```python
import torch

def _softmax(x, axis=-1):
    return torch.softmax(x, dim=axis)
def _gelu(x):
    return torch.nn.functional.gelu(x, approximate="tanh")
def _silu(x):
    return torch.nn.functional.silu(x)
def _sigmoid(x):
    return torch.sigmoid(x)
def _layernorm(x, axis=-1, eps=1e-5):
    m = x.mean(dim=axis, keepdim=True)
    v = x.var(dim=axis, keepdim=True, unbiased=False)
    return (x - m) / torch.sqrt(v + eps)
def _scatter_add(tgt, idx, src, axis=0):
    return tgt.clone().index_add_(axis, idx, src)
def _segment_sum(src, seg, n):
    out = torch.zeros((n,) + src.shape[1:], dtype=src.dtype)
    return out.index_add_(0, seg, src)
def _pad(x, pw):
    flat = tuple(v for pair in reversed(pw) for v in pair)
    return torch.nn.functional.pad(x, flat)

kernel_name = 'concat_heads__mha_block__softmax_full_mha__prompt'

def setup_inputs():

    _w = (lambda a: (lambda t: t.to(torch.bfloat16) if t.is_floating_point() else t)(torch.as_tensor(a)))
    def _A_setup():
        B, S, D, H = 1, 2048, 1024, 32
        return {
            "x": _w((lambda *s: torch.randn(*s, dtype=torch.bfloat16) * 0.2)(B, S, D)),
            "wqkv": _w((lambda *s: torch.randn(*s, dtype=torch.bfloat16) * 0.2)(D, 3 * D)),
            "wo": _w((lambda *s: torch.randn(*s, dtype=torch.bfloat16) * 0.05)(D, D)),
        }
    _A_in = _A_setup()

    def _B_setup():
        B, S, D = 1, 2048, 1024
        return {
            "x": _w((lambda *s: torch.randn(*s, dtype=torch.bfloat16) * 0.2)(B, S, D)),
            "wqkv": _w((lambda *s: torch.randn(*s, dtype=torch.bfloat16) * 0.2)(D, 3 * D)),
            "wo": _w((lambda *s: torch.randn(*s, dtype=torch.bfloat16) * 0.05)(D, D)),
        }
    _B_in = _B_setup()

    return {
        "A_x": _A_in["x"],
        "A_wqkv": _A_in["wqkv"],
        "A_wo": _A_in["wo"],
        "B_x": _B_in["x"],
        "B_wqkv": _B_in["wqkv"],
        "B_wo": _B_in["wo"],
    }

def reference(A_x, A_wqkv, A_wo, B_x, B_wqkv, B_wo):
    def _A_ref(x, wqkv, wo):
        B, S, D = x.shape
        H = 32
        Dh = D // H
        qkv = (lambda x, *d: x.permute(*d))((x @ wqkv).reshape(B, S, 3, H, Dh), 2, 0, 3, 1, 4)
        q, k, v = qkv[0], qkv[1], qkv[2]
        scores = torch.einsum("bhqd,bhkd->bhqk", q, k) * (Dh ** -0.5)
        p = _softmax(scores, axis=-1)
        o = torch.einsum("bhqk,bhkd->bhqd", p, v)
        return (lambda x, *d: x.permute(*d))(o, 0, 2, 1, 3).reshape(B, S, D) @ wo

    def _B_ref(x, wqkv, wo):
        B, S, D = x.shape
        H = 32; Dh = D // H
        qkv = (lambda x, *d: x.permute(*d))((x @ wqkv).reshape(B, S, 3, H, Dh), 2, 0, 3, 1, 4)
        q, k, v = qkv[0], qkv[1], qkv[2]
        scale = Dh ** -0.5
        scores = torch.einsum("bhqd,bhkd->bhqk", q, k) * scale
        p = _softmax(scores, axis=-1)
        o = torch.einsum("bhqk,bhkd->bhqd", p, v)
        return (lambda x, *d: x.permute(*d))(o, 0, 2, 1, 3).reshape(B, S, D) @ wo

    a = _A_ref(A_x, A_wqkv, A_wo)
    b = _B_ref(B_x, B_wqkv, B_wo)
    return torch.concatenate([a, b], axis=-1)
```

```python
class Asm:
    def __init__(self):
        self.lines = []
        self.nlabel = 0
    def __call__(self, s):
        for l in s.split("\n"):
            l = l.strip()
            if l:
                self.lines.append(("" if l.endswith(":") else "    ") + l)
    def label(self, n):
        self.lines.append(n + ":")
    def newlabel(self, p="L"):
        self.nlabel += 1
        return f"{p}_{self.nlabel}"
    def text(self):
        return "\n".join(self.lines) + "\n"

def v(b, n=1):
    return f"v{b}" if n == 1 else f"v[{b}:{b+n-1}]"
def s(b, n=1):
    return f"s{b}" if n == 1 else f"s[{b}:{b+n-1}]"

class VmTrack:
    def __init__(self):
        self.ops = []
    def issue(self, tag):
        self.ops.append(tag)
    def wait_count(self, tags):
        last = -1
        for i, t in enumerate(self.ops):
            if t in tags:
                last = i
        n = len(self.ops) - 1 - last
        return n

def kernel_header(name):
    return f""".globl {name}
.p2align 8
.type {name},@function
{name}:
"""

def kernel_desc(name, vgpr, sgpr=96, accum=None):
    if accum is None:
        accum = (vgpr + 3) // 4 * 4
    return f""".p2align 6
.amdhsa_kernel {name}
  .amdhsa_next_free_vgpr {vgpr}
  .amdhsa_next_free_sgpr {sgpr}
  .amdhsa_accum_offset {accum}
  .amdhsa_group_segment_fixed_size 0
  .amdhsa_kernarg_size 72
  .amdhsa_user_sgpr_count 2
  .amdhsa_user_sgpr_kernarg_segment_ptr 1
  .amdhsa_system_sgpr_workgroup_id_x 1
  .amdhsa_float_denorm_mode_32 3
.end_amdhsa_kernel
"""
```

```python
import sys
from dsl import *

KV_OFF = 0
Q_OFF = 16 << 20
O_OFF = 24 << 20
QSCALE = 0x3e8293ee
import struct, math
QSCALE = struct.unpack("<I", struct.pack("<f", math.log2(math.e) / math.sqrt(32.0)))[0]

S_W, S_B, S_TM, S_HP = 16, 17, 18, 19
S_T0, S_T1, S_T2, S_T3 = 26, 27, 28, 29
PTR = 32

def prologue_decode(a, end):
    a(f"""
    s_cmp_ge_u32 s2, 256
    s_cbranch_scc1 {end}
    s_load_dwordx16 s[32:47], s[0:1], 0
    s_load_dwordx2 s[48:49], s[0:1], 64
    v_lshrrev_b32 v1, 6, v0
    s_and_b32 s26, s2, 7
    s_lshr_b32 s27, s2, 3
    v_readfirstlane_b32 s{S_W}, v1
    s_lshr_b32 s{S_B}, s26, 2
    s_and_b32 s28, s26, 1
    s_lshl_b32 s28, s28, 2
    s_and_b32 s29, s27, 3
    s_add_u32 s{S_TM}, s28, s29
    s_bfe_u32 s28, s26, 0x10001
    s_lshl_b32 s28, s28, 3
    s_lshr_b32 s29, s27, 2
    s_add_u32 s{S_HP}, s28, s29
    v_and_b32 v1, 63, v0
    """)

def make_srd(a, d, lo, hi, off_sgpr, nrec):
    if off_sgpr is None:
        a(f"s_mov_b32 s{d}, s{lo}\ns_and_b32 s{d+1}, s{hi}, 0xffff")
    else:
        a(f"s_add_u32 s{d}, s{lo}, s{off_sgpr}\ns_addc_u32 s{d+1}, s{hi}, 0\ns_and_b32 s{d+1}, s{d+1}, 0xffff")
    a(f"s_mov_b32 s{d+2}, {nrec}\ns_mov_b32 s{d+3}, 0x00020000")

ACC = 8
def acc(tt, f): return ACC + (tt * 6 + f) * 4
XF = [[104 + 4*i for i in range(4)], [144 + 4*i for i in range(4)]]
WF = [[120 + 4*i for i in range(6)], [160 + 4*i for i in range(6)]]
V_XR = [184, 185]; V_WR = [186, 187]; V_XD = [188, 189, 190, 191]; V_WD = [192, 193]
LDS_W = 98304
S_SOX, S_SOW, S_XB, S_WB = 20, 21, 22, 23
S_EXW = 24

def gemm1_setup(a):
    a(f"""
    s_waitcnt lgkmcnt(0)
    s_cmp_eq_u32 s{S_B}, 0
    s_cselect_b32 s26, s32, s38
    s_cselect_b32 s27, s33, s39
    s_cselect_b32 s28, s34, s40
    s_cselect_b32 s29, s35, s41
    s_lshl_b32 s30, s{S_TM}, 19
    """)
    make_srd(a, 4, 26, 27, 30, 524288)
    a(f"s_lshl_b32 s30, s{S_HP}, 7\ns_sub_u32 s31, {1024*6144}, s30")
    make_srd(a, 8, 28, 29, 30, "s31")
    a(f"""
    s_lshr_b32 s26, s{S_W}, 1
    s_mul_i32 s26, s26, 24576
    s_and_b32 s27, s{S_W}, 1
    s_lshl_b32 s27, s27, 12
    s_add_u32 s{S_XB}, s26, s27
    s_mul_i32 s26, s{S_W}, 1536
    s_add_u32 s{S_WB}, s26, {LDS_W}
    s_mov_b32 s{S_EXW}, -1
    s_mov_b32 s{S_EXW+1}, 0xffff
    s_mov_b32 s{S_SOX}, 0
    s_mov_b32 s{S_SOW}, 0
    v_lshrrev_b32 v2, 3, v1
    s_lshl_b32 s26, s{S_W}, 5
    v_add_u32 v2, s26, v2
    v_and_b32 v3, 7, v1
    v_lshrrev_b32 v4, 4, v1
    v_xor_b32 v5, v3, v4
    v_lshlrev_b32 v5, 4, v5
    v_lshl_add_u32 v{V_XD[0]}, v2, 11, v5
    v_xor_b32 v5, 64, v5
    v_lshl_add_u32 v{V_XD[1]}, v2, 11, v5
    v_add_u32 v{V_XD[1]}, {8*2048}, v{V_XD[1]}
    v_add_u32 v{V_XD[2]}, {16*2048}, v{V_XD[0]}
    v_add_u32 v{V_XD[3]}, {16*2048}, v{V_XD[1]}
    """)
    for q in range(2):
        a(f"""
        s_mul_i32 s26, s{S_W}, 12
        s_add_u32 s26, s26, {6*q}
        v_lshrrev_b32 v2, 3, v1
        v_add_u32 v2, s26, v2            ; R
        v_lshrrev_b32 v4, 5, v2          ; sec
        v_and_b32 v2, 31, v2             ; k
        v_bfe_u32 v5, v2, 1, 1
        v_bfe_u32 v6, v2, 3, 1
        v_lshl_or_b32 v5, v6, 1, v5      ; swz
        v_lshlrev_b32 v5, 1, v5
        v_xor_b32 v5, v3, v5             ; chunk
        v_lshlrev_b32 v5, 4, v5
        v_lshl_add_u32 v5, v4, 11, v5    ; + sec*2048
        v_mul_u32_u24 v2, 6144, v2
        v_add_u32 v{V_WD[q]}, v2, v5
        """)
    a(f"""
    s_and_b32 s26, s{S_W}, 3
    s_mul_i32 s26, s26, 24576
    v_and_b32 v2, 15, v1             ; c
    v_lshrrev_b32 v4, 4, v1          ; G
    v_lshrrev_b32 v5, 1, v2          ; c>>1
    v_xor_b32 v5, v4, v5
    v_lshlrev_b32 v5, 4, v5
    v_lshl_add_u32 v5, v2, 7, v5
    v_add_u32 v{V_XR[0]}, s26, v5
    v_xor_b32 v{V_XR[1]}, 64, v{V_XR[0]}
    v_bfe_u32 v2, v1, 2, 2           ; r
    v_and_b32 v3, 3, v1              ; c4
    v_lshl_add_u32 v5, v4, 3, v2     ; k = 8G + r
    v_lshrrev_b32 v6, 1, v2          ; r>>1
    v_and_b32 v7, 1, v4
    v_lshl_or_b32 v6, v7, 1, v6      ; swz
    s_lshr_b32 s26, s{S_W}, 2
    s_lshl_b32 s26, s26, 1           ; 2*hh
    v_xor_b32 v6, s26, v6
    v_lshlrev_b32 v6, 5, v6
    v_lshl_add_u32 v6, v3, 3, v6
    v_lshl_add_u32 v6, v5, 7, v6
    v_add_u32 v{V_WR[0]}, {LDS_W}, v6
    v_xor_b32 v{V_WR[1]}, 32, v{V_WR[0]}
    """)

def dma_x(stage, q):
    slot = stage % 3
    return [f"s_add_u32 m0, s{S_XB}, {slot*8192 + q*1024}",
            f"buffer_load_dwordx4 v{V_XD[q]}, s[4:7], s{S_SOX} offen lds"]
def dma_w(step, q):
    slot = step % 5
    return [f"s_add_u32 m0, s{S_WB}, {slot*12288 + q*768}",
            f"buffer_load_dwordx4 v{V_WD[q]}, s[8:11], s{S_SOW} offen lds"]

def frag_reads(step):
    p = step & 1; xs = (step >> 1) % 3; ws = step % 5
    X = [f"ds_read_b128 {v(XF[p][tt],4)}, v{V_XR[p]} offset:{xs*8192 + tt*2048}" for tt in range(4)]
    W = []
    for f in range(6):
        sec, ft = f >> 1, f & 1
        W.append([f"ds_read_b64_tr_b16 {v(WF[p][f]+2*h,2)}, v{V_WR[ft]} offset:{ws*12288 + sec*4096 + h*512}" for h in range(2)])
    return [X[0]] + W[0] + W[1] + W[2] + [X[1]] + W[3] + W[4] + W[5] + [X[2], X[3]]

def gemm1_mfmas(step):
    p = step & 1
    out = []
    for tt in range(4):
        fs = range(6) if tt % 2 == 0 else range(5, -1, -1)
        for f in fs:
            d = acc(tt, f)
            A, B = (WF[p][f], XF[p][tt]) if f < 4 else (XF[p][tt], WF[p][f])
            c = "0" if step == 0 else v(d, 4)
            out.append(f"v_mfma_f32_16x16x32_bf16 {v(d,4)}, {v(A,4)}, {v(B,4)}, {c}")
    return out

def gemm1_main(a, vm):
    def emit_group(ins):
        for i in ins: a(i)
    def X(stage, qs):
        for q in qs:
            m, l = dma_x(stage, q); a(m); a("s_nop 0"); a(l); vm.issue(("X", stage))
    def W(step):
        a(f"s_mov_b64 exec, s[{S_EXW}:{S_EXW+1}]")
        for q in range(2):
            m, l = dma_w(step, q); a(m); a("s_nop 0"); a(l); vm.issue(("W", step))
        a("s_mov_b64 exec, -1")
        a(f"s_add_u32 s{S_SOW}, s{S_SOW}, {32*6144}")
    def Xadv(): a(f"s_add_u32 s{S_SOX}, s{S_SOX}, 128")
    X(0, range(4)); Xadv(); W(0); W(1); X(1, range(4)); Xadv(); W(2); W(3); X(2, range(4)); Xadv(); W(4)
    a(f"s_waitcnt vmcnt({vm.wait_count({('X',0),('W',0)})})")
    a("s_barrier")
    for l in frag_reads(0): a(l)
    for st in range(32):
        need = set()
        if st + 1 < 32: need = {("W", st + 1), ("X", (st + 1) >> 1)}
        if need:
            a(f"s_waitcnt vmcnt({vm.wait_count(need)}) lgkmcnt(0)")
            a("s_barrier")
        else:
            a("s_waitcnt lgkmcnt(0)")
        M = gemm1_mfmas(st)
        side = []
        R = frag_reads(st + 1) if st + 1 < 32 else []
        D = []
        if st + 5 < 32:
            m0, l0 = dma_w(st + 5, 0); m1, l1 = dma_w(st + 5, 1)
            D += [[f"s_mov_b64 exec, s[{S_EXW}:{S_EXW+1}]", m0, "s_nop 0", l0, m1, "s_nop 0", l1, "s_mov_b64 exec, -1", f"s_add_u32 s{S_SOW}, s{S_SOW}, {32*6144}"]]
            tagsW = [("W", st + 5)] * 2
        else: tagsW = []
        xs = None
        if st >= 1:
            S = (st - 1) >> 1
            if S + 3 < 16:
                qs = (0, 1) if st % 2 == 1 else (2, 3)
                xs = (S + 3, qs)
        tagsX = []
        if xs:
            for q in xs[1]:
                m, l = dma_x(xs[0], q)
                D.append([m, "s_nop 0", l]); tagsX.append(("X", xs[0]))
            if st % 2 == 0: D[-1].append(f"s_add_u32 s{S_SOX}, s{S_SOX}, 128")
        for t in tagsW + tagsX: vm.issue(t)
        gaps = [[] for _ in range(24)]
        for i, r in enumerate(R): gaps[i].append(r)
        for i, d in enumerate(D): gaps[17 + 2*i] += d
        for i, m in enumerate(M):
            a(m)
            for x in gaps[i]: a(x)

def gemm1_epilogue(a):
    a(f"""
    s_lshl_b32 s26, s{S_B}, 5
    s_lshl_b32 s27, s{S_HP}, 1
    s_add_u32 s26, s26, s27
    s_lshr_b32 s27, s{S_W}, 2
    s_add_u32 s26, s26, s27
    s_lshl_b32 s27, s{S_TM}, 3
    s_and_b32 s28, s{S_W}, 3
    s_lshl_b32 s28, s28, 1
    s_add_u32 s27, s27, s28
    s_lshl_b32 s28, s26, 18
    s_lshl_b32 s29, s27, 12
    s_add_u32 s30, s28, s29
    """)
    make_srd(a, 12, 48, 49, 30, 8192)
    a(f"""
    s_lshl_b32 s28, s26, 17
    s_lshl_b32 s29, s27, 11
    s_add_u32 s30, s28, s29
    s_add_u32 s30, s30, {Q_OFF}
    """)
    make_srd(a, 4, 48, 49, 30, 4096)
    a(f"""
    v_and_b32 v2, 15, v1             ; c
    v_lshrrev_b32 v4, 4, v1          ; G
    v_lshlrev_b32 v4, 9, v4          ; (G>>1)*1024 + (G&1)*512
    v_lshl_add_u32 v5, v2, 4, v4
    v_lshrrev_b32 v3, 2, v2
    v_and_b32 v2, 3, v2
    v_lshl_add_u32 v2, v3, 3, v2
    v_lshl_add_u32 v6, v2, 4, v4     ; voffK
    s_mov_b32 s26, {QSCALE}
    s_mov_b32 s27, 4096
    s_mov_b32 s28, 2048
    """)
    T0 = 104
    u = 0
    def unit(regs):
        nonlocal u
        d = T0 + 4 * (u % 16); u += 1
        for i in range(4):
            a(f"v_cvt_pk_bf16_f32 v{d+i}, v{regs[2*i]}, v{regs[2*i+1]}")
        return d
    for T in range(2):
        so = "0" if T == 0 else "s27"
        for h in range(2):
            tt = 2*T + h
            d = unit([acc(tt,2)+i for i in range(4)] + [acc(tt,3)+i for i in range(4)])
            a(f"buffer_store_dwordx4 {v(d,4)}, v6, s[12:15], {so} offen offset:{h*64}")
        for ft in range(2):
            d = unit([acc(2*T,4+ft)+i for i in range(4)] + [acc(2*T+1,4+ft)+i for i in range(4)])
            a(f"buffer_store_dwordx4 {v(d,4)}, v5, s[12:15], {so} offen offset:{2048+ft*256}")
    for T in range(2):
        so = "0" if T == 0 else "s28"
        for h in range(2):
            tt = 2*T + h
            regs = [acc(tt,0)+i for i in range(4)] + [acc(tt,1)+i for i in range(4)]
            for r in regs: a(f"v_mul_f32 v{r}, s26, v{r}")
            d = unit(regs)
            a(f"buffer_store_dwordx4 {v(d,4)}, v5, s[4:7], {so} offen offset:{h*256}")

def kernel_qkv():
    a = Asm(); vm = VmTrack()
    prologue_decode(a, "Lqkv_end")
    gemm1_setup(a)
    gemm1_main(a, vm)
    a("s_nop 7")
    gemm1_epilogue(a)
    a.label("Lqkv_end")
    a("s_endpgm")
    return a.text()

AQ = {('a',0):8, ('a',1):12, ('b',0):16, ('b',1):20}
AC = {'a':24, 'b':40}
AO = {'a':56, 'b':72}
AL = {'a':88, 'b':92}
AS = [96, 112, 128, 144]
AK = [[160,164],[168,172]]
AV = [[176,180],[184,188]]
ASEL = 192; AIDX = 196; AADDR = 197; AVO = 198
S_CH, S_M0, S_CNT = 20, 21, 22
def qk1(Y,kb,q,c=None): return f"v_mfma_f32_32x32x16_bf16 {v(Y,16)}, {v(AK[kb][0],4)}, {v(AQ[(q,0)],4)}, {v(AC[q],16) if c is None else c}"
def qk2(Y,kb,q): return f"v_mfma_f32_32x32x16_bf16 {v(Y,16)}, {v(AK[kb][1],4)}, {v(AQ[(q,1)],4)}, {v(Y,16)}"
def pv(Z,h,vb,q): return f"v_smfmac_f32_32x32x32_bf16 {v(AO[q],16)}, {v(AV[vb][h],4)}, {v(Z+8*h,8)}, v{AIDX}"
def sm(Z,h,q): return f"v_smfmac_f32_16x16x64_bf16 {v(AL[q],4)}, {v(ASEL,4)}, {v(Z+8*h,8)}, v{AIDX}"

def attn_half(a, t, q, extra=None):
    hs = (2*t + (q == 'b')) % 4
    oq = 'b' if q == 'a' else 'a'
    X = AS[hs]; Y = AS[(hs+1) % 4]; Z = AS[(hs-1) % 4]
    kb = t % 2 if q == 'a' else (t+1) % 2
    vb = (t-1) % 2 if q == 'a' else t % 2
    nt = (t + 1) % 4
    M = {'Q1': qk1(Y,kb,oq), 'Q2': qk2(Y,kb,oq), 'P1': pv(Z,0,vb,oq), 'S1': sm(Z,0,oq), 'P2': pv(Z,1,vb,oq), 'S2': sm(Z,1,oq)}
    pat = "Q1 W0 3 S1 L0 2 Q2 3 P1 3 S2 L1 2 P2 W1 3"
    e = 0
    for tok in pat.split():
        if tok in M: a(M[tok])
        elif tok in ('L0', 'L1'):
            j = int(tok[1])
            if q == 'a': a(f"ds_read_b128 {v(AK[(t+1)%2][j],4)}, v{AADDR} offset:{nt*4096 + 1024*j}")
            else: a(f"ds_read_b128 {v(AV[(t+1)%2][j],4)}, v{AADDR} offset:{nt*4096 + 2048 + 1024*j}")
        elif tok == 'W0':
            if q == 'b': a("s_waitcnt lgkmcnt(0)")
        elif tok == 'W1':
            if q == 'a': a("s_waitcnt lgkmcnt(1)")
        else:
            for _ in range(int(tok)):
                a(f"v_exp_f32 v{X+e}, v{X+e}"); e += 1
        if extra and tok in extra:
            for x in extra[tok]: a(x)
    assert e == 16

def attn_dma():
    return [f"buffer_load_dwordx4 v{AVO}, s[4:7], s{S_CH} offen offset:{1024*i} lds" for i in range(4)]

def rowmax16(a, S, m, t):
    a(f"v_max3_f32 v{m}, v{S}, v{S+1}, v{S+2}")
    for i in range(3, 15, 2): a(f"v_max3_f32 v{m}, v{m}, v{S+i}, v{S+i+1}")
    a(f"v_max_f32 v{m}, v{m}, v{S+15}")
    a(f"v_mov_b32 v{t}, v{m}\ns_nop 1\nv_permlane32_swap_b32 v{m}, v{t}\ns_nop 0\nv_max_f32 v{m}, v{m}, v{t}")

def kernel_attn():
    a = Asm()
    prologue_decode(a, "Lattn_end")
    a(f"""
    s_waitcnt lgkmcnt(0)
    s_lshl_b32 s26, s{S_B}, 5
    s_lshl_b32 s27, s{S_HP}, 1
    s_add_u32 s26, s26, s27
    s_lshr_b32 s27, s{S_W}, 2
    s_add_u32 s26, s26, s27          ; bh
    s_and_b32 s28, s{S_W}, 3
    s_lshl_b32 s29, s28, 12
    s_lshl_b32 s30, s26, 18
    s_add_u32 s30, s30, s29
    s_sub_u32 s31, 262144, s29
    """)
    make_srd(a, 4, 48, 49, 30, "s31")
    a(f"""
    s_lshl_b32 s27, s{S_TM}, 3
    s_lshl_b32 s28, s28, 1
    s_add_u32 s27, s27, s28          ; qt0
    s_lshl_b32 s28, s26, 17
    s_lshl_b32 s29, s27, 11
    s_add_u32 s30, s28, s29
    s_add_u32 s30, s30, {Q_OFF}
    """)
    make_srd(a, 8, 48, 49, 30, 4096)
    a(f"""
    s_lshl_b32 s28, s{S_B}, 22
    s_lshl_b32 s29, s27, 16
    s_add_u32 s30, s28, s29
    s_and_b32 s28, s26, 31
    s_lshl_b32 s28, s28, 10
    s_add_u32 s30, s30, s28
    s_add_u32 s30, s30, {O_OFF}
    """)
    make_srd(a, 12, 48, 49, 30, 131072)
    a(f"s_lshl_b32 s30, s26, 18")
    make_srd(a, 52, 48, 49, 30, 262144)
    a(f"""
    v_lshlrev_b32 v{AVO}, 4, v1
    s_lshl_b32 s{S_M0}, s{S_W}, 12
    s_mov_b32 m0, s{S_M0}
    s_mov_b32 s{S_CH}, 0
    """)
    for i, k in enumerate([('a',0),('a',1),('b',0),('b',1)]):
        a(f"buffer_load_dwordx4 {v(AQ[k],4)}, v{AVO}, s[8:11], 0 offen offset:{1024*i}")
    for l in attn_dma(): a(l)
    a(f"s_xor_b32 s{S_M0}, s{S_M0}, 32768\ns_mov_b32 m0, s{S_M0}\ns_mov_b32 s{S_CH}, 16384")
    for l in attn_dma(): a(l)
    a(f"""
    s_lshr_b32 s26, s{S_W}, 2
    s_lshl_b32 s26, s26, 14
    v_add_u32 v{AADDR}, s26, v{AVO}
    v_mov_b32 v{AIDX}, 0xdddddddd
    v_bfe_u32 v2, v1, 2, 1
    v_mov_b32 v3, 0x3f803f80
    v_cmp_eq_u32 vcc, 0, v2
    s_nop 1
    v_cndmask_b32 v{ASEL}, 0, v3, vcc
    v_cndmask_b32 v{ASEL+1}, 0, v3, vcc
    v_cndmask_b32 v{ASEL+2}, v3, 0, vcc
    v_cndmask_b32 v{ASEL+3}, v3, 0, vcc
    """.replace("v_cndmask_b32 v194, v3, 0, vcc", "v_xor_b32 v194, v3, v192").replace("v_cndmask_b32 v195, v3, 0, vcc", "v_xor_b32 v195, v3, v192"))
    for r in list(range(AO['a'], AO['a']+40)) + list(range(AS[3], AS[3]+16)) + list(range(AV[1][0], AV[1][0]+8)):
        a(f"v_mov_b32 v{r}, 0")
    a("s_waitcnt vmcnt(4)\ns_barrier")
    for j in range(2): a(f"ds_read_b128 {v(AK[0][j],4)}, v{AADDR} offset:{1024*j}")
    for j in range(2): a(f"ds_read_b128 {v(AV[0][j],4)}, v{AADDR} offset:{2048+1024*j}")
    a("s_waitcnt lgkmcnt(2)")
    a(qk1(AS[0],0,'a',"0")); a(qk2(AS[0],0,'a')); a(qk1(AS[1],0,'b',"0")); a(qk2(AS[1],0,'b'))
    a("s_nop 10")
    rowmax16(a, AS[0], 2, 3)
    rowmax16(a, AS[1], 4, 5)
    for i in range(16): a(f"v_sub_f32 v{AC['a']+i}, 0, v2")
    for i in range(16): a(f"v_sub_f32 v{AC['b']+i}, 0, v4")
    a(qk1(AS[0],0,'a')); a(qk2(AS[0],0,'a'))
    a(f"s_mov_b32 s{S_CNT}, 16\ns_nop 10")
    a(".p2align 6")
    a.label("Lattn_loop")
    for t in range(4):
        if t == 3:
            a(f"s_waitcnt vmcnt(0) lgkmcnt(0)\ns_barrier")
            dm = attn_dma()
            ex = {'Q1': [f"s_xor_b32 s{S_M0}, s{S_M0}, 32768", f"v_xor_b32 v{AADDR}, 32768, v{AADDR}"],
                  'Q2': [f"s_mov_b32 m0, s{S_M0}", f"s_add_u32 s{S_CH}, s{S_CH}, 16384"],
                  'P1': [dm[0]], 'P2': [dm[1]]}
            attn_half(a, t, 'a', ex)
            attn_half(a, t, 'b', {'Q2': [dm[2]], 'P1': [dm[3]], 'P2': [f"s_sub_u32 s{S_CNT}, s{S_CNT}, 1", f"s_cmp_lg_u32 s{S_CNT}, 0"]})
        else:
            attn_half(a, t, 'a'); attn_half(a, t, 'b')
    a("s_cbranch_scc1 Lattn_loop")
    a("s_nop 1")
    a(pv(AS[3],0,1,'b')); a(sm(AS[3],0,'b')); a(pv(AS[3],1,1,'b')); a(sm(AS[3],1,'b'))
    a(f"""
    s_mov_b32 s26, 0x4e800000        ; 2^30
    s_nop 8
    v_cmp_nge_f32 vcc, s26, v{AL['a']}
    v_cmp_nge_f32 s[28:29], s26, v{AL['b']}
    s_or_b64 vcc, vcc, s[28:29]
    s_cbranch_vccnz Lattn_fallback
    Lattn_fin:
    v_rcp_f32 v2, v{AL['a']}
    v_rcp_f32 v3, v{AL['b']}
    v_and_b32 v4, 15, v1
    v_lshlrev_b32 v4, 4, v4
    v_bfe_u32 v5, v1, 4, 1
    v_lshl_add_u32 v4, v5, 15, v4
    v_lshrrev_b32 v5, 5, v1
    v_lshl_add_u32 v4, v5, 8, v4
    s_mov_b32 s27, 65536
    """)
    for qi, q in enumerate('ab'):
        for u in range(2):
            for i in range(8): a(f"v_mul_f32 v{AO[q]+8*u+i}, v{2+qi}, v{AO[q]+8*u+i}")
            d = AS[0] + 4*(2*qi+u)
            for i in range(4): a(f"v_cvt_pk_bf16_f32 v{d+i}, v{AO[q]+8*u+2*i}, v{AO[q]+8*u+2*i+1}")
            a(f"buffer_store_dwordx4 {v(d,4)}, v4, s[12:15], {'0' if qi==0 else 's27'} offen offset:{512*u}")
    a.label("Lattn_end")
    a("s_endpgm")
    a.label("Lattn_fallback")
    a("s_waitcnt vmcnt(0)")
    for r in range(AO['a'], AO['a']+40): a(f"v_mov_b32 v{r}, 0")
    Mr = {'a': AC['a'], 'b': AC['b']}
    a(f"v_mov_b32 v{Mr['a']}, 0xff800000\nv_mov_b32 v{Mr['b']}, 0xff800000\ns_mov_b32 s26, 0")
    a.label("Lfb_loop")
    for j in range(2): a(f"buffer_load_dwordx4 {v(AK[0][j],4)}, v{AVO}, s[52:55], s26 offen offset:{1024*j}")
    for j in range(2): a(f"buffer_load_dwordx4 {v(AV[0][j],4)}, v{AVO}, s[52:55], s26 offen offset:{2048+1024*j}")
    a("s_waitcnt vmcnt(0)")
    for q in 'ab':
        S = AS[0]
        a(qk1(S,0,q,"0")); a(qk2(S,0,q)); a("s_nop 15")
        rowmax16(a, S, 2, 3)
        a(f"""
        v_max_f32 v2, v2, v{Mr[q]}
        v_sub_f32 v3, v{Mr[q]}, v2
        v_exp_f32 v3, v3
        v_mov_b32 v{Mr[q]}, v2
        """)
        for i in range(16): a(f"v_sub_f32 v{S+i}, v{S+i}, v2")
        for i in range(16): a(f"v_exp_f32 v{S+i}, v{S+i}")
        for i in range(16): a(f"v_mul_f32 v{AO[q]+i}, v3, v{AO[q]+i}")
        for i in range(4): a(f"v_mul_f32 v{AL[q]+i}, v3, v{AL[q]+i}")
        a("s_nop 1")
        a(pv(S,0,0,q)); a(sm(S,0,q)); a(pv(S,1,0,q)); a(sm(S,1,q))
        a("s_nop 15")
    a(f"""
    s_add_u32 s26, s26, 4096
    s_cmp_lt_u32 s26, 262144
    s_cbranch_scc1 Lfb_loop
    s_branch Lattn_fin
    """)
    return a.text()

PACC = 8
POF = 40
PWF = [104, 120]
P_WR = [136, 137, 138, 139]; P_OV = [140, 141]; P_WD = 142
def kernel_proj():
    a = Asm(); vm = VmTrack()
    prologue_decode(a, "Lproj_end")
    a(f"""
    s_waitcnt lgkmcnt(0)
    s_cmp_eq_u32 s{S_B}, 0
    s_cselect_b32 s26, s36, s42
    s_cselect_b32 s27, s37, s43
    s_lshl_b32 s30, s{S_HP}, 7
    s_sub_u32 s31, {1024*2048}, s30
    """)
    make_srd(a, 4, 26, 27, 30, "s31")
    a(f"""
    s_lshl_b32 s28, s{S_B}, 22
    s_lshl_b32 s29, s{S_TM}, 19
    s_add_u32 s30, s28, s29
    s_lshl_b32 s29, s{S_W}, 16
    s_add_u32 s30, s30, s29
    s_add_u32 s30, s30, {O_OFF}
    """)
    make_srd(a, 8, 48, 49, 30, 65536)
    a(f"""
    s_lshl_b32 s28, s{S_TM}, 20
    s_lshl_b32 s29, s{S_W}, 17
    s_add_u32 s30, s28, s29
    s_lshl_b32 s29, s{S_B}, 11
    s_add_u32 s30, s30, s29
    s_lshl_b32 s29, s{S_HP}, 7
    s_add_u32 s30, s30, s29
    s_sub_u32 s31, {2048*4096}, s30
    """)
    make_srd(a, 12, 44, 45, 30, "s31")
    a(f"""
    v_lshlrev_b32 v{P_OV[0]}, 4, v1
    v_add_u32 v{P_OV[1]}, 32768, v{P_OV[0]}
    v_lshrrev_b32 v2, 3, v1
    v_and_b32 v3, 7, v1
    v_lshrrev_b32 v4, 4, v1
    v_lshlrev_b32 v5, 1, v4
    v_xor_b32 v5, v3, v5
    v_lshlrev_b32 v5, 4, v5
    v_lshl_add_u32 v{P_WD}, v2, 11, v5
    s_lshl_b32 s20, s{S_W}, 14
    s_lshl_b32 s21, s{S_W}, 10        ; m0 base
    s_mov_b32 s22, 0                  ; O soffset
    """)
    def oload(hd):
        if hd % 4 == 0 and hd > 0: a("s_add_u32 s22, s22, 4096")
        for tt in range(2):
            a(f"buffer_load_dwordx4 {v(POF + ((hd%8)*2+tt)*4,4)}, v{P_OV[tt]}, s[8:11], s22 offen offset:{(hd%4)*1024}")
            vm.issue(("O", hd))
    def wdma(i):
        a(f"s_add_u32 m0, s21, {i*8192}\ns_nop 0\nbuffer_load_dwordx4 v{P_WD}, s[4:7], s20 offen lds\ns_add_u32 s20, s20, {64*2048}")
        vm.issue(("W", i))
    for i in range(4): wdma(i)
    for hd in range(4): oload(hd)
    for i in range(4, 16): wdma(i)
    for hd in range(4, 8): oload(hd)
    a(f"""
    v_bfe_u32 v2, v1, 2, 2           ; r
    v_and_b32 v3, 3, v1              ; c4
    v_and_b32 v5, 1, v4              ; h
    v_lshrrev_b32 v6, 1, v4          ; u
    v_lshl_add_u32 v7, v5, 2, v2     ; 4h + r
    v_lshl_add_u32 v6, v6, 4, v7     ; k = 16u + 4h + r
    v_lshrrev_b32 v7, 1, v7          ; swz2
    v_lshlrev_b32 v7, 5, v7
    v_lshl_add_u32 v7, v3, 3, v7
    v_lshl_add_u32 v{P_WR[0]}, v6, 7, v7
    v_xor_b32 v{P_WR[1]}, 32, v{P_WR[0]}
    v_xor_b32 v{P_WR[2]}, 64, v{P_WR[0]}
    v_xor_b32 v{P_WR[3]}, 96, v{P_WR[0]}
    """)
    def wreads(hd):
        return [f"ds_read_b64_tr_b16 {v(PWF[hd&1]+4*ct+2*h,2)}, v{P_WR[ct]} offset:{(hd%16)*4096 + h*1024}" for ct in range(4) for h in range(2)]
    def wbar(hd):
        a(f"s_waitcnt vmcnt({vm.wait_count({('W', i) for i in range(hd//2, hd//2+4)})})\ns_barrier")
    wbar(0)
    for l in wreads(0): a(l)
    for hd in range(32):
        if hd + 1 < 32 and (hd + 1) % 8 == 0: wbar(hd + 1)
        if hd + 1 == 16:
            for ct in range(4): a(f"v_add_u32 v{P_WR[ct]}, 65536, v{P_WR[ct]}")
        a(f"s_waitcnt vmcnt({vm.wait_count({('O', hd)})}) lgkmcnt(0)")
        R = wreads(hd + 1) if hd + 1 < 32 else []
        n = 0
        for tt in range(2):
            for ct in (range(4) if tt == 0 else range(3, -1, -1)):
                d = PACC + (tt*4+ct)*4
                a(f"v_mfma_f32_16x16x32_bf16 {v(d,4)}, {v(PWF[hd&1]+4*ct,4)}, {v(POF+((hd%8)*2+tt)*4,4)}, {'0' if hd==0 else v(d,4)}")
                if n < len(R): a(R[n])
                n += 1
        if hd + 8 < 32: oload(hd + 8)
    a(f"""
    v_and_b32 v2, 15, v1
    v_lshlrev_b32 v2, 12, v2
    v_and_b32 v3, 1, v4
    v_lshl_add_u32 v2, v3, 5, v2
    v_lshrrev_b32 v3, 1, v4
    v_lshl_add_u32 v2, v3, 4, v2
    s_mov_b32 s26, 65536
    s_nop 3
    """)
    for tt in range(2):
        for pr in range(2):
            d = POF + (tt*2+pr)*4
            for x in range(2):
                s0 = PACC + (tt*4+2*pr+x)*4
                a(f"v_cvt_pk_bf16_f32 v{d+2*x}, v{s0}, v{s0+1}\nv_cvt_pk_bf16_f32 v{d+2*x+1}, v{s0+2}, v{s0+3}")
            a(f"s_nop 1\nv_permlane16_swap_b32 v{d}, v{d+2}\nv_permlane16_swap_b32 v{d+1}, v{d+3}")
            a(f"buffer_store_dwordx4 {v(d,4)}, v2, s[12:15], {'0' if tt==0 else 's26'} offen offset:{64*pr}")
    a.label("Lproj_end")
    a("s_endpgm")
    return a.text()

def main(out):
    P = "concat_heads__mha_block__softmax_full_mha__prompt"
    hdr = f"""; generated by gen1.py
; @launch kernel=qkv_kernel grid=(256,1,1) block=(512,1,1) lds=159744
; @launch kernel=attn_kernel grid=(256,1,1) block=(512,1,1) lds=65536
; @launch kernel=proj_kernel grid=(256,1,1) block=(512,1,1) lds=131072
.amdgcn_target "amdgcn-amd-amdhsa--gfx950"
.text
"""
    txt = hdr
    txt += kernel_header("qkv_kernel") + kernel_qkv()
    txt += kernel_header("attn_kernel") + kernel_attn()
    txt += kernel_header("proj_kernel") + kernel_proj()
    txt += '.section .rodata,"a"\n'
    txt += kernel_desc("qkv_kernel", 200) + kernel_desc("attn_kernel", 200) + kernel_desc("proj_kernel", 144)
    open(out, "w").write(txt)

if __name__ == "__main__":
    main(sys.argv[1] if len(sys.argv) > 1 else "concat_heads__mha_block__softmax_full_mha__prompt.s")
```

```python
import sys, struct, math
from dsl import *

def opt(name, default):
    for x in sys.argv:
        if x.startswith(f"--{name}="): return type(default)(x[len(name) + 3:])
    return default
STAMP = "--stamp" in sys.argv
ROT = opt("rot", 2)
PRO = opt("pro", "X0,W0,Q0,B,W1,X1,W2").replace(",", " ")
STEPX = {}
for it in opt("stepx", "0:W3.X2.Q1;1:W4;8:Q2;16:Q3").split(";"):
    if it:
        k, val = it.split(":"); STEPX[int(k)] = val.split(".")
SC1 = "" if "--nosc1" in sys.argv else " sc1"
NTD = " nt" if "d" in opt("nt", "dw") else ""
NTP = " nt" if "p" in opt("nt", "dw") else ""
NTW = " nt" if "w" in opt("nt", "dw") else ""
ROTB = opt("rotb", -1)

KV_OFF = 0
O_OFF = 24 << 20
F1_OFF = 32 << 20
F2_OFF = 33 << 20
SLEEP = opt('sleep', 8)
ST_OFF = 64 << 20
QSCALE = struct.unpack("<I", struct.pack("<f", math.log2(math.e) / math.sqrt(32.0)))[0]
SPIN_LIMIT = 1 << 16

S_W, S_B, S_TM, S_HP = 16, 17, 18, 19
S_SOX, S_SOW, S_XB, S_WB = 20, 21, 22, 23
S_EXW = 24
S_NONCE = 80
S_MASK = 82
S_CIDX, S_M0, S_CNT, S_CH, S_WOS, S_WOM, S_FIDX, S_SPIN = 84, 85, 86, 87, 88, 89, 90, 91
S_WOI, S_WOB = 20, 21
PRIO = opt('prio', 1)
SRD_KV, SRD_F, SRD_WO, SRD_O = 4, 8, 52, 12
SRD_KVS = 56

def make_srd(a, d, lo, hi, off_sgpr, nrec):
    a(f"s_add_u32 s{d}, s{lo}, s{off_sgpr}\ns_addc_u32 s{d+1}, s{hi}, 0\ns_and_b32 s{d+1}, s{d+1}, 0xffff")
    a(f"s_mov_b32 s{d+2}, {nrec}\ns_mov_b32 s{d+3}, 0x00020000")

NST = [0]
STG = opt("stg", "m")
def stamp(a, i=None, g="m"):
    if not STAMP: return
    if i is None: g = "a" if g == "m" else g
    if g not in STG: return
    a("s_memrealtime s[60:61]\ns_memtime s[62:63]\ns_waitcnt lgkmcnt(0)\ns_lshl_b64 exec, 1, s64\nv_mov_b32 v0, s60\nv_mov_b32 v203, s62\ns_mov_b64 exec, -1\ns_add_u32 s64, s64, 1")
def stamp_flush(a, n):
    if not STAMP: return
    a(f"""
    s_lshl_b32 s26, s2, 3
    s_add_u32 s26, s26, s{S_W}
    s_lshl_b32 s26, s26, 9
    s_add_u32 s30, s26, {ST_OFF}
    """)
    make_srd(a, 56, 48, 49, 30, 512)
    a("v_lshlrev_b32 v2, 3, v1\nv_mov_b32 v4, v0\nv_mov_b32 v5, v203\nbuffer_store_dwordx2 v[4:5], v2, s[56:59], 0 offen")

ACC = 8
def acc(tt, f): return ACC + (tt * 6 + f) * 4
XF = [[104 + 4*i for i in range(4)], [144 + 4*i for i in range(4)]]
WF = [[120 + 4*i for i in range(6)], [160 + 4*i for i in range(6)]]
V_XR = [208, 209]; V_WR = [210, 211]; V_XD = [212, 213, 214, 215]; V_WD = [216, 217]
V_PX, V_PW, V_PD = 218, 219, 220
V_NON = 222
LDS_W = 98304

def decode(a, end):
    a(f"""
    s_cmp_ge_u32 s2, 256
    s_cbranch_scc1 {end}
    s_load_dwordx16 s[32:47], s[0:1], 0
    s_load_dwordx2 s[48:49], s[0:1], 64
    v_lshrrev_b32 v1, 6, v0
    s_and_b32 s26, s2, 7
    s_lshr_b32 s27, s2, 3
    v_readfirstlane_b32 s{S_W}, v1
    s_lshr_b32 s{S_B}, s26, 2
    s_and_b32 s28, s26, 1
    s_lshl_b32 s28, s28, 2
    s_and_b32 s29, s27, 3
    s_add_u32 s{S_TM}, s28, s29
    s_bfe_u32 s28, s26, 0x10001
    s_lshl_b32 s28, s28, 3
    s_lshr_b32 s29, s27, 2
    s_add_u32 s{S_HP}, s28, s29
    v_and_b32 v1, 63, v0
    s_mul_i32 s51, {'s26' if ROTB < 0 else 's17'}, {ROT if ROTB < 0 else ROTB}
    s_and_b32 s51, s51, 15
    s_lshl_b32 s14, s51, 1
    s_lshl_b32 s15, s51, 7
    s_mov_b32 s64, 0
    """)

def gemm1_setup_dma(a):
    a(f"""
    s_lshr_b32 s26, s{S_W}, 1
    s_mul_i32 s26, s26, 24576
    s_and_b32 s27, s{S_W}, 1
    s_lshl_b32 s27, s27, 12
    s_add_u32 s{S_XB}, s26, s27
    s_mul_i32 s26, s{S_W}, 1536
    s_add_u32 s{S_WB}, s26, {LDS_W}
    s_mov_b32 s{S_EXW}, -1
    s_mov_b32 s{S_EXW+1}, 0xffff
    v_lshrrev_b32 v2, 3, v1
    s_lshl_b32 s26, s{S_W}, 5
    v_add_u32 v7, s26, v2
    v_and_b32 v3, 7, v1
    v_lshrrev_b32 v4, 4, v1
    v_xor_b32 v5, v3, v4
    v_lshlrev_b32 v5, 4, v5
    v_lshl_add_u32 v{V_XD[0]}, v7, 11, v5
    v_xor_b32 v5, 64, v5
    v_lshl_add_u32 v{V_XD[1]}, v7, 11, v5
    v_add_u32 v{V_XD[1]}, {8*2048}, v{V_XD[1]}
    v_add_u32 v{V_XD[2]}, {16*2048}, v{V_XD[0]}
    v_add_u32 v{V_XD[3]}, {16*2048}, v{V_XD[1]}
    s_mul_i32 s26, s{S_W}, 12
    """)
    for q in range(2):
        a(f"""
        v_add_u32 v7, s26, v2            ; R
        s_add_u32 s26, s26, 6
        v_lshrrev_b32 v4, 5, v7          ; sec
        v_and_b32 v7, 31, v7             ; k
        v_and_b32 v5, 2, v7
        v_bfe_u32 v6, v7, 3, 1
        v_lshl_or_b32 v5, v6, 2, v5      ; swz*2
        v_xor_b32 v5, v3, v5             ; chunk
        v_lshlrev_b32 v5, 4, v5
        v_lshl_add_u32 v5, v4, 11, v5
        v_mul_u32_u24 v7, 6144, v7
        v_add_u32 v{V_WD[q]}, v7, v5
        """)
    a(f"""
    s_waitcnt lgkmcnt(0)
    s_cmp_eq_u32 s{S_B}, 0
    s_cselect_b32 s26, s32, s38
    s_cselect_b32 s27, s33, s39
    s_cselect_b32 s28, s34, s40
    s_cselect_b32 s29, s35, s41
    s_lshl_b32 s30, s{S_TM}, 19
    """)
    make_srd(a, 4, 26, 27, 30, 524288)
    a(f"s_lshl_b32 s30, s{S_HP}, 7\ns_sub_u32 s31, {1024*6144}, s30")
    make_srd(a, 8, 28, 29, 30, "s31")

def gemm1_setup_rest(a):
    a(f"""
    s_and_b32 s30, s{S_W}, 3
    s_mul_i32 s30, s30, 24576
    v_and_b32 v2, 15, v1             ; c
    v_lshrrev_b32 v4, 4, v1          ; G
    v_lshrrev_b32 v5, 1, v2
    v_xor_b32 v5, v4, v5
    v_lshlrev_b32 v5, 4, v5
    v_lshl_add_u32 v5, v2, 7, v5
    v_add_u32 v{V_XR[0]}, s30, v5
    v_xor_b32 v{V_XR[1]}, 64, v{V_XR[0]}
    v_bfe_u32 v2, v1, 2, 2           ; r
    v_and_b32 v3, 3, v1              ; c4
    v_lshl_add_u32 v5, v4, 3, v2     ; k = 8G + r
    v_lshrrev_b32 v6, 1, v2
    v_and_b32 v7, 1, v4
    v_lshl_or_b32 v6, v7, 1, v6      ; swz
    s_lshr_b32 s30, s{S_W}, 2
    s_lshl_b32 s30, s30, 1
    v_xor_b32 v6, s30, v6
    v_lshlrev_b32 v6, 5, v6
    v_lshl_add_u32 v6, v3, 3, v6
    v_lshl_add_u32 v6, v5, 7, v6
    v_add_u32 v{V_WR[0]}, {LDS_W}, v6
    v_xor_b32 v{V_WR[1]}, 32, v{V_WR[0]}
    """)
    a(f"s_lshr_b32 s30, s{S_TM}, 2\ns_lshl_b32 s30, s30, 21")
    make_srd(a, 52, 26, 27, 30, 2 << 20)
    a(f"s_lshr_b32 s30, s{S_HP}, 3\ns_lshl_b32 s30, s30, 10\ns_sub_u32 s31, {1024*6144}, s30")
    make_srd(a, 56, 28, 29, 30, "s31")
    toks = PRO + " ".join(" ".join(x) for x in STEPX.values())
    if "Q" in toks or "R" in toks:
        for l in q_setup(): a(l)
    if "P" in toks: a(f"""
    s_lshr_b32 s26, s2, 3
    s_lshl_b32 s26, s26, 3
    s_add_u32 s26, s26, s{S_W}       ; u
    s_lshl_b32 s27, s26, 13
    v_and_b32 v2, 3, v1
    v_lshlrev_b32 v2, 11, v2
    v_lshrrev_b32 v3, 2, v1
    v_lshl_add_u32 v2, v3, 7, v2
    v_add_u32 v{V_PX}, s27, v2
    v_mul_u32_u24 v2, 43, v1
    v_lshrrev_b32 v2, 8, v2
    v_mul_u32_u24 v3, 6, v2
    v_sub_u32 v3, v1, v3
    s_and_b32 s27, s26, 3
    s_mul_i32 s27, s27, 6
    v_add_u32 v3, s27, v3
    v_lshrrev_b32 v4, 3, v3
    v_and_b32 v3, 7, v3
    v_lshlrev_b32 v3, 7, v3
    v_lshl_add_u32 v3, v4, 11, v3
    s_lshr_b32 s27, s26, 2
    v_lshl_add_u32 v2, v2, 6, s27
    v_mul_u32_u24 v2, 6144, v2
    v_add_u32 v{V_PW}, v2, v3
    """)
    a(f"""
    v_mov_b32 v{V_PD+1}, 0
    s_or_b32 s26, s2, s{S_W}
    s_cmp_lg_u32 s26, 0
    s_cbranch_scc1 Lnononce
    s_memrealtime s[26:27]
    s_mov_b32 s28, s46
    s_and_b32 s29, s47, 0xffff
    s_mov_b32 s30, 256
    s_mov_b32 s31, 0x00020000
    s_waitcnt lgkmcnt(0)
    s_or_b32 s26, s26, 1
    v_mov_b32 v2, s26
    v_mov_b32 v3, s27
    s_mov_b64 exec, 1
    buffer_store_dwordx2 v[2:3], v{V_PD+1}, s[28:31], 0 offen sc1
    s_mov_b64 exec, -1
    Lnononce:
    """)

def pf_batch(s0, n):
    return [f"s_add_u32 s13, s51, {s0}", "s_and_b32 s13, s13, 15", f"s_bfm_b64 exec, {6*n}, 0", f"s_mul_i32 s50, s13, {64*6144}",
            f"buffer_load_dword v{V_PD}, v{V_PW}, s[56:59], s50 offen{NTP}", "s_lshl_b32 s13, s13, 7",
            f"s_bfm_b64 exec, {4*n}, 0",
            f"buffer_load_dword v{V_PD}, v{V_PX}, s[52:55], s13 offen{NTP}", "s_mov_b64 exec, -1"]
V_QW, V_QX = 218, 219
SLOWC = opt("slowc", 3)
def q_setup():
    return [f"s_lshr_b32 s12, s2, 3", "s_lshl_b32 s12, s12, 3", f"s_add_u32 s12, s12, s{S_W}",
            f"v_lshlrev_b32 v{V_QW}, 11, v1", f"v_add_u32 v{V_QW}, {SLOWC*128}, v{V_QW}",
            "v_and_b32 v2, 3, v1", "v_lshlrev_b32 v2, 11, v2", "v_bfe_u32 v3, v1, 2, 1", "v_lshl_add_u32 v2, v3, 10, v2",
            "s_lshl_b32 s13, s12, 13", f"s_add_u32 s13, s13, {SLOWC*128}", f"v_add_u32 v{V_QX}, s13, v2",
            "s_lshl_b32 s13, s51, 6", "s_add_u32 s12, s12, s13"]
def q_batch(i):
    return [f"s_add_u32 s13, s12, {256*i}", "s_and_b32 s13, s13, 1023", "s_mov_b64 exec, 7", "s_mul_i32 s13, s13, 6144",
            f"buffer_load_dword v{V_PD}, v{V_QW}, s[56:59], s13 offen", "s_mov_b64 exec, -1"]
def r_batch():
    return ["s_mov_b64 exec, 0xff", f"buffer_load_dword v{V_PD}, v{V_QX}, s[52:55], 0 offen", "s_mov_b64 exec, -1"]
def dma_x(stage, q):
    return [f"s_add_u32 m0, s{S_XB}, {(stage % 3)*8192 + q*1024}", f"buffer_load_dwordx4 v{V_XD[q]}, s[4:7], s{S_SOX} offen{NTD} lds"]
def dma_w(step, q):
    return [f"s_add_u32 m0, s{S_WB}, {(step % 5)*12288 + q*768}", f"buffer_load_dwordx4 v{V_WD[q]}, s[8:11], s{S_SOW} offen{NTD} lds"]
def frag_reads(step):
    p = step & 1; xs = (step >> 1) % 3; ws = step % 5
    X = [f"ds_read_b128 {v(XF[p][tt],4)}, v{V_XR[p]} offset:{xs*8192 + tt*2048}" for tt in range(4)]
    W = [[f"ds_read_b64_tr_b16 {v(WF[p][f]+2*h,2)}, v{V_WR[f&1]} offset:{ws*12288 + (f>>1)*4096 + h*512}" for h in range(2)] for f in range(6)]
    return [X[0]] + W[0] + W[1] + W[2] + [X[1]] + W[3] + W[4] + W[5] + [X[2], X[3]]
def gemm1_mfmas(step):
    p = step & 1; out = []
    for tt in range(4):
        for f in (range(6) if tt % 2 == 0 else range(5, -1, -1)):
            d = acc(tt, f)
            A, B = (WF[p][f], XF[p][tt]) if f < 4 else (XF[p][tt], WF[p][f])
            out.append(f"v_mfma_f32_16x16x32_bf16 {v(d,4)}, {v(A,4)}, {v(B,4)}, {'0' if step == 0 else v(d,4)}")
    return out

def gemm1_main(a, late):
    vm = VmTrack()
    def group(tok):
        if tok == "B": return [["s_barrier"]], []
        if tok[0] == "Q": return [q_batch(int(tok[1:]))], ["pf"]
        if tok[0] == "R": return [r_batch()], ["pf"]
        if tok[0] == "P":
            s0, n = map(int, tok[1:].split("_")); return [pf_batch(s0, n)], ["pf", "pf"]
        if tok[0] == "W":
            st = int(tok[1:]); m0, l0 = dma_w(st, 0); m1, l1 = dma_w(st, 1)
            return [[f"s_add_u32 s{S_SOW}, s14, {st}", f"s_and_b32 s{S_SOW}, s{S_SOW}, 31", f"s_mov_b64 exec, s[{S_EXW}:{S_EXW+1}]", m0,
                     f"s_mul_i32 s{S_SOW}, s{S_SOW}, {32*6144}", l0, m1, "s_nop 0", l1, "s_mov_b64 exec, -1"]], [("W", st)] * 2
        if tok[0] == "X":
            if "h" in tok: S, h = tok[1:].split("h"); S = int(S); qs = (0, 1) if h == "0" else (2, 3)
            else: S = int(tok[1:]); qs = (0, 1, 2, 3)
            g = []
            for q in qs:
                m, l = dma_x(S, q)
                g.append([f"s_add_u32 s{S_SOX}, s15, {S*128}", m, f"s_and_b32 s{S_SOX}, s{S_SOX}, 0x780", l] if q in (0, 2) else [m, "s_nop 0", l])
            return g, [("X", S)] * len(qs)
    first = True
    for tok in PRO.split():
        g, t = group(tok)
        for x in g:
            for y in x: a(y)
        for y in t: vm.issue(y)
        if tok == "W0":
            gemm1_setup_rest(a)
    a(f"s_waitcnt vmcnt({vm.wait_count({('X',0),('W',0)})})")
    a("s_barrier")
    stamp(a, 1)
    for l in frag_reads(0): a(l)
    for st in range(32):
        if st + 1 < 32:
            need = {("W", st + 1), ("X", (st + 1) >> 1)}
            for nd in need: assert vm.ops.count(nd) == (2 if nd[0] == "W" else 4), (st, nd)
            a(f"s_waitcnt vmcnt({min(63, vm.wait_count(need))}) lgkmcnt(0)")
        else:
            a("s_waitcnt lgkmcnt(0)")
        a("s_barrier")
        M = gemm1_mfmas(st)
        if st == 31:
            last_step(a, late[31]); break
        R = frag_reads(st + 1) if st + 1 < 32 else []
        toks = list(STEPX.get(st, []))
        if st + 5 < 32: toks.append(f"W{st+5}")
        if st >= 1 and ((st - 1) >> 1) + 3 < 16: toks.append(f"X{((st-1)>>1)+3}h{0 if st % 2 == 1 else 1}")
        D = []
        for tok in toks:
            g, t = group(tok); D += g
            for y in t: vm.issue(y)
        for g in late.get(st, []):
            D.append(g)
            for y in g:
                if y.startswith("buffer_"): vm.issue("late")
        gaps = [[] for _ in range(24)]
        if len(D) <= 3:
            for i, r in enumerate(R): gaps[i].append(r)
            for i, d in enumerate(D): gaps[17 + 2*i] += d
        else:
            for i, r in enumerate(R): gaps[i + 4].append(r)
            for i, d in enumerate(D): gaps[(i * 23) // len(D)] += d
        for i, m in enumerate(M):
            a(m)
            for x in gaps[i]: a(x)

AS = [8, 24, 40, 56]
AO = {'a': 224, 'b': 240}
AQ = {('a',0): 104, ('a',1): 108, ('b',0): 112, ('b',1): 116}
AC = {'a': 120, 'b': 136}
AK = [[152, 156], [160, 164]]
AV = [[168, 172], [176, 180]]
AL = {'a': 184, 'b': 188}
ASEL = 192; AIDX = 196; AADDR = 197; AVO = 198; AWD = 199
AFL = 200
AFA = 202
V_VS, V_VL = 205, 207
AADK, AVK = 204, 206
V_FA = 221
S_CH2 = 22
def qk1(Y, kb, q, c=None): return f"v_mfma_f32_32x32x16_bf16 {v(Y,16)}, {v(AK[kb][0],4)}, {v(AQ[(q,0)],4)}, {v(AC[q],16) if c is None else c}"
def qk2(Y, kb, q): return f"v_mfma_f32_32x32x16_bf16 {v(Y,16)}, {v(AK[kb][1],4)}, {v(AQ[(q,1)],4)}, {v(Y,16)}"
def pv(Z, h, vb, q): return f"v_smfmac_f32_32x32x32_bf16 {v(AO[q],16)}, {v(AV[vb][h],4)}, {v(Z+8*h,8)}, v{AIDX}"
def sm(Z, h, q): return f"v_smfmac_f32_16x16x64_bf16 {v(AL[q],4)}, {v(ASEL,4)}, {v(Z+8*h,8)}, v{AIDX}"
def srd(d, lo, hi, off, nrec):
    return [f"s_add_u32 s{d}, s{lo}, s{off}", f"s_addc_u32 s{d+1}, s{hi}, 0", f"s_and_b32 s{d+1}, s{d+1}, 0xffff", f"s_mov_b32 s{d+2}, {nrec}", f"s_mov_b32 s{d+3}, 0x00020000"]

def late_setup():
    L = {}
    L[24] = [["s_mov_b32 s92, s46", "s_and_b32 s93, s47, 0xffff", "s_mov_b32 s94, 256", "s_mov_b32 s95, 0x00020000",
              f"buffer_load_dwordx2 {v(V_NON,2)}, v{V_PD+1}, s[92:95], 0 offen sc1"]]
    if WARMF:
        L[25] = [[f"s_lshl_b32 s28, s{S_B}, 4", f"s_add_u32 s28, s28, s{S_HP}", "s_lshl_b32 s28, s28, 10", f"s_add_u32 s30, s28, {F1_OFF}",
                  f"s_lshl_b32 s28, s{S_B}, 3", f"s_add_u32 s28, s28, s{S_TM}", "s_lshl_b32 s28, s28, 11", f"s_add_u32 s31, s28, {F2_OFF}",
                  "s_mov_b32 s64, s64" if False else "s_nop 0",
                  "s_mov_b32 s76, s48", "s_and_b32 s77, s49, 0xffff", f"s_mov_b32 s78, {34 << 20}", "s_mov_b32 s79, 0x00020000",
                  "v_lshlrev_b32 v2, 7, v1", "s_mov_b64 exec, 0xff", f"buffer_load_dword v{V_PD}, v2, s[76:79], s30 offen sc1",
                  "s_mov_b64 exec, 0xffff", f"buffer_load_dword v{V_PD}, v2, s[76:79], s31 offen sc1", "s_mov_b64 exec, -1"]]
    L[27] = [[f"v_mov_b32 v{AO['a']+8*g+i}, 0" for i in range(8)] for g in range(3)]
    L[28] = [[f"v_lshlrev_b32 v{AVO}, 4, v1", "v_and_b32 v2, 7, v1", f"v_lshlrev_b32 v{AFA}, 3, v2", f"s_lshr_b32 s26, s{S_W}, 2", "s_lshl_b32 s26, s26, 14",
              f"v_add_u32 v{AADDR}, s26, v{AVO}", f"v_mov_b32 v{AIDX}, 0xdddddddd"],
             ["v_bfe_u32 v2, v1, 2, 1", "v_mov_b32 v3, 0x3f803f80", "v_cmp_eq_u32 vcc, 0, v2", "s_nop 1",
              f"v_cndmask_b32 v{ASEL}, 0, v3, vcc", f"v_cndmask_b32 v{ASEL+1}, 0, v3, vcc", f"v_xor_b32 v{ASEL+2}, v3, v{ASEL}", f"v_xor_b32 v{ASEL+3}, v3, v{ASEL}"],
             [f"v_mov_b32 v{AL['a']+i}, 0" for i in range(8)] + [f"v_mov_b32 v{AO['a']+24+i}, 0" for i in range(8)]]
    L[29] = [["v_and_b32 v2, 15, v1", "v_lshrrev_b32 v4, 4, v1", "v_lshlrev_b32 v4, 9, v4", f"v_lshl_add_u32 v{V_VS}, v2, 4, v4",
              "v_bfe_u32 v2, v1, 2, 1", "v_bfe_u32 v3, v1, 3, 2", "v_and_b32 v4, 35, v1", "v_lshl_add_u32 v4, v2, 4, v4", "v_lshl_add_u32 v4, v3, 2, v4",
              f"v_lshlrev_b32 v{AVK}, 4, v4", f"v_sub_u32 v2, v{AADDR}, v{AVO}", f"v_add_u32 v{AADK}, v2, v{AVK}"],
             [f"s_and_b32 s26, s{S_W}, 2", "s_lshl_b32 s26, s26, 14", f"s_and_b32 s27, s{S_W}, 1", "s_lshl_b32 s27, s27, 13", "s_add_u32 s26, s26, s27",
              f"s_lshr_b32 s27, s{S_W}, 2", "s_lshl_b32 s27, s27, 14", "s_add_u32 s26, s26, s27",
              f"v_add_u32 v{V_VL}, s26, v{V_VS}"],
             ["v_lshrrev_b32 v2, 3, v1", "v_and_b32 v3, 7, v1", "v_lshrrev_b32 v4, 4, v1", "v_lshlrev_b32 v4, 1, v4", "v_xor_b32 v4, v3, v4",
              "v_lshlrev_b32 v4, 4, v4", f"v_lshl_add_u32 v{AWD}, v2, 11, v4"]]
    L[30] = [[f"s_lshl_b32 s26, s{S_B}, 5", f"s_lshl_b32 s27, s{S_HP}, 1", "s_add_u32 s26, s26, s27",
              f"s_and_b32 s28, s{S_W}, 3", "s_lshl_b32 s29, s28, 12", "s_lshl_b32 s30, s26, 18", "s_add_u32 s31, s30, s29", "s_sub_u32 s50, 524288, s29"]
             + srd(SRD_KV, 48, 49, 31, "s50") + [f"s_lshr_b32 s27, s{S_W}, 2", "s_add_u32 s26, s26, s27", "s_lshl_b32 s30, s26, 18"],
             [f"s_lshl_b32 s27, s{S_TM}, 3", "s_lshl_b32 s28, s28, 1", "s_add_u32 s27, s27, s28", "s_lshl_b32 s29, s27, 12", "s_add_u32 s31, s30, s29"]
             + srd(SRD_KVS, 48, 49, 31, 8192) + ["s_mov_b32 s50, 4096"],
             [f"s_lshl_b32 s28, s{S_B}, 22", "s_lshl_b32 s29, s27, 16", "s_add_u32 s31, s28, s29", "s_and_b32 s28, s26, 31", "s_lshl_b32 s28, s28, 10",
              "s_add_u32 s31, s31, s28", f"s_add_u32 s31, s31, {O_OFF}"] + srd(SRD_O, 48, 49, 31, 131072)]
    L[31] = ([f"s_bitcmp0_b32 s{S_W}, 1", "s_cselect_b64 vcc, -1, 0", f"s_lshl_b32 s28, s{S_B}, 4", f"s_add_u32 s28, s28, s{S_HP}", "s_lshl_b32 s28, s28, 10", f"s_add_u32 s31, s28, {F1_OFF}"] + srd(SRD_F, 48, 49, 31, 1024)
             + [f"s_cmp_eq_u32 s{S_B}, 0", "s_cselect_b32 s26, s36, s42", "s_cselect_b32 s27, s37, s43", f"s_lshl_b32 s30, s{S_HP}, 7", f"s_sub_u32 s31, {1024*2048}, s30"]
             + srd(SRD_WO, 26, 27, 30, "s31")
             + [f"s_mov_b32 s{S_WOI}, -1", f"s_lshl_b32 s{S_WOB}, s{S_W}, 14", f"s_lshl_b32 s27, s{S_W}, 10", f"s_add_u32 s{S_WOM}, s27, 65536",
                f"s_lshl_b32 s{S_M0}, s{S_W}, 12", f"s_mov_b32 s{S_CIDX}, 16384", f"s_lshl_b32 s23, s{S_TM}, 15", f"s_lshr_b32 s51, s{S_W}, 1",
                f"s_mov_b32 s26, {QSCALE}", f"s_mov_b32 s27, {QSCALE}"])
    return L

UNITS = [('V',0,0,80), ('V',0,1,84), ('V',1,0,72), ('V',1,1,76), ('K',1,1,88), ('K',1,0,92), ('K',0,0,96), ('K',0,1,100)]
def unit_src(u):
    k, T, h, d = UNITS[u]
    return [(2*T, 4+h), (2*T+1, 4+h)] if k == 'V' else [(2*T+h, 2), (2*T+h, 3)]
def cvt4(regs, d): return [f"v_cvt_pk_bf16_f32 v{d+i}, v{regs[2*i]}, v{regs[2*i+1]}" for i in range(4)]
def unit_cvt(u):
    k, T, h, d = UNITS[u]
    regs = [acc(*x) + i for x in unit_src(u) for i in range(4)]
    w = f"ds_write_b128 v{V_VL}, {v(d,4)} offset:{T*4096 + (2048 if k == 'V' else 0) + h*256}"
    return cvt4(regs, d) + [w]
def kv_store(u):
    k, T, h, d = UNITS[u]
    return f"buffer_store_dwordx4 {v(d,4)}, v{V_VS}, s[{SRD_KVS}:{SRD_KVS+3}], {'0' if T == 0 else 's50'} offen offset:{(2048 if k == 'V' else 0) + h*256}{SC1}"
NLAB = [0]
def if_vcc(ins, want=True):
    NLAB[0] += 1
    return [f"s_cbranch_vcc{'z' if want else 'nz'} Lskip{NLAB[0]}"] + ins + [f"Lskip{NLAB[0]}:"]
old_only = if_vcc
def q_cvt(tt):
    return [f"v_pk_mul_f32 {v(acc(tt,0)+2*i,2)}, {v(acc(tt,0)+2*i,2)}, s[26:27]" for i in range(4)] + cvt4([acc(tt,0)+i for i in range(8)], AQ[("ab"[tt >> 1], tt & 1)])

def last_step(a, sal):
    order = [(3, 0), (3, 1)] + [x for u in range(8) for x in unit_src(u)] + [(tt, f) for tt in range(3) for f in range(2)]
    gaps = [[] for _ in range(24)]
    per = (len(sal) + 9) // 10
    for i, x in enumerate(sal): gaps[i // per].append(x)
    gaps[10] += q_cvt(3)
    for u in range(6): gaps[12 + 2*u] += unit_cvt(u) + (if_vcc([kv_store(u - 1), kv_store(u)]) if u & 1 else [])
    for i, (tt, f) in enumerate(order):
        d = acc(tt, f)
        A, B = (WF[1][f], XF[1][tt]) if f < 4 else (XF[1][tt], WF[1][f])
        a(f"v_mfma_f32_16x16x32_bf16 {v(d,4)}, {v(A,4)}, {v(B,4)}, {v(d,4)}")
        for x in gaps[i]: a(x)
    for x in unit_cvt(6) + unit_cvt(7) + if_vcc([kv_store(6), kv_store(7)]): a(x)

def transition_ab(a):
    a(f"s_cmp_lt_u32 s{S_W}, 4\ns_setprio 1\ns_cbranch_scc0 Lyng0\ns_setprio 2\nLyng0:")
    a("s_waitcnt lgkmcnt(0)\ns_barrier")
    for j in range(2): a(f"ds_read_b128 {v(AK[0][j],4)}, v{AADK} offset:{1024*j}")
    for j in range(2): a(f"ds_read_b128 {v(AV[0][j],4)}, v{AADDR} offset:{2048+1024*j}")
    for tt in range(3):
        for x in q_cvt(tt): a(x)
    a("s_nop 1")
    for q in "ab":
        for i in range(4): a(f"v_permlane16_swap_b32 v{AQ[(q,0)]+i}, v{AQ[(q,1)]+i}")
    for q in "ab":
        for i in range(4): a(f"v_permlane32_swap_b32 v{AQ[(q,0)]+i}, v{AQ[(q,1)]+i}")
    a("s_waitcnt lgkmcnt(2)")
    a(qk1(AS[0],0,'a',"0")); a(qk2(AS[0],0,'a')); a(qk1(AS[1],0,'b',"0")); a(qk2(AS[1],0,'b'))
    a(f"""
    v_readfirstlane_b32 s{S_NONCE}, v{V_NON}
    v_readfirstlane_b32 s{S_NONCE+1}, v{V_NON+1}
    s_lshl_b32 s26, s{S_TM}, 4
    s_add_u32 s26, s26, s{S_W}
    s_lshl_b32 s28, s26, 3
    s_nop 3
    s_cmp_eq_u32 s{S_NONCE}, 0
    s_cbranch_scc1 Lnonce_spin
    Lnonce_ok:
    v_mov_b32 v{V_FA}, s28
    s_nop 0
    """)
    rowmax16(a, AS[0], 2, 3)
    rowmax16(a, AS[1], 4, 5)
    for i in range(8): a(f"v_pk_mul_f32 {v(AC['a']+2*i,2)}, v[2:3], -1.0 op_sel_hi:[0,0]")
    a(f"v_pk_mul_f32 {v(AC['b'],2)}, v[4:5], -1.0 op_sel_hi:[0,0]\nv_pk_mul_f32 {v(AC['b']+2,2)}, v[4:5], -1.0 op_sel_hi:[0,0]")
    a(qk1(AS[0],0,'a')); a(qk2(AS[0],0,'a'))
    for i in range(2, 8): a(f"v_pk_mul_f32 {v(AC['b']+2*i,2)}, v[4:5], -1.0 op_sel_hi:[0,0]")
    a("s_nop 4")

def rowmax16(a, S, m, t):
    a(f"v_max3_f32 v{m}, v{S}, v{S+1}, v{S+2}")
    for i in range(3, 15, 2): a(f"v_max3_f32 v{m}, v{m}, v{S+i}, v{S+i+1}")
    a(f"v_max_f32 v{m}, v{m}, v{S+15}")
    a(f"v_mov_b32 v{t}, v{m}\ns_nop 1\nv_permlane32_swap_b32 v{m}, v{t}\ns_nop 0\nv_max_f32 v{m}, v{m}, v{t}")

def attn_half(a, t, q, extra=None, skipz=False):
    hs = (2*t + (q == 'b')) % 4
    oq = 'b' if q == 'a' else 'a'
    X = AS[hs]; Y = AS[(hs+1) % 4]; Z = AS[(hs-1) % 4]
    kb = t % 2 if q == 'a' else (t+1) % 2
    vb = (t-1) % 2 if q == 'a' else t % 2
    nt = (t + 1) % 4
    M = {'Q1': qk1(Y,kb,oq), 'Q2': qk2(Y,kb,oq), 'P1': pv(Z,0,vb,oq), 'S1': sm(Z,0,oq), 'P2': pv(Z,1,vb,oq), 'S2': sm(Z,1,oq)}
    e = 0
    for tok in "Q1 W0 3 S1 L0 2 Q2 3 P1 3 S2 L1 2 P2 W1 3".split():
        if tok in M:
            if not (skipz and tok[0] != 'Q'): a(M[tok])
        elif tok in ('L0', 'L1'):
            j = int(tok[1])
            if q == 'a': a(f"ds_read_b128 {v(AK[(t+1)%2][j],4)}, v{AADK} offset:{nt*4096 + 1024*j}")
            else: a(f"ds_read_b128 {v(AV[(t+1)%2][j],4)}, v{AADDR} offset:{nt*4096 + 2048 + 1024*j}")
        elif tok == 'W0':
            if q == 'b': a("s_waitcnt lgkmcnt(0)")
        elif tok == 'W1':
            if q == 'a': a("s_waitcnt lgkmcnt(1)")
        else:
            for _ in range(int(tok)):
                a(f"v_exp_f32 v{X+e}, v{X+e}"); e += 1
        if extra and tok in extra:
            for x in extra[tok]: a(x)
    assert e == 16

def kv_dma(h): return [f"buffer_load_dwordx4 v{AVO}, s[{SRD_KV}:{SRD_KV+3}], s{S_CH if h == 0 else S_CH2} offen offset:{1024*i}{SC1} lds" for i in range(4)]
S_FSO = 24
def flag_load(): return f"buffer_load_dwordx2 {v(AFL,2)}, v{AFA}, s[{SRD_F}:{SRD_F+3}], s{S_FSO} offen sc1"
def chunk_scalars():
    return [f"s_add_u32 s{S_CIDX}, s{S_CIDX}, 16384", f"s_xor_b32 s{S_CH}, s{S_CIDX}, s23", f"s_add_u32 s{S_CH2}, s{S_CH}, 262144",
            f"s_bfe_u32 s26, s{S_CH}, 0x1000e", "s_lshl_b32 s26, s26, 1", f"s_add_u32 s{S_FIDX}, s26, s51"]
def line_cur(): return [f"s_lshr_b32 s26, s{S_CH}, 15", f"s_lshl_b32 s{S_FSO}, s26, 7"]
def line_next(): return [f"s_add_u32 s26, s{S_CIDX}, 16384", "s_xor_b32 s26, s26, s23", "s_bfe_u32 s26, s26, 0x3000f", f"s_lshl_b32 s{S_FSO}, s26, 7"]
def mask_test():
    return [f"s_lshr_b32 s26, s{S_MASK}, s{S_FIDX}", "s_andn2_b32 s26, 0x11, s26"]
def flag_cmp(): return f"v_cmp_eq_u64 s[{S_MASK}:{S_MASK+1}], s[{S_NONCE}:{S_NONCE+1}], {v(AFL,2)}"
def spin(a, name, test):
    a(f"""
    {name}:
    s_mov_b32 s{S_SPIN}, {SPIN_LIMIT}
    {name}_l:
    {flag_load()}
    s_waitcnt vmcnt(0)
    {flag_cmp()}
    s_sub_u32 s{S_SPIN}, s{S_SPIN}, 1
    s_cbranch_scc1 {name}_r
    """)
    for x in test: a(x)
    a(f"s_cbranch_scc0 {name}_r\ns_sleep {SLEEP}\ns_branch {name}_l")
def spin_flags(a, name): spin(a, name, mask_test())
def wo_dma():
    return [f"s_add_u32 s{S_WOI}, s{S_WOI}, 1", f"s_add_u32 s26, s{S_WOI}, s{S_HP}", "s_and_b32 s26, s26, 7",
            f"s_xor_b32 s27, s{S_WOI}, s{S_HP}", "s_and_b32 s27, s27, 8", "s_or_b32 s26, s26, s27", "s_lshl_b32 s26, s26, 1",
            f"s_lshr_b32 s27, s{S_WOI}, 4", "s_add_u32 s26, s26, s27", "s_lshl_b32 s26, s26, 16", f"s_mov_b32 m0, s{S_WOM}",
            f"s_add_u32 s{S_WOS}, s26, s{S_WOB}", f"s_add_u32 s{S_WOM}, s{S_WOM}, 4096",
            f"buffer_load_dwordx4 v{AWD}, s[{SRD_WO}:{SRD_WO+3}], s{S_WOS} offen{NTW} lds"]
TOUCH = "--touch" in sys.argv
WARMF = "--nowarmf" not in sys.argv
def publish(): return ["s_waitcnt vmcnt(0)", "s_mov_b64 exec, 1", f"buffer_store_dwordx2 {v(V_NON,2)}, v{V_FA}, s[{SRD_F}:{SRD_F+3}], 0 offen sc1", "s_mov_b64 exec, -1"]
def w3_dma(k):
    o = [f"s_lshl_b32 s28, s{S_W}, 1", f"s_add_u32 s28, s28, {24 + k}", f"s_add_u32 s26, s28, s{S_HP}", "s_and_b32 s26, s26, 7",
         f"s_xor_b32 s27, s28, s{S_HP}", "s_and_b32 s27, s27, 8", "s_or_b32 s26, s26, s27", "s_lshl_b32 s26, s26, 17", f"s_add_u32 s{S_WOS}, s26, 65536",
         f"s_lshl_b32 s{S_WOM}, s{S_W}, 13"]
    for i in range(4):
        o += [f"s_add_u32 m0, s{S_WOM}, {k*4096 + i*1024}", "s_nop 0", f"buffer_load_dwordx4 v{AWD}, s[{SRD_WO}:{SRD_WO+3}], s{S_WOS} offen{NTW} lds"]
        if i < 3: o.append(f"s_add_u32 s{S_WOS}, s{S_WOS}, 16384")
    return o
LST = opt("lst", 2)
def attn_chunk(a, kind):
    tog = f"v_xor_b32 v{AADDR}, 32768, v{AADDR}\nv_xor_b32 v{AADK}, 32768, v{AADK}"
    for t in range(4):
        ea, eb = {}, {}
        if kind == 'c0':
            for k, e in enumerate((ea, eb)):
                j = 2*t + k - LST
                if 0 <= j < 4: e['P1'] = if_vcc([kv_store(2*j), kv_store(2*j + 1)], False)
        if kind == 'c1' and t == 0:
            eb['P2'] = [f"s_and_b32 s26, s{S_W}, 6", "s_cmp_eq_u32 s26, 2", "s_cbranch_scc0 Lpub2"] + publish() + ["Lpub2:"]
        if t == 3:
            if kind == 'c0':
                stamp(a); a("s_waitcnt lgkmcnt(0)\ns_barrier"); stamp(a)
                for x in [f"s_cmp_lt_u32 s{S_W}, 4", "s_cselect_b64 vcc, -1, 0", f"s_and_b32 s26, s{S_W}, 6", "s_cmp_eq_u32 s26, 2", "s_cbranch_scc1 Lpub1"] + publish() + ["Lpub1:"]: a(x)
                stamp(a)
                ea['Q1'] = [tog]
            else:
                if kind == 'c1':
                    for x in old_only(chunk_scalars() + line_cur() + ["s_branch Lspin_c1a", "Lspin_c1a_r:", f"s_mov_b32 m0, s{S_M0}", "s_nop 0"] + kv_dma(0)
                                      + [f"s_add_u32 m0, s{S_M0}, 16384", "s_nop 0"] + kv_dma(1)): a(x)
                if kind != 'c15':
                    stamp(a); a("s_waitcnt vmcnt(0) lgkmcnt(0)"); stamp(a); a("s_barrier"); stamp(a)
                if kind in ('c1', 'loop'):
                    nm = "Lspin_" + kind
                    ea = {'Q1': [tog],
                          'Q2': old_only([flag_cmp(), f"s_xor_b32 s{S_M0}, s{S_M0}, 32768"] + chunk_scalars() + [f"s_mov_b32 m0, s{S_M0}"] + mask_test()
                                         + [f"s_cbranch_scc1 {nm}", f"{nm}_r:"] + kv_dma(0)),
                          'P2': old_only([f"s_add_u32 m0, s{S_M0}, 16384", "s_nop 0"] + kv_dma(1) + line_next() + [flag_load()])}
                    if kind == 'loop':
                        eb = {'Q2': old_only(wo_dma() + wo_dma()), 'P2': [f"s_sub_u32 s{S_CNT}, s{S_CNT}, 1", f"s_cmp_lg_u32 s{S_CNT}, 0"]}
                elif kind == 'c14':
                    ea = {'Q1': [tog], 'Q2': old_only(w3_dma(0)), 'P2': old_only(w3_dma(1))}
        attn_half(a, t, 'a', ea, skipz=(kind == 'c0' and t == 0)); attn_half(a, t, 'b', eb)

def attention(a):
    attn_chunk(a, 'c0')
    attn_chunk(a, 'c1')
    a(f"s_mov_b32 s{S_CNT}, 12")
    a(".p2align 6")
    a.label("Lattn_loop")
    attn_chunk(a, 'loop')
    a("s_cbranch_scc1 Lattn_loop")
    attn_chunk(a, 'c14')
    attn_chunk(a, 'c15')
    a("s_nop 1")
    stamp(a, 4)
    a(pv(AS[3],0,1,'b')); a(sm(AS[3],0,'b')); a(pv(AS[3],1,1,'b')); a(sm(AS[3],1,'b'))
    a(f"""
    s_mov_b32 s26, 0x4e800000        ; 2^30
    v_and_b32 v4, 15, v1
    v_lshlrev_b32 v4, 4, v4
    v_bfe_u32 v5, v1, 4, 1
    v_lshl_add_u32 v4, v5, 15, v4
    v_lshrrev_b32 v5, 5, v1
    v_lshl_add_u32 v6, v5, 8, v4
    s_mov_b32 s27, 65536
    v_cmp_nge_f32 vcc, s26, v{AL['a']}
    v_cmp_nge_f32 s[28:29], s26, v{AL['b']}
    s_or_b64 vcc, vcc, s[28:29]
    s_cbranch_vccnz Lattn_fallback
    Lattn_fin:
    v_rcp_f32 v2, v{AL['a']}
    v_rcp_f32 v4, v{AL['b']}
    """)
    for qi, q in enumerate('ab'):
        for u in range(2):
            for i in range(4): a(f"v_pk_mul_f32 {v(AO[q]+8*u+2*i,2)}, {v(AO[q]+8*u+2*i,2)}, {v(2+2*qi,2)} op_sel_hi:[1,0]")
            d = AS[0] + 4*(2*qi+u)
            for x in cvt4([AO[q]+8*u+i for i in range(8)], d): a(x)
            a(f"buffer_store_dwordx4 {v(d,4)}, v6, s[{SRD_O}:{SRD_O+3}], {'0' if qi==0 else 's27'} offen offset:{512*u}{SC1}")

def fallback(a):
    a.label("Lattn_fallback")
    a(f"""
    s_waitcnt vmcnt(0)
    s_lshl_b32 s26, s{S_B}, 5
    s_lshl_b32 s28, s{S_HP}, 1
    s_add_u32 s26, s26, s28
    s_lshr_b32 s28, s{S_W}, 2
    s_add_u32 s26, s26, s28
    s_lshl_b32 s30, s26, 18
    """)
    make_srd(a, SRD_KV, 48, 49, 30, 262144)
    a(f"""
    s_mov_b32 s{S_SPIN}, {SPIN_LIMIT}
    v_lshrrev_b32 v2, 3, v1
    v_lshl_add_u32 v2, v2, 7, v{AFA}
    Lfb_poll:
    buffer_load_dwordx2 {v(AFL,2)}, v2, s[{SRD_F}:{SRD_F+3}], 0 offen sc1
    s_waitcnt vmcnt(0)
    v_cmp_eq_u64 vcc, s[{S_NONCE}:{S_NONCE+1}], {v(AFL,2)}
    s_sub_u32 s{S_SPIN}, s{S_SPIN}, 1
    s_cbranch_scc1 Lfb_go
    s_cmp_eq_u64 vcc, -1
    s_cbranch_scc0 Lfb_poll
    Lfb_go:
    """)
    for r in list(range(AO['a'], AO['a']+32)) + list(range(AL['a'], AL['a']+8)): a(f"v_mov_b32 v{r}, 0")
    Mr = {'a': AC['a'], 'b': AC['b']}
    a(f"v_mov_b32 v{Mr['a']}, 0xff800000\nv_mov_b32 v{Mr['b']}, 0xff800000\ns_mov_b32 s26, 0")
    a.label("Lfb_loop")
    for j in range(2): a(f"buffer_load_dwordx4 {v(AK[0][j],4)}, v{AVK}, s[{SRD_KV}:{SRD_KV+3}], s26 offen offset:{1024*j} sc1")
    for j in range(2): a(f"buffer_load_dwordx4 {v(AV[0][j],4)}, v{AVO}, s[{SRD_KV}:{SRD_KV+3}], s26 offen offset:{2048+1024*j} sc1")
    a("s_waitcnt vmcnt(0)")
    for q in 'ab':
        S = AS[0]
        a(qk1(S,0,q,"0")); a(qk2(S,0,q)); a("s_nop 15")
        rowmax16(a, S, 2, 3)
        a(f"v_max_f32 v2, v2, v{Mr[q]}\nv_sub_f32 v3, v{Mr[q]}, v2\nv_exp_f32 v3, v3\nv_mov_b32 v{Mr[q]}, v2")
        for i in range(16): a(f"v_sub_f32 v{S+i}, v{S+i}, v2")
        for i in range(16): a(f"v_exp_f32 v{S+i}, v{S+i}")
        for i in range(16): a(f"v_mul_f32 v{AO[q]+i}, v3, v{AO[q]+i}")
        for i in range(4): a(f"v_mul_f32 v{AL[q]+i}, v3, v{AL[q]+i}")
        a("s_nop 1")
        a(pv(S,0,0,q)); a(sm(S,0,q)); a(pv(S,1,0,q)); a(sm(S,1,q))
        a("s_nop 15")
    a("s_add_u32 s26, s26, 4096\ns_cmp_lt_u32 s26, 262144\ns_cbranch_scc1 Lfb_loop\ns_branch Lattn_fin")

PACC = 40
POF = 104
PWF = [72, 88]
P_WR = [208, 209, 210, 211]; P_WW = 212; P_RD = 213; P_OV = [[214, 215], [216, 217]]
S_OSO = 64 if not STAMP else 66
def proj(a):
    vm = VmTrack()
    a(f"""
    v_lshrrev_b32 v4, 4, v1          ; G
    v_bfe_u32 v2, v1, 2, 2           ; r
    v_and_b32 v3, 3, v1              ; c4
    v_and_b32 v5, 1, v4              ; h
    v_lshrrev_b32 v6, 1, v4          ; u
    v_lshl_add_u32 v7, v5, 2, v2
    v_lshl_add_u32 v6, v6, 4, v7
    v_lshrrev_b32 v7, 1, v7
    v_lshlrev_b32 v7, 5, v7
    v_lshl_add_u32 v7, v3, 3, v7
    v_lshl_add_u32 v7, v6, 7, v7
    s_cmp_lt_u32 s{S_W}, 4
    s_cselect_b64 vcc, -1, 0
    s_cselect_b32 s26, 16, 24
    s_add_u32 s26, s26, s{S_W}
    s_lshl_b32 s26, s26, 12
    v_add_u32 v{P_WR[0]}, s26, v7
    v_add_u32 v{P_WW}, s26, v{AVO}
    v_xor_b32 v{P_WR[1]}, 32, v{P_WR[0]}
    v_xor_b32 v{P_WR[2]}, 64, v{P_WR[0]}
    v_xor_b32 v{P_WR[3]}, 96, v{P_WR[0]}
    """)
    def crd(off, d): return [f"ds_read_b64_tr_b16 {v(d+4*ct+2*h,2)}, v{P_WR[ct]} offset:{off + h*1024}" for ct in range(4) for h in range(2)]
    def cwr(off, d): return [f"ds_write_b128 v{P_WW}, {v(d+4*ct,4)} offset:{off + ct*1024}" for ct in range(4)]
    a(f"""
    s_lshl_b32 s28, s{S_B}, 3
    s_add_u32 s28, s28, s{S_TM}
    s_lshl_b32 s28, s28, 11
    s_add_u32 s30, s28, {F2_OFF}
    """)
    make_srd(a, SRD_F, 48, 49, 30, 2048)
    a(f"""
    s_and_b32 s26, s{S_W}, 3
    s_lshl_b32 s26, s26, 6
    s_lshr_b32 s27, s{S_W}, 2
    s_lshl_b32 s27, s27, 5
    s_add_u32 s26, s26, s27
    s_and_b32 s27, s{S_HP}, 8
    s_add_u32 s27, s27, s{S_HP}
    s_add_u32 s26, s26, s27
    s_lshl_b32 s26, s26, 3
    v_mov_b32 v{V_FA}, s26
    """)
    PUBP = opt("pubp", 1)
    def pub(k):
        if k == PUBP:
            for x in publish(): a(x)
            a("s_setprio 0")
            stamp(a, 5)
    for x in crd(0, 104) + crd(16384, 120): a(x)
    pub(0)
    a("s_waitcnt lgkmcnt(8)")
    for x in cwr(0, 104) + crd(32768, 136): a(x)
    pub(1)
    a("s_waitcnt lgkmcnt(12)")
    for x in cwr(16384, 120): a(x)
    a(f"""
    s_lshl_b32 s28, s{S_B}, 22
    s_lshl_b32 s29, s{S_TM}, 19
    s_add_u32 s30, s28, s29
    s_lshl_b32 s29, s{S_W}, 16
    s_add_u32 s30, s30, s29
    s_add_u32 s30, s30, {O_OFF}
    """)
    make_srd(a, SRD_KV, 48, 49, 30, 65536)
    a("s_waitcnt lgkmcnt(4)")
    for x in cwr(32768, 136): a(x)
    pub(2)
    blk = [f"s_lshl_b32 s26, s{S_W}, 13", f"v_add_u32 v{P_WR[0]}, s26, v7", f"v_add_u32 v{P_WW}, s26, v{AVO}", f"v_xor_b32 v{P_WR[1]}, 32, v{P_WR[0]}",
           f"v_xor_b32 v{P_WR[2]}, 64, v{P_WR[0]}", f"v_xor_b32 v{P_WR[3]}, 96, v{P_WR[0]}"] + crd(0, 104) + crd(4096, 120) + ["s_waitcnt lgkmcnt(8)"] + cwr(0, 104) \
          + ["s_waitcnt lgkmcnt(4)"] + cwr(4096, 120)
    for x in old_only(blk): a(x)
    a(f"""
    s_lshl_b32 s28, s{S_TM}, 20
    s_lshl_b32 s29, s{S_W}, 17
    s_add_u32 s30, s28, s29
    s_lshl_b32 s29, s{S_B}, 11
    s_add_u32 s30, s30, s29
    s_lshl_b32 s29, s{S_HP}, 7
    s_add_u32 s30, s30, s29
    s_sub_u32 s31, {2048*4096}, s30
    """)
    make_srd(a, SRD_WO, 44, 45, 30, "s31")
    a(f"""
    s_and_b32 s26, s{S_HP}, 8
    s_lshl_b32 s20, s26, 11
    v_add_u32 v{P_OV[0][0]}, s20, v{AVO}
    v_add_u32 v{P_OV[0][1]}, 32768, v{P_OV[0][0]}
    v_xor_b32 v{P_OV[1][0]}, 16384, v{P_OV[0][0]}
    v_xor_b32 v{P_OV[1][1]}, 16384, v{P_OV[0][1]}
    v_add_u32 v{P_RD}, 65536, v{AVO}
    s_lshl_b32 s26, s26, 4
    s_lshr_b32 s27, s{S_W}, 1
    s_lshl_b32 s27, s27, 9
    s_add_u32 s25, s26, s27
    """)
    for j in range(8): a(f"s_add_u32 s26, s{S_HP}, {j}\ns_and_b32 s26, s26, 7\ns_lshl_b32 s{S_OSO+j}, s26, 11")
    DEPTH = opt("odepth", 4)
    polls = []
    def check(g):
        nm = f"Lpoll{g}"; polls.append(nm)
        return [f"s_cmp_lg_u32 s{S_MASK}, -1", f"s_cbranch_scc1 {nm}", f"{nm}_r:"]
    def setline(g): return f"s_xor_b32 s{S_FSO}, s25, {(g & 1) * 128 + (g >> 1) * 256}"
    def oload(p):
        o = []
        for tt in range(2):
            o.append(f"buffer_load_dwordx4 {v(POF + ((p%8)*2+tt)*4,4)}, v{P_OV[(p>>3)&1][tt]}, s[{SRD_KV}:{SRD_KV+3}], s{S_OSO + p%8} offen offset:{(p>>4)*1024}{SC1}")
            vm.issue(("O", p))
        return o
    def wreads(p):
        off = (p % 16 if p < 24 else p - 24) * 4096
        return [f"ds_read_b128 {v(PWF[p&1]+4*ct,4)}, v{P_RD} offset:{off + ct*1024}" for ct in range(4)]
    a(f"s_mov_b32 s{S_MASK}, 0")
    a(setline(0))
    a("s_waitcnt vmcnt(0) lgkmcnt(0)")
    for x in check(0): a(x)
    stamp(a, 6)
    for p in range(DEPTH):
        for x in oload(p): a(x)
    a("s_barrier")
    for x in wreads(0): a(x)
    for p in range(32):
        if p + 1 == 16: a(f"v_add_u32 v{P_RD}, 65536, v{P_RD}")
        if p + 1 == 24: a(f"v_mov_b32 v{P_RD}, v{AVO}")
        a(f"s_waitcnt vmcnt({vm.wait_count({('O', p)})}) lgkmcnt(0)")
        gaps = [[] for _ in range(8)]
        for i, r in enumerate(wreads(p + 1) if p + 1 < 32 else []): gaps[i].append(r)
        nx = p + DEPTH
        if nx < 32:
            if nx % 8 == 0:
                if ("F", nx) in vm.ops: gaps[4] += [f"s_waitcnt vmcnt({vm.wait_count({('F', nx)})})", flag_cmp(), "s_nop 0"]
                else: gaps[4] += [f"s_mov_b32 s{S_MASK}, 0", setline(nx // 8)]
                gaps[4] += check(nx // 8)
            o = oload(nx)
            if DEPTH < 8: gaps[5].append(o[0]); gaps[6].append(o[1])
            else: gaps[7] += o
            if (nx + 3) % 8 == 0 and nx + 3 < 32:
                gaps[7] += [setline((nx + 3) // 8), flag_load()]; vm.issue(("F", nx + 3))
        n = 0
        for tt in range(2):
            for ct in (range(4) if tt == 0 else range(3, -1, -1)):
                d = PACC + (tt*4+ct)*4
                a(f"v_mfma_f32_16x16x32_bf16 {v(d,4)}, {v(PWF[p&1]+4*ct,4)}, {v(POF+((p%8)*2+tt)*4,4)}, {'0' if p==0 else v(d,4)}")
                for x in gaps[n]: a(x)
                n += 1
        if p % 4 == 3: stamp(a, None, "p")
    proj.polls = polls
    a(f"""
    v_and_b32 v2, 15, v1
    v_lshlrev_b32 v2, 12, v2
    v_and_b32 v3, 1, v4
    v_lshl_add_u32 v2, v3, 5, v2
    v_lshrrev_b32 v3, 1, v4
    v_lshl_add_u32 v2, v3, 4, v2
    s_mov_b32 s26, 65536
    s_nop 3
    """)
    for tt in range(2):
        for pr in range(2):
            d = POF + (tt*2+pr)*4
            for x in range(2):
                s0 = PACC + (tt*4+2*pr+x)*4
                a(f"v_cvt_pk_bf16_f32 v{d+2*x}, v{s0}, v{s0+1}\nv_cvt_pk_bf16_f32 v{d+2*x+1}, v{s0+2}, v{s0+3}")
            a(f"s_nop 1\nv_permlane16_swap_b32 v{d}, v{d+2}\nv_permlane16_swap_b32 v{d+1}, v{d+3}")
            a(f"buffer_store_dwordx4 {v(d,4)}, v2, s[{SRD_WO}:{SRD_WO+3}], {'0' if tt==0 else 's26'} offen offset:{64*pr}{' ' + opt('ofl', 'nt').replace('_', ' ') if opt('ofl', 'nt') else ''}")

def build():
    a = Asm()
    decode(a, "Lend")
    gemm1_setup_dma(a)
    stamp(a, 0)
    gemm1_main(a, late_setup())
    stamp(a, 2)
    transition_ab(a)
    stamp(a, 3)
    attention(a)
    proj(a)
    stamp(a, 7)
    stamp_flush(a, 8)
    a.label("Lend")
    a("s_endpgm")
    for nm in ("Lspin_c1a", "Lspin_c1", "Lspin_loop"): spin_flags(a, nm)
    a(f"""
    Lnonce_spin:
    s_mov_b32 s{S_SPIN}, {SPIN_LIMIT}
    Lnonce_l:
    buffer_load_dwordx2 {v(V_NON,2)}, v{V_PD+1}, s[92:95], 0 offen sc1
    s_waitcnt vmcnt(0)
    v_readfirstlane_b32 s{S_NONCE}, v{V_NON}
    v_readfirstlane_b32 s{S_NONCE+1}, v{V_NON+1}
    s_sub_u32 s{S_SPIN}, s{S_SPIN}, 1
    s_cbranch_scc1 Lnonce_ok
    s_cmp_eq_u32 s{S_NONCE}, 0
    s_cbranch_scc1 Lnonce_l
    s_branch Lnonce_ok
    """)
    for nm in proj.polls: spin(a, nm, [f"s_cmp_lg_u32 s{S_MASK}, -1"])
    fallback(a)
    return a.text()

def main(out):
    P = "concat_heads__mha_block__softmax_full_mha__prompt_kernel"
    txt = f"""; fused QKV projection + attention + output projection (generated)
; @launch grid=(256,1,1) block=(512,1,1) lds=163840
.amdgcn_target "amdgcn-amd-amdhsa--gfx950"
.text
""" + kernel_header(P) + build() + '.section .rodata,"a"\n' + kernel_desc(P, 256, sgpr=96)
    open(out, "w").write(txt)

if __name__ == "__main__":
    args = [x for x in sys.argv[1:] if not x.startswith("--")]
    main(args[0] if args else "concat_heads__mha_block__softmax_full_mha__prompt.s")
```

```python
import sys, struct, math
from dsl import *

def opt(name, default):
    for x in sys.argv:
        if x.startswith(f"--{name}="): return type(default)(x[len(name) + 3:])
    return default
STAMP = "--stamp" in sys.argv
ROT = opt("rot", 2)
PRO = opt("pro", "X0,W0,Q0,B,W1,X1,W2").replace(",", " ")
STEPX = {}
for it in opt("stepx", "0:W3.X2.Q1;1:W4;8:Q2;16:Q3").split(";"):
    if it:
        k, val = it.split(":"); STEPX[int(k)] = val.split(".")
SC1 = "" if "--nosc1" in sys.argv else " sc1"
NTD = " nt" if "d" in opt("nt", "dw") else ""
NTP = " nt" if "p" in opt("nt", "dw") else ""
NTW = " nt" if "w" in opt("nt", "dw") else ""
ROTB = opt("rotb", -1)

KV_OFF = 0
O_OFF = 24 << 20
F1_OFF = 32 << 20
F2_OFF = 33 << 20
SLEEP = opt('sleep', 8)
ST_OFF = 64 << 20
QSCALE = struct.unpack("<I", struct.pack("<f", math.log2(math.e) / math.sqrt(32.0)))[0]
SPIN_LIMIT = 1 << 16

S_W, S_B, S_TM, S_HP = 16, 17, 18, 19
S_SOX, S_SOW, S_XB, S_WB = 20, 21, 22, 23
S_EXW = 24
S_NONCE = 80
S_MASK = 82
S_CIDX, S_M0, S_CNT, S_CH, S_WOS, S_WOM, S_FIDX, S_SPIN = 84, 85, 86, 87, 88, 89, 90, 91
S_WOI, S_WOB = 20, 21
PRIO = opt('prio', 1)
SRD_KV, SRD_F, SRD_WO, SRD_O = 4, 8, 52, 12
SRD_KVS = 56

def make_srd(a, d, lo, hi, off_sgpr, nrec):
    a(f"s_add_u32 s{d}, s{lo}, s{off_sgpr}\ns_addc_u32 s{d+1}, s{hi}, 0\ns_and_b32 s{d+1}, s{d+1}, 0xffff")
    a(f"s_mov_b32 s{d+2}, {nrec}\ns_mov_b32 s{d+3}, 0x00020000")

NST = [0]
STG = opt("stg", "m")
def stamp(a, i=None, g="m"):
    if not STAMP: return
    if i is None: g = "a" if g == "m" else g
    if g not in STG: return
    a("s_memrealtime s[60:61]\ns_memtime s[62:63]\ns_waitcnt lgkmcnt(0)\ns_lshl_b64 exec, 1, s64\nv_mov_b32 v0, s60\nv_mov_b32 v203, s62\ns_mov_b64 exec, -1\ns_add_u32 s64, s64, 1")
DBG = "--dbg" in sys.argv
def dbgstamp(a, i, inv=False):
    if DBG: a(f"s_memrealtime s[60:61]\ns_waitcnt lgkmcnt(0)\ns_{'not' if inv else 'mov'}_b32 s{96+i}, s60")
def dbgflush(a):
    if not DBG: return
    a("s_mov_b64 exec, 1\nv_mov_b32 v2, 0")
    for i in range(5): a(f"v_mov_b32 v3, s{96+i}\nbuffer_atomic_umax v3, v2, s[92:95], 0 offen offset:{8+4*i}\ns_nop 1")
def stamp_flush(a, n):
    if not STAMP: return
    a(f"""
    s_lshl_b32 s26, s2, 3
    s_add_u32 s26, s26, s{S_W}
    s_lshl_b32 s26, s26, 9
    s_add_u32 s30, s26, {ST_OFF}
    """)
    make_srd(a, 56, 48, 49, 30, 512)
    a("v_lshlrev_b32 v2, 3, v1\nv_mov_b32 v4, v0\nv_mov_b32 v5, v203\nbuffer_store_dwordx2 v[4:5], v2, s[56:59], 0 offen")

ACC = 8
def acc(tt, f): return ACC + (tt * 6 + f) * 4
XF = [[104 + 4*i for i in range(4)], [144 + 4*i for i in range(4)]]
WF = [[120 + 4*i for i in range(6)], [160 + 4*i for i in range(6)]]
V_XR = [208, 209]; V_WR = [210, 211]; V_XD = [212, 213, 214, 215]; V_WD = [216, 217]
V_PX, V_PW, V_PD = 218, 219, 220
V_NON = 222
LDS_W = 98304

def decode(a, end):
    a(f"""
    s_cmp_ge_u32 s2, 256
    s_cbranch_scc1 {end}
    s_load_dwordx16 s[32:47], s[0:1], 0
    s_load_dwordx2 s[48:49], s[0:1], 64
    v_lshrrev_b32 v1, 6, v0
    s_and_b32 s26, s2, 7
    s_lshr_b32 s27, s2, 3
    v_readfirstlane_b32 s{S_W}, v1
    s_lshr_b32 s{S_B}, s26, 2
    s_and_b32 s28, s26, 1
    s_lshl_b32 s28, s28, 2
    s_and_b32 s29, s27, 3
    s_add_u32 s{S_TM}, s28, s29
    s_bfe_u32 s28, s26, 0x10001
    s_lshl_b32 s28, s28, 3
    s_lshr_b32 s29, s27, 2
    s_add_u32 s{S_HP}, s28, s29
    v_and_b32 v1, 63, v0
    s_mul_i32 s51, {'s26' if ROTB < 0 else 's17'}, {ROT if ROTB < 0 else ROTB}
    s_and_b32 s51, s51, 15
    s_lshl_b32 s14, s51, 1
    s_lshl_b32 s15, s51, 7
    s_mov_b32 s64, 0
    """)

def gemm1_setup_dma(a):
    a(f"""
    s_lshr_b32 s26, s{S_W}, 1
    s_mul_i32 s26, s26, 24576
    s_and_b32 s27, s{S_W}, 1
    s_lshl_b32 s27, s27, 12
    s_add_u32 s{S_XB}, s26, s27
    s_mul_i32 s26, s{S_W}, 1536
    s_add_u32 s{S_WB}, s26, {LDS_W}
    s_mov_b32 s{S_EXW}, -1
    s_mov_b32 s{S_EXW+1}, 0xffff
    v_lshrrev_b32 v2, 3, v1
    s_lshl_b32 s26, s{S_W}, 5
    v_add_u32 v7, s26, v2
    v_and_b32 v3, 7, v1
    v_lshrrev_b32 v4, 4, v1
    v_xor_b32 v5, v3, v4
    v_lshlrev_b32 v5, 4, v5
    v_lshl_add_u32 v{V_XD[0]}, v7, 11, v5
    v_xor_b32 v5, 64, v5
    v_lshl_add_u32 v{V_XD[1]}, v7, 11, v5
    v_add_u32 v{V_XD[1]}, {8*2048}, v{V_XD[1]}
    v_add_u32 v{V_XD[2]}, {16*2048}, v{V_XD[0]}
    v_add_u32 v{V_XD[3]}, {16*2048}, v{V_XD[1]}
    s_mul_i32 s26, s{S_W}, 12
    """)
    for q in range(2):
        a(f"""
        v_add_u32 v7, s26, v2            ; R
        s_add_u32 s26, s26, 6
        v_lshrrev_b32 v4, 5, v7          ; sec
        v_and_b32 v7, 31, v7             ; k
        v_and_b32 v5, 2, v7
        v_bfe_u32 v6, v7, 3, 1
        v_lshl_or_b32 v5, v6, 2, v5      ; swz*2
        v_xor_b32 v5, v3, v5             ; chunk
        v_lshlrev_b32 v5, 4, v5
        v_lshl_add_u32 v5, v4, 11, v5
        v_mul_u32_u24 v7, 6144, v7
        v_add_u32 v{V_WD[q]}, v7, v5
        """)
    a(f"""
    s_waitcnt lgkmcnt(0)
    s_cmp_eq_u32 s{S_B}, 0
    s_cselect_b32 s26, s32, s38
    s_cselect_b32 s27, s33, s39
    s_cselect_b32 s28, s34, s40
    s_cselect_b32 s29, s35, s41
    s_lshl_b32 s30, s{S_TM}, 19
    """)
    make_srd(a, 4, 26, 27, 30, 524288)
    a(f"s_lshl_b32 s30, s{S_HP}, 7\ns_sub_u32 s31, {1024*6144}, s30")
    make_srd(a, 8, 28, 29, 30, "s31")

def gemm1_setup_rest(a):
    a(f"""
    s_and_b32 s30, s{S_W}, 3
    s_mul_i32 s30, s30, 24576
    v_and_b32 v2, 15, v1             ; c
    v_lshrrev_b32 v4, 4, v1          ; G
    v_lshrrev_b32 v5, 1, v2
    v_xor_b32 v5, v4, v5
    v_lshlrev_b32 v5, 4, v5
    v_lshl_add_u32 v5, v2, 7, v5
    v_add_u32 v{V_XR[0]}, s30, v5
    v_xor_b32 v{V_XR[1]}, 64, v{V_XR[0]}
    v_bfe_u32 v2, v1, 2, 2           ; r
    v_and_b32 v3, 3, v1              ; c4
    v_lshl_add_u32 v5, v4, 3, v2     ; k = 8G + r
    v_lshrrev_b32 v6, 1, v2
    v_and_b32 v7, 1, v4
    v_lshl_or_b32 v6, v7, 1, v6      ; swz
    s_lshr_b32 s30, s{S_W}, 2
    s_lshl_b32 s30, s30, 1
    v_xor_b32 v6, s30, v6
    v_lshlrev_b32 v6, 5, v6
    v_lshl_add_u32 v6, v3, 3, v6
    v_lshl_add_u32 v6, v5, 7, v6
    v_add_u32 v{V_WR[0]}, {LDS_W}, v6
    v_xor_b32 v{V_WR[1]}, 32, v{V_WR[0]}
    """)
    a(f"s_lshr_b32 s30, s{S_TM}, 2\ns_lshl_b32 s30, s30, 21")
    make_srd(a, 52, 26, 27, 30, 2 << 20)
    a(f"s_lshr_b32 s30, s{S_HP}, 3\ns_lshl_b32 s30, s30, 10\ns_sub_u32 s31, {1024*6144}, s30")
    make_srd(a, 56, 28, 29, 30, "s31")
    toks = PRO + " ".join(" ".join(x) for x in STEPX.values())
    if "Q" in toks or "R" in toks:
        for l in q_setup(): a(l)
    if "P" in toks: a(f"""
    s_lshr_b32 s26, s2, 3
    s_lshl_b32 s26, s26, 3
    s_add_u32 s26, s26, s{S_W}       ; u
    s_lshl_b32 s27, s26, 13
    v_and_b32 v2, 3, v1
    v_lshlrev_b32 v2, 11, v2
    v_lshrrev_b32 v3, 2, v1
    v_lshl_add_u32 v2, v3, 7, v2
    v_add_u32 v{V_PX}, s27, v2
    v_mul_u32_u24 v2, 43, v1
    v_lshrrev_b32 v2, 8, v2
    v_mul_u32_u24 v3, 6, v2
    v_sub_u32 v3, v1, v3
    s_and_b32 s27, s26, 3
    s_mul_i32 s27, s27, 6
    v_add_u32 v3, s27, v3
    v_lshrrev_b32 v4, 3, v3
    v_and_b32 v3, 7, v3
    v_lshlrev_b32 v3, 7, v3
    v_lshl_add_u32 v3, v4, 11, v3
    s_lshr_b32 s27, s26, 2
    v_lshl_add_u32 v2, v2, 6, s27
    v_mul_u32_u24 v2, 6144, v2
    v_add_u32 v{V_PW}, v2, v3
    """)
    a(f"""
    v_mov_b32 v{V_PD+1}, 0
    s_or_b32 s26, s2, s{S_W}
    s_cmp_lg_u32 s26, 0
    s_cbranch_scc1 Lnononce
    s_memrealtime s[26:27]
    s_mov_b32 s28, s46
    s_and_b32 s29, s47, 0xffff
    s_mov_b32 s30, 256
    s_mov_b32 s31, 0x00020000
    s_waitcnt lgkmcnt(0)
    s_or_b32 s26, s26, 1
    v_mov_b32 v2, s26
    v_mov_b32 v3, s27
    s_mov_b64 exec, 1
    buffer_store_dwordx2 v[2:3], v{V_PD+1}, s[28:31], 0 offen sc1
    s_mov_b64 exec, -1
    Lnononce:
    """)

def pf_batch(s0, n):
    return [f"s_add_u32 s13, s51, {s0}", "s_and_b32 s13, s13, 15", f"s_bfm_b64 exec, {6*n}, 0", f"s_mul_i32 s50, s13, {64*6144}",
            f"buffer_load_dword v{V_PD}, v{V_PW}, s[56:59], s50 offen{NTP}", "s_lshl_b32 s13, s13, 7",
            f"s_bfm_b64 exec, {4*n}, 0",
            f"buffer_load_dword v{V_PD}, v{V_PX}, s[52:55], s13 offen{NTP}", "s_mov_b64 exec, -1"]
V_QW, V_QX = 218, 219
SLOWC = opt("slowc", 3)
def q_setup():
    return [f"s_lshr_b32 s12, s2, 3", "s_lshl_b32 s12, s12, 3", f"s_add_u32 s12, s12, s{S_W}",
            f"v_lshlrev_b32 v{V_QW}, 11, v1", f"v_add_u32 v{V_QW}, {SLOWC*128}, v{V_QW}",
            "v_and_b32 v2, 3, v1", "v_lshlrev_b32 v2, 11, v2", "v_bfe_u32 v3, v1, 2, 1", "v_lshl_add_u32 v2, v3, 10, v2",
            "s_lshl_b32 s13, s12, 13", f"s_add_u32 s13, s13, {SLOWC*128}", f"v_add_u32 v{V_QX}, s13, v2",
            "s_lshl_b32 s13, s51, 6", "s_add_u32 s12, s12, s13"]
def q_batch(i):
    return [f"s_add_u32 s13, s12, {256*i}", "s_and_b32 s13, s13, 1023", "s_mov_b64 exec, 7", "s_mul_i32 s13, s13, 6144",
            f"buffer_load_dword v{V_PD}, v{V_QW}, s[56:59], s13 offen", "s_mov_b64 exec, -1"]
def r_batch():
    return ["s_mov_b64 exec, 0xff", f"buffer_load_dword v{V_PD}, v{V_QX}, s[52:55], 0 offen", "s_mov_b64 exec, -1"]
def dma_x(stage, q):
    return [f"s_add_u32 m0, s{S_XB}, {(stage % 3)*8192 + q*1024}", f"buffer_load_dwordx4 v{V_XD[q]}, s[4:7], s{S_SOX} offen{NTD} lds"]
def dma_w(step, q):
    return [f"s_add_u32 m0, s{S_WB}, {(step % 5)*12288 + q*768}", f"buffer_load_dwordx4 v{V_WD[q]}, s[8:11], s{S_SOW} offen{NTD} lds"]
def frag_reads(step):
    p = step & 1; xs = (step >> 1) % 3; ws = step % 5
    X = [f"ds_read_b128 {v(XF[p][tt],4)}, v{V_XR[p]} offset:{xs*8192 + tt*2048}" for tt in range(4)]
    W = [[f"ds_read_b64_tr_b16 {v(WF[p][f]+2*h,2)}, v{V_WR[f&1]} offset:{ws*12288 + (f>>1)*4096 + h*512}" for h in range(2)] for f in range(6)]
    return [X[0]] + W[0] + W[1] + W[2] + [X[1]] + W[3] + W[4] + W[5] + [X[2], X[3]]
def gemm1_mfmas(step):
    p = step & 1; out = []
    for tt in range(4):
        for f in (range(6) if tt % 2 == 0 else range(5, -1, -1)):
            d = acc(tt, f)
            A, B = (WF[p][f], XF[p][tt]) if f < 4 else (XF[p][tt], WF[p][f])
            out.append(f"v_mfma_f32_16x16x32_bf16 {v(d,4)}, {v(A,4)}, {v(B,4)}, {'0' if step == 0 else v(d,4)}")
    return out

def gemm1_main(a, late):
    vm = VmTrack()
    def group(tok):
        if tok == "B": return [["s_barrier"]], []
        if tok[0] == "Q": return [q_batch(int(tok[1:]))], ["pf"]
        if tok[0] == "R": return [r_batch()], ["pf"]
        if tok[0] == "P":
            s0, n = map(int, tok[1:].split("_")); return [pf_batch(s0, n)], ["pf", "pf"]
        if tok[0] == "W":
            st = int(tok[1:]); m0, l0 = dma_w(st, 0); m1, l1 = dma_w(st, 1)
            return [[f"s_add_u32 s{S_SOW}, s14, {st}", f"s_and_b32 s{S_SOW}, s{S_SOW}, 31", f"s_mov_b64 exec, s[{S_EXW}:{S_EXW+1}]", m0,
                     f"s_mul_i32 s{S_SOW}, s{S_SOW}, {32*6144}", l0, m1, "s_nop 0", l1, "s_mov_b64 exec, -1"]], [("W", st)] * 2
        if tok[0] == "X":
            if "h" in tok: S, h = tok[1:].split("h"); S = int(S); qs = (0, 1) if h == "0" else (2, 3)
            else: S = int(tok[1:]); qs = (0, 1, 2, 3)
            g = []
            for q in qs:
                m, l = dma_x(S, q)
                g.append([f"s_add_u32 s{S_SOX}, s15, {S*128}", m, f"s_and_b32 s{S_SOX}, s{S_SOX}, 0x780", l] if q in (0, 2) else [m, "s_nop 0", l])
            return g, [("X", S)] * len(qs)
    first = True
    for tok in PRO.split():
        g, t = group(tok)
        for x in g:
            for y in x: a(y)
        for y in t: vm.issue(y)
        if tok == "W0":
            gemm1_setup_rest(a)
    a(f"s_waitcnt vmcnt({vm.wait_count({('X',0),('W',0)})})")
    a("s_barrier")
    stamp(a, 1)
    for l in frag_reads(0): a(l)
    for st in range(32):
        if st + 1 < 32:
            need = {("W", st + 1), ("X", (st + 1) >> 1)}
            for nd in need: assert vm.ops.count(nd) == (2 if nd[0] == "W" else 4), (st, nd)
            a(f"s_waitcnt vmcnt({min(63, vm.wait_count(need))}) lgkmcnt(0)")
        else:
            a("s_waitcnt lgkmcnt(0)")
        a("s_barrier")
        M = gemm1_mfmas(st)
        if st == 31:
            last_step(a, late[31]); break
        R = frag_reads(st + 1) if st + 1 < 32 else []
        toks = list(STEPX.get(st, []))
        if st + 5 < 32: toks.append(f"W{st+5}")
        if st >= 1 and ((st - 1) >> 1) + 3 < 16: toks.append(f"X{((st-1)>>1)+3}h{0 if st % 2 == 1 else 1}")
        D = []
        for tok in toks:
            g, t = group(tok); D += g
            for y in t: vm.issue(y)
        for g in late.get(st, []):
            D.append(g)
            for y in g:
                if y.startswith("buffer_"): vm.issue("late")
        gaps = [[] for _ in range(24)]
        if len(D) <= 3:
            for i, r in enumerate(R): gaps[i].append(r)
            for i, d in enumerate(D): gaps[17 + 2*i] += d
        else:
            for i, r in enumerate(R): gaps[i + 4].append(r)
            for i, d in enumerate(D): gaps[(i * 23) // len(D)] += d
        for i, m in enumerate(M):
            a(m)
            for x in gaps[i]: a(x)

AS = [8, 24, 40, 56]
AO = {'a': 224, 'b': 240}
AQ = {('a',0): 104, ('a',1): 108, ('b',0): 112, ('b',1): 116}
AC = {'a': 120, 'b': 136}
AK = [[152, 156], [160, 164]]
AV = [[168, 172], [176, 180]]
AL = {'a': 184, 'b': 188}
ASEL = 192; AIDX = 196; AADDR = 197; AVO = 198; AWD = 199
AFL = 200
AFA = 202
V_VS, V_VL = 205, 207
AADK, AVK = 204, 206
V_FA = 221
S_CH2 = 22
def qk1(Y, kb, q, c=None): return f"v_mfma_f32_32x32x16_bf16 {v(Y,16)}, {v(AK[kb][0],4)}, {v(AQ[(q,0)],4)}, {v(AC[q],16) if c is None else c}"
def qk2(Y, kb, q): return f"v_mfma_f32_32x32x16_bf16 {v(Y,16)}, {v(AK[kb][1],4)}, {v(AQ[(q,1)],4)}, {v(Y,16)}"
def pv(Z, h, vb, q): return f"v_smfmac_f32_32x32x32_bf16 {v(AO[q],16)}, {v(AV[vb][h],4)}, {v(Z+8*h,8)}, v{AIDX}"
def sm(Z, h, q): return f"v_smfmac_f32_16x16x64_bf16 {v(AL[q],4)}, {v(ASEL,4)}, {v(Z+8*h,8)}, v{AIDX}"
def srd(d, lo, hi, off, nrec):
    return [f"s_add_u32 s{d}, s{lo}, s{off}", f"s_addc_u32 s{d+1}, s{hi}, 0", f"s_and_b32 s{d+1}, s{d+1}, 0xffff", f"s_mov_b32 s{d+2}, {nrec}", f"s_mov_b32 s{d+3}, 0x00020000"]

def late_setup():
    L = {}
    L[24] = [["s_mov_b32 s92, s46", "s_and_b32 s93, s47, 0xffff", "s_mov_b32 s94, 256", "s_mov_b32 s95, 0x00020000",
              f"buffer_load_dwordx2 {v(V_NON,2)}, v{V_PD+1}, s[92:95], 0 offen sc1"]]
    if WARMF:
        L[25] = [[f"s_lshl_b32 s28, s{S_B}, 4", f"s_add_u32 s28, s28, s{S_HP}", "s_lshl_b32 s28, s28, 10", f"s_add_u32 s30, s28, {F1_OFF}",
                  f"s_lshl_b32 s28, s{S_B}, 3", f"s_add_u32 s28, s28, s{S_TM}", "s_lshl_b32 s28, s28, 11", f"s_add_u32 s31, s28, {F2_OFF}",
                  "s_mov_b32 s64, s64" if False else "s_nop 0",
                  "s_mov_b32 s76, s48", "s_and_b32 s77, s49, 0xffff", f"s_mov_b32 s78, {34 << 20}", "s_mov_b32 s79, 0x00020000",
                  "v_lshlrev_b32 v2, 7, v1", "s_mov_b64 exec, 0xff", f"buffer_load_dword v{V_PD}, v2, s[76:79], s30 offen sc1",
                  "s_mov_b64 exec, 0xffff", f"buffer_load_dword v{V_PD}, v2, s[76:79], s31 offen sc1", "s_mov_b64 exec, -1"]]
    L[27] = [[f"v_mov_b32 v{AO['a']+8*g+i}, 0" for i in range(8)] for g in range(3)]
    L[28] = [[f"v_lshlrev_b32 v{AVO}, 4, v1", "v_and_b32 v2, 7, v1", f"v_lshlrev_b32 v{AFA}, 3, v2", f"s_lshr_b32 s26, s{S_W}, 2", "s_lshl_b32 s26, s26, 14",
              f"v_add_u32 v{AADDR}, s26, v{AVO}", f"v_mov_b32 v{AIDX}, 0xdddddddd"],
             ["v_bfe_u32 v2, v1, 2, 1", "v_mov_b32 v3, 0x3f803f80", "v_cmp_eq_u32 vcc, 0, v2", "s_nop 1",
              f"v_cndmask_b32 v{ASEL}, 0, v3, vcc", f"v_cndmask_b32 v{ASEL+1}, 0, v3, vcc", f"v_xor_b32 v{ASEL+2}, v3, v{ASEL}", f"v_xor_b32 v{ASEL+3}, v3, v{ASEL}"],
             [f"v_mov_b32 v{AL['a']+i}, 0" for i in range(8)] + [f"v_mov_b32 v{AO['a']+24+i}, 0" for i in range(8)]]
    L[29] = [["v_and_b32 v2, 15, v1", "v_lshrrev_b32 v4, 4, v1", "v_lshlrev_b32 v4, 9, v4", f"v_lshl_add_u32 v{V_VS}, v2, 4, v4",
              "v_bfe_u32 v2, v1, 2, 1", "v_bfe_u32 v3, v1, 3, 2", "v_and_b32 v4, 35, v1", "v_lshl_add_u32 v4, v2, 4, v4", "v_lshl_add_u32 v4, v3, 2, v4",
              f"v_lshlrev_b32 v{AVK}, 4, v4", f"v_sub_u32 v2, v{AADDR}, v{AVO}", f"v_add_u32 v{AADK}, v2, v{AVK}"],
             [f"s_and_b32 s26, s{S_W}, 2", "s_lshl_b32 s26, s26, 14", f"s_and_b32 s27, s{S_W}, 1", "s_lshl_b32 s27, s27, 13", "s_add_u32 s26, s26, s27",
              f"s_lshr_b32 s27, s{S_W}, 2", "s_lshl_b32 s27, s27, 14", "s_add_u32 s26, s26, s27",
              f"v_add_u32 v{V_VL}, s26, v{V_VS}"],
             ["v_lshrrev_b32 v2, 3, v1", "v_and_b32 v3, 7, v1", "v_lshrrev_b32 v4, 4, v1", "v_lshlrev_b32 v4, 1, v4", "v_xor_b32 v4, v3, v4",
              "v_lshlrev_b32 v4, 4, v4", f"v_lshl_add_u32 v{AWD}, v2, 11, v4"]]
    L[30] = [[f"s_lshl_b32 s26, s{S_B}, 5", f"s_lshl_b32 s27, s{S_HP}, 1", "s_add_u32 s26, s26, s27",
              f"s_and_b32 s28, s{S_W}, 3", "s_lshl_b32 s29, s28, 12", "s_lshl_b32 s30, s26, 18", "s_add_u32 s31, s30, s29", "s_sub_u32 s50, 524288, s29"]
             + srd(SRD_KV, 48, 49, 31, "s50") + [f"s_lshr_b32 s27, s{S_W}, 2", "s_add_u32 s26, s26, s27", "s_lshl_b32 s30, s26, 18"],
             [f"s_lshl_b32 s27, s{S_TM}, 3", "s_lshl_b32 s28, s28, 1", "s_add_u32 s27, s27, s28", "s_lshl_b32 s29, s27, 12", "s_add_u32 s31, s30, s29"]
             + srd(SRD_KVS, 48, 49, 31, 8192) + ["s_mov_b32 s50, 4096"],
             [f"s_lshl_b32 s28, s{S_B}, 22", "s_lshl_b32 s29, s27, 16", "s_add_u32 s31, s28, s29", "s_and_b32 s28, s26, 31", "s_lshl_b32 s28, s28, 10",
              "s_add_u32 s31, s31, s28", f"s_add_u32 s31, s31, {O_OFF}"] + srd(SRD_O, 48, 49, 31, 131072)]
    L[31] = ([f"s_bitcmp0_b32 s{S_W}, 1", "s_cselect_b64 vcc, -1, 0", f"s_lshl_b32 s28, s{S_B}, 4", f"s_add_u32 s28, s28, s{S_HP}", "s_lshl_b32 s28, s28, 10", f"s_add_u32 s31, s28, {F1_OFF}"] + srd(SRD_F, 48, 49, 31, 1024)
             + [f"s_cmp_eq_u32 s{S_B}, 0", "s_cselect_b32 s26, s36, s42", "s_cselect_b32 s27, s37, s43", f"s_lshl_b32 s30, s{S_HP}, 7", f"s_sub_u32 s31, {1024*2048}, s30"]
             + srd(SRD_WO, 26, 27, 30, "s31")
             + [f"s_mov_b32 s{S_WOI}, -1", f"s_lshl_b32 s{S_WOB}, s{S_W}, 14", f"s_lshl_b32 s27, s{S_W}, 10", f"s_add_u32 s{S_WOM}, s27, 65536",
                f"s_lshl_b32 s{S_M0}, s{S_W}, 12", f"s_mov_b32 s{S_CIDX}, 16384", f"s_lshl_b32 s23, s{S_TM}, 15", f"s_lshr_b32 s51, s{S_W}, 1",
                f"s_mov_b32 s26, {QSCALE}", f"s_mov_b32 s27, {QSCALE}"])
    return L

UNITS = [('V',0,0,80), ('V',0,1,84), ('V',1,0,72), ('V',1,1,76), ('K',1,1,88), ('K',1,0,92), ('K',0,0,96), ('K',0,1,100)]
def unit_src(u):
    k, T, h, d = UNITS[u]
    return [(2*T, 4+h), (2*T+1, 4+h)] if k == 'V' else [(2*T+h, 2), (2*T+h, 3)]
def cvt4(regs, d): return [f"v_cvt_pk_bf16_f32 v{d+i}, v{regs[2*i]}, v{regs[2*i+1]}" for i in range(4)]
def unit_cvt(u):
    k, T, h, d = UNITS[u]
    regs = [acc(*x) + i for x in unit_src(u) for i in range(4)]
    w = f"ds_write_b128 v{V_VL}, {v(d,4)} offset:{T*4096 + (2048 if k == 'V' else 0) + h*256}"
    return cvt4(regs, d) + [w]
def kv_store(u):
    k, T, h, d = UNITS[u]
    return f"buffer_store_dwordx4 {v(d,4)}, v{V_VS}, s[{SRD_KVS}:{SRD_KVS+3}], {'0' if T == 0 else 's50'} offen offset:{(2048 if k == 'V' else 0) + h*256}{SC1}"
NLAB = [0]
def if_vcc(ins, want=True):
    NLAB[0] += 1
    return [f"s_cbranch_vcc{'z' if want else 'nz'} Lskip{NLAB[0]}"] + ins + [f"Lskip{NLAB[0]}:"]
old_only = if_vcc
def q_cvt(tt):
    return [f"v_pk_mul_f32 {v(acc(tt,0)+2*i,2)}, {v(acc(tt,0)+2*i,2)}, s[26:27]" for i in range(4)] + cvt4([acc(tt,0)+i for i in range(8)], AQ[("ab"[tt >> 1], tt & 1)])

def last_step(a, sal):
    order = [(3, 0), (3, 1)] + [x for u in range(8) for x in unit_src(u)] + [(tt, f) for tt in range(3) for f in range(2)]
    gaps = [[] for _ in range(24)]
    per = (len(sal) + 9) // 10
    for i, x in enumerate(sal): gaps[i // per].append(x)
    gaps[10] += q_cvt(3)
    for u in range(6): gaps[12 + 2*u] += unit_cvt(u) + (if_vcc([kv_store(u - 1), kv_store(u)]) if u & 1 else [])
    for i, (tt, f) in enumerate(order):
        d = acc(tt, f)
        A, B = (WF[1][f], XF[1][tt]) if f < 4 else (XF[1][tt], WF[1][f])
        a(f"v_mfma_f32_16x16x32_bf16 {v(d,4)}, {v(A,4)}, {v(B,4)}, {v(d,4)}")
        for x in gaps[i]: a(x)
    for x in unit_cvt(6) + unit_cvt(7) + if_vcc([kv_store(6), kv_store(7)]): a(x)

def transition_ab(a):
    a(f"s_cmp_lt_u32 s{S_W}, 4\ns_setprio 1\ns_cbranch_scc0 Lyng0\ns_setprio 2\nLyng0:")
    a("s_waitcnt lgkmcnt(0)\ns_barrier")
    for j in range(2): a(f"ds_read_b128 {v(AK[0][j],4)}, v{AADK} offset:{1024*j}")
    for j in range(2): a(f"ds_read_b128 {v(AV[0][j],4)}, v{AADDR} offset:{2048+1024*j}")
    for tt in range(3):
        for x in q_cvt(tt): a(x)
    a("s_nop 1")
    for q in "ab":
        for i in range(4): a(f"v_permlane16_swap_b32 v{AQ[(q,0)]+i}, v{AQ[(q,1)]+i}")
    for q in "ab":
        for i in range(4): a(f"v_permlane32_swap_b32 v{AQ[(q,0)]+i}, v{AQ[(q,1)]+i}")
    a("s_waitcnt lgkmcnt(2)")
    a(qk1(AS[0],0,'a',"0")); a(qk2(AS[0],0,'a')); a(qk1(AS[1],0,'b',"0")); a(qk2(AS[1],0,'b'))
    a(f"""
    v_readfirstlane_b32 s{S_NONCE}, v{V_NON}
    v_readfirstlane_b32 s{S_NONCE+1}, v{V_NON+1}
    s_lshl_b32 s26, s{S_TM}, 4
    s_add_u32 s26, s26, s{S_W}
    s_lshl_b32 s28, s26, 3
    s_nop 3
    s_cmp_eq_u32 s{S_NONCE}, 0
    s_cbranch_scc1 Lnonce_spin
    Lnonce_ok:
    v_mov_b32 v{V_FA}, s28
    s_nop 0
    """)
    rowmax16(a, AS[0], 2, 3)
    rowmax16(a, AS[1], 4, 5)
    for i in range(8): a(f"v_pk_mul_f32 {v(AC['a']+2*i,2)}, v[2:3], -1.0 op_sel_hi:[0,0]")
    a(f"v_pk_mul_f32 {v(AC['b'],2)}, v[4:5], -1.0 op_sel_hi:[0,0]\nv_pk_mul_f32 {v(AC['b']+2,2)}, v[4:5], -1.0 op_sel_hi:[0,0]")
    a(qk1(AS[0],0,'a')); a(qk2(AS[0],0,'a'))
    for i in range(2, 8): a(f"v_pk_mul_f32 {v(AC['b']+2*i,2)}, v[4:5], -1.0 op_sel_hi:[0,0]")
    a("s_nop 4")

def rowmax16(a, S, m, t):
    a(f"v_max3_f32 v{m}, v{S}, v{S+1}, v{S+2}")
    for i in range(3, 15, 2): a(f"v_max3_f32 v{m}, v{m}, v{S+i}, v{S+i+1}")
    a(f"v_max_f32 v{m}, v{m}, v{S+15}")
    a(f"v_mov_b32 v{t}, v{m}\ns_nop 1\nv_permlane32_swap_b32 v{m}, v{t}\ns_nop 0\nv_max_f32 v{m}, v{m}, v{t}")

def attn_half(a, t, q, extra=None, skipz=False):
    hs = (2*t + (q == 'b')) % 4
    oq = 'b' if q == 'a' else 'a'
    X = AS[hs]; Y = AS[(hs+1) % 4]; Z = AS[(hs-1) % 4]
    kb = t % 2 if q == 'a' else (t+1) % 2
    vb = (t-1) % 2 if q == 'a' else t % 2
    nt = (t + 1) % 4
    M = {'Q1': qk1(Y,kb,oq), 'Q2': qk2(Y,kb,oq), 'P1': pv(Z,0,vb,oq), 'S1': sm(Z,0,oq), 'P2': pv(Z,1,vb,oq), 'S2': sm(Z,1,oq)}
    e = 0
    for tok in "Q1 W0 3 S1 L0 2 Q2 3 P1 3 S2 L1 2 P2 W1 3".split():
        if tok in M:
            if not (skipz and tok[0] != 'Q'): a(M[tok])
        elif tok in ('L0', 'L1'):
            j = int(tok[1])
            if q == 'a': a(f"ds_read_b128 {v(AK[(t+1)%2][j],4)}, v{AADK} offset:{nt*4096 + 1024*j}")
            else: a(f"ds_read_b128 {v(AV[(t+1)%2][j],4)}, v{AADDR} offset:{nt*4096 + 2048 + 1024*j}")
        elif tok == 'W0':
            if q == 'b': a("s_waitcnt lgkmcnt(0)")
        elif tok == 'W1':
            if q == 'a': a("s_waitcnt lgkmcnt(1)")
        else:
            for _ in range(int(tok)):
                a(f"v_exp_f32 v{X+e}, v{X+e}"); e += 1
        if extra and tok in extra:
            for x in extra[tok]: a(x)
    assert e == 16

def kv_dma(h): return [f"buffer_load_dwordx4 v{AVO}, s[{SRD_KV}:{SRD_KV+3}], s{S_CH if h == 0 else S_CH2} offen offset:{1024*i}{SC1} lds" for i in range(4)]
S_FSO = 24
def flag_load(): return f"buffer_load_dwordx2 {v(AFL,2)}, v{AFA}, s[{SRD_F}:{SRD_F+3}], s{S_FSO} offen sc1"
def chunk_scalars():
    return [f"s_add_u32 s{S_CIDX}, s{S_CIDX}, 16384", f"s_xor_b32 s{S_CH}, s{S_CIDX}, s23", f"s_add_u32 s{S_CH2}, s{S_CH}, 262144",
            f"s_bfe_u32 s26, s{S_CH}, 0x1000e", "s_lshl_b32 s26, s26, 1", f"s_add_u32 s{S_FIDX}, s26, s51"]
def line_cur(): return [f"s_lshr_b32 s26, s{S_CH}, 15", f"s_lshl_b32 s{S_FSO}, s26, 7"]
def line_next(): return [f"s_add_u32 s26, s{S_CIDX}, 16384", "s_xor_b32 s26, s26, s23", "s_bfe_u32 s26, s26, 0x3000f", f"s_lshl_b32 s{S_FSO}, s26, 7"]
def mask_test():
    return [f"s_lshr_b32 s26, s{S_MASK}, s{S_FIDX}", "s_andn2_b32 s26, 0x11, s26"]
def flag_cmp(): return f"v_cmp_eq_u64 s[{S_MASK}:{S_MASK+1}], s[{S_NONCE}:{S_NONCE+1}], {v(AFL,2)}"
def spin(a, name, test):
    a(f"""
    {name}:
    s_mov_b32 s{S_SPIN}, {SPIN_LIMIT}
    {name}_l:
    {flag_load()}
    s_waitcnt vmcnt(0)
    {flag_cmp()}
    s_sub_u32 s{S_SPIN}, s{S_SPIN}, 1
    s_cbranch_scc1 {name}_r
    """)
    for x in test: a(x)
    a(f"s_cbranch_scc0 {name}_r\ns_sleep {SLEEP}\ns_branch {name}_l")
def spin_flags(a, name): spin(a, name, mask_test())
def wo_dma():
    return [f"s_add_u32 s{S_WOI}, s{S_WOI}, 1", f"s_add_u32 s26, s{S_WOI}, s{S_HP}", "s_and_b32 s26, s26, 7",
            f"s_xor_b32 s27, s{S_WOI}, s{S_HP}", "s_and_b32 s27, s27, 8", "s_or_b32 s26, s26, s27", "s_lshl_b32 s26, s26, 1",
            f"s_lshr_b32 s27, s{S_WOI}, 4", "s_add_u32 s26, s26, s27", "s_lshl_b32 s26, s26, 16", f"s_mov_b32 m0, s{S_WOM}",
            f"s_add_u32 s{S_WOS}, s26, s{S_WOB}", f"s_add_u32 s{S_WOM}, s{S_WOM}, 4096",
            f"buffer_load_dwordx4 v{AWD}, s[{SRD_WO}:{SRD_WO+3}], s{S_WOS} offen{NTW} lds"]
TOUCH = "--touch" in sys.argv
WARMF = "--nowarmf" not in sys.argv
def publish(): return ["s_waitcnt vmcnt(0)", "s_mov_b64 exec, 1", f"buffer_store_dwordx2 {v(V_NON,2)}, v{V_FA}, s[{SRD_F}:{SRD_F+3}], 0 offen sc1", "s_mov_b64 exec, -1"]
def w3_dma(k):
    o = [f"s_lshl_b32 s28, s{S_W}, 1", f"s_add_u32 s28, s28, {24 + k}", f"s_add_u32 s26, s28, s{S_HP}", "s_and_b32 s26, s26, 7",
         f"s_xor_b32 s27, s28, s{S_HP}", "s_and_b32 s27, s27, 8", "s_or_b32 s26, s26, s27", "s_lshl_b32 s26, s26, 17", f"s_add_u32 s{S_WOS}, s26, 65536",
         f"s_lshl_b32 s{S_WOM}, s{S_W}, 13"]
    for i in range(4):
        o += [f"s_add_u32 m0, s{S_WOM}, {k*4096 + i*1024}", "s_nop 0", f"buffer_load_dwordx4 v{AWD}, s[{SRD_WO}:{SRD_WO+3}], s{S_WOS} offen{NTW} lds"]
        if i < 3: o.append(f"s_add_u32 s{S_WOS}, s{S_WOS}, 16384")
    return o
LST = opt("lst", 2)
def attn_chunk(a, kind):
    tog = f"v_xor_b32 v{AADDR}, 32768, v{AADDR}\nv_xor_b32 v{AADK}, 32768, v{AADK}"
    for t in range(4):
        ea, eb = {}, {}
        if kind == 'c0':
            for k, e in enumerate((ea, eb)):
                j = 2*t + k - LST
                if 0 <= j < 4: e['P1'] = if_vcc([kv_store(2*j), kv_store(2*j + 1)], False)
        if kind == 'c1' and t == 0:
            eb['P2'] = [f"s_and_b32 s26, s{S_W}, 6", "s_cmp_eq_u32 s26, 2", "s_cbranch_scc0 Lpub2"] + publish() + ["Lpub2:"]
        if t == 3:
            if kind == 'c0':
                stamp(a); a("s_waitcnt lgkmcnt(0)\ns_barrier"); stamp(a)
                for x in [f"s_cmp_lt_u32 s{S_W}, 4", "s_cselect_b64 vcc, -1, 0", f"s_and_b32 s26, s{S_W}, 6", "s_cmp_eq_u32 s26, 2", "s_cbranch_scc1 Lpub1"] + publish() + ["Lpub1:"]: a(x)
                stamp(a)
                ea['Q1'] = [tog]
            else:
                if kind == 'c1':
                    for x in old_only(chunk_scalars() + line_cur() + ["s_branch Lspin_c1a", "Lspin_c1a_r:", f"s_mov_b32 m0, s{S_M0}", "s_nop 0"] + kv_dma(0)
                                      + [f"s_add_u32 m0, s{S_M0}, 16384", "s_nop 0"] + kv_dma(1)): a(x)
                if kind != 'c15':
                    stamp(a); a("s_waitcnt vmcnt(0) lgkmcnt(0)"); stamp(a); a("s_barrier"); stamp(a)
                if kind in ('c1', 'loop'):
                    nm = "Lspin_" + kind
                    ea = {'Q1': [tog],
                          'Q2': old_only([flag_cmp(), f"s_xor_b32 s{S_M0}, s{S_M0}, 32768"] + chunk_scalars() + [f"s_mov_b32 m0, s{S_M0}"] + mask_test()
                                         + [f"s_cbranch_scc1 {nm}", f"{nm}_r:"] + kv_dma(0)),
                          'P2': old_only([f"s_add_u32 m0, s{S_M0}, 16384", "s_nop 0"] + kv_dma(1) + line_next() + [flag_load()])}
                    if kind == 'loop':
                        eb = {'Q2': old_only(wo_dma() + wo_dma()), 'P2': [f"s_sub_u32 s{S_CNT}, s{S_CNT}, 1", f"s_cmp_lg_u32 s{S_CNT}, 0"]}
                elif kind == 'c14':
                    ea = {'Q1': [tog], 'Q2': old_only(w3_dma(0)), 'P2': old_only(w3_dma(1))}
        attn_half(a, t, 'a', ea, skipz=(kind == 'c0' and t == 0)); attn_half(a, t, 'b', eb)

def attention(a):
    attn_chunk(a, 'c0')
    attn_chunk(a, 'c1')
    a(f"s_mov_b32 s{S_CNT}, 12")
    a(".p2align 6")
    a.label("Lattn_loop")
    attn_chunk(a, 'loop')
    a("s_cbranch_scc1 Lattn_loop")
    attn_chunk(a, 'c14')
    attn_chunk(a, 'c15')
    a("s_nop 1")
    stamp(a, 4)
    a(pv(AS[3],0,1,'b')); a(sm(AS[3],0,'b')); a(pv(AS[3],1,1,'b')); a(sm(AS[3],1,'b'))
    a(f"""
    s_mov_b32 s26, 0x4e800000        ; 2^30
    v_and_b32 v4, 15, v1
    v_lshlrev_b32 v4, 4, v4
    v_bfe_u32 v5, v1, 4, 1
    v_lshl_add_u32 v4, v5, 15, v4
    v_lshrrev_b32 v5, 5, v1
    v_lshl_add_u32 v6, v5, 8, v4
    s_mov_b32 s27, 65536
    v_cmp_nge_f32 vcc, s26, v{AL['a']}
    v_cmp_nge_f32 s[28:29], s26, v{AL['b']}
    s_or_b64 vcc, vcc, s[28:29]
    s_cbranch_vccnz Lattn_fallback
    Lattn_fin:
    v_rcp_f32 v2, v{AL['a']}
    v_rcp_f32 v4, v{AL['b']}
    """)
    for qi, q in enumerate('ab'):
        for u in range(2):
            for i in range(4): a(f"v_pk_mul_f32 {v(AO[q]+8*u+2*i,2)}, {v(AO[q]+8*u+2*i,2)}, {v(2+2*qi,2)} op_sel_hi:[1,0]")
            d = AS[0] + 4*(2*qi+u)
            for x in cvt4([AO[q]+8*u+i for i in range(8)], d): a(x)
            a(f"buffer_store_dwordx4 {v(d,4)}, v6, s[{SRD_O}:{SRD_O+3}], {'0' if qi==0 else 's27'} offen offset:{512*u}{SC1}")

def fallback(a):
    a.label("Lattn_fallback")
    a(f"""
    s_waitcnt vmcnt(0)
    s_lshl_b32 s26, s{S_B}, 5
    s_lshl_b32 s28, s{S_HP}, 1
    s_add_u32 s26, s26, s28
    s_lshr_b32 s28, s{S_W}, 2
    s_add_u32 s26, s26, s28
    s_lshl_b32 s30, s26, 18
    """)
    make_srd(a, SRD_KV, 48, 49, 30, 262144)
    a(f"""
    s_mov_b32 s{S_SPIN}, {SPIN_LIMIT}
    v_lshrrev_b32 v2, 3, v1
    v_lshl_add_u32 v2, v2, 7, v{AFA}
    Lfb_poll:
    buffer_load_dwordx2 {v(AFL,2)}, v2, s[{SRD_F}:{SRD_F+3}], 0 offen sc1
    s_waitcnt vmcnt(0)
    v_cmp_eq_u64 vcc, s[{S_NONCE}:{S_NONCE+1}], {v(AFL,2)}
    s_sub_u32 s{S_SPIN}, s{S_SPIN}, 1
    s_cbranch_scc1 Lfb_go
    s_cmp_eq_u64 vcc, -1
    s_cbranch_scc0 Lfb_poll
    Lfb_go:
    """)
    for r in list(range(AO['a'], AO['a']+32)) + list(range(AL['a'], AL['a']+8)): a(f"v_mov_b32 v{r}, 0")
    Mr = {'a': AC['a'], 'b': AC['b']}
    a(f"v_mov_b32 v{Mr['a']}, 0xff800000\nv_mov_b32 v{Mr['b']}, 0xff800000\ns_mov_b32 s26, 0")
    a.label("Lfb_loop")
    for j in range(2): a(f"buffer_load_dwordx4 {v(AK[0][j],4)}, v{AVK}, s[{SRD_KV}:{SRD_KV+3}], s26 offen offset:{1024*j} sc1")
    for j in range(2): a(f"buffer_load_dwordx4 {v(AV[0][j],4)}, v{AVO}, s[{SRD_KV}:{SRD_KV+3}], s26 offen offset:{2048+1024*j} sc1")
    a("s_waitcnt vmcnt(0)")
    for q in 'ab':
        S = AS[0]
        a(qk1(S,0,q,"0")); a(qk2(S,0,q)); a("s_nop 15")
        rowmax16(a, S, 2, 3)
        a(f"v_max_f32 v2, v2, v{Mr[q]}\nv_sub_f32 v3, v{Mr[q]}, v2\nv_exp_f32 v3, v3\nv_mov_b32 v{Mr[q]}, v2")
        for i in range(16): a(f"v_sub_f32 v{S+i}, v{S+i}, v2")
        for i in range(16): a(f"v_exp_f32 v{S+i}, v{S+i}")
        for i in range(16): a(f"v_mul_f32 v{AO[q]+i}, v3, v{AO[q]+i}")
        for i in range(4): a(f"v_mul_f32 v{AL[q]+i}, v3, v{AL[q]+i}")
        a("s_nop 1")
        a(pv(S,0,0,q)); a(sm(S,0,q)); a(pv(S,1,0,q)); a(sm(S,1,q))
        a("s_nop 15")
    a("s_add_u32 s26, s26, 4096\ns_cmp_lt_u32 s26, 262144\ns_cbranch_scc1 Lfb_loop\ns_branch Lattn_fin")

PACC = 40
POF = 104
PWF = [72, 88]
P_WR = [208, 209, 210, 211]; P_WW = 212; P_RD = 213; P_OV = [[214, 215], [216, 217]]
S_OSO = 64 if not STAMP else 66
def proj(a):
    vm = VmTrack()
    a(f"""
    v_lshrrev_b32 v4, 4, v1          ; G
    v_bfe_u32 v2, v1, 2, 2           ; r
    v_and_b32 v3, 3, v1              ; c4
    v_and_b32 v5, 1, v4              ; h
    v_lshrrev_b32 v6, 1, v4          ; u
    v_lshl_add_u32 v7, v5, 2, v2
    v_lshl_add_u32 v6, v6, 4, v7
    v_lshrrev_b32 v7, 1, v7
    v_lshlrev_b32 v7, 5, v7
    v_lshl_add_u32 v7, v3, 3, v7
    v_lshl_add_u32 v7, v6, 7, v7
    s_cmp_lt_u32 s{S_W}, 4
    s_cselect_b64 vcc, -1, 0
    s_cselect_b32 s26, 16, 24
    s_add_u32 s26, s26, s{S_W}
    s_lshl_b32 s26, s26, 12
    v_add_u32 v{P_WR[0]}, s26, v7
    v_add_u32 v{P_WW}, s26, v{AVO}
    v_xor_b32 v{P_WR[1]}, 32, v{P_WR[0]}
    v_xor_b32 v{P_WR[2]}, 64, v{P_WR[0]}
    v_xor_b32 v{P_WR[3]}, 96, v{P_WR[0]}
    """)
    def crd(off, d): return [f"ds_read_b64_tr_b16 {v(d+4*ct+2*h,2)}, v{P_WR[ct]} offset:{off + h*1024}" for ct in range(4) for h in range(2)]
    def cwr(off, d): return [f"ds_write_b128 v{P_WW}, {v(d+4*ct,4)} offset:{off + ct*1024}" for ct in range(4)]
    a(f"""
    s_lshl_b32 s28, s{S_B}, 3
    s_add_u32 s28, s28, s{S_TM}
    s_lshl_b32 s28, s28, 11
    s_add_u32 s30, s28, {F2_OFF}
    """)
    make_srd(a, SRD_F, 48, 49, 30, 2048)
    a(f"""
    s_and_b32 s26, s{S_W}, 3
    s_lshl_b32 s26, s26, 6
    s_lshr_b32 s27, s{S_W}, 2
    s_lshl_b32 s27, s27, 5
    s_add_u32 s26, s26, s27
    s_and_b32 s27, s{S_HP}, 8
    s_add_u32 s27, s27, s{S_HP}
    s_add_u32 s26, s26, s27
    s_lshl_b32 s26, s26, 3
    v_mov_b32 v{V_FA}, s26
    """)
    PUBP = opt("pubp", 1)
    def pub(k):
        if k == PUBP:
            for x in publish(): a(x)
            a("s_setprio 0")
            stamp(a, 5)
    for x in crd(0, 104) + crd(16384, 120): a(x)
    pub(0)
    a("s_waitcnt lgkmcnt(8)")
    for x in cwr(0, 104) + crd(32768, 136): a(x)
    pub(1)
    a("s_waitcnt lgkmcnt(12)")
    for x in cwr(16384, 120): a(x)
    a(f"""
    s_lshl_b32 s28, s{S_B}, 22
    s_lshl_b32 s29, s{S_TM}, 19
    s_add_u32 s30, s28, s29
    s_lshl_b32 s29, s{S_W}, 16
    s_add_u32 s30, s30, s29
    s_add_u32 s30, s30, {O_OFF}
    """)
    make_srd(a, SRD_KV, 48, 49, 30, 65536)
    a("s_waitcnt lgkmcnt(4)")
    for x in cwr(32768, 136): a(x)
    pub(2)
    blk = [f"s_lshl_b32 s26, s{S_W}, 13", f"v_add_u32 v{P_WR[0]}, s26, v7", f"v_add_u32 v{P_WW}, s26, v{AVO}", f"v_xor_b32 v{P_WR[1]}, 32, v{P_WR[0]}",
           f"v_xor_b32 v{P_WR[2]}, 64, v{P_WR[0]}", f"v_xor_b32 v{P_WR[3]}, 96, v{P_WR[0]}"] + crd(0, 104) + crd(4096, 120) + ["s_waitcnt lgkmcnt(8)"] + cwr(0, 104) \
          + ["s_waitcnt lgkmcnt(4)"] + cwr(4096, 120)
    for x in old_only(blk): a(x)
    a(f"""
    s_lshl_b32 s28, s{S_TM}, 20
    s_lshl_b32 s29, s{S_W}, 17
    s_add_u32 s30, s28, s29
    s_lshl_b32 s29, s{S_B}, 11
    s_add_u32 s30, s30, s29
    s_lshl_b32 s29, s{S_HP}, 7
    s_add_u32 s30, s30, s29
    s_sub_u32 s31, {2048*4096}, s30
    """)
    make_srd(a, SRD_WO, 44, 45, 30, "s31")
    a(f"""
    s_and_b32 s26, s{S_HP}, 8
    s_lshl_b32 s20, s26, 11
    v_add_u32 v{P_OV[0][0]}, s20, v{AVO}
    v_add_u32 v{P_OV[0][1]}, 32768, v{P_OV[0][0]}
    v_xor_b32 v{P_OV[1][0]}, 16384, v{P_OV[0][0]}
    v_xor_b32 v{P_OV[1][1]}, 16384, v{P_OV[0][1]}
    v_add_u32 v{P_RD}, 65536, v{AVO}
    s_lshl_b32 s26, s26, 4
    s_lshr_b32 s27, s{S_W}, 1
    s_lshl_b32 s27, s27, 9
    s_add_u32 s25, s26, s27
    """)
    for j in range(8): a(f"s_add_u32 s26, s{S_HP}, {j}\ns_and_b32 s26, s26, 7\ns_lshl_b32 s{S_OSO+j}, s26, 11")
    DEPTH = opt("odepth", 4)
    polls = []
    def check(g):
        nm = f"Lpoll{g}"; polls.append(nm)
        return [f"s_cmp_lg_u32 s{S_MASK}, -1", f"s_cbranch_scc1 {nm}", f"{nm}_r:"]
    def setline(g): return f"s_xor_b32 s{S_FSO}, s25, {(g & 1) * 128 + (g >> 1) * 256}"
    def oload(p):
        o = []
        for tt in range(2):
            o.append(f"buffer_load_dwordx4 {v(POF + ((p%8)*2+tt)*4,4)}, v{P_OV[(p>>3)&1][tt]}, s[{SRD_KV}:{SRD_KV+3}], s{S_OSO + p%8} offen offset:{(p>>4)*1024}{SC1}")
            vm.issue(("O", p))
        return o
    def wreads(p):
        off = (p % 16 if p < 24 else p - 24) * 4096
        return [f"ds_read_b128 {v(PWF[p&1]+4*ct,4)}, v{P_RD} offset:{off + ct*1024}" for ct in range(4)]
    a(f"s_mov_b32 s{S_MASK}, 0")
    a(setline(0))
    a("s_waitcnt vmcnt(0) lgkmcnt(0)")
    for x in check(0): a(x)
    stamp(a, 6)
    for p in range(DEPTH):
        for x in oload(p): a(x)
    a("s_barrier")
    for x in wreads(0): a(x)
    for p in range(32):
        if p + 1 == 16: a(f"v_add_u32 v{P_RD}, 65536, v{P_RD}")
        if p + 1 == 24: a(f"v_mov_b32 v{P_RD}, v{AVO}")
        a(f"s_waitcnt vmcnt({vm.wait_count({('O', p)})}) lgkmcnt(0)")
        gaps = [[] for _ in range(8)]
        for i, r in enumerate(wreads(p + 1) if p + 1 < 32 else []): gaps[i].append(r)
        nx = p + DEPTH
        if nx < 32:
            if nx % 8 == 0:
                if ("F", nx) in vm.ops: gaps[4] += [f"s_waitcnt vmcnt({vm.wait_count({('F', nx)})})", flag_cmp(), "s_nop 0"]
                else: gaps[4] += [f"s_mov_b32 s{S_MASK}, 0", setline(nx // 8)]
                gaps[4] += check(nx // 8)
            o = oload(nx)
            if DEPTH < 8: gaps[5].append(o[0]); gaps[6].append(o[1])
            else: gaps[7] += o
            if (nx + 3) % 8 == 0 and nx + 3 < 32:
                gaps[7] += [setline((nx + 3) // 8), flag_load()]; vm.issue(("F", nx + 3))
        n = 0
        for tt in range(2):
            for ct in (range(4) if tt == 0 else range(3, -1, -1)):
                d = PACC + (tt*4+ct)*4
                a(f"v_mfma_f32_16x16x32_bf16 {v(d,4)}, {v(PWF[p&1]+4*ct,4)}, {v(POF+((p%8)*2+tt)*4,4)}, {'0' if p==0 else v(d,4)}")
                for x in gaps[n]: a(x)
                n += 1
        if p % 4 == 3: stamp(a, None, "p")
    proj.polls = polls
    a(f"""
    v_and_b32 v2, 15, v1
    v_lshlrev_b32 v2, 12, v2
    v_and_b32 v3, 1, v4
    v_lshl_add_u32 v2, v3, 5, v2
    v_lshrrev_b32 v3, 1, v4
    v_lshl_add_u32 v2, v3, 4, v2
    s_mov_b32 s26, 65536
    s_nop 3
    """)
    for tt in range(2):
        for pr in range(2):
            d = POF + (tt*2+pr)*4
            for x in range(2):
                s0 = PACC + (tt*4+2*pr+x)*4
                a(f"v_cvt_pk_bf16_f32 v{d+2*x}, v{s0}, v{s0+1}\nv_cvt_pk_bf16_f32 v{d+2*x+1}, v{s0+2}, v{s0+3}")
            a(f"s_nop 1\nv_permlane16_swap_b32 v{d}, v{d+2}\nv_permlane16_swap_b32 v{d+1}, v{d+3}")
            a(f"buffer_store_dwordx4 {v(d,4)}, v2, s[{SRD_WO}:{SRD_WO+3}], {'0' if tt==0 else 's26'} offen offset:{64*pr}{' ' + opt('ofl', 'nt').replace('_', ' ') if opt('ofl', 'nt') else ''}")

def build():
    a = Asm()
    decode(a, "Lend")
    gemm1_setup_dma(a)
    stamp(a, 0); dbgstamp(a, 0, True); dbgstamp(a, 1)
    gemm1_main(a, late_setup())
    stamp(a, 2); dbgstamp(a, 2)
    transition_ab(a)
    stamp(a, 3)
    attention(a)
    dbgstamp(a, 3)
    proj(a)
    stamp(a, 7); dbgstamp(a, 4); dbgflush(a)
    stamp_flush(a, 8)
    a.label("Lend")
    a("s_endpgm")
    for nm in ("Lspin_c1a", "Lspin_c1", "Lspin_loop"): spin_flags(a, nm)
    a(f"""
    Lnonce_spin:
    s_mov_b32 s{S_SPIN}, {SPIN_LIMIT}
    Lnonce_l:
    buffer_load_dwordx2 {v(V_NON,2)}, v{V_PD+1}, s[92:95], 0 offen sc1
    s_waitcnt vmcnt(0)
    v_readfirstlane_b32 s{S_NONCE}, v{V_NON}
    v_readfirstlane_b32 s{S_NONCE+1}, v{V_NON+1}
    s_sub_u32 s{S_SPIN}, s{S_SPIN}, 1
    s_cbranch_scc1 Lnonce_ok
    s_cmp_eq_u32 s{S_NONCE}, 0
    s_cbranch_scc1 Lnonce_l
    s_branch Lnonce_ok
    """)
    for nm in proj.polls: spin(a, nm, [f"s_cmp_lg_u32 s{S_MASK}, -1"])
    fallback(a)
    return a.text()

def main(out):
    P = "concat_heads__mha_block__softmax_full_mha__prompt_kernel"
    txt = f"""; fused QKV projection + attention + output projection (generated)
; @launch grid=(256,1,1) block=(512,1,1) lds=163840
.amdgcn_target "amdgcn-amd-amdhsa--gfx950"
.text
""" + kernel_header(P) + build() + '.section .rodata,"a"\n' + kernel_desc(P, 256, sgpr=102 if DBG else 96)
    open(out, "w").write(txt)

if __name__ == "__main__":
    args = [x for x in sys.argv[1:] if not x.startswith("--")]
    main(args[0] if args else "concat_heads__mha_block__softmax_full_mha__prompt.s")
```

```python
import sys, struct, math
from dsl import *

def opt(name, default):
    for x in sys.argv:
        if x.startswith(f"--{name}="): return type(default)(x[len(name) + 3:])
    return default
STAMP = "--stamp" in sys.argv
ROT = opt("rot", 2)
PRO = opt("pro", "X0,W0,Q0,B,W1,X1,W2").replace(",", " ")
STEPX = {}
for it in opt("stepx", "0:W3.X2.Q1;1:W4;8:Q2;16:Q3").split(";"):
    if it:
        k, val = it.split(":"); STEPX[int(k)] = val.split(".")
SC1 = "" if "--nosc1" in sys.argv else " sc1"
NTD = " nt" if "d" in opt("nt", "") else ""
NTP = " nt" if "p" in opt("nt", "") else ""
NTW = " nt" if "w" in opt("nt", "") else ""
ROTB = opt("rotb", -1)

KV_OFF = 0
O_OFF = 24 << 20
F1_OFF = 32 << 20
F2_OFF = 33 << 20
SLEEP = opt('sleep', 8)
ST_OFF = 64 << 20
QSCALE = struct.unpack("<I", struct.pack("<f", math.log2(math.e) / math.sqrt(32.0)))[0]
SPIN_LIMIT = 1 << 16

S_W, S_B, S_TM, S_HP = 16, 17, 18, 19
S_SOX, S_SOW, S_XB, S_WB = 20, 21, 22, 23
S_EXW = 24
S_NONCE = 80
S_MASK = 82
S_CIDX, S_M0, S_CNT, S_CH, S_WOS, S_WOM, S_FIDX, S_SPIN = 84, 85, 86, 87, 88, 89, 90, 91
S_WOI, S_WOB = 20, 21
PRIO = opt('prio', 1)
SRD_KV, SRD_F, SRD_WO, SRD_O = 4, 8, 52, 12
SRD_KVS = 56
SRD_OUT, SRD_OL, SRD_F2 = 36, 32, 76
S_FL0 = 40

def make_srd(a, d, lo, hi, off_sgpr, nrec):
    a(f"s_add_u32 s{d}, s{lo}, s{off_sgpr}\ns_addc_u32 s{d+1}, s{hi}, 0\ns_and_b32 s{d+1}, s{d+1}, 0xffff")
    a(f"s_mov_b32 s{d+2}, {nrec}\ns_mov_b32 s{d+3}, 0x00020000")

NST = [0]
STG = opt("stg", "m")
def stamp(a, i=None, g="m"):
    if not STAMP: return
    if i is None: g = "a" if g == "m" else g
    if g not in STG: return
    a("s_memrealtime s[60:61]\ns_memtime s[62:63]\ns_waitcnt lgkmcnt(0)\ns_lshl_b64 exec, 1, s64\nv_mov_b32 v0, s60\nv_mov_b32 v203, s62\ns_mov_b64 exec, -1\ns_add_u32 s64, s64, 1")
DBG = "--dbg" in sys.argv
def dbgstamp(a, i, inv=False):
    if DBG: a(f"s_memrealtime s[60:61]\ns_waitcnt lgkmcnt(0)\ns_{'not' if inv else 'mov'}_b32 s{96+i}, s60")
def dbgflush(a):
    if not DBG: return
    a("s_mov_b64 exec, 1\nv_mov_b32 v2, 0")
    for i in range(5): a(f"v_mov_b32 v3, s{96+i}\nbuffer_atomic_umax v3, v2, s[92:95], 0 offen offset:{8+4*i}\ns_nop 1")
def stamp_flush(a, n):
    if not STAMP: return
    a(f"""
    s_lshl_b32 s26, s2, 3
    s_add_u32 s26, s26, s{S_W}
    s_lshl_b32 s26, s26, 9
    s_add_u32 s30, s26, {ST_OFF}
    """)
    make_srd(a, 56, 48, 49, 30, 512)
    a("v_lshlrev_b32 v2, 3, v1\nv_mov_b32 v4, v0\nv_mov_b32 v5, v203\nbuffer_store_dwordx2 v[4:5], v2, s[56:59], 0 offen")

ACC = 8
def acc(tt, f): return ACC + (tt * 6 + f) * 4
XF = [[104 + 4*i for i in range(4)], [144 + 4*i for i in range(4)]]
WF = [[120 + 4*i for i in range(6)], [160 + 4*i for i in range(6)]]
V_XR = [208, 209]; V_WR = [210, 211]; V_XD = list(range(184, 192)); V_WD = [212, 213, 214]
V_PX, V_PW, V_PD = 218, 219, 220
V_NON = 222
LDS_W = 98304

def decode(a, end):
    a(f"""
    s_cmp_ge_u32 s2, 256
    s_cbranch_scc1 {end}
    s_load_dwordx16 s[32:47], s[0:1], 0
    s_load_dwordx2 s[48:49], s[0:1], 64
    v_lshrrev_b32 v1, 6, v0
    s_and_b32 s26, s2, 7
    s_lshr_b32 s27, s2, 3
    v_readfirstlane_b32 s{S_W}, v1
    s_lshr_b32 s{S_B}, s26, 2
    s_and_b32 s28, s26, 1
    s_lshl_b32 s28, s28, 2
    s_and_b32 s29, s27, 3
    s_add_u32 s{S_TM}, s28, s29
    s_bfe_u32 s28, s26, 0x10001
    s_lshl_b32 s28, s28, 3
    s_lshr_b32 s29, s27, 2
    s_add_u32 s{S_HP}, s28, s29
    v_and_b32 v1, 63, v0
    s_mul_i32 s51, {'s26' if ROTB < 0 else 's17'}, {ROT if ROTB < 0 else ROTB}
    s_and_b32 s51, s51, 15
    s_lshl_b32 s14, s51, 1
    s_lshl_b32 s15, s51, 7
    s_mov_b32 s64, 0
    """)

NLAB = [0]
def if_vcc(ins, want=True):
    NLAB[0] += 1
    return [f"s_cbranch_vcc{'z' if want else 'nz'} Lskip{NLAB[0]}"] + ins + [f"Lskip{NLAB[0]}:"]
old_only = if_vcc

def gemm1_setup_dma(a):
    a(f"""
    s_cmp_lt_u32 s{S_W}, 4
    s_cselect_b64 vcc, -1, 0
    s_cbranch_scc0 Lsetup1
    s_setprio 1
    Lsetup1:
    s_mul_i32 s{S_XB}, s{S_W}, 24576
    s_mul_i32 s26, s{S_W}, 3072
    s_add_u32 s{S_WB}, s26, {LDS_W}
    v_lshrrev_b32 v2, 3, v1
    s_lshl_b32 s26, s{S_W}, 6
    v_add_u32 v7, s26, v2
    v_and_b32 v3, 7, v1
    v_lshrrev_b32 v4, 4, v1
    v_xor_b32 v5, v3, v4
    v_lshlrev_b32 v5, 4, v5
    v_lshl_add_u32 v{V_XD[0]}, v7, 11, v5
    v_xor_b32 v5, 64, v5
    v_lshl_add_u32 v{V_XD[1]}, v7, 11, v5
    v_add_u32 v{V_XD[1]}, {8*2048}, v{V_XD[1]}
    """)
    for q in range(2, 8): a(f"v_add_u32 v{V_XD[q]}, {16*2048}, v{V_XD[q-2]}")
    a(f"s_mul_i32 s26, s{S_W}, 24")
    for q in range(3):
        a(f"""
        v_add_u32 v7, s26, v2            ; R
        s_add_u32 s26, s26, 8
        v_lshrrev_b32 v4, 5, v7          ; sec
        v_and_b32 v7, 31, v7             ; k
        v_and_b32 v5, 2, v7
        v_bfe_u32 v6, v7, 3, 1
        v_lshl_or_b32 v5, v6, 2, v5      ; swz*2
        v_xor_b32 v5, v3, v5             ; chunk
        v_lshlrev_b32 v5, 4, v5
        v_lshl_add_u32 v5, v4, 11, v5
        v_mul_u32_u24 v7, 6144, v7
        v_add_u32 v{V_WD[q]}, v7, v5
        """)
    a(f"""
    s_waitcnt lgkmcnt(0)
    s_cmp_eq_u32 s{S_B}, 0
    s_cselect_b32 s26, s32, s38
    s_cselect_b32 s27, s33, s39
    s_cselect_b32 s28, s34, s40
    s_cselect_b32 s29, s35, s41
    s_lshl_b32 s30, s{S_TM}, 19
    """)
    make_srd(a, 4, 26, 27, 30, 524288)
    a(f"s_lshl_b32 s30, s{S_HP}, 7\ns_sub_u32 s31, {1024*6144}, s30")
    make_srd(a, 8, 28, 29, 30, "s31")

def gemm1_setup_rest(a):
    a(f"""
    s_and_b32 s30, s{S_W}, 3
    s_mul_i32 s30, s30, 24576
    v_and_b32 v2, 15, v1             ; c
    v_lshrrev_b32 v4, 4, v1          ; G
    v_lshrrev_b32 v5, 1, v2
    v_xor_b32 v5, v4, v5
    v_lshlrev_b32 v5, 4, v5
    v_lshl_add_u32 v5, v2, 7, v5
    v_add_u32 v{V_XR[0]}, s30, v5
    v_xor_b32 v{V_XR[1]}, 64, v{V_XR[0]}
    v_bfe_u32 v2, v1, 2, 2           ; r
    v_and_b32 v3, 3, v1              ; c4
    v_lshl_add_u32 v5, v4, 3, v2     ; k = 8G + r
    v_lshrrev_b32 v6, 1, v2
    v_and_b32 v7, 1, v4
    v_lshl_or_b32 v6, v7, 1, v6      ; swz
    s_lshr_b32 s30, s{S_W}, 2
    s_lshl_b32 s30, s30, 1
    v_xor_b32 v6, s30, v6
    v_lshlrev_b32 v6, 5, v6
    v_lshl_add_u32 v6, v3, 3, v6
    v_lshl_add_u32 v6, v5, 7, v6
    v_add_u32 v{V_WR[0]}, {LDS_W}, v6
    v_xor_b32 v{V_WR[1]}, 32, v{V_WR[0]}
    """)
    a(f"s_lshr_b32 s30, s{S_TM}, 2\ns_lshl_b32 s30, s30, 21")
    make_srd(a, 52, 26, 27, 30, 2 << 20)
    a(f"s_lshr_b32 s30, s{S_HP}, 3\ns_lshl_b32 s30, s30, 10\ns_sub_u32 s31, {1024*6144}, s30")
    make_srd(a, 56, 28, 29, 30, "s31")
    toks = PRO + " ".join(" ".join(x) for x in STEPX.values())
    if "Q" in toks or "R" in toks:
        for l in q_setup(): a(l)
    if "P" in toks: a(f"""
    s_lshr_b32 s26, s2, 3
    s_lshl_b32 s26, s26, 3
    s_add_u32 s26, s26, s{S_W}       ; u
    s_lshl_b32 s27, s26, 13
    v_and_b32 v2, 3, v1
    v_lshlrev_b32 v2, 11, v2
    v_lshrrev_b32 v3, 2, v1
    v_lshl_add_u32 v2, v3, 7, v2
    v_add_u32 v{V_PX}, s27, v2
    v_mul_u32_u24 v2, 43, v1
    v_lshrrev_b32 v2, 8, v2
    v_mul_u32_u24 v3, 6, v2
    v_sub_u32 v3, v1, v3
    s_and_b32 s27, s26, 3
    s_mul_i32 s27, s27, 6
    v_add_u32 v3, s27, v3
    v_lshrrev_b32 v4, 3, v3
    v_and_b32 v3, 7, v3
    v_lshlrev_b32 v3, 7, v3
    v_lshl_add_u32 v3, v4, 11, v3
    s_lshr_b32 s27, s26, 2
    v_lshl_add_u32 v2, v2, 6, s27
    v_mul_u32_u24 v2, 6144, v2
    v_add_u32 v{V_PW}, v2, v3
    """)
    a(f"""
    v_mov_b32 v{V_PD+1}, 0
    s_or_b32 s26, s2, s{S_W}
    s_cmp_lg_u32 s26, 0
    s_cbranch_scc1 Lnononce
    s_memrealtime s[26:27]
    s_mov_b32 s28, s46
    s_and_b32 s29, s47, 0xffff
    s_mov_b32 s30, 256
    s_mov_b32 s31, 0x00020000
    s_waitcnt lgkmcnt(0)
    s_or_b32 s26, s26, 1
    v_mov_b32 v2, s26
    v_mov_b32 v3, s27
    s_mov_b64 exec, 1
    buffer_store_dwordx2 v[2:3], v{V_PD+1}, s[28:31], 0 offen sc1
    s_mov_b64 exec, -1
    Lnononce:
    """)

def pf_batch(s0, n):
    return [f"s_add_u32 s13, s51, {s0}", "s_and_b32 s13, s13, 15", f"s_bfm_b64 exec, {6*n}, 0", f"s_mul_i32 s50, s13, {64*6144}",
            f"buffer_load_dword v{V_PD}, v{V_PW}, s[56:59], s50 offen{NTP}", "s_lshl_b32 s13, s13, 7",
            f"s_bfm_b64 exec, {4*n}, 0",
            f"buffer_load_dword v{V_PD}, v{V_PX}, s[52:55], s13 offen{NTP}", "s_mov_b64 exec, -1"]
V_QW, V_QX = 218, 219
SLOWC = opt("slowc", 3)
def q_setup():
    return [f"s_lshr_b32 s12, s2, 3", "s_lshl_b32 s12, s12, 3", f"s_add_u32 s12, s12, s{S_W}",
            f"v_lshlrev_b32 v{V_QW}, 11, v1", f"v_add_u32 v{V_QW}, {SLOWC*128}, v{V_QW}",
            "v_and_b32 v2, 3, v1", "v_lshlrev_b32 v2, 11, v2", "v_bfe_u32 v3, v1, 2, 1", "v_lshl_add_u32 v2, v3, 10, v2",
            "s_lshl_b32 s13, s12, 13", f"s_add_u32 s13, s13, {SLOWC*128}", f"v_add_u32 v{V_QX}, s13, v2",
            "s_lshl_b32 s13, s51, 6", "s_add_u32 s12, s12, s13"]
def q_batch(i):
    return [f"s_add_u32 s13, s12, {256*i}", "s_and_b32 s13, s13, 1023", "s_mov_b64 exec, 7", "s_mul_i32 s13, s13, 6144",
            f"buffer_load_dword v{V_NON+1}, v{V_QW}, s[56:59], s13 offen", "s_mov_b64 exec, -1"]
def r_batch():
    return ["s_mov_b64 exec, 0xff", f"buffer_load_dword v{V_NON+1}, v{V_QX}, s[52:55], 0 offen", "s_mov_b64 exec, -1"]
def dma_x(stage, q):
    return [f"s_add_u32 m0, s{S_XB}, {(stage % 3)*8192 + q*1024}", f"buffer_load_dwordx4 v{V_XD[q]}, s[4:7], s{S_SOX} offen{NTD} lds"]
def dma_w(step, q):
    return [f"s_add_u32 m0, s{S_WB}, {(step % 5)*12288 + q*1024}", f"buffer_load_dwordx4 v{V_WD[q]}, s[8:11], s{S_SOW} offen{NTD} lds"]
def frag_reads(step):
    p = step & 1; xs = (step >> 1) % 3; ws = step % 5
    X = [f"ds_read_b128 {v(XF[p][tt],4)}, v{V_XR[p]} offset:{xs*8192 + tt*2048}" for tt in range(4)]
    W = [[f"ds_read_b64_tr_b16 {v(WF[p][f]+2*h,2)}, v{V_WR[f&1]} offset:{ws*12288 + (f>>1)*4096 + h*512}" for h in range(2)] for f in range(6)]
    return [X[0]] + W[0] + W[1] + W[2] + [X[1]] + W[3] + W[4] + W[5] + [X[2], X[3]]
def gemm1_mfmas(step):
    p = step & 1; out = []
    for tt in range(4):
        for f in (range(6) if tt % 2 == 0 else range(5, -1, -1)):
            d = acc(tt, f)
            A, B = (WF[p][f], XF[p][tt]) if f < 4 else (XF[p][tt], WF[p][f])
            out.append(f"v_mfma_f32_16x16x32_bf16 {v(d,4)}, {v(A,4)}, {v(B,4)}, {'0' if step == 0 else v(d,4)}")
    return out

RD0, DG0, DGS = opt('rd0', 0), opt('dg0', 16), opt('dgs', 3)
def gemm1_main(a, late):
    vm = VmTrack()
    def group(tok):
        if tok == "B": return [["s_barrier"]], []
        if tok[0] == "Q": return [q_batch(int(tok[1:]))], ["pf"]
        if tok[0] == "R": return [r_batch()], ["pf"]
        if tok[0] == "P":
            s0, n = map(int, tok[1:].split("_")); return [pf_batch(s0, n)], ["pf", "pf"]
        if tok[0] == "W":
            st = int(tok[1:]); g = [f"s_add_u32 s{S_SOW}, s14, {st}", f"s_and_b32 s{S_SOW}, s{S_SOW}, 31"]
            for q in range(3):
                m, l = dma_w(st, q); g += [m, f"s_mul_i32 s{S_SOW}, s{S_SOW}, {32*6144}" if q == 0 else "s_nop 0", l]
            return [old_only(g)], [("W", st)] * 3
        if tok[0] == "X":
            if "h" in tok: S, h = tok[1:].split("h"); S = int(S); qs = range(0, 4) if h == "0" else range(4, 8)
            else: S = int(tok[1:]); qs = range(8)
            g = [f"s_add_u32 s{S_SOX}, s15, {S*128}"]
            for q in qs:
                m, l = dma_x(S, q); g += [m, f"s_and_b32 s{S_SOX}, s{S_SOX}, 0x780" if q == qs[0] else "s_nop 0", l]
            return [old_only(g)], [("X", S)] * len(qs)
    first = True
    for tok in PRO.split():
        g, t = group(tok)
        for x in g:
            for y in x: a(y)
        for y in t: vm.issue(y)
        if tok == "W0":
            gemm1_setup_rest(a)
    a(f"s_waitcnt vmcnt({vm.wait_count({('X',0),('W',0)})})")
    a("s_barrier")
    stamp(a, 1)
    for l in frag_reads(0): a(l)
    for st in range(32):
        if st + 1 < 32:
            need = {("W", st + 1), ("X", (st + 1) >> 1)}
            for nd in need: assert vm.ops.count(nd) == (3 if nd[0] == "W" else 8), (st, nd)
            a(f"s_waitcnt vmcnt({min(63, vm.wait_count(need))}) lgkmcnt(0)")
        else:
            a("s_waitcnt vmcnt(0) lgkmcnt(0)")
        a("s_barrier")
        if st % 4 == 0: stamp(a, None, "g")
        M = gemm1_mfmas(st)
        if st == 31:
            last_step(a, late[31]); break
        R = frag_reads(st + 1) if st + 1 < 32 else []
        toks = list(STEPX.get(st, []))
        if st + 5 < 32: toks.append(f"W{st+5}")
        if st >= 1 and ((st - 1) >> 1) + 3 < 16: toks.append(f"X{((st-1)>>1)+3}h{0 if st % 2 == 1 else 1}")
        D = []
        for tok in toks:
            g, t = group(tok); D += g
            for y in t: vm.issue(y)
        gaps = [[] for _ in range(24)]
        for i, r in enumerate(R): gaps[i + RD0].append(r)
        for i, d in enumerate(D): gaps[min(23, DG0 + (i * DGS if len(D) <= 3 else (i * (23 - DG0)) // len(D)))] += d
        lt = late.get(st, [])
        assert len(lt) <= 24
        for i, x in enumerate(lt):
            gaps[i].append(x)
            if x.startswith("buffer_"): vm.issue("late")
        for i, m in enumerate(M):
            a(m)
            for x in gaps[i]: a(x)

AS = [8, 24, 40, 56]
AO = {'a': 224, 'b': 240}
AQ = {('a',0): 104, ('a',1): 108, ('b',0): 112, ('b',1): 116}
AC = {'a': 120, 'b': 136}
AK = [[152, 156], [160, 164]]
AV = [[168, 172], [176, 180]]
AL = {'a': 184, 'b': 188}
ASEL = 192; AIDX = 196; AADDR = 197; AVO = 198; AWD = 199
AFL = 200
AFA = 202
V_VS, V_VL = 205, 207
AADK, AVK = 204, 206
V_FA = 221
S_CH2 = 22
P_WR = [212, 213, 214, 215]; P_OV = [[216, 217], [218, 219]]; V_FA2 = 220
S_OSO = 64 if not STAMP else 66
def qk1(Y, kb, q, c=None): return f"v_mfma_f32_32x32x16_bf16 {v(Y,16)}, {v(AK[kb][0],4)}, {v(AQ[(q,0)],4)}, {v(AC[q],16) if c is None else c}"
def qk2(Y, kb, q): return f"v_mfma_f32_32x32x16_bf16 {v(Y,16)}, {v(AK[kb][1],4)}, {v(AQ[(q,1)],4)}, {v(Y,16)}"
def pv(Z, h, vb, q): return f"v_smfmac_f32_32x32x32_bf16 {v(AO[q],16)}, {v(AV[vb][h],4)}, {v(Z+8*h,8)}, v{AIDX}"
def sm(Z, h, q): return f"v_smfmac_f32_16x16x64_bf16 {v(AL[q],4)}, {v(ASEL,4)}, {v(Z+8*h,8)}, v{AIDX}"
def srd(d, lo, hi, off, nrec):
    return [f"s_add_u32 s{d}, s{lo}, s{off}\ns_addc_u32 s{d+1}, s{hi}, 0", f"s_and_b32 s{d+1}, s{d+1}, 0xffff", f"s_mov_b32 s{d+2}, {nrec}", f"s_mov_b32 s{d+3}, 0x00020000"]

def late_setup():
    L = {}
    L[18] = [f"v_mov_b32 v{AO['a']+i}, 0" for i in range(24)]
    L[19] = [f"v_mov_b32 v{AO['a']+24+i}, 0" for i in range(8)] + \
            [f"v_lshlrev_b32 v{AVO}, 4, v1", "v_and_b32 v2, 7, v1", f"v_lshlrev_b32 v{AFA}, 3, v2", f"s_lshr_b32 s26, s{S_W}, 2", "s_lshl_b32 s26, s26, 14",
             f"v_add_u32 v{AADDR}, s26, v{AVO}", f"v_mov_b32 v{AIDX}, 0xdddddddd",
             "v_bfe_u32 v2, v1, 2, 1", "v_mov_b32 v3, 0x3f803f80", "v_cmp_eq_u32 s[28:29], 0, v2", "s_nop 1",
             f"v_cndmask_b32 v{ASEL}, 0, v3, s[28:29]", f"v_cndmask_b32 v{ASEL+1}, 0, v3, s[28:29]", f"v_xor_b32 v{ASEL+2}, v3, v{ASEL}", f"v_xor_b32 v{ASEL+3}, v3, v{ASEL}"]
    L[20] = ["v_and_b32 v2, 15, v1", "v_lshrrev_b32 v4, 4, v1", "v_lshlrev_b32 v4, 9, v4", f"v_lshl_add_u32 v{V_VS}, v2, 4, v4",
             "v_bfe_u32 v2, v1, 2, 1", "v_bfe_u32 v3, v1, 3, 2", "v_and_b32 v4, 35, v1", "v_lshl_add_u32 v4, v2, 4, v4", "v_lshl_add_u32 v4, v3, 2, v4",
             f"v_lshlrev_b32 v{AVK}, 4, v4", f"v_sub_u32 v2, v{AADDR}, v{AVO}", f"v_add_u32 v{AADK}, v2, v{AVK}",
             f"s_and_b32 s26, s{S_W}, 2", "s_lshl_b32 s26, s26, 14", f"s_and_b32 s27, s{S_W}, 1", "s_lshl_b32 s27, s27, 13", "s_add_u32 s26, s26, s27",
             f"s_lshr_b32 s27, s{S_W}, 2", "s_lshl_b32 s27, s27, 14", "s_add_u32 s26, s26, s27", f"v_add_u32 v{V_VL}, s26, v{V_VS}"]
    L[21] = ["v_lshrrev_b32 v2, 3, v1", "v_and_b32 v3, 7, v1", "v_lshrrev_b32 v4, 4, v1", "v_lshlrev_b32 v4, 1, v4", "v_xor_b32 v4, v3, v4",
             "v_lshlrev_b32 v4, 4, v4", f"v_lshl_add_u32 v{AWD}, v2, 11, v4",
             f"s_cmp_eq_u32 s{S_B}, 0\ns_cselect_b32 s26, s36, s42\ns_cselect_b32 s27, s37, s43", f"s_lshl_b32 s30, s{S_HP}, 7", f"s_sub_u32 s31, {1024*2048}, s30"] \
            + srd(SRD_WO, 26, 27, 30, "s31") + ["s_mov_b32 s92, s46", "s_and_b32 s93, s47, 0xffff", "s_mov_b32 s94, 256", "s_mov_b32 s95, 0x00020000"]
    if WARMF:
        L[22] = [f"s_lshl_b32 s28, s{S_B}, 4", f"s_add_u32 s28, s28, s{S_HP}", "s_lshl_b32 s28, s28, 10", f"s_add_u32 s30, s28, {F1_OFF}",
                 f"s_lshl_b32 s28, s{S_B}, 3", f"s_add_u32 s28, s28, s{S_TM}", "s_lshl_b32 s28, s28, 11", f"s_add_u32 s31, s28, {F2_OFF}",
                 "s_mov_b32 s76, s48", "s_and_b32 s77, s49, 0xffff", f"s_mov_b32 s78, {34 << 20}", "s_mov_b32 s79, 0x00020000", "v_lshlrev_b32 v2, 7, v1",
                 "\n".join(if_vcc(["s_mov_b64 exec, 0xff", f"buffer_load_dword v{V_NON+1}, v2, s[76:79], s30 offen sc1",
                                   "s_mov_b64 exec, 0xffff", f"buffer_load_dword v{V_NON+1}, v2, s[76:79], s31 offen sc1", "s_mov_b64 exec, -1"], False))]
    L[27] = [f"buffer_load_dwordx2 {v(V_NON,2)}, v{V_PD+1}, s[92:95], 0 offen sc1"] + [f"v_mov_b32 v{AL['a']+i}, 0" for i in range(8)] + \
            [f"s_mov_b32 s{S_WOI}, -1", f"s_lshl_b32 s{S_WOB}, s{S_W}, 14", f"s_lshl_b32 s27, s{S_W}, 10", f"s_add_u32 s{S_WOM}, s27, 65536",
             f"s_lshl_b32 s{S_M0}, s{S_W}, 12", f"s_mov_b32 s{S_CIDX}, 16384", f"s_lshl_b32 s23, s{S_TM}, 15", f"s_lshr_b32 s51, s{S_W}, 1", f"s_mov_b32 s{S_EARLY}, 0"]
    L[28] = [f"s_lshl_b32 s26, s{S_B}, 5", f"s_lshl_b32 s27, s{S_HP}, 1", "s_add_u32 s26, s26, s27",
             f"s_and_b32 s28, s{S_W}, 3", "s_lshl_b32 s29, s28, 12", "s_lshl_b32 s30, s26, 18", "s_add_u32 s31, s30, s29", "s_sub_u32 s50, 524288, s29"] \
            + srd(SRD_KV, 48, 49, 31, "s50") + [f"s_lshr_b32 s27, s{S_W}, 2", "s_add_u32 s26, s26, s27", "s_lshl_b32 s30, s26, 18"]
    L[29] = [f"s_lshl_b32 s27, s{S_TM}, 3", "s_lshl_b32 s28, s28, 1", "s_add_u32 s27, s27, s28", "s_lshl_b32 s29, s27, 12", "s_add_u32 s31, s30, s29"] \
            + srd(SRD_KVS, 48, 49, 31, 8192) + ["s_mov_b32 s50, 4096",
             f"s_lshl_b32 s28, s{S_B}, 22", "s_lshl_b32 s29, s27, 16", "s_add_u32 s31, s28, s29", "s_and_b32 s28, s26, 31", "s_lshl_b32 s28, s28, 10",
             "s_add_u32 s31, s31, s28", f"s_add_u32 s31, s31, {O_OFF}"] + srd(SRD_O, 48, 49, 31, 131072)
    L[30] = [f"s_lshl_b32 s28, s{S_B}, 4", f"s_add_u32 s28, s28, s{S_HP}", "s_lshl_b32 s28, s28, 10", f"s_add_u32 s31, s28, {F1_OFF}"] + srd(SRD_F, 48, 49, 31, 1024) \
            + [f"s_bitcmp0_b32 s{S_W}, 1\ns_cselect_b64 vcc, -1, 0", f"s_mov_b32 s26, {QSCALE}", f"s_mov_b32 s27, {QSCALE}"]
    L[23] = [f"s_lshl_b32 s28, s{S_B}, 3", f"s_add_u32 s28, s28, s{S_TM}", "s_lshl_b32 s28, s28, 11", f"s_add_u32 s30, s28, {F2_OFF}"] + srd(SRD_F2, 48, 49, 30, 2048) \
            + [f"s_lshl_b32 s28, s{S_B}, 22", f"s_lshl_b32 s29, s{S_TM}, 19", "s_add_u32 s30, s28, s29", f"s_lshl_b32 s29, s{S_W}, 16", "s_add_u32 s30, s30, s29",
               f"s_add_u32 s30, s30, {O_OFF}"] + srd(SRD_OL, 48, 49, 30, 65536)
    L[24] = [f"s_lshl_b32 s28, s{S_TM}, 20", f"s_lshl_b32 s29, s{S_W}, 17", "s_add_u32 s30, s28, s29", f"s_lshl_b32 s29, s{S_B}, 11", "s_add_u32 s30, s30, s29",
             f"s_lshl_b32 s29, s{S_HP}, 7", "s_add_u32 s30, s30, s29", f"s_sub_u32 s31, {2048*4096}, s30"] + srd(SRD_OUT, 44, 45, 30, "s31") \
            + [f"s_and_b32 s26, s{S_HP}, 8", "s_lshl_b32 s27, s26, 11", f"v_add_u32 v{P_OV[0][0]}, s27, v{AVO}", f"v_add_u32 v{P_OV[0][1]}, 32768, v{P_OV[0][0]}",
               f"v_xor_b32 v{P_OV[1][0]}, 16384, v{P_OV[0][0]}", f"v_xor_b32 v{P_OV[1][1]}, 16384, v{P_OV[0][1]}",
               "s_lshl_b32 s26, s26, 4", f"s_lshr_b32 s27, s{S_W}, 1", "s_lshl_b32 s27, s27, 9", f"s_add_u32 s{S_FL0}, s26, s27"]
    L[25] = [x for j in range(8) for x in (f"s_add_u32 s26, s{S_HP}, {j}", "s_and_b32 s26, s26, 7", f"s_lshl_b32 s{S_OSO+j}, s26, 11")]
    L[26] = [f"s_and_b32 s26, s{S_W}, 3", "s_lshl_b32 s26, s26, 6", f"s_lshr_b32 s27, s{S_W}, 2", "s_lshl_b32 s27, s27, 5", "s_add_u32 s26, s26, s27",
             f"s_and_b32 s27, s{S_HP}, 8", f"s_add_u32 s27, s27, s{S_HP}", "s_add_u32 s26, s26, s27", "s_lshl_b32 s26, s26, 3", f"v_mov_b32 v{V_FA2}, s26",
             "v_and_b32 v4, 15, v1", "v_lshlrev_b32 v4, 4, v4", "v_bfe_u32 v5, v1, 4, 1", "v_lshl_add_u32 v4, v5, 15, v4", "v_lshrrev_b32 v5, 5, v1", "v_lshl_add_u32 v6, v5, 8, v4"]
    L[30] += ["v_lshrrev_b32 v4, 4, v1", "v_bfe_u32 v2, v1, 2, 2", "v_and_b32 v3, 3, v1", "v_and_b32 v5, 1, v4", "v_lshrrev_b32 v4, 1, v4", "v_lshl_add_u32 v7, v5, 2, v2",
              "v_lshl_add_u32 v4, v4, 4, v7", "v_lshrrev_b32 v7, 1, v7", "v_lshlrev_b32 v7, 5, v7", "v_lshl_add_u32 v7, v3, 3, v7", "v_lshl_add_u32 v7, v4, 7, v7",
              f"v_add_u32 v{P_WR[0]}, 65536, v7\nv_xor_b32 v{P_WR[1]}, 32, v{P_WR[0]}", f"v_xor_b32 v{P_WR[2]}, 64, v{P_WR[0]}\nv_xor_b32 v{P_WR[3]}, 96, v{P_WR[0]}"]
    L[31] = []
    return L

UNITS = [('V',0,0,80), ('V',0,1,84), ('V',1,0,72), ('V',1,1,76), ('K',1,1,88), ('K',1,0,92), ('K',0,0,96), ('K',0,1,100)]
def unit_src(u):
    k, T, h, d = UNITS[u]
    return [(2*T, 4+h), (2*T+1, 4+h)] if k == 'V' else [(2*T+h, 2), (2*T+h, 3)]
def cvt4(regs, d): return [f"v_cvt_pk_bf16_f32 v{d+i}, v{regs[2*i]}, v{regs[2*i+1]}" for i in range(4)]
def unit_cvt(u):
    k, T, h, d = UNITS[u]
    regs = [acc(*x) + i for x in unit_src(u) for i in range(4)]
    w = f"ds_write_b128 v{V_VL}, {v(d,4)} offset:{T*4096 + (2048 if k == 'V' else 0) + h*256}"
    return cvt4(regs, d) + [w]
def kv_store(u):
    k, T, h, d = UNITS[u]
    return f"buffer_store_dwordx4 {v(d,4)}, v{V_VS}, s[{SRD_KVS}:{SRD_KVS+3}], {'0' if T == 0 else 's50'} offen offset:{(2048 if k == 'V' else 0) + h*256}{SC1}"
def q_cvt(tt):
    return [f"v_pk_mul_f32 {v(acc(tt,0)+2*i,2)}, {v(acc(tt,0)+2*i,2)}, s[26:27]" for i in range(4)] + cvt4([acc(tt,0)+i for i in range(8)], AQ[("ab"[tt >> 1], tt & 1)])

def last_step(a, sal):
    order = [(3, 0), (3, 1)] + [x for u in range(8) for x in unit_src(u)] + [(tt, f) for tt in range(3) for f in range(2)]
    gaps = [[] for _ in range(24)]
    gaps[10] += q_cvt(3)
    for u in range(6): gaps[12 + 2*u] += unit_cvt(u) + (if_vcc([kv_store(u - 1), kv_store(u)]) if u & 1 else [])
    for i, (tt, f) in enumerate(order):
        d = acc(tt, f)
        A, B = (WF[1][f], XF[1][tt]) if f < 4 else (XF[1][tt], WF[1][f])
        a(f"v_mfma_f32_16x16x32_bf16 {v(d,4)}, {v(A,4)}, {v(B,4)}, {v(d,4)}")
        for x in gaps[i]: a(x)
    for x in unit_cvt(6) + unit_cvt(7) + if_vcc([kv_store(6), kv_store(7)]): a(x)

def transition_ab(a):
    a(f"s_cmp_lt_u32 s{S_W}, 4\ns_setprio 1\ns_cbranch_scc0 Lyng0\ns_setprio 2\nLyng0:")
    a("s_waitcnt lgkmcnt(0)\ns_barrier")
    for j in range(2): a(f"ds_read_b128 {v(AK[0][j],4)}, v{AADK} offset:{1024*j}")
    for j in range(2): a(f"ds_read_b128 {v(AV[0][j],4)}, v{AADDR} offset:{2048+1024*j}")
    for tt in range(3):
        for x in q_cvt(tt): a(x)
    a("s_nop 1")
    for q in "ab":
        for i in range(4): a(f"v_permlane16_swap_b32 v{AQ[(q,0)]+i}, v{AQ[(q,1)]+i}")
    for q in "ab":
        for i in range(4): a(f"v_permlane32_swap_b32 v{AQ[(q,0)]+i}, v{AQ[(q,1)]+i}")
    a("s_waitcnt lgkmcnt(2)")
    a(qk1(AS[0],0,'a',"0")); a(qk2(AS[0],0,'a')); a(qk1(AS[1],0,'b',"0")); a(qk2(AS[1],0,'b'))
    a(f"""
    v_readfirstlane_b32 s{S_NONCE}, v{V_NON}
    v_readfirstlane_b32 s{S_NONCE+1}, v{V_NON+1}
    s_lshl_b32 s26, s{S_TM}, 4
    s_add_u32 s26, s26, s{S_W}
    s_lshl_b32 s28, s26, 3
    s_nop 3
    s_cmp_eq_u32 s{S_NONCE}, 0
    s_cbranch_scc1 Lnonce_spin
    Lnonce_ok:
    v_mov_b32 v{V_FA}, s28
    s_nop 0
    """)
    rowmax16(a, AS[0], 2, 3)
    rowmax16(a, AS[1], 4, 5)
    for i in range(8): a(f"v_pk_mul_f32 {v(AC['a']+2*i,2)}, v[2:3], -1.0 op_sel_hi:[0,0]")
    a(f"v_pk_mul_f32 {v(AC['b'],2)}, v[4:5], -1.0 op_sel_hi:[0,0]\nv_pk_mul_f32 {v(AC['b']+2,2)}, v[4:5], -1.0 op_sel_hi:[0,0]")
    a(qk1(AS[0],0,'a')); a(qk2(AS[0],0,'a'))
    for i in range(2, 8): a(f"v_pk_mul_f32 {v(AC['b']+2*i,2)}, v[4:5], -1.0 op_sel_hi:[0,0]")
    a("s_nop 4")

def rowmax16(a, S, m, t):
    a(f"v_max3_f32 v{m}, v{S}, v{S+1}, v{S+2}")
    for i in range(3, 15, 2): a(f"v_max3_f32 v{m}, v{m}, v{S+i}, v{S+i+1}")
    a(f"v_max_f32 v{m}, v{m}, v{S+15}")
    a(f"v_mov_b32 v{t}, v{m}\ns_nop 1\nv_permlane32_swap_b32 v{m}, v{t}\ns_nop 0\nv_max_f32 v{m}, v{m}, v{t}")

def attn_half(a, t, q, extra=None, skipz=False):
    hs = (2*t + (q == 'b')) % 4
    oq = 'b' if q == 'a' else 'a'
    X = AS[hs]; Y = AS[(hs+1) % 4]; Z = AS[(hs-1) % 4]
    kb = t % 2 if q == 'a' else (t+1) % 2
    vb = (t-1) % 2 if q == 'a' else t % 2
    nt = (t + 1) % 4
    M = {'Q1': qk1(Y,kb,oq), 'Q2': qk2(Y,kb,oq), 'P1': pv(Z,0,vb,oq), 'S1': sm(Z,0,oq), 'P2': pv(Z,1,vb,oq), 'S2': sm(Z,1,oq)}
    e = 0
    for tok in "Q1 W0 3 S1 L0 2 Q2 3 P1 3 S2 L1 2 P2 W1 3".split():
        if tok in M:
            if not (skipz and tok[0] != 'Q'): a(M[tok])
        elif tok in ('L0', 'L1'):
            j = int(tok[1])
            if q == 'a': a(f"ds_read_b128 {v(AK[(t+1)%2][j],4)}, v{AADK} offset:{nt*4096 + 1024*j}")
            else: a(f"ds_read_b128 {v(AV[(t+1)%2][j],4)}, v{AADDR} offset:{nt*4096 + 2048 + 1024*j}")
        elif tok == 'W0':
            if q == 'b': a("s_waitcnt lgkmcnt(0)")
        elif tok == 'W1':
            if q == 'a': a("s_waitcnt lgkmcnt(1)")
        else:
            for _ in range(int(tok)):
                a(f"v_exp_f32 v{X+e}, v{X+e}"); e += 1
        if extra and tok in extra:
            for x in extra[tok]: a(x)
    assert e == 16

def kv_dma(h): return [f"buffer_load_dwordx4 v{AVO}, s[{SRD_KV}:{SRD_KV+3}], s{S_CH if h == 0 else S_CH2} offen offset:{1024*i}{SC1} lds" for i in range(4)]
S_FSO = 24
def flag_load(srd=None):
    srd = SRD_F if srd is None else srd
    return f"buffer_load_dwordx2 {v(AFL,2)}, v{AFA}, s[{srd}:{srd+3}], s{S_FSO} offen sc1"
S_EARLY = 41
DEPTH = opt("odepth", 5)
def oslot(p, tt): return (72 if p % 8 < 4 else 136 - 32) + ((p % 8) * 2 + tt) * 4
def oload_ins(p):
    return [f"buffer_load_dwordx4 {v(oslot(p, tt),4)}, v{P_OV[(p>>3)&1][tt]}, s[{SRD_OL}:{SRD_OL+3}], s{S_OSO + p%8} offen offset:{(p>>4)*1024}{SC1}" for tt in range(2)]
def chunk_scalars():
    return [f"s_add_u32 s{S_CIDX}, s{S_CIDX}, 16384", f"s_xor_b32 s{S_CH}, s{S_CIDX}, s23", f"s_add_u32 s{S_CH2}, s{S_CH}, 262144",
            f"s_bfe_u32 s26, s{S_CH}, 0x1000e", "s_lshl_b32 s26, s26, 1", f"s_add_u32 s{S_FIDX}, s26, s51"]
def line_cur(): return [f"s_lshr_b32 s26, s{S_CH}, 15", f"s_lshl_b32 s{S_FSO}, s26, 7"]
def line_next(): return [f"s_add_u32 s26, s{S_CIDX}, 16384", "s_xor_b32 s26, s26, s23", "s_bfe_u32 s26, s26, 0x3000f", f"s_lshl_b32 s{S_FSO}, s26, 7"]
def mask_test():
    return [f"s_lshr_b32 s26, s{S_MASK}, s{S_FIDX}", "s_andn2_b32 s26, 0x11, s26"]
def flag_cmp(): return f"v_cmp_eq_u64 s[{S_MASK}:{S_MASK+1}], s[{S_NONCE}:{S_NONCE+1}], {v(AFL,2)}"
def spin(a, name, test, lowprio=False):
    if lowprio:
        a(f"""
        {name}:
        s_mov_b32 s{S_SPIN}, {SPIN_LIMIT}
        {name}_l:
        {flag_load()}
        s_waitcnt vmcnt(0)
        {flag_cmp()}
        s_sub_u32 s{S_SPIN}, s{S_SPIN}, 1
        s_cbranch_scc1 {name}_x
        """)
        for x in test: a(x)
        a(f"s_cbranch_scc0 {name}_x\ns_setprio 0\ns_sleep {SLEEP}\ns_branch {name}_l\n{name}_x:\ns_cbranch_vccz {name}_r\ns_setprio 2\ns_branch {name}_r")
        return
    a(f"""
    {name}:
    s_mov_b32 s{S_SPIN}, {SPIN_LIMIT}
    {name}_l:
    {flag_load()}
    s_waitcnt vmcnt(0)
    {flag_cmp()}
    s_sub_u32 s{S_SPIN}, s{S_SPIN}, 1
    s_cbranch_scc1 {name}_r
    """)
    for x in test: a(x)
    a(f"s_cbranch_scc0 {name}_r\ns_sleep {SLEEP}\ns_branch {name}_l")
def spin_flags(a, name): spin(a, name, mask_test())
def wo_dma():
    return [f"s_add_u32 s{S_WOI}, s{S_WOI}, 1", f"s_add_u32 s26, s{S_WOI}, s{S_HP}", "s_and_b32 s26, s26, 7",
            f"s_xor_b32 s27, s{S_WOI}, s{S_HP}", "s_and_b32 s27, s27, 8", "s_or_b32 s26, s26, s27", "s_lshl_b32 s26, s26, 1",
            f"s_lshr_b32 s27, s{S_WOI}, 4", "s_add_u32 s26, s26, s27", "s_lshl_b32 s26, s26, 16", f"s_mov_b32 m0, s{S_WOM}",
            f"s_add_u32 s{S_WOS}, s26, s{S_WOB}", f"s_add_u32 s{S_WOM}, s{S_WOM}, 4096",
            f"buffer_load_dwordx4 v{AWD}, s[{SRD_WO}:{SRD_WO+3}], s{S_WOS} offen{NTW} lds"]
TOUCH = "--touch" in sys.argv
WARMF = "--nowarmf" not in sys.argv
def publish(fa=V_FA): return ["s_waitcnt vmcnt(0)", "s_mov_b64 exec, 1", f"buffer_store_dwordx2 {v(V_NON,2)}, v{fa}, s[{SRD_F}:{SRD_F+3}], 0 offen sc1", "s_mov_b64 exec, -1"]
def wo_rows(n):
    o = []
    for _ in range(n): o += wo_dma()
    return o
EARLY = '--noearly' not in sys.argv
LST = opt("lst", 2)
def attn_chunk(a, kind):
    tog = f"v_xor_b32 v{AADDR}, 32768, v{AADDR}\nv_xor_b32 v{AADK}, 32768, v{AADK}"
    for t in range(4):
        ea, eb = {}, {}
        if kind == 'c0':
            for k, e in enumerate((ea, eb)):
                j = 2*t + k - LST
                if 0 <= j < 4: e['P1'] = if_vcc([kv_store(2*j), kv_store(2*j + 1)], False)
        if kind == 'c1' and t == 0:
            eb['P2'] = [f"s_and_b32 s26, s{S_W}, 6", "s_cmp_eq_u32 s26, 2", "s_cbranch_scc0 Lpub2"] + publish() + ["Lpub2:"]
        if kind == 'c14' and t == 0:
            ea['Q2'] = old_only([f"s_lshl_b32 s28, s{S_W}, 1", f"s_add_u32 s28, s28, s{S_HP}", "v_lshrrev_b32 v2, 5, v1", "v_add_u32 v2, s28, v2", "v_and_b32 v2, 7, v2",
                                 f"s_and_b32 s28, s{S_HP}, 8", "s_xor_b32 s28, s28, 8", "v_or_b32 v2, s28, v2", "v_lshlrev_b32 v2, 17, v2", "v_and_b32 v3, 31, v1",
                                 "v_lshl_add_u32 v2, v3, 11, v2", "s_mov_b32 s28, 65536", f"buffer_load_dword v3, v2, s[{SRD_WO}:{SRD_WO+3}], s28 offen"])
        if kind == 'c15' and EARLY:
            if t == 2: ea['Q2'] = if_vcc([f"s_mov_b32 s{S_FSO}, s{S_FL0}", flag_load(SRD_F2)], False)
            if t == 3: ea['Q2'] = if_vcc(["s_waitcnt vmcnt(0)", flag_cmp(), "s_nop 0", f"s_cmp_lg_u32 s{S_MASK}, -1", "s_cbranch_scc1 Lnoearly", f"s_mov_b32 s{S_EARLY}, 1"]
                                         + [x for p in range(min(DEPTH, 4)) for x in oload_ins(p)] + ["Lnoearly:"], False)
        if t == 3:
            if kind == 'c0':
                stamp(a); a("s_waitcnt lgkmcnt(0)\ns_barrier"); stamp(a)
                for x in [f"s_cmp_lt_u32 s{S_W}, 4", "s_cselect_b64 vcc, -1, 0", f"s_and_b32 s26, s{S_W}, 6", "s_cmp_eq_u32 s26, 2", "s_cbranch_scc1 Lpub1"] + publish() + ["Lpub1:"]: a(x)
                stamp(a)
                ea['Q1'] = [tog]
            elif kind == 'c14':
                ea['Q1'] = [f"v_add_u32 v{AADDR}, 131072, v{AADDR}\nv_add_u32 v{AADK}, 131072, v{AADK}"]
            elif kind != 'c15':
                if kind == 'c1':
                    for x in old_only(chunk_scalars() + line_cur() + ["s_branch Lspin_c1a", "Lspin_c1a_r:", f"s_mov_b32 m0, s{S_M0}", "s_nop 0"] + kv_dma(0)
                                      + [f"s_add_u32 m0, s{S_M0}, 16384", "s_nop 0"] + kv_dma(1)): a(x)
                stamp(a); a("s_waitcnt vmcnt(0) lgkmcnt(0)"); stamp(a); a("s_barrier"); stamp(a)
                if kind in ('c1', 'loop'):
                    nm = "Lspin_" + kind
                    ea = {'Q1': [tog],
                          'Q2': old_only([flag_cmp(), f"s_xor_b32 s{S_M0}, s{S_M0}, 32768"] + chunk_scalars() + [f"s_mov_b32 m0, s{S_M0}"] + mask_test()
                                         + [f"s_cbranch_scc1 {nm}", f"{nm}_r:"] + kv_dma(0)),
                          'P2': old_only([f"s_add_u32 m0, s{S_M0}, 16384", "s_nop 0"] + kv_dma(1) + line_next() + [flag_load()])}
                    if kind == 'loop':
                        eb = {'Q2': old_only([f"s_cmp_gt_u32 s{S_CNT}, 3", "s_cbranch_scc0 Lnowo"] + wo_rows(2) + ["Lnowo:", f"s_cmp_eq_u32 s{S_CNT}, 1", "s_cbranch_scc0 Lno15"]
                                             + chunk_scalars() + [f"s_add_u32 m0, s{S_M0}, 131072"] + mask_test() + ["s_cbranch_scc1 Lspin_15", "Lspin_15_r:"] + kv_dma(0)
                                             + [f"s_add_u32 m0, s{S_M0}, {131072 + 16384}", "s_nop 0"] + kv_dma(1) + ["Lno15:"]),
                              'P2': [f"s_sub_u32 s{S_CNT}, s{S_CNT}, 1", f"s_cmp_lg_u32 s{S_CNT}, 0"]}
                elif kind == 'c13':
                    ea = {'Q1': [tog], 'Q2': old_only([f"s_lshl_b32 s{S_WOM}, s{S_W}, 10", f"s_add_u32 s{S_WOM}, s{S_WOM}, 32768"] + wo_rows(3)), 'P2': old_only(wo_rows(3))}
                    eb = {'Q2': old_only(wo_rows(2))}
        attn_half(a, t, 'a', ea, skipz=(kind == 'c0' and t == 0)); attn_half(a, t, 'b', eb)

def attention(a):
    attn_chunk(a, 'c0')
    attn_chunk(a, 'c1')
    a(f"s_mov_b32 s{S_CNT}, 11")
    a(".p2align 6")
    a.label("Lattn_loop")
    attn_chunk(a, 'loop')
    a("s_cbranch_scc1 Lattn_loop")
    attn_chunk(a, 'c13')
    for x in if_vcc(["s_barrier"], False): a(x)
    attn_chunk(a, 'c14')
    attn_chunk(a, 'c15')
    a("s_nop 1")
    stamp(a, 4)
    a(pv(AS[3],0,1,'b')); a(sm(AS[3],0,'b')); a(pv(AS[3],1,1,'b')); a(sm(AS[3],1,'b'))
    a(f"""
    s_mov_b32 s26, 0x4e800000        ; 2^30
    s_mov_b32 s27, 65536
    s_nop 5
    v_cmp_nge_f32 vcc, s26, v{AL['a']}
    v_cmp_nge_f32 s[28:29], s26, v{AL['b']}
    s_or_b64 vcc, vcc, s[28:29]
    s_cbranch_vccnz Lattn_fallback
    Lattn_fin:
    """)
    stamp(a, None, "e")
    a(f"""
    v_rcp_f32 v2, v{AL['a']}
    v_rcp_f32 v4, v{AL['b']}
    """)
    for qi, q in enumerate('ab'):
        for u in range(2):
            for i in range(4): a(f"v_pk_mul_f32 {v(AO[q]+8*u+2*i,2)}, {v(AO[q]+8*u+2*i,2)}, {v(2+2*qi,2)} op_sel_hi:[1,0]")
            d = AS[0] + 4*(2*qi+u)
            for x in cvt4([AO[q]+8*u+i for i in range(8)], d): a(x)
            a(f"buffer_store_dwordx4 {v(d,4)}, v6, s[{SRD_O}:{SRD_O+3}], {'0' if qi==0 else 's27'} offen offset:{512*u}{SC1}")

def fallback(a):
    a.label("Lattn_fallback")
    a(f"""
    s_waitcnt vmcnt(0)
    s_lshl_b32 s26, s{S_B}, 5
    s_lshl_b32 s28, s{S_HP}, 1
    s_add_u32 s26, s26, s28
    s_lshr_b32 s28, s{S_W}, 2
    s_add_u32 s26, s26, s28
    s_lshl_b32 s30, s26, 18
    """)
    make_srd(a, SRD_KV, 48, 49, 30, 262144)
    a(f"""
    s_mov_b32 s{S_SPIN}, {SPIN_LIMIT}
    v_lshrrev_b32 v2, 3, v1
    v_lshl_add_u32 v2, v2, 7, v{AFA}
    Lfb_poll:
    buffer_load_dwordx2 {v(AFL,2)}, v2, s[{SRD_F}:{SRD_F+3}], 0 offen sc1
    s_waitcnt vmcnt(0)
    v_cmp_eq_u64 vcc, s[{S_NONCE}:{S_NONCE+1}], {v(AFL,2)}
    s_sub_u32 s{S_SPIN}, s{S_SPIN}, 1
    s_cbranch_scc1 Lfb_go
    s_cmp_eq_u64 vcc, -1
    s_cbranch_scc0 Lfb_poll
    Lfb_go:
    """)
    for r in list(range(AO['a'], AO['a']+32)) + list(range(AL['a'], AL['a']+8)): a(f"v_mov_b32 v{r}, 0")
    Mr = {'a': AC['a'], 'b': AC['b']}
    a(f"v_mov_b32 v{Mr['a']}, 0xff800000\nv_mov_b32 v{Mr['b']}, 0xff800000\ns_mov_b32 s26, 0")
    a.label("Lfb_loop")
    for j in range(2): a(f"buffer_load_dwordx4 {v(AK[0][j],4)}, v{AVK}, s[{SRD_KV}:{SRD_KV+3}], s26 offen offset:{1024*j} sc1")
    for j in range(2): a(f"buffer_load_dwordx4 {v(AV[0][j],4)}, v{AVO}, s[{SRD_KV}:{SRD_KV+3}], s26 offen offset:{2048+1024*j} sc1")
    a("s_waitcnt vmcnt(0)")
    for q in 'ab':
        S = AS[0]
        a(qk1(S,0,q,"0")); a(qk2(S,0,q)); a("s_nop 15")
        rowmax16(a, S, 2, 3)
        a(f"v_max_f32 v2, v2, v{Mr[q]}\nv_sub_f32 v3, v{Mr[q]}, v2\nv_exp_f32 v3, v3\nv_mov_b32 v{Mr[q]}, v2")
        for i in range(16): a(f"v_sub_f32 v{S+i}, v{S+i}, v2")
        for i in range(16): a(f"v_exp_f32 v{S+i}, v{S+i}")
        for i in range(16): a(f"v_mul_f32 v{AO[q]+i}, v3, v{AO[q]+i}")
        for i in range(4): a(f"v_mul_f32 v{AL[q]+i}, v3, v{AL[q]+i}")
        a("s_nop 1")
        a(pv(S,0,0,q)); a(sm(S,0,q)); a(pv(S,1,0,q)); a(sm(S,1,q))
        a("s_nop 15")
    a("s_add_u32 s26, s26, 4096\ns_cmp_lt_u32 s26, 262144\ns_cbranch_scc1 Lfb_loop\ns_branch Lattn_fin")

PACC = 40
PWF = [104, 120]
POF = 168
def proj(a):
    vm = VmTrack()
    def wreads(p):
        off = (p if p < 16 else p - 16 + 8 if p < 24 else (p - 24) % 4) * 4096
        return [f"ds_read_b64_tr_b16 {v(PWF[p&1]+4*ct+2*h,2)}, v{P_WR[ct]} offset:{off + h*1024}" for ct in range(4) for h in range(2)]
    a(f"s_cmp_lt_u32 s{S_W}, 4\ns_cselect_b64 vcc, -1, 0")
    for x in old_only(["s_waitcnt vmcnt(4)", "s_barrier"]): a(x)
    stamp(a, None, "e")
    for x in wreads(0): a(x)
    a(f"s_mov_b64 s[{SRD_F}:{SRD_F+1}], s[{SRD_F2}:{SRD_F2+1}]\ns_mov_b32 s{SRD_F+2}, 2048")
    for x in publish(V_FA2): a(x)
    PDROP = opt("pdrop", 11)
    for x in (if_vcc([f"s_setprio {opt('yprio', 0)}"], False) if PDROP >= 0 else ["s_setprio 0"]): a(x)
    stamp(a, 5)
    for x in old_only([f"s_lshl_b32 s{S_WOM}, s{S_W}, 10"] + wo_rows(4) + [f"s_add_u32 s{S_WOM}, s{S_WOM}, {131072 - 16384}"] + wo_rows(4) + ["s_waitcnt vmcnt(8)"]): a(x)
    polls = []; fpos = {}; YX3 = opt('yx3', 2)
    def check(g):
        nm = f"Lpoll{g}"; polls.append(nm)
        return [f"s_cmp_lg_u32 s{S_MASK}, -1", f"s_cbranch_scc1 {nm}", f"{nm}_r:"]
    def setline(g): return f"s_xor_b32 s{S_FSO}, s{S_FL0}, {(g & 1) * 128 + (g >> 1) * 256}"
    def oload(p):
        vm.issue(("O", p)); vm.issue(("O", p))
        return oload_ins(p)
    a(f"s_cmp_eq_u32 s{S_EARLY}, 1\ns_cbranch_scc1 Learly")
    a(f"s_mov_b32 s{S_MASK}, 0")
    a(setline(0))
    for x in check(0): a(x)
    for p in range(min(DEPTH, 4)):
        for x in oload(p): a(x)
    a.label("Learly")
    stamp(a, 6)
    for p in range(4, DEPTH):
        for x in oload(p): a(x)
    for p in range(32):
        if p + 1 == 16:
            for ct in range(4): a(f"v_add_u32 v{P_WR[ct]}, {-65536 & 0xffffffff}, v{P_WR[ct]}")
        if p + 1 == 28:
            for ct in range(4): a(f"v_add_u32 v{P_WR[ct]}, 131072, v{P_WR[ct]}")
        a(f"s_waitcnt vmcnt({vm.wait_count({('O', p)})}) lgkmcnt(0)")
        gaps = [[] for _ in range(8)]
        for i, r in enumerate(wreads(p + 1) if p + 1 < 32 else []): gaps[i // 2].append(r)
        if p == YX3: gaps[0] += if_vcc(["s_barrier"], False)
        nx = p + DEPTH
        if nx < 32:
            if nx % 8 == 0:
                g = nx // 8
                pre = [f"s_waitcnt vmcnt({len(vm.ops) - fpos[g]})", flag_cmp(), "s_nop 0"] if g in fpos else [f"s_mov_b32 s{S_MASK}, 0", setline(g)]
                if g == 2: pre = if_vcc(pre, False) + old_only(["s_setprio 0", "s_barrier", f"s_mov_b32 s{S_MASK}, 0", setline(g)])
                gaps[4] += pre + check(g)
            o = oload(nx)
            if DEPTH < 8: gaps[5].append(o[0]); gaps[6].append(o[1])
            else: gaps[7] += o
            if (nx + 3) % 8 == 0 and nx + 3 < 32:
                g = (nx + 3) // 8
                fl = [setline(g), flag_load()]
                gaps[7] += if_vcc(fl, False) if g == 2 else fl
                fpos[g] = len(vm.ops)
        n = 0
        for tt in range(2):
            for ct in (range(4) if tt == 0 else range(3, -1, -1)):
                d = PACC + (tt*4+ct)*4
                a(f"v_mfma_f32_16x16x32_bf16 {v(d,4)}, {v(PWF[p&1]+4*ct,4)}, {v(oslot(p, tt),4)}, {'0' if p==0 else v(d,4)}")
                for x in gaps[n]: a(x)
                n += 1
        if p % 4 == 3: stamp(a, None, "p")
    proj.polls = polls
    a(f"""
    v_lshrrev_b32 v4, 4, v1
    v_and_b32 v2, 15, v1
    v_lshlrev_b32 v2, 12, v2
    v_and_b32 v3, 1, v4
    v_lshl_add_u32 v2, v3, 5, v2
    v_lshrrev_b32 v3, 1, v4
    v_lshl_add_u32 v2, v3, 4, v2
    s_mov_b32 s26, 65536
    s_nop 3
    """)
    for tt in range(2):
        for pr in range(2):
            d = POF + (tt*2+pr)*4
            for x in range(2):
                s0 = PACC + (tt*4+2*pr+x)*4
                a(f"v_cvt_pk_bf16_f32 v{d+2*x}, v{s0}, v{s0+1}\nv_cvt_pk_bf16_f32 v{d+2*x+1}, v{s0+2}, v{s0+3}")
            a(f"s_nop 1\nv_permlane16_swap_b32 v{d}, v{d+2}\nv_permlane16_swap_b32 v{d+1}, v{d+3}")
            a(f"buffer_store_dwordx4 {v(d,4)}, v2, s[{SRD_OUT}:{SRD_OUT+3}], {'0' if tt==0 else 's26'} offen offset:{64*pr}{' ' + opt('ofl', 'nt').replace('_', ' ') if opt('ofl', 'nt') else ''}")

def build():
    a = Asm()
    decode(a, "Lend")
    gemm1_setup_dma(a)
    stamp(a, 0); dbgstamp(a, 0, True); dbgstamp(a, 1)
    gemm1_main(a, late_setup())
    stamp(a, 2); dbgstamp(a, 2)
    transition_ab(a)
    stamp(a, 3)
    attention(a)
    dbgstamp(a, 3)
    proj(a)
    stamp(a, 7); dbgstamp(a, 4); dbgflush(a)
    stamp_flush(a, 8)
    a.label("Lend")
    a("s_endpgm")
    for nm in ("Lspin_c1a", "Lspin_c1", "Lspin_loop", "Lspin_15"): spin_flags(a, nm)
    a(f"""
    Lnonce_spin:
    s_mov_b32 s{S_SPIN}, {SPIN_LIMIT}
    Lnonce_l:
    buffer_load_dwordx2 {v(V_NON,2)}, v{V_PD+1}, s[92:95], 0 offen sc1
    s_waitcnt vmcnt(0)
    v_readfirstlane_b32 s{S_NONCE}, v{V_NON}
    v_readfirstlane_b32 s{S_NONCE+1}, v{V_NON+1}
    s_sub_u32 s{S_SPIN}, s{S_SPIN}, 1
    s_cbranch_scc1 Lnonce_ok
    s_cmp_eq_u32 s{S_NONCE}, 0
    s_cbranch_scc1 Lnonce_l
    s_branch Lnonce_ok
    """)
    for i, nm in enumerate(proj.polls): spin(a, nm, [f"s_cmp_lg_u32 s{S_MASK}, -1"], lowprio=(8 * i - DEPTH < opt("pdrop", 11) and opt("pdrop", 11) >= 0))
    fallback(a)
    return a.text()

def main(out):
    P = "concat_heads__mha_block__softmax_full_mha__prompt_kernel"
    txt = f"""; fused QKV projection + attention + output projection (generated)
; @launch grid=(256,1,1) block=(512,1,1) lds=163840
.amdgcn_target "amdgcn-amd-amdhsa--gfx950"
.text
""" + kernel_header(P) + build() + '.section .rodata,"a"\n' + kernel_desc(P, 256, sgpr=102 if DBG else 96)
    open(out, "w").write(txt)

if __name__ == "__main__":
    args = [x for x in sys.argv[1:] if not x.startswith("--")]
    main(args[0] if args else "concat_heads__mha_block__softmax_full_mha__prompt.s")
```

```python
import sys, struct, math
from dsl import *

def opt(name, default):
    for x in sys.argv:
        if x.startswith(f"--{name}="): return type(default)(x[len(name) + 3:])
    return default
STAMP = "--stamp" in sys.argv
ROT = opt("rot", 2)
PRO = opt("pro", "X0,W0,B,W1,X1,W2").replace(",", " ")
STEPX = {}
for it in opt("stepx", "0:W3.X2;1:W4").split(";"):
    if it:
        k, val = it.split(":"); STEPX[int(k)] = val.split(".")
SC1 = "" if "--nosc1" in sys.argv else " sc1"
NTD = " nt" if "d" in opt("nt", "") else ""
NTP = " nt" if "p" in opt("nt", "") else ""
NTW = " nt" if "w" in opt("nt", "") else ""
ROTB = opt("rotb", -1)

KV_OFF = 0
O_OFF = 24 << 20
F1_OFF = 32 << 20
F2_OFF = 33 << 20
SLEEP = opt('sleep', 8)
ST_OFF = 64 << 20
QSCALE = struct.unpack("<I", struct.pack("<f", math.log2(math.e) / math.sqrt(32.0)))[0]
SPIN_LIMIT = 1 << 16

S_W, S_B, S_TM, S_HP = 16, 17, 18, 19
S_SOX, S_SOW, S_XB, S_WB = 20, 21, 22, 23
S_EXW = 24
S_NONCE = 80
S_MASK = 82
S_CIDX, S_M0, S_CNT, S_CH, S_WOS, S_WOM, S_FIDX, S_SPIN = 84, 85, 86, 87, 88, 89, 90, 91
S_WOI, S_WOB = 20, 21
PRIO = opt('prio', 1)
SRD_KV, SRD_F, SRD_WO, SRD_O = 4, 8, 52, 12
SRD_KVS = 56
SRD_OUT, SRD_OL, SRD_F2 = 36, 32, 76
S_FL0 = 40

def make_srd(a, d, lo, hi, off_sgpr, nrec):
    a(f"s_add_u32 s{d}, s{lo}, s{off_sgpr}\ns_addc_u32 s{d+1}, s{hi}, 0\ns_and_b32 s{d+1}, s{d+1}, 0xffff")
    a(f"s_mov_b32 s{d+2}, {nrec}\ns_mov_b32 s{d+3}, 0x00020000")

NST = [0]
STG = opt("stg", "m")
def stamp(a, i=None, g="m"):
    if not STAMP: return
    if i is None: g = "a" if g == "m" else g
    if g not in STG: return
    a("s_memrealtime s[60:61]\ns_memtime s[62:63]\ns_waitcnt lgkmcnt(0)\ns_lshl_b64 exec, 1, s64\nv_mov_b32 v0, s60\nv_mov_b32 v203, s62\ns_mov_b64 exec, -1\ns_add_u32 s64, s64, 1")
DBG = "--dbg" in sys.argv
def dbgstamp(a, i, inv=False):
    if DBG: a(f"s_memrealtime s[60:61]\ns_waitcnt lgkmcnt(0)\ns_{'not' if inv else 'mov'}_b32 s{96+i}, s60")
def dbgflush(a):
    if not DBG: return
    a("s_mov_b64 exec, 1\nv_mov_b32 v2, 0")
    for i in range(5): a(f"v_mov_b32 v3, s{96+i}\nbuffer_atomic_umax v3, v2, s[92:95], 0 offen offset:{8+4*i}\ns_nop 1")
def stamp_flush(a, n):
    if not STAMP: return
    a(f"""
    s_lshl_b32 s26, s2, 3
    s_add_u32 s26, s26, s{S_W}
    s_lshl_b32 s26, s26, 9
    s_add_u32 s30, s26, {ST_OFF}
    """)
    make_srd(a, 56, 48, 49, 30, 512)
    a("v_lshlrev_b32 v2, 3, v1\nv_mov_b32 v4, v0\nv_mov_b32 v5, v203\nbuffer_store_dwordx2 v[4:5], v2, s[56:59], 0 offen")

ACC = 8
def acc(tt, f): return ACC + (tt * 6 + f) * 4
XF = [[104 + 4*i for i in range(4)], [144 + 4*i for i in range(4)]]
WF = [[120 + 4*i for i in range(6)], [160 + 4*i for i in range(6)]]
V_XR = [208, 209]; V_WR = [210, 211]; V_XD = list(range(184, 192)); V_WD = [212, 213, 214]
V_PX, V_PW, V_PD = 218, 219, 220
V_NON = 222
LDS_W = 98304

def decode(a, end):
    a(f"""
    s_cmp_ge_u32 s2, 256
    s_cbranch_scc1 {end}
    s_load_dwordx16 s[32:47], s[0:1], 0
    s_load_dwordx2 s[48:49], s[0:1], 64
    v_lshrrev_b32 v1, 6, v0
    s_and_b32 s26, s2, 7
    s_lshr_b32 s27, s2, 3
    v_readfirstlane_b32 s{S_W}, v1
    s_lshr_b32 s{S_B}, s26, 2
    s_and_b32 s28, s26, 1
    s_lshl_b32 s28, s28, 2
    s_and_b32 s29, s27, 3
    s_add_u32 s{S_TM}, s28, s29
    s_bfe_u32 s28, s26, 0x10001
    s_lshl_b32 s28, s28, 3
    s_lshr_b32 s29, s27, 2
    s_add_u32 s{S_HP}, s28, s29
    v_and_b32 v1, 63, v0
    s_mul_i32 s51, {'s26' if ROTB < 0 else 's17'}, {ROT if ROTB < 0 else ROTB}
    s_and_b32 s51, s51, 15
    s_lshl_b32 s14, s51, 1
    s_lshl_b32 s15, s51, 7
    s_mov_b32 s64, 0
    """)

NLAB = [0]
def if_vcc(ins, want=True):
    NLAB[0] += 1
    return [f"s_cbranch_vcc{'z' if want else 'nz'} Lskip{NLAB[0]}"] + ins + [f"Lskip{NLAB[0]}:"]
old_only = if_vcc

def gemm1_setup_dma(a):
    a(f"""
    s_cmp_lt_u32 s{S_W}, 4
    s_cselect_b64 vcc, -1, 0
    s_cbranch_scc0 Lsetup1
    s_setprio 1
    Lsetup1:
    s_mul_i32 s{S_XB}, s{S_W}, 24576
    s_mul_i32 s26, s{S_W}, 3072
    s_add_u32 s{S_WB}, s26, {LDS_W}
    v_lshrrev_b32 v2, 3, v1
    s_lshl_b32 s26, s{S_W}, 6
    v_add_u32 v7, s26, v2
    v_and_b32 v3, 7, v1
    v_lshrrev_b32 v4, 4, v1
    v_xor_b32 v5, v3, v4
    v_lshlrev_b32 v5, 4, v5
    v_lshl_add_u32 v{V_XD[0]}, v7, 11, v5
    v_xor_b32 v5, 64, v5
    v_lshl_add_u32 v{V_XD[1]}, v7, 11, v5
    v_add_u32 v{V_XD[1]}, {8*2048}, v{V_XD[1]}
    """)
    for q in range(2, 8): a(f"v_add_u32 v{V_XD[q]}, {16*2048}, v{V_XD[q-2]}")
    a(f"s_mul_i32 s26, s{S_W}, 24")
    for q in range(3):
        a(f"""
        v_add_u32 v7, s26, v2            ; R
        s_add_u32 s26, s26, 8
        v_lshrrev_b32 v4, 5, v7          ; sec
        v_and_b32 v7, 31, v7             ; k
        v_and_b32 v5, 2, v7
        v_bfe_u32 v6, v7, 3, 1
        v_lshl_or_b32 v5, v6, 2, v5      ; swz*2
        v_xor_b32 v5, v3, v5             ; chunk
        v_lshlrev_b32 v5, 4, v5
        v_lshl_add_u32 v5, v4, 11, v5
        v_mul_u32_u24 v7, 6144, v7
        v_add_u32 v{V_WD[q]}, v7, v5
        """)
    a(f"""
    s_waitcnt lgkmcnt(0)
    s_cmp_eq_u32 s{S_B}, 0
    s_cselect_b32 s26, s32, s38
    s_cselect_b32 s27, s33, s39
    s_cselect_b32 s28, s34, s40
    s_cselect_b32 s29, s35, s41
    s_lshl_b32 s30, s{S_TM}, 19
    """)
    make_srd(a, 4, 26, 27, 30, 524288)
    a(f"s_lshl_b32 s30, s{S_HP}, 7\ns_sub_u32 s31, {1024*6144}, s30")
    make_srd(a, 8, 28, 29, 30, "s31")

def gemm1_setup_rest(a):
    a(f"""
    s_and_b32 s30, s{S_W}, 3
    s_mul_i32 s30, s30, 24576
    v_and_b32 v2, 15, v1             ; c
    v_lshrrev_b32 v4, 4, v1          ; G
    v_lshrrev_b32 v5, 1, v2
    v_xor_b32 v5, v4, v5
    v_lshlrev_b32 v5, 4, v5
    v_lshl_add_u32 v5, v2, 7, v5
    v_add_u32 v{V_XR[0]}, s30, v5
    v_xor_b32 v{V_XR[1]}, 64, v{V_XR[0]}
    v_bfe_u32 v2, v1, 2, 2           ; r
    v_and_b32 v3, 3, v1              ; c4
    v_lshl_add_u32 v5, v4, 3, v2     ; k = 8G + r
    v_lshrrev_b32 v6, 1, v2
    v_and_b32 v7, 1, v4
    v_lshl_or_b32 v6, v7, 1, v6      ; swz
    s_lshr_b32 s30, s{S_W}, 2
    s_lshl_b32 s30, s30, 1
    v_xor_b32 v6, s30, v6
    v_lshlrev_b32 v6, 5, v6
    v_lshl_add_u32 v6, v3, 3, v6
    v_lshl_add_u32 v6, v5, 7, v6
    v_add_u32 v{V_WR[0]}, {LDS_W}, v6
    v_xor_b32 v{V_WR[1]}, 32, v{V_WR[0]}
    """)
    a(f"s_lshr_b32 s30, s{S_TM}, 2\ns_lshl_b32 s30, s30, 21")
    make_srd(a, 52, 26, 27, 30, 2 << 20)
    a(f"s_lshr_b32 s30, s{S_HP}, 3\ns_lshl_b32 s30, s30, 10\ns_sub_u32 s31, {1024*6144}, s30")
    make_srd(a, 56, 28, 29, 30, "s31")
    toks = PRO + " ".join(" ".join(x) for x in STEPX.values())
    if "Q" in toks or "R" in toks:
        for l in q_setup(): a(l)
    if "P" in toks: a(f"""
    s_lshr_b32 s26, s2, 3
    s_lshl_b32 s26, s26, 3
    s_add_u32 s26, s26, s{S_W}       ; u
    s_lshl_b32 s27, s26, 13
    v_and_b32 v2, 3, v1
    v_lshlrev_b32 v2, 11, v2
    v_lshrrev_b32 v3, 2, v1
    v_lshl_add_u32 v2, v3, 7, v2
    v_add_u32 v{V_PX}, s27, v2
    v_mul_u32_u24 v2, 43, v1
    v_lshrrev_b32 v2, 8, v2
    v_mul_u32_u24 v3, 6, v2
    v_sub_u32 v3, v1, v3
    s_and_b32 s27, s26, 3
    s_mul_i32 s27, s27, 6
    v_add_u32 v3, s27, v3
    v_lshrrev_b32 v4, 3, v3
    v_and_b32 v3, 7, v3
    v_lshlrev_b32 v3, 7, v3
    v_lshl_add_u32 v3, v4, 11, v3
    s_lshr_b32 s27, s26, 2
    v_lshl_add_u32 v2, v2, 6, s27
    v_mul_u32_u24 v2, 6144, v2
    v_add_u32 v{V_PW}, v2, v3
    """)
    a(f"""
    v_mov_b32 v{V_PD+1}, 0
    s_or_b32 s26, s2, s{S_W}
    s_cmp_lg_u32 s26, 0
    s_cbranch_scc1 Lnononce
    s_memrealtime s[26:27]
    s_mov_b32 s28, s46
    s_and_b32 s29, s47, 0xffff
    s_mov_b32 s30, 256
    s_mov_b32 s31, 0x00020000
    s_waitcnt lgkmcnt(0)
    s_or_b32 s26, s26, 1
    v_mov_b32 v2, s26
    v_mov_b32 v3, s27
    s_mov_b64 exec, 1
    buffer_store_dwordx2 v[2:3], v{V_PD+1}, s[28:31], 0 offen sc1
    s_mov_b64 exec, -1
    Lnononce:
    """)

def pf_batch(s0, n):
    return [f"s_add_u32 s13, s51, {s0}", "s_and_b32 s13, s13, 15", f"s_bfm_b64 exec, {6*n}, 0", f"s_mul_i32 s50, s13, {64*6144}",
            f"buffer_load_dword v{V_PD}, v{V_PW}, s[56:59], s50 offen{NTP}", "s_lshl_b32 s13, s13, 7",
            f"s_bfm_b64 exec, {4*n}, 0",
            f"buffer_load_dword v{V_PD}, v{V_PX}, s[52:55], s13 offen{NTP}", "s_mov_b64 exec, -1"]
V_QW, V_QX = 218, 219
SLOWC = opt("slowc", 3)
def q_setup():
    return [f"s_lshr_b32 s12, s2, 3", "s_lshl_b32 s12, s12, 3", f"s_add_u32 s12, s12, s{S_W}",
            f"v_lshlrev_b32 v{V_QW}, 11, v1", f"v_add_u32 v{V_QW}, {SLOWC*128}, v{V_QW}",
            "v_and_b32 v2, 3, v1", "v_lshlrev_b32 v2, 11, v2", "v_bfe_u32 v3, v1, 2, 1", "v_lshl_add_u32 v2, v3, 10, v2",
            "s_lshl_b32 s13, s12, 13", f"s_add_u32 s13, s13, {SLOWC*128}", f"v_add_u32 v{V_QX}, s13, v2",
            "s_lshl_b32 s13, s51, 6", "s_add_u32 s12, s12, s13"]
def q_batch(i):
    return [f"s_add_u32 s13, s12, {256*i}", "s_and_b32 s13, s13, 1023", "s_mov_b64 exec, 7", "s_mul_i32 s13, s13, 6144",
            f"buffer_load_dword v{V_NON+1}, v{V_QW}, s[56:59], s13 offen", "s_mov_b64 exec, -1"]
def r_batch():
    return ["s_mov_b64 exec, 0xff", f"buffer_load_dword v{V_NON+1}, v{V_QX}, s[52:55], 0 offen", "s_mov_b64 exec, -1"]
def dma_x(stage, q):
    return [f"s_add_u32 m0, s{S_XB}, {(stage % 3)*8192 + q*1024}", f"buffer_load_dwordx4 v{V_XD[q]}, s[4:7], s{S_SOX} offen{NTD} lds"]
def dma_w(step, q):
    return [f"s_add_u32 m0, s{S_WB}, {(step % 5)*12288 + q*1024}", f"buffer_load_dwordx4 v{V_WD[q]}, s[8:11], s{S_SOW} offen{NTD} lds"]
def frag_reads(step):
    p = step & 1; xs = (step >> 1) % 3; ws = step % 5
    X = [f"ds_read_b128 {v(XF[p][tt],4)}, v{V_XR[p]} offset:{xs*8192 + tt*2048}" for tt in range(4)]
    W = [[f"ds_read_b64_tr_b16 {v(WF[p][f]+2*h,2)}, v{V_WR[f&1]} offset:{ws*12288 + (f>>1)*4096 + h*512}" for h in range(2)] for f in range(6)]
    return [X[0]] + W[0] + W[1] + W[2] + [X[1]] + W[3] + W[4] + W[5] + [X[2], X[3]]
def gemm1_mfmas(step):
    p = step & 1; out = []
    for tt in range(4):
        for f in (range(6) if tt % 2 == 0 else range(5, -1, -1)):
            d = acc(tt, f)
            A, B = (WF[p][f], XF[p][tt]) if f < 4 else (XF[p][tt], WF[p][f])
            out.append(f"v_mfma_f32_16x16x32_bf16 {v(d,4)}, {v(A,4)}, {v(B,4)}, {'0' if step == 0 else v(d,4)}")
    return out

HB = opt('hb', 0)
RD0, DG0, DGS = opt('rd0', 0), opt('dg0', 16), opt('dgs', 3)
def gemm1_main(a, late):
    vm = VmTrack()
    def group(tok):
        if tok == "B": return [["s_barrier"]], []
        if tok[0] == "Q": return [q_batch(int(tok[1:]))], ["pf"]
        if tok[0] == "R": return [r_batch()], ["pf"]
        if tok[0] == "P":
            s0, n = map(int, tok[1:].split("_")); return [pf_batch(s0, n)], ["pf", "pf"]
        if tok[0] == "W":
            st = int(tok[1:]); g = [f"s_add_u32 s{S_SOW}, s14, {st}", f"s_and_b32 s{S_SOW}, s{S_SOW}, 31"]
            for q in range(3):
                m, l = dma_w(st, q); g += [m, f"s_mul_i32 s{S_SOW}, s{S_SOW}, {32*6144}" if q == 0 else "s_nop 0", l]
            return [old_only(g)], [("W", st)] * 3
        if tok[0] == "X":
            if "h" in tok: S, h = tok[1:].split("h"); S = int(S); qs = range(0, 4) if h == "0" else range(4, 8)
            else: S = int(tok[1:]); qs = range(8)
            g = [f"s_add_u32 s{S_SOX}, s15, {S*128}"]
            for q in qs:
                m, l = dma_x(S, q); g += [m, f"s_and_b32 s{S_SOX}, s{S_SOX}, 0x780" if q == qs[0] else "s_nop 0", l]
            return [old_only(g)], [("X", S)] * len(qs)
    first = True
    for tok in PRO.split():
        g, t = group(tok)
        for x in g:
            for y in x: a(y)
        for y in t: vm.issue(y)
        if tok == "W0":
            gemm1_setup_rest(a)
    a(f"s_waitcnt vmcnt({vm.wait_count({('X',0),('W',0)})})")
    a("s_barrier")
    stamp(a, 1)
    for l in frag_reads(0): a(l)
    for st in range(32):
        bar = (not HB) or st == 0 or st % 2 == 1
        if st == 31:
            a("s_waitcnt vmcnt(0) lgkmcnt(0)")
        elif bar:
            ahead = [st + 1] + ([st + 2] if HB and st % 2 == 1 else [])
            need = {("W", x) for x in ahead} | {("X", x >> 1) for x in ahead}
            for nd in need: assert vm.ops.count(nd) == (3 if nd[0] == "W" else 8), (st, nd)
            a(f"s_waitcnt vmcnt({min(63, vm.wait_count(need))}) lgkmcnt(0)")
        else:
            a("s_waitcnt lgkmcnt(0)")
        if bar: a("s_barrier")
        if st % 4 == 0: stamp(a, None, "g")
        M = gemm1_mfmas(st)
        if st == 31:
            last_step(a, late[31]); break
        R = frag_reads(st + 1) if st + 1 < 32 else []
        toks = list(STEPX.get(st, []))
        if not HB:
            if st + 5 < 32: toks.append(f"W{st+5}")
        elif st >= 1 and st + 4 < 32:
            toks.append(f"W{st+4}")
        if st >= 1 and ((st - 1) >> 1) + 3 < 16: toks.append(f"X{((st-1)>>1)+3}h{0 if st % 2 == 1 else 1}")
        D = []
        for tok in toks:
            g, t = group(tok); D += g
            for y in t: vm.issue(y)
        gaps = [[] for _ in range(24)]
        for i, r in enumerate(R): gaps[i + RD0].append(r)
        for i, d in enumerate(D): gaps[min(23, DG0 + (i * DGS if len(D) <= 3 else (i * (23 - DG0)) // len(D)))] += d
        lt = late.get(st, [])
        assert len(lt) <= 24
        for i, x in enumerate(lt):
            gaps[i].append(x)
            if x.startswith("buffer_"): vm.issue("late")
        for i, m in enumerate(M):
            a(m)
            for x in gaps[i]: a(x)

AS = [8, 24, 40, 56]
AO = {'a': 224, 'b': 240}
AQ = {('a',0): 104, ('a',1): 108, ('b',0): 112, ('b',1): 116}
AC = {'a': 120, 'b': 136}
AK = [[152, 156], [160, 164]]
AV = [[168, 172], [176, 180]]
AL = {'a': 184, 'b': 188}
ASEL = 192; AIDX = 196; AADDR = 197; AVO = 198; AWD = 199
AFL = 200
AFA = 202
V_VS, V_VL = 205, 207
AADK, AVK = 204, 206
V_FA = 221
S_CH2 = 22
P_WR = [212, 213, 214, 215]; P_OV = [[216, 217], [218, 219]]; V_FA2 = 220
S_OSO = 64 if not STAMP else 66
def qk1(Y, kb, q, c=None): return f"v_mfma_f32_32x32x16_bf16 {v(Y,16)}, {v(AK[kb][0],4)}, {v(AQ[(q,0)],4)}, {v(AC[q],16) if c is None else c}"
def qk2(Y, kb, q): return f"v_mfma_f32_32x32x16_bf16 {v(Y,16)}, {v(AK[kb][1],4)}, {v(AQ[(q,1)],4)}, {v(Y,16)}"
def pv(Z, h, vb, q): return f"v_smfmac_f32_32x32x32_bf16 {v(AO[q],16)}, {v(AV[vb][h],4)}, {v(Z+8*h,8)}, v{AIDX}"
def sm(Z, h, q): return f"v_smfmac_f32_16x16x64_bf16 {v(AL[q],4)}, {v(ASEL,4)}, {v(Z+8*h,8)}, v{AIDX}"
def srd(d, lo, hi, off, nrec):
    return [f"s_add_u32 s{d}, s{lo}, s{off}\ns_addc_u32 s{d+1}, s{hi}, 0", f"s_and_b32 s{d+1}, s{d+1}, 0xffff", f"s_mov_b32 s{d+2}, {nrec}", f"s_mov_b32 s{d+3}, 0x00020000"]

def late_setup():
    L = {}
    L[18] = [f"v_mov_b32 v{AO['a']+i}, 0" for i in range(24)]
    L[19] = [f"v_mov_b32 v{AO['a']+24+i}, 0" for i in range(8)] + \
            [f"v_lshlrev_b32 v{AVO}, 4, v1", "v_and_b32 v2, 7, v1", f"v_lshlrev_b32 v{AFA}, 3, v2", f"s_lshr_b32 s26, s{S_W}, 2", "s_lshl_b32 s26, s26, 14",
             f"v_add_u32 v{AADDR}, s26, v{AVO}", f"v_mov_b32 v{AIDX}, 0xdddddddd",
             "v_bfe_u32 v2, v1, 2, 1", "v_mov_b32 v3, 0x3f803f80", "v_cmp_eq_u32 s[28:29], 0, v2", "s_nop 1",
             f"v_cndmask_b32 v{ASEL}, 0, v3, s[28:29]", f"v_cndmask_b32 v{ASEL+1}, 0, v3, s[28:29]", f"v_xor_b32 v{ASEL+2}, v3, v{ASEL}", f"v_xor_b32 v{ASEL+3}, v3, v{ASEL}"]
    L[20] = ["v_and_b32 v2, 15, v1", "v_lshrrev_b32 v4, 4, v1", "v_lshlrev_b32 v4, 9, v4", f"v_lshl_add_u32 v{V_VS}, v2, 4, v4",
             "v_bfe_u32 v2, v1, 2, 1", "v_bfe_u32 v3, v1, 3, 2", "v_and_b32 v4, 35, v1", "v_lshl_add_u32 v4, v2, 4, v4", "v_lshl_add_u32 v4, v3, 2, v4",
             f"v_lshlrev_b32 v{AVK}, 4, v4", f"v_sub_u32 v2, v{AADDR}, v{AVO}", f"v_add_u32 v{AADK}, v2, v{AVK}",
             f"s_and_b32 s26, s{S_W}, 2", "s_lshl_b32 s26, s26, 14", f"s_and_b32 s27, s{S_W}, 1", "s_lshl_b32 s27, s27, 13", "s_add_u32 s26, s26, s27",
             f"s_lshr_b32 s27, s{S_W}, 2", "s_lshl_b32 s27, s27, 14", "s_add_u32 s26, s26, s27", f"v_add_u32 v{V_VL}, s26, v{V_VS}"]
    L[21] = ["v_lshrrev_b32 v2, 3, v1", "v_and_b32 v3, 7, v1", "v_lshrrev_b32 v4, 4, v1", "v_lshlrev_b32 v4, 1, v4", "v_xor_b32 v4, v3, v4",
             "v_lshlrev_b32 v4, 4, v4", f"v_lshl_add_u32 v{AWD}, v2, 11, v4",
             f"s_cmp_eq_u32 s{S_B}, 0\ns_cselect_b32 s26, s36, s42\ns_cselect_b32 s27, s37, s43", f"s_lshl_b32 s30, s{S_HP}, 7", f"s_sub_u32 s31, {1024*2048}, s30"] \
            + srd(SRD_WO, 26, 27, 30, "s31") + ["s_mov_b32 s92, s46", "s_and_b32 s93, s47, 0xffff", "s_mov_b32 s94, 256", "s_mov_b32 s95, 0x00020000"]
    if WARMF:
        L[22] = [f"s_lshl_b32 s28, s{S_B}, 4", f"s_add_u32 s28, s28, s{S_HP}", "s_lshl_b32 s28, s28, 10", f"s_add_u32 s30, s28, {F1_OFF}",
                 f"s_lshl_b32 s28, s{S_B}, 3", f"s_add_u32 s28, s28, s{S_TM}", "s_lshl_b32 s28, s28, 11", f"s_add_u32 s31, s28, {F2_OFF}",
                 "s_mov_b32 s76, s48", "s_and_b32 s77, s49, 0xffff", f"s_mov_b32 s78, {34 << 20}", "s_mov_b32 s79, 0x00020000", "v_lshlrev_b32 v2, 7, v1",
                 "\n".join(if_vcc(["s_mov_b64 exec, 0xff", f"buffer_load_dword v{V_NON+1}, v2, s[76:79], s30 offen sc1",
                                   "s_mov_b64 exec, 0xffff", f"buffer_load_dword v{V_NON+1}, v2, s[76:79], s31 offen sc1", "s_mov_b64 exec, -1"], False))]
    L[27] = [f"v_mov_b32 v{AL['a']+i}, 0" for i in range(8)] + \
            [f"s_lshl_b32 s26, s{S_B}, 5", f"s_lshl_b32 s27, s{S_HP}, 1", "s_add_u32 s26, s26, s27",
             f"s_and_b32 s28, s{S_W}, 3", "s_lshl_b32 s29, s28, 12", "s_lshl_b32 s30, s26, 18", "s_add_u32 s31, s30, s29", "s_sub_u32 s50, 524288, s29"] \
            + srd(SRD_KV, 48, 49, 31, "s50") + [f"s_lshr_b32 s27, s{S_W}, 2", "s_add_u32 s26, s26, s27", "s_lshl_b32 s30, s26, 18"]
    L[28] = [f"buffer_load_dwordx2 {v(V_NON,2)}, v{V_PD+1}, s[92:95], 0 offen sc1",
             f"s_mov_b32 s{S_WOI}, -1", f"s_lshl_b32 s{S_WOB}, s{S_W}, 14", f"s_lshl_b32 s27, s{S_W}, 10", f"s_add_u32 s{S_WOM}, s27, 65536",
             f"s_lshl_b32 s{S_M0}, s{S_W}, 12", f"s_mov_b32 s{S_CIDX}, 16384", f"s_lshl_b32 s23, s{S_TM}, 15", f"s_lshr_b32 s51, s{S_W}, 1", f"s_mov_b32 s{S_EARLY}, 0"]
    L[29] = [f"s_lshl_b32 s27, s{S_TM}, 3", "s_lshl_b32 s28, s28, 1", "s_add_u32 s27, s27, s28", "s_lshl_b32 s29, s27, 12", "s_add_u32 s31, s30, s29"] \
            + srd(SRD_KVS, 48, 49, 31, 8192) + ["s_mov_b32 s50, 4096",
             f"s_lshl_b32 s28, s{S_B}, 22", "s_lshl_b32 s29, s27, 16", "s_add_u32 s31, s28, s29", "s_and_b32 s28, s26, 31", "s_lshl_b32 s28, s28, 10",
             "s_add_u32 s31, s31, s28", f"s_add_u32 s31, s31, {O_OFF}"] + srd(SRD_O, 48, 49, 31, 131072)
    L[30] = [f"s_lshl_b32 s28, s{S_B}, 4", f"s_add_u32 s28, s28, s{S_HP}", "s_lshl_b32 s28, s28, 10", f"s_add_u32 s31, s28, {F1_OFF}"] + srd(SRD_F, 48, 49, 31, 1024) \
            + [f"s_bitcmp0_b32 s{S_W}, 1\ns_cselect_b64 vcc, -1, 0", f"s_mov_b32 s26, {QSCALE}", f"s_mov_b32 s27, {QSCALE}"]
    L[23] = [f"s_lshl_b32 s28, s{S_B}, 3", f"s_add_u32 s28, s28, s{S_TM}", "s_lshl_b32 s28, s28, 11", f"s_add_u32 s30, s28, {F2_OFF}"] + srd(SRD_F2, 48, 49, 30, 2048) \
            + [f"s_lshl_b32 s28, s{S_B}, 22", f"s_lshl_b32 s29, s{S_TM}, 19", "s_add_u32 s30, s28, s29", f"s_lshl_b32 s29, s{S_W}, 16", "s_add_u32 s30, s30, s29",
               f"s_add_u32 s30, s30, {O_OFF}"] + srd(SRD_OL, 48, 49, 30, 65536)
    L[24] = [f"s_lshl_b32 s28, s{S_TM}, 20", f"s_lshl_b32 s29, s{S_W}, 17", "s_add_u32 s30, s28, s29", f"s_lshl_b32 s29, s{S_B}, 11", "s_add_u32 s30, s30, s29",
             f"s_lshl_b32 s29, s{S_HP}, 7", "s_add_u32 s30, s30, s29", f"s_sub_u32 s31, {2048*4096}, s30"] + srd(SRD_OUT, 44, 45, 30, "s31") \
            + [f"s_and_b32 s26, s{S_HP}, 8", "s_lshl_b32 s27, s26, 11", f"v_add_u32 v{P_OV[0][0]}, s27, v{AVO}", f"v_add_u32 v{P_OV[0][1]}, 32768, v{P_OV[0][0]}",
               f"v_xor_b32 v{P_OV[1][0]}, 16384, v{P_OV[0][0]}", f"v_xor_b32 v{P_OV[1][1]}, 16384, v{P_OV[0][1]}",
               "s_lshl_b32 s26, s26, 4", f"s_lshr_b32 s27, s{S_W}, 1", "s_lshl_b32 s27, s27, 9", f"s_add_u32 s{S_FL0}, s26, s27"]
    L[25] = [x for j in range(8) for x in (f"s_add_u32 s26, s{S_HP}, {j}", "s_and_b32 s26, s26, 7", f"s_lshl_b32 s{S_OSO+j}, s26, 11")]
    L[26] = [f"s_and_b32 s26, s{S_W}, 3", "s_lshl_b32 s26, s26, 6", f"s_lshr_b32 s27, s{S_W}, 2", "s_lshl_b32 s27, s27, 5", "s_add_u32 s26, s26, s27",
             f"s_and_b32 s27, s{S_HP}, 8", f"s_add_u32 s27, s27, s{S_HP}", "s_add_u32 s26, s26, s27", "s_lshl_b32 s26, s26, 3", f"v_mov_b32 v{V_FA2}, s26",
             "v_and_b32 v4, 15, v1", "v_lshlrev_b32 v4, 4, v4", "v_bfe_u32 v5, v1, 4, 1", "v_lshl_add_u32 v4, v5, 15, v4", "v_lshrrev_b32 v5, 5, v1", "v_lshl_add_u32 v6, v5, 8, v4"]
    L[30] += ["v_lshrrev_b32 v4, 4, v1", "v_bfe_u32 v2, v1, 2, 2", "v_and_b32 v3, 3, v1", "v_and_b32 v5, 1, v4", "v_lshrrev_b32 v4, 1, v4", "v_lshl_add_u32 v7, v5, 2, v2",
              "v_lshl_add_u32 v4, v4, 4, v7", "v_lshrrev_b32 v7, 1, v7", "v_lshlrev_b32 v7, 5, v7", "v_lshl_add_u32 v7, v3, 3, v7", "v_lshl_add_u32 v7, v4, 7, v7",
              f"v_add_u32 v{P_WR[0]}, 65536, v7\nv_xor_b32 v{P_WR[1]}, 32, v{P_WR[0]}", f"v_xor_b32 v{P_WR[2]}, 64, v{P_WR[0]}\nv_xor_b32 v{P_WR[3]}, 96, v{P_WR[0]}"]
    L[31] = []
    return L

UNITS = [('V',0,0,80), ('V',0,1,84), ('V',1,0,72), ('V',1,1,76), ('K',1,1,88), ('K',1,0,92), ('K',0,0,96), ('K',0,1,100)]
def unit_src(u):
    k, T, h, d = UNITS[u]
    return [(2*T, 4+h), (2*T+1, 4+h)] if k == 'V' else [(2*T+h, 2), (2*T+h, 3)]
def cvt4(regs, d): return [f"v_cvt_pk_bf16_f32 v{d+i}, v{regs[2*i]}, v{regs[2*i+1]}" for i in range(4)]
def unit_cvt(u):
    k, T, h, d = UNITS[u]
    regs = [acc(*x) + i for x in unit_src(u) for i in range(4)]
    w = f"ds_write_b128 v{V_VL}, {v(d,4)} offset:{T*4096 + (2048 if k == 'V' else 0) + h*256}"
    return cvt4(regs, d) + [w]
def kv_store(u):
    k, T, h, d = UNITS[u]
    return f"buffer_store_dwordx4 {v(d,4)}, v{V_VS}, s[{SRD_KVS}:{SRD_KVS+3}], {'0' if T == 0 else 's50'} offen offset:{(2048 if k == 'V' else 0) + h*256}{SC1}"
def q_cvt(tt):
    return [f"v_pk_mul_f32 {v(acc(tt,0)+2*i,2)}, {v(acc(tt,0)+2*i,2)}, s[26:27]" for i in range(4)] + cvt4([acc(tt,0)+i for i in range(8)], AQ[("ab"[tt >> 1], tt & 1)])

def last_step(a, sal):
    order = [(3, 0), (3, 1)] + [x for u in range(8) for x in unit_src(u)] + [(tt, f) for tt in range(3) for f in range(2)]
    gaps = [[] for _ in range(24)]
    gaps[10] += q_cvt(3)
    for u in range(6): gaps[12 + 2*u] += unit_cvt(u) + (if_vcc([kv_store(u - 1), kv_store(u)]) if u & 1 else [])
    for i, (tt, f) in enumerate(order):
        d = acc(tt, f)
        A, B = (WF[1][f], XF[1][tt]) if f < 4 else (XF[1][tt], WF[1][f])
        a(f"v_mfma_f32_16x16x32_bf16 {v(d,4)}, {v(A,4)}, {v(B,4)}, {v(d,4)}")
        for x in gaps[i]: a(x)
    for x in unit_cvt(6) + unit_cvt(7) + if_vcc([kv_store(6), kv_store(7)]): a(x)

def transition_ab(a):
    a(f"s_cmp_lt_u32 s{S_W}, 4\ns_setprio 1\ns_cbranch_scc0 Lyng0\ns_setprio 2\nLyng0:")
    a("s_waitcnt lgkmcnt(0)\ns_barrier")
    for j in range(2): a(f"ds_read_b128 {v(AK[0][j],4)}, v{AADK} offset:{1024*j}")
    for j in range(2): a(f"ds_read_b128 {v(AV[0][j],4)}, v{AADDR} offset:{2048+1024*j}")
    for tt in range(3):
        for x in q_cvt(tt): a(x)
    a("s_nop 1")
    for q in "ab":
        for i in range(4): a(f"v_permlane16_swap_b32 v{AQ[(q,0)]+i}, v{AQ[(q,1)]+i}")
    for q in "ab":
        for i in range(4): a(f"v_permlane32_swap_b32 v{AQ[(q,0)]+i}, v{AQ[(q,1)]+i}")
    a("s_waitcnt lgkmcnt(2)")
    a(qk1(AS[0],0,'a',"0")); a(qk2(AS[0],0,'a')); a(qk1(AS[1],0,'b',"0")); a(qk2(AS[1],0,'b'))
    a(f"""
    v_readfirstlane_b32 s{S_NONCE}, v{V_NON}
    v_readfirstlane_b32 s{S_NONCE+1}, v{V_NON+1}
    s_lshl_b32 s26, s{S_TM}, 4
    s_add_u32 s26, s26, s{S_W}
    s_lshl_b32 s28, s26, 3
    s_nop 3
    s_cmp_eq_u32 s{S_NONCE}, 0
    s_cbranch_scc1 Lnonce_spin
    Lnonce_ok:
    v_mov_b32 v{V_FA}, s28
    s_nop 0
    """)
    rowmax16(a, AS[0], 2, 3)
    rowmax16(a, AS[1], 4, 5)
    for i in range(8): a(f"v_pk_mul_f32 {v(AC['a']+2*i,2)}, v[2:3], -1.0 op_sel_hi:[0,0]")
    a(f"v_pk_mul_f32 {v(AC['b'],2)}, v[4:5], -1.0 op_sel_hi:[0,0]\nv_pk_mul_f32 {v(AC['b']+2,2)}, v[4:5], -1.0 op_sel_hi:[0,0]")
    a(qk1(AS[0],0,'a')); a(qk2(AS[0],0,'a'))
    for i in range(2, 8): a(f"v_pk_mul_f32 {v(AC['b']+2*i,2)}, v[4:5], -1.0 op_sel_hi:[0,0]")
    a("s_nop 4")

def rowmax16(a, S, m, t):
    a(f"v_max3_f32 v{m}, v{S}, v{S+1}, v{S+2}")
    for i in range(3, 15, 2): a(f"v_max3_f32 v{m}, v{m}, v{S+i}, v{S+i+1}")
    a(f"v_max_f32 v{m}, v{m}, v{S+15}")
    a(f"v_mov_b32 v{t}, v{m}\ns_nop 1\nv_permlane32_swap_b32 v{m}, v{t}\ns_nop 0\nv_max_f32 v{m}, v{m}, v{t}")

def attn_half(a, t, q, extra=None, skipz=False):
    hs = (2*t + (q == 'b')) % 4
    oq = 'b' if q == 'a' else 'a'
    X = AS[hs]; Y = AS[(hs+1) % 4]; Z = AS[(hs-1) % 4]
    kb = t % 2 if q == 'a' else (t+1) % 2
    vb = (t-1) % 2 if q == 'a' else t % 2
    nt = (t + 1) % 4
    M = {'Q1': qk1(Y,kb,oq), 'Q2': qk2(Y,kb,oq), 'P1': pv(Z,0,vb,oq), 'S1': sm(Z,0,oq), 'P2': pv(Z,1,vb,oq), 'S2': sm(Z,1,oq)}
    e = 0
    for tok in "Q1 W0 3 S1 L0 2 Q2 3 P1 3 S2 L1 2 P2 W1 3".split():
        if tok in M:
            if not (skipz and tok[0] != 'Q'): a(M[tok])
        elif tok in ('L0', 'L1'):
            j = int(tok[1])
            if q == 'a': a(f"ds_read_b128 {v(AK[(t+1)%2][j],4)}, v{AADK} offset:{nt*4096 + 1024*j}")
            else: a(f"ds_read_b128 {v(AV[(t+1)%2][j],4)}, v{AADDR} offset:{nt*4096 + 2048 + 1024*j}")
        elif tok == 'W0':
            if q == 'b': a("s_waitcnt lgkmcnt(0)")
        elif tok == 'W1':
            if q == 'a': a("s_waitcnt lgkmcnt(1)")
        else:
            for _ in range(int(tok)):
                a(f"v_exp_f32 v{X+e}, v{X+e}"); e += 1
        if extra and tok in extra:
            for x in extra[tok]: a(x)
    assert e == 16

def kv_dma(h): return [f"buffer_load_dwordx4 v{AVO}, s[{SRD_KV}:{SRD_KV+3}], s{S_CH if h == 0 else S_CH2} offen offset:{1024*i}{SC1} lds" for i in range(4)]
S_FSO = 24
def flag_load(srd=None):
    srd = SRD_F if srd is None else srd
    return f"buffer_load_dwordx2 {v(AFL,2)}, v{AFA}, s[{srd}:{srd+3}], s{S_FSO} offen sc1"
S_EARLY = 41
DEPTH = opt("odepth", 5)
def oslot(p, tt): return (72 if p % 8 < 4 else 136 - 32) + ((p % 8) * 2 + tt) * 4
def oload_ins(p):
    return [f"buffer_load_dwordx4 {v(oslot(p, tt),4)}, v{P_OV[(p>>3)&1][tt]}, s[{SRD_OL}:{SRD_OL+3}], s{S_OSO + p%8} offen offset:{(p>>4)*1024}{SC1}" for tt in range(2)]
def chunk_scalars():
    return [f"s_add_u32 s{S_CIDX}, s{S_CIDX}, 16384", f"s_xor_b32 s{S_CH}, s{S_CIDX}, s23", f"s_add_u32 s{S_CH2}, s{S_CH}, 262144",
            f"s_bfe_u32 s26, s{S_CH}, 0x1000e", "s_lshl_b32 s26, s26, 1", f"s_add_u32 s{S_FIDX}, s26, s51"]
def line_cur(): return [f"s_lshr_b32 s26, s{S_CH}, 15", f"s_lshl_b32 s{S_FSO}, s26, 7"]
def line_next(): return [f"s_add_u32 s26, s{S_CIDX}, 16384", "s_xor_b32 s26, s26, s23", "s_bfe_u32 s26, s26, 0x3000f", f"s_lshl_b32 s{S_FSO}, s26, 7"]
def mask_test():
    return [f"s_lshr_b32 s26, s{S_MASK}, s{S_FIDX}", "s_andn2_b32 s26, 0x11, s26"]
def flag_cmp(): return f"v_cmp_eq_u64 s[{S_MASK}:{S_MASK+1}], s[{S_NONCE}:{S_NONCE+1}], {v(AFL,2)}"
def spin(a, name, test, lowprio=False):
    if lowprio:
        a(f"""
        {name}:
        s_mov_b32 s{S_SPIN}, {SPIN_LIMIT}
        {name}_l:
        {flag_load()}
        s_waitcnt vmcnt(0)
        {flag_cmp()}
        s_sub_u32 s{S_SPIN}, s{S_SPIN}, 1
        s_cbranch_scc1 {name}_x
        """)
        for x in test: a(x)
        a(f"s_cbranch_scc0 {name}_x\ns_setprio 0\ns_sleep {SLEEP}\ns_branch {name}_l\n{name}_x:\ns_cbranch_vccz {name}_r\ns_setprio 2\ns_branch {name}_r")
        return
    a(f"""
    {name}:
    s_mov_b32 s{S_SPIN}, {SPIN_LIMIT}
    {name}_l:
    {flag_load()}
    s_waitcnt vmcnt(0)
    {flag_cmp()}
    s_sub_u32 s{S_SPIN}, s{S_SPIN}, 1
    s_cbranch_scc1 {name}_r
    """)
    for x in test: a(x)
    a(f"s_cbranch_scc0 {name}_r\ns_sleep {SLEEP}\ns_branch {name}_l")
def spin_flags(a, name): spin(a, name, mask_test())
def wo_dma():
    return [f"s_add_u32 s{S_WOI}, s{S_WOI}, 1", f"s_add_u32 s26, s{S_WOI}, s{S_HP}", "s_and_b32 s26, s26, 7",
            f"s_xor_b32 s27, s{S_WOI}, s{S_HP}", "s_and_b32 s27, s27, 8", "s_or_b32 s26, s26, s27", "s_lshl_b32 s26, s26, 1",
            f"s_lshr_b32 s27, s{S_WOI}, 4", "s_add_u32 s26, s26, s27", "s_lshl_b32 s26, s26, 16", f"s_mov_b32 m0, s{S_WOM}",
            f"s_add_u32 s{S_WOS}, s26, s{S_WOB}", f"s_add_u32 s{S_WOM}, s{S_WOM}, 4096",
            f"buffer_load_dwordx4 v{AWD}, s[{SRD_WO}:{SRD_WO+3}], s{S_WOS} offen{NTW} lds"]
TOUCH = "--touch" in sys.argv
WARMF = "--nowarmf" not in sys.argv
def publish(fa=V_FA): return ["s_waitcnt vmcnt(0)", "s_mov_b64 exec, 1", f"buffer_store_dwordx2 {v(V_NON,2)}, v{fa}, s[{SRD_F}:{SRD_F+3}], 0 offen sc1", "s_mov_b64 exec, -1"]
def wo_rows(n):
    o = []
    for _ in range(n): o += wo_dma()
    return o
EARLY = '--noearly' not in sys.argv
LST = opt("lst", 2)
def attn_chunk(a, kind):
    tog = f"v_xor_b32 v{AADDR}, 32768, v{AADDR}\nv_xor_b32 v{AADK}, 32768, v{AADK}"
    for t in range(4):
        ea, eb = {}, {}
        if kind == 'c0':
            for k, e in enumerate((ea, eb)):
                j = 2*t + k - LST
                if 0 <= j < 4: e['P1'] = if_vcc([kv_store(2*j), kv_store(2*j + 1)], False)
        if kind == 'c1' and t == 0:
            eb['P2'] = [f"s_and_b32 s26, s{S_W}, 6", "s_cmp_eq_u32 s26, 2", "s_cbranch_scc0 Lpub2"] + publish() + ["Lpub2:"]
        if kind == 'c14' and t == 0:
            ea['Q2'] = old_only([f"s_lshl_b32 s28, s{S_W}, 1", f"s_add_u32 s28, s28, s{S_HP}", "v_lshrrev_b32 v2, 5, v1", "v_add_u32 v2, s28, v2", "v_and_b32 v2, 7, v2",
                                 f"s_and_b32 s28, s{S_HP}, 8", "s_xor_b32 s28, s28, 8", "v_or_b32 v2, s28, v2", "v_lshlrev_b32 v2, 17, v2", "v_and_b32 v3, 31, v1",
                                 "v_lshl_add_u32 v2, v3, 11, v2", "s_mov_b32 s28, 65536", f"buffer_load_dword v3, v2, s[{SRD_WO}:{SRD_WO+3}], s28 offen"])
        if kind == 'c15' and EARLY:
            if t == 2: ea['Q2'] = if_vcc([f"s_mov_b32 s{S_FSO}, s{S_FL0}", flag_load(SRD_F2)], False)
            if t == 3: ea['Q2'] = if_vcc(["s_waitcnt vmcnt(0)", flag_cmp(), "s_nop 0", f"s_cmp_lg_u32 s{S_MASK}, -1", "s_cbranch_scc1 Lnoearly", f"s_mov_b32 s{S_EARLY}, 1"]
                                         + [x for p in range(min(DEPTH, 4)) for x in oload_ins(p)] + ["Lnoearly:"], False)
        if t == 3:
            if kind == 'c0':
                stamp(a); a("s_waitcnt lgkmcnt(0)\ns_barrier"); stamp(a)
                for x in [f"s_cmp_lt_u32 s{S_W}, 4", "s_cselect_b64 vcc, -1, 0", f"s_and_b32 s26, s{S_W}, 6", "s_cmp_eq_u32 s26, 2", "s_cbranch_scc1 Lpub1"] + publish() + ["Lpub1:"]: a(x)
                stamp(a)
                ea['Q1'] = [tog]
            elif kind == 'c14':
                ea['Q1'] = [f"v_add_u32 v{AADDR}, 131072, v{AADDR}\nv_add_u32 v{AADK}, 131072, v{AADK}"]
            elif kind != 'c15':
                if kind == 'c1':
                    for x in old_only(chunk_scalars() + line_cur() + ["s_branch Lspin_c1a", "Lspin_c1a_r:", f"s_mov_b32 m0, s{S_M0}", "s_nop 0"] + kv_dma(0)
                                      + [f"s_add_u32 m0, s{S_M0}, 16384", "s_nop 0"] + kv_dma(1)): a(x)
                stamp(a); a("s_waitcnt vmcnt(0) lgkmcnt(0)"); stamp(a); a("s_barrier"); stamp(a)
                if kind in ('c1', 'loop'):
                    nm = "Lspin_" + kind
                    ea = {'Q1': [tog],
                          'Q2': old_only([flag_cmp(), f"s_xor_b32 s{S_M0}, s{S_M0}, 32768"] + chunk_scalars() + [f"s_mov_b32 m0, s{S_M0}"] + mask_test()
                                         + [f"s_cbranch_scc1 {nm}", f"{nm}_r:"] + kv_dma(0)),
                          'P2': old_only([f"s_add_u32 m0, s{S_M0}, 16384", "s_nop 0"] + kv_dma(1) + line_next() + [flag_load()])}
                    if kind == 'loop':
                        eb = {'Q2': old_only([f"s_cmp_gt_u32 s{S_CNT}, 3", "s_cbranch_scc0 Lnowo"] + wo_rows(2) + ["Lnowo:", f"s_cmp_eq_u32 s{S_CNT}, 1", "s_cbranch_scc0 Lno15"]
                                             + chunk_scalars() + [f"s_add_u32 m0, s{S_M0}, 131072"] + mask_test() + ["s_cbranch_scc1 Lspin_15", "Lspin_15_r:"] + kv_dma(0)
                                             + [f"s_add_u32 m0, s{S_M0}, {131072 + 16384}", "s_nop 0"] + kv_dma(1) + ["Lno15:"]),
                              'P2': [f"s_sub_u32 s{S_CNT}, s{S_CNT}, 1", f"s_cmp_lg_u32 s{S_CNT}, 0"]}
                elif kind == 'c13':
                    ea = {'Q1': [tog], 'Q2': old_only([f"s_lshl_b32 s{S_WOM}, s{S_W}, 10", f"s_add_u32 s{S_WOM}, s{S_WOM}, 32768"] + wo_rows(3)), 'P2': old_only(wo_rows(3))}
                    eb = {'Q2': old_only(wo_rows(2))}
        attn_half(a, t, 'a', ea, skipz=(kind == 'c0' and t == 0)); attn_half(a, t, 'b', eb)

def attention(a):
    attn_chunk(a, 'c0')
    attn_chunk(a, 'c1')
    a(f"s_mov_b32 s{S_CNT}, 11")
    a(".p2align 6")
    a.label("Lattn_loop")
    attn_chunk(a, 'loop')
    a("s_cbranch_scc1 Lattn_loop")
    attn_chunk(a, 'c13')
    for x in if_vcc(["s_barrier"], False): a(x)
    attn_chunk(a, 'c14')
    attn_chunk(a, 'c15')
    a("s_nop 1")
    stamp(a, 4)
    a(pv(AS[3],0,1,'b')); a(sm(AS[3],0,'b')); a(pv(AS[3],1,1,'b')); a(sm(AS[3],1,'b'))
    a(f"""
    s_mov_b32 s26, 0x4e800000        ; 2^30
    s_mov_b32 s27, 65536
    s_nop 5
    v_cmp_nge_f32 vcc, s26, v{AL['a']}
    v_cmp_nge_f32 s[28:29], s26, v{AL['b']}
    s_or_b64 vcc, vcc, s[28:29]
    s_cbranch_vccnz Lattn_fallback
    Lattn_fin:
    """)
    stamp(a, None, "e")
    a(f"""
    v_rcp_f32 v2, v{AL['a']}
    v_rcp_f32 v4, v{AL['b']}
    """)
    for qi, q in enumerate('ab'):
        for u in range(2):
            for i in range(4): a(f"v_pk_mul_f32 {v(AO[q]+8*u+2*i,2)}, {v(AO[q]+8*u+2*i,2)}, {v(2+2*qi,2)} op_sel_hi:[1,0]")
            d = AS[0] + 4*(2*qi+u)
            for x in cvt4([AO[q]+8*u+i for i in range(8)], d): a(x)
            a(f"buffer_store_dwordx4 {v(d,4)}, v6, s[{SRD_O}:{SRD_O+3}], {'0' if qi==0 else 's27'} offen offset:{512*u}{SC1}")

def fallback(a):
    a.label("Lattn_fallback")
    a(f"""
    s_waitcnt vmcnt(0)
    s_lshl_b32 s26, s{S_B}, 5
    s_lshl_b32 s28, s{S_HP}, 1
    s_add_u32 s26, s26, s28
    s_lshr_b32 s28, s{S_W}, 2
    s_add_u32 s26, s26, s28
    s_lshl_b32 s30, s26, 18
    """)
    make_srd(a, SRD_KV, 48, 49, 30, 262144)
    a(f"""
    s_mov_b32 s{S_SPIN}, {SPIN_LIMIT}
    v_lshrrev_b32 v2, 3, v1
    v_lshl_add_u32 v2, v2, 7, v{AFA}
    Lfb_poll:
    buffer_load_dwordx2 {v(AFL,2)}, v2, s[{SRD_F}:{SRD_F+3}], 0 offen sc1
    s_waitcnt vmcnt(0)
    v_cmp_eq_u64 vcc, s[{S_NONCE}:{S_NONCE+1}], {v(AFL,2)}
    s_sub_u32 s{S_SPIN}, s{S_SPIN}, 1
    s_cbranch_scc1 Lfb_go
    s_cmp_eq_u64 vcc, -1
    s_cbranch_scc0 Lfb_poll
    Lfb_go:
    """)
    for r in list(range(AO['a'], AO['a']+32)) + list(range(AL['a'], AL['a']+8)): a(f"v_mov_b32 v{r}, 0")
    Mr = {'a': AC['a'], 'b': AC['b']}
    a(f"v_mov_b32 v{Mr['a']}, 0xff800000\nv_mov_b32 v{Mr['b']}, 0xff800000\ns_mov_b32 s26, 0")
    a.label("Lfb_loop")
    for j in range(2): a(f"buffer_load_dwordx4 {v(AK[0][j],4)}, v{AVK}, s[{SRD_KV}:{SRD_KV+3}], s26 offen offset:{1024*j} sc1")
    for j in range(2): a(f"buffer_load_dwordx4 {v(AV[0][j],4)}, v{AVO}, s[{SRD_KV}:{SRD_KV+3}], s26 offen offset:{2048+1024*j} sc1")
    a("s_waitcnt vmcnt(0)")
    for q in 'ab':
        S = AS[0]
        a(qk1(S,0,q,"0")); a(qk2(S,0,q)); a("s_nop 15")
        rowmax16(a, S, 2, 3)
        a(f"v_max_f32 v2, v2, v{Mr[q]}\nv_sub_f32 v3, v{Mr[q]}, v2\nv_exp_f32 v3, v3\nv_mov_b32 v{Mr[q]}, v2")
        for i in range(16): a(f"v_sub_f32 v{S+i}, v{S+i}, v2")
        for i in range(16): a(f"v_exp_f32 v{S+i}, v{S+i}")
        for i in range(16): a(f"v_mul_f32 v{AO[q]+i}, v3, v{AO[q]+i}")
        for i in range(4): a(f"v_mul_f32 v{AL[q]+i}, v3, v{AL[q]+i}")
        a("s_nop 1")
        a(pv(S,0,0,q)); a(sm(S,0,q)); a(pv(S,1,0,q)); a(sm(S,1,q))
        a("s_nop 15")
    a("s_add_u32 s26, s26, 4096\ns_cmp_lt_u32 s26, 262144\ns_cbranch_scc1 Lfb_loop\ns_branch Lattn_fin")

PACC = 40
PWF = [104, 120]
POF = 168
def proj(a):
    vm = VmTrack()
    def wreads(p):
        off = (p if p < 16 else p - 16 + 8 if p < 24 else (p - 24) % 4) * 4096
        return [f"ds_read_b64_tr_b16 {v(PWF[p&1]+4*ct+2*h,2)}, v{P_WR[ct]} offset:{off + h*1024}" for ct in range(4) for h in range(2)]
    a(f"s_cmp_lt_u32 s{S_W}, 4\ns_cselect_b64 vcc, -1, 0")
    for x in old_only(["s_waitcnt vmcnt(4)", "s_barrier"]): a(x)
    stamp(a, None, "e")
    for x in wreads(0): a(x)
    a(f"s_mov_b64 s[{SRD_F}:{SRD_F+1}], s[{SRD_F2}:{SRD_F2+1}]\ns_mov_b32 s{SRD_F+2}, 2048")
    for x in publish(V_FA2): a(x)
    PDROP = opt("pdrop", -1)
    for x in (if_vcc([f"s_setprio {opt('yprio', 0)}"], False) if PDROP >= 0 else ["s_setprio 0"]): a(x)
    stamp(a, 5)
    for x in old_only([f"s_lshl_b32 s{S_WOM}, s{S_W}, 10"] + wo_rows(4) + [f"s_add_u32 s{S_WOM}, s{S_WOM}, {131072 - 16384}"] + wo_rows(4) + ["s_waitcnt vmcnt(8)"]): a(x)
    polls = []; fpos = {}; YX3 = opt('yx3', 2)
    def check(g):
        nm = f"Lpoll{g}"; polls.append(nm)
        return [f"s_cmp_lg_u32 s{S_MASK}, -1", f"s_cbranch_scc1 {nm}", f"{nm}_r:"]
    def setline(g): return f"s_xor_b32 s{S_FSO}, s{S_FL0}, {(g & 1) * 128 + (g >> 1) * 256}"
    def oload(p):
        vm.issue(("O", p)); vm.issue(("O", p))
        return oload_ins(p)
    a(f"s_cmp_eq_u32 s{S_EARLY}, 1\ns_cbranch_scc1 Learly")
    a(f"s_mov_b32 s{S_MASK}, 0")
    a(setline(0))
    for x in check(0): a(x)
    for p in range(min(DEPTH, 4)):
        for x in oload(p): a(x)
    a.label("Learly")
    stamp(a, 6)
    for p in range(4, DEPTH):
        for x in oload(p): a(x)
    for p in range(32):
        if p + 1 == 16:
            for ct in range(4): a(f"v_add_u32 v{P_WR[ct]}, {-65536 & 0xffffffff}, v{P_WR[ct]}")
        if p + 1 == 28:
            for ct in range(4): a(f"v_add_u32 v{P_WR[ct]}, 131072, v{P_WR[ct]}")
        a(f"s_waitcnt vmcnt({vm.wait_count({('O', p)})}) lgkmcnt(0)")
        gaps = [[] for _ in range(8)]
        for i, r in enumerate(wreads(p + 1) if p + 1 < 32 else []): gaps[i // 2].append(r)
        if p == YX3: gaps[0] += if_vcc(["s_barrier"], False)
        nx = p + DEPTH
        if nx < 32:
            if nx % 8 == 0:
                g = nx // 8
                pre = [f"s_waitcnt vmcnt({len(vm.ops) - fpos[g]})", flag_cmp(), "s_nop 0"] if g in fpos else [f"s_mov_b32 s{S_MASK}, 0", setline(g)]
                if g == 2: pre = if_vcc(pre, False) + old_only(["s_setprio 0", "s_barrier", f"s_mov_b32 s{S_MASK}, 0", setline(g)])
                gaps[4] += pre + check(g)
            o = oload(nx)
            if DEPTH < 8: gaps[5].append(o[0]); gaps[6].append(o[1])
            else: gaps[7] += o
            if (nx + 3) % 8 == 0 and nx + 3 < 32:
                g = (nx + 3) // 8
                fl = [setline(g), flag_load()]
                gaps[7] += if_vcc(fl, False) if g == 2 else fl
                fpos[g] = len(vm.ops)
        n = 0
        for tt in range(2):
            for ct in (range(4) if tt == 0 else range(3, -1, -1)):
                d = PACC + (tt*4+ct)*4
                a(f"v_mfma_f32_16x16x32_bf16 {v(d,4)}, {v(PWF[p&1]+4*ct,4)}, {v(oslot(p, tt),4)}, {'0' if p==0 else v(d,4)}")
                for x in gaps[n]: a(x)
                n += 1
        if p % 4 == 3: stamp(a, None, "p")
    proj.polls = polls
    a(f"""
    v_lshrrev_b32 v4, 4, v1
    v_and_b32 v2, 15, v1
    v_lshlrev_b32 v2, 12, v2
    v_and_b32 v3, 1, v4
    v_lshl_add_u32 v2, v3, 5, v2
    v_lshrrev_b32 v3, 1, v4
    v_lshl_add_u32 v2, v3, 4, v2
    s_mov_b32 s26, 65536
    s_nop 3
    """)
    for tt in range(2):
        for pr in range(2):
            d = POF + (tt*2+pr)*4
            for x in range(2):
                s0 = PACC + (tt*4+2*pr+x)*4
                a(f"v_cvt_pk_bf16_f32 v{d+2*x}, v{s0}, v{s0+1}\nv_cvt_pk_bf16_f32 v{d+2*x+1}, v{s0+2}, v{s0+3}")
            a(f"s_nop 1\nv_permlane16_swap_b32 v{d}, v{d+2}\nv_permlane16_swap_b32 v{d+1}, v{d+3}")
            a(f"buffer_store_dwordx4 {v(d,4)}, v2, s[{SRD_OUT}:{SRD_OUT+3}], {'0' if tt==0 else 's26'} offen offset:{64*pr}{' ' + opt('ofl', 'nt').replace('_', ' ') if opt('ofl', 'nt') else ''}")

def build():
    a = Asm()
    decode(a, "Lend")
    gemm1_setup_dma(a)
    stamp(a, 0); dbgstamp(a, 0, True); dbgstamp(a, 1)
    gemm1_main(a, late_setup())
    stamp(a, 2); dbgstamp(a, 2)
    transition_ab(a)
    stamp(a, 3)
    attention(a)
    dbgstamp(a, 3)
    proj(a)
    stamp(a, 7); dbgstamp(a, 4); dbgflush(a)
    stamp_flush(a, 8)
    a.label("Lend")
    a("s_endpgm")
    for nm in ("Lspin_c1a", "Lspin_c1", "Lspin_loop", "Lspin_15"): spin_flags(a, nm)
    a(f"""
    Lnonce_spin:
    s_mov_b32 s{S_SPIN}, {SPIN_LIMIT}
    Lnonce_l:
    buffer_load_dwordx2 {v(V_NON,2)}, v{V_PD+1}, s[92:95], 0 offen sc1
    s_waitcnt vmcnt(0)
    v_readfirstlane_b32 s{S_NONCE}, v{V_NON}
    v_readfirstlane_b32 s{S_NONCE+1}, v{V_NON+1}
    s_sub_u32 s{S_SPIN}, s{S_SPIN}, 1
    s_cbranch_scc1 Lnonce_ok
    s_cmp_eq_u32 s{S_NONCE}, 0
    s_cbranch_scc1 Lnonce_l
    s_branch Lnonce_ok
    """)
    for i, nm in enumerate(proj.polls): spin(a, nm, [f"s_cmp_lg_u32 s{S_MASK}, -1"], lowprio=(8 * i - DEPTH < opt("pdrop", -1) and opt("pdrop", -1) >= 0))
    fallback(a)
    return a.text()

def main(out):
    P = "concat_heads__mha_block__softmax_full_mha__prompt_kernel"
    txt = f"""; fused QKV projection + attention + output projection (generated)
; @launch grid=(256,1,1) block=(512,1,1) lds=163840
.amdgcn_target "amdgcn-amd-amdhsa--gfx950"
.text
""" + kernel_header(P) + build() + '.section .rodata,"a"\n' + kernel_desc(P, 256, sgpr=102 if DBG else 96)
    open(out, "w").write(txt)

if __name__ == "__main__":
    args = [x for x in sys.argv[1:] if not x.startswith("--")]
    main(args[0] if args else "concat_heads__mha_block__softmax_full_mha__prompt.s")
```

```python
import sys, struct, math
from dsl import *

def opt(name, default):
    for x in sys.argv:
        if x.startswith(f"--{name}="): return type(default)(x[len(name) + 3:])
    return default
STAMP = "--stamp" in sys.argv
ROT = opt("rot", 2)
PRO = opt("pro", "X0,W0,B,W1,X1,W2").replace(",", " ")
STEPX = {}
for it in opt("stepx", "0:W3.X2;1:W4").split(";"):
    if it:
        k, val = it.split(":"); STEPX[int(k)] = val.split(".")
SC1 = "" if "--nosc1" in sys.argv else " sc1"
NTD = " nt" if "d" in opt("nt", "") else ""
NTP = " nt" if "p" in opt("nt", "") else ""
NTW = " nt" if "w" in opt("nt", "") else ""
ROTB = opt("rotb", -1)

KV_OFF = 0
O_OFF = 24 << 20
F1_OFF = 32 << 20
F2_OFF = 33 << 20
SLEEP = opt('sleep', 8)
ST_OFF = 64 << 20
QSCALE = struct.unpack("<I", struct.pack("<f", math.log2(math.e) / math.sqrt(32.0)))[0]
SPIN_LIMIT = 1 << 16

S_W, S_B, S_TM, S_HP = 16, 17, 18, 19
S_SOX, S_SOW, S_XB, S_WB = 20, 21, 22, 23
S_EXW = 24
S_NONCE = 80
S_MASK = 82
S_CIDX, S_M0, S_CNT, S_CH, S_WOS, S_WOM, S_FIDX, S_SPIN = 84, 85, 86, 87, 88, 89, 90, 91
S_WOI, S_WOB = 20, 21
PRIO = opt('prio', 1)
SRD_KV, SRD_F, SRD_WO, SRD_O = 4, 8, 52, 12
SRD_KVS = 56
SRD_OUT, SRD_OL, SRD_F2 = 36, 32, 76
S_FL0 = 40

def make_srd(a, d, lo, hi, off_sgpr, nrec):
    a(f"s_add_u32 s{d}, s{lo}, s{off_sgpr}\ns_addc_u32 s{d+1}, s{hi}, 0\ns_and_b32 s{d+1}, s{d+1}, 0xffff")
    a(f"s_mov_b32 s{d+2}, {nrec}\ns_mov_b32 s{d+3}, 0x00020000")

NST = [0]
STG = opt("stg", "m")
def stamp(a, i=None, g="m"):
    if not STAMP: return
    if i is None: g = "a" if g == "m" else g
    if g not in STG: return
    a("s_memrealtime s[60:61]\ns_memtime s[62:63]\ns_waitcnt lgkmcnt(0)\ns_lshl_b64 exec, 1, s64\nv_mov_b32 v0, s60\nv_mov_b32 v203, s62\ns_mov_b64 exec, -1\ns_add_u32 s64, s64, 1")
DBG = "--dbg" in sys.argv
def dbgstamp(a, i, inv=False):
    if DBG: a(f"s_memrealtime s[60:61]\ns_waitcnt lgkmcnt(0)\ns_mov_b32 s{96+i}, s60")
def dbgflush(a):
    if not DBG: return
    a(f"""
    s_cmp_lg_u32 s{S_W}, 7
    s_cbranch_scc1 Ldbg_e
    s_mov_b64 exec, 1
    s_and_b32 s26, s{S_HP}, 7
    s_lshl_b32 s26, s26, 2
    v_mov_b32 v2, s26
    s_sub_u32 s27, s98, s96
    v_mov_b32 v3, s27
    buffer_atomic_umax v3, v2, s[92:95], 0 offen offset:8
    v_mov_b32 v4, 0
    s_sub_u32 s27, s97, s96
    v_mov_b32 v5, s27
    buffer_atomic_umax v5, v4, s[92:95], 0 offen offset:40
    s_sub_u32 s27, s99, s98
    v_mov_b32 v6, s27
    buffer_atomic_umax v6, v4, s[92:95], 0 offen offset:44
    s_sub_u32 s27, s100, s99
    v_mov_b32 v7, s27
    buffer_atomic_umax v7, v4, s[92:95], 0 offen offset:48
    s_sub_u32 s27, s100, s96
    v_mov_b32 v8, s27
    buffer_atomic_umax v8, v4, s[92:95], 0 offen offset:52
    s_not_b32 s27, s96
    v_mov_b32 v9, s27
    buffer_atomic_umax v9, v4, s[92:95], 0 offen offset:56
    v_mov_b32 v10, s100
    buffer_atomic_umax v10, v4, s[92:95], 0 offen offset:60
    Ldbg_e:
    """)
def stamp_flush(a, n):
    if not STAMP: return
    a(f"""
    s_lshl_b32 s26, s2, 3
    s_add_u32 s26, s26, s{S_W}
    s_lshl_b32 s26, s26, 9
    s_add_u32 s30, s26, {ST_OFF}
    """)
    make_srd(a, 56, 48, 49, 30, 512)
    a("v_lshlrev_b32 v2, 3, v1\nv_mov_b32 v4, v0\nv_mov_b32 v5, v203\nbuffer_store_dwordx2 v[4:5], v2, s[56:59], 0 offen")

ACC = 8
def acc(tt, f): return ACC + (tt * 6 + f) * 4
XF = [[104 + 4*i for i in range(4)], [144 + 4*i for i in range(4)]]
WF = [[120 + 4*i for i in range(6)], [160 + 4*i for i in range(6)]]
V_XR = [208, 209]; V_WR = [210, 211]; V_XD = list(range(184, 192)); V_WD = [212, 213, 214]
V_PX, V_PW, V_PD = 218, 219, 220
V_NON = 222
LDS_W = 98304

def decode(a, end):
    a(f"""
    s_cmp_ge_u32 s2, 256
    s_cbranch_scc1 {end}
    s_load_dwordx16 s[32:47], s[0:1], 0
    s_load_dwordx2 s[48:49], s[0:1], 64
    v_lshrrev_b32 v1, 6, v0
    s_and_b32 s26, s2, 7
    s_lshr_b32 s27, s2, 3
    v_readfirstlane_b32 s{S_W}, v1
    s_lshr_b32 s{S_B}, s26, 2
    s_and_b32 s28, s26, 1
    s_lshl_b32 s28, s28, 2
    s_and_b32 s29, s27, 3
    s_add_u32 s{S_TM}, s28, s29
    s_bfe_u32 s28, s26, 0x10001
    s_lshl_b32 s28, s28, 3
    s_lshr_b32 s29, s27, 2
    s_add_u32 s{S_HP}, s28, s29
    v_and_b32 v1, 63, v0
    s_mul_i32 s51, {'s26' if ROTB < 0 else 's17'}, {ROT if ROTB < 0 else ROTB}
    s_and_b32 s51, s51, 15
    s_lshl_b32 s14, s51, 1
    s_lshl_b32 s15, s51, 7
    s_mov_b32 s64, 0
    """)

NLAB = [0]
def if_vcc(ins, want=True):
    NLAB[0] += 1
    return [f"s_cbranch_vcc{'z' if want else 'nz'} Lskip{NLAB[0]}"] + ins + [f"Lskip{NLAB[0]}:"]
old_only = if_vcc

def gemm1_setup_dma(a):
    a(f"""
    s_cmp_lt_u32 s{S_W}, 4
    s_cselect_b64 vcc, -1, 0
    s_cbranch_scc0 Lsetup1
    s_setprio 1
    Lsetup1:
    s_mul_i32 s{S_XB}, s{S_W}, 24576
    s_mul_i32 s26, s{S_W}, 3072
    s_add_u32 s{S_WB}, s26, {LDS_W}
    v_lshrrev_b32 v2, 3, v1
    s_lshl_b32 s26, s{S_W}, 6
    v_add_u32 v7, s26, v2
    v_and_b32 v3, 7, v1
    v_lshrrev_b32 v4, 4, v1
    v_xor_b32 v5, v3, v4
    v_lshlrev_b32 v5, 4, v5
    v_lshl_add_u32 v{V_XD[0]}, v7, 11, v5
    v_xor_b32 v5, 64, v5
    v_lshl_add_u32 v{V_XD[1]}, v7, 11, v5
    v_add_u32 v{V_XD[1]}, {8*2048}, v{V_XD[1]}
    """)
    for q in range(2, 8): a(f"v_add_u32 v{V_XD[q]}, {16*2048}, v{V_XD[q-2]}")
    a(f"s_mul_i32 s26, s{S_W}, 24")
    for q in range(3):
        a(f"""
        v_add_u32 v7, s26, v2            ; R
        s_add_u32 s26, s26, 8
        v_lshrrev_b32 v4, 5, v7          ; sec
        v_and_b32 v7, 31, v7             ; k
        v_and_b32 v5, 2, v7
        v_bfe_u32 v6, v7, 3, 1
        v_lshl_or_b32 v5, v6, 2, v5      ; swz*2
        v_xor_b32 v5, v3, v5             ; chunk
        v_lshlrev_b32 v5, 4, v5
        v_lshl_add_u32 v5, v4, 11, v5
        v_mul_u32_u24 v7, 6144, v7
        v_add_u32 v{V_WD[q]}, v7, v5
        """)
    a(f"""
    s_waitcnt lgkmcnt(0)
    s_cmp_eq_u32 s{S_B}, 0
    s_cselect_b32 s26, s32, s38
    s_cselect_b32 s27, s33, s39
    s_cselect_b32 s28, s34, s40
    s_cselect_b32 s29, s35, s41
    s_lshl_b32 s30, s{S_TM}, 19
    """)
    make_srd(a, 4, 26, 27, 30, 524288)
    a(f"s_lshl_b32 s30, s{S_HP}, 7\ns_sub_u32 s31, {1024*6144}, s30")
    make_srd(a, 8, 28, 29, 30, "s31")

def gemm1_setup_rest(a):
    a(f"""
    s_and_b32 s30, s{S_W}, 3
    s_mul_i32 s30, s30, 24576
    v_and_b32 v2, 15, v1             ; c
    v_lshrrev_b32 v4, 4, v1          ; G
    v_lshrrev_b32 v5, 1, v2
    v_xor_b32 v5, v4, v5
    v_lshlrev_b32 v5, 4, v5
    v_lshl_add_u32 v5, v2, 7, v5
    v_add_u32 v{V_XR[0]}, s30, v5
    v_xor_b32 v{V_XR[1]}, 64, v{V_XR[0]}
    v_bfe_u32 v2, v1, 2, 2           ; r
    v_and_b32 v3, 3, v1              ; c4
    v_lshl_add_u32 v5, v4, 3, v2     ; k = 8G + r
    v_lshrrev_b32 v6, 1, v2
    v_and_b32 v7, 1, v4
    v_lshl_or_b32 v6, v7, 1, v6      ; swz
    s_lshr_b32 s30, s{S_W}, 2
    s_lshl_b32 s30, s30, 1
    v_xor_b32 v6, s30, v6
    v_lshlrev_b32 v6, 5, v6
    v_lshl_add_u32 v6, v3, 3, v6
    v_lshl_add_u32 v6, v5, 7, v6
    v_add_u32 v{V_WR[0]}, {LDS_W}, v6
    v_xor_b32 v{V_WR[1]}, 32, v{V_WR[0]}
    """)
    a(f"s_lshr_b32 s30, s{S_TM}, 2\ns_lshl_b32 s30, s30, 21")
    make_srd(a, 52, 26, 27, 30, 2 << 20)
    a(f"s_lshr_b32 s30, s{S_HP}, 3\ns_lshl_b32 s30, s30, 10\ns_sub_u32 s31, {1024*6144}, s30")
    make_srd(a, 56, 28, 29, 30, "s31")
    toks = PRO + " ".join(" ".join(x) for x in STEPX.values())
    if "Q" in toks or "R" in toks:
        for l in q_setup(): a(l)
    if "P" in toks: a(f"""
    s_lshr_b32 s26, s2, 3
    s_lshl_b32 s26, s26, 3
    s_add_u32 s26, s26, s{S_W}       ; u
    s_lshl_b32 s27, s26, 13
    v_and_b32 v2, 3, v1
    v_lshlrev_b32 v2, 11, v2
    v_lshrrev_b32 v3, 2, v1
    v_lshl_add_u32 v2, v3, 7, v2
    v_add_u32 v{V_PX}, s27, v2
    v_mul_u32_u24 v2, 43, v1
    v_lshrrev_b32 v2, 8, v2
    v_mul_u32_u24 v3, 6, v2
    v_sub_u32 v3, v1, v3
    s_and_b32 s27, s26, 3
    s_mul_i32 s27, s27, 6
    v_add_u32 v3, s27, v3
    v_lshrrev_b32 v4, 3, v3
    v_and_b32 v3, 7, v3
    v_lshlrev_b32 v3, 7, v3
    v_lshl_add_u32 v3, v4, 11, v3
    s_lshr_b32 s27, s26, 2
    v_lshl_add_u32 v2, v2, 6, s27
    v_mul_u32_u24 v2, 6144, v2
    v_add_u32 v{V_PW}, v2, v3
    """)
    a(f"""
    v_mov_b32 v{V_PD+1}, 0
    s_or_b32 s26, s2, s{S_W}
    s_cmp_lg_u32 s26, 0
    s_cbranch_scc1 Lnononce
    s_memrealtime s[26:27]
    s_mov_b32 s28, s46
    s_and_b32 s29, s47, 0xffff
    s_mov_b32 s30, 256
    s_mov_b32 s31, 0x00020000
    s_waitcnt lgkmcnt(0)
    s_or_b32 s26, s26, 1
    v_mov_b32 v2, s26
    v_mov_b32 v3, s27
    s_mov_b64 exec, 1
    buffer_store_dwordx2 v[2:3], v{V_PD+1}, s[28:31], 0 offen sc1
    s_mov_b64 exec, -1
    Lnononce:
    """)

def pf_batch(s0, n):
    return [f"s_add_u32 s13, s51, {s0}", "s_and_b32 s13, s13, 15", f"s_bfm_b64 exec, {6*n}, 0", f"s_mul_i32 s50, s13, {64*6144}",
            f"buffer_load_dword v{V_PD}, v{V_PW}, s[56:59], s50 offen{NTP}", "s_lshl_b32 s13, s13, 7",
            f"s_bfm_b64 exec, {4*n}, 0",
            f"buffer_load_dword v{V_PD}, v{V_PX}, s[52:55], s13 offen{NTP}", "s_mov_b64 exec, -1"]
V_QW, V_QX = 218, 219
SLOWC = opt("slowc", 3)
def q_setup():
    return [f"s_lshr_b32 s12, s2, 3", "s_lshl_b32 s12, s12, 3", f"s_add_u32 s12, s12, s{S_W}",
            f"v_lshlrev_b32 v{V_QW}, 11, v1", f"v_add_u32 v{V_QW}, {SLOWC*128}, v{V_QW}",
            "v_and_b32 v2, 3, v1", "v_lshlrev_b32 v2, 11, v2", "v_bfe_u32 v3, v1, 2, 1", "v_lshl_add_u32 v2, v3, 10, v2",
            "s_lshl_b32 s13, s12, 13", f"s_add_u32 s13, s13, {SLOWC*128}", f"v_add_u32 v{V_QX}, s13, v2",
            "s_lshl_b32 s13, s51, 6", "s_add_u32 s12, s12, s13"]
def q_batch(i):
    return [f"s_add_u32 s13, s12, {256*i}", "s_and_b32 s13, s13, 1023", "s_mov_b64 exec, 7", "s_mul_i32 s13, s13, 6144",
            f"buffer_load_dword v{V_NON+1}, v{V_QW}, s[56:59], s13 offen", "s_mov_b64 exec, -1"]
def r_batch():
    return ["s_mov_b64 exec, 0xff", f"buffer_load_dword v{V_NON+1}, v{V_QX}, s[52:55], 0 offen", "s_mov_b64 exec, -1"]
def dma_x(stage, q):
    return [f"s_add_u32 m0, s{S_XB}, {(stage % 3)*8192 + q*1024}", f"buffer_load_dwordx4 v{V_XD[q]}, s[4:7], s{S_SOX} offen{NTD} lds"]
def dma_w(step, q):
    return [f"s_add_u32 m0, s{S_WB}, {(step % 5)*12288 + q*1024}", f"buffer_load_dwordx4 v{V_WD[q]}, s[8:11], s{S_SOW} offen{NTD} lds"]
def frag_reads(step):
    p = step & 1; xs = (step >> 1) % 3; ws = step % 5
    X = [f"ds_read_b128 {v(XF[p][tt],4)}, v{V_XR[p]} offset:{xs*8192 + tt*2048}" for tt in range(4)]
    W = [[f"ds_read_b64_tr_b16 {v(WF[p][f]+2*h,2)}, v{V_WR[f&1]} offset:{ws*12288 + (f>>1)*4096 + h*512}" for h in range(2)] for f in range(6)]
    return [X[0]] + W[0] + W[1] + W[2] + [X[1]] + W[3] + W[4] + W[5] + [X[2], X[3]]
def gemm1_mfmas(step):
    p = step & 1; out = []
    for tt in range(4):
        for f in (range(6) if tt % 2 == 0 else range(5, -1, -1)):
            d = acc(tt, f)
            A, B = (WF[p][f], XF[p][tt]) if f < 4 else (XF[p][tt], WF[p][f])
            out.append(f"v_mfma_f32_16x16x32_bf16 {v(d,4)}, {v(A,4)}, {v(B,4)}, {'0' if step == 0 else v(d,4)}")
    return out

HB = opt('hb', 1)
RD0, DG0, DGS = opt('rd0', 0), opt('dg0', 16), opt('dgs', 3)
def gemm1_main(a, late):
    vm = VmTrack()
    def group(tok):
        if tok == "B": return [["s_barrier"]], []
        if tok[0] == "Q": return [q_batch(int(tok[1:]))], ["pf"]
        if tok[0] == "R": return [r_batch()], ["pf"]
        if tok[0] == "P":
            s0, n = map(int, tok[1:].split("_")); return [pf_batch(s0, n)], ["pf", "pf"]
        if tok[0] == "W":
            st = int(tok[1:]); g = [f"s_add_u32 s{S_SOW}, s14, {st}", f"s_and_b32 s{S_SOW}, s{S_SOW}, 31"]
            for q in range(3):
                m, l = dma_w(st, q); g += [m, f"s_mul_i32 s{S_SOW}, s{S_SOW}, {32*6144}" if q == 0 else "s_nop 0", l]
            return [old_only(g)], [("W", st)] * 3
        if tok[0] == "X":
            if "h" in tok: S, h = tok[1:].split("h"); S = int(S); qs = range(0, 4) if h == "0" else range(4, 8)
            else: S = int(tok[1:]); qs = range(8)
            g = [f"s_add_u32 s{S_SOX}, s15, {S*128}"]
            for q in qs:
                m, l = dma_x(S, q); g += [m, f"s_and_b32 s{S_SOX}, s{S_SOX}, 0x780" if q == qs[0] else "s_nop 0", l]
            return [old_only(g)], [("X", S)] * len(qs)
    first = True
    for tok in PRO.split():
        g, t = group(tok)
        for x in g:
            for y in x: a(y)
        for y in t: vm.issue(y)
        if tok == "W0":
            gemm1_setup_rest(a)
    a(f"s_waitcnt vmcnt({vm.wait_count({('X',0),('W',0)})})")
    a("s_barrier")
    stamp(a, 1); dbgstamp(a, 1)
    for l in frag_reads(0): a(l)
    for st in range(32):
        bar = (not HB) or st == 0 or st % 2 == 1
        if st == 31:
            a("s_waitcnt vmcnt(0) lgkmcnt(0)")
        elif bar:
            ahead = [st + 1] + ([st + 2] if HB and st % 2 == 1 else [])
            need = {("W", x) for x in ahead} | {("X", x >> 1) for x in ahead}
            for nd in need: assert vm.ops.count(nd) == (3 if nd[0] == "W" else 8), (st, nd)
            a(f"s_waitcnt vmcnt({min(63, vm.wait_count(need))}) lgkmcnt(0)")
        else:
            a("s_waitcnt lgkmcnt(0)")
        if bar: a("s_barrier")
        if st % 4 == 0: stamp(a, None, "g")
        M = gemm1_mfmas(st)
        if st == 31:
            last_step(a, late[31]); break
        R = frag_reads(st + 1) if st + 1 < 32 else []
        toks = list(STEPX.get(st, []))
        if not HB:
            if st + 5 < 32: toks.append(f"W{st+5}")
        elif st >= 1 and st + 4 < 32:
            toks.append(f"W{st+4}")
        if st >= 1 and ((st - 1) >> 1) + 3 < 16: toks.append(f"X{((st-1)>>1)+3}h{0 if st % 2 == 1 else 1}")
        D = []
        for tok in toks:
            g, t = group(tok); D += g
            for y in t: vm.issue(y)
        gaps = [[] for _ in range(24)]
        for i, r in enumerate(R): gaps[i + RD0].append(r)
        for i, d in enumerate(D): gaps[min(23, DG0 + (i * DGS if len(D) <= 3 else (i * (23 - DG0)) // len(D)))] += d
        lt = late.get(st, [])
        assert len(lt) <= 24
        for i, x in enumerate(lt):
            gaps[i].append(x)
            if x.startswith("buffer_"): vm.issue("late")
        for i, m in enumerate(M):
            a(m)
            for x in gaps[i]: a(x)

AS = [8, 24, 40, 56]
AO = {'a': 224, 'b': 240}
AQ = {('a',0): 104, ('a',1): 108, ('b',0): 112, ('b',1): 116}
AC = {'a': 120, 'b': 136}
AK = [[152, 156], [160, 164]]
AV = [[168, 172], [176, 180]]
AL = {'a': 184, 'b': 188}
ASEL = 192; AIDX = 196; AADDR = 197; AVO = 198; AWD = 199
AFL = 200
AFA = 202
V_VS, V_VL = 205, 207
AADK, AVK = 204, 206
V_FA = 221
S_CH2 = 22
P_WR = [212, 213, 214, 215]; P_OV = [[216, 217], [218, 219]]; V_FA2 = 220
S_OSO = 64 if not STAMP else 66
def qk1(Y, kb, q, c=None): return f"v_mfma_f32_32x32x16_bf16 {v(Y,16)}, {v(AK[kb][0],4)}, {v(AQ[(q,0)],4)}, {v(AC[q],16) if c is None else c}"
def qk2(Y, kb, q): return f"v_mfma_f32_32x32x16_bf16 {v(Y,16)}, {v(AK[kb][1],4)}, {v(AQ[(q,1)],4)}, {v(Y,16)}"
def pv(Z, h, vb, q): return f"v_smfmac_f32_32x32x32_bf16 {v(AO[q],16)}, {v(AV[vb][h],4)}, {v(Z+8*h,8)}, v{AIDX}"
def sm(Z, h, q): return f"v_smfmac_f32_16x16x64_bf16 {v(AL[q],4)}, {v(ASEL,4)}, {v(Z+8*h,8)}, v{AIDX}"
def srd(d, lo, hi, off, nrec):
    return [f"s_add_u32 s{d}, s{lo}, s{off}\ns_addc_u32 s{d+1}, s{hi}, 0", f"s_and_b32 s{d+1}, s{d+1}, 0xffff", f"s_mov_b32 s{d+2}, {nrec}", f"s_mov_b32 s{d+3}, 0x00020000"]

def late_setup():
    L = {}
    L[18] = [f"v_mov_b32 v{AO['a']+i}, 0" for i in range(24)]
    L[19] = [f"v_mov_b32 v{AO['a']+24+i}, 0" for i in range(8)] + \
            [f"v_lshlrev_b32 v{AVO}, 4, v1", "v_and_b32 v2, 7, v1", f"v_lshlrev_b32 v{AFA}, 3, v2", f"s_lshr_b32 s26, s{S_W}, 2", "s_lshl_b32 s26, s26, 14",
             f"v_add_u32 v{AADDR}, s26, v{AVO}", f"v_mov_b32 v{AIDX}, 0xdddddddd",
             "v_bfe_u32 v2, v1, 2, 1", "v_mov_b32 v3, 0x3f803f80", "v_cmp_eq_u32 s[28:29], 0, v2", "s_nop 1",
             f"v_cndmask_b32 v{ASEL}, 0, v3, s[28:29]", f"v_cndmask_b32 v{ASEL+1}, 0, v3, s[28:29]", f"v_xor_b32 v{ASEL+2}, v3, v{ASEL}", f"v_xor_b32 v{ASEL+3}, v3, v{ASEL}"]
    L[20] = ["v_and_b32 v2, 15, v1", "v_lshrrev_b32 v4, 4, v1", "v_lshlrev_b32 v4, 9, v4", f"v_lshl_add_u32 v{V_VS}, v2, 4, v4",
             "v_bfe_u32 v2, v1, 2, 1", "v_bfe_u32 v3, v1, 3, 2", "v_and_b32 v4, 35, v1", "v_lshl_add_u32 v4, v2, 4, v4", "v_lshl_add_u32 v4, v3, 2, v4",
             f"v_lshlrev_b32 v{AVK}, 4, v4", f"v_sub_u32 v2, v{AADDR}, v{AVO}", f"v_add_u32 v{AADK}, v2, v{AVK}",
             f"s_and_b32 s26, s{S_W}, 2", "s_lshl_b32 s26, s26, 14", f"s_and_b32 s27, s{S_W}, 1", "s_lshl_b32 s27, s27, 13", "s_add_u32 s26, s26, s27",
             f"s_lshr_b32 s27, s{S_W}, 2", "s_lshl_b32 s27, s27, 14", "s_add_u32 s26, s26, s27", f"v_add_u32 v{V_VL}, s26, v{V_VS}"]
    L[21] = ["v_lshrrev_b32 v2, 3, v1", "v_and_b32 v3, 7, v1", "v_lshrrev_b32 v4, 4, v1", "v_lshlrev_b32 v4, 1, v4", "v_xor_b32 v4, v3, v4",
             "v_lshlrev_b32 v4, 4, v4", f"v_lshl_add_u32 v{AWD}, v2, 11, v4",
             f"s_cmp_eq_u32 s{S_B}, 0\ns_cselect_b32 s26, s36, s42\ns_cselect_b32 s27, s37, s43", f"s_lshl_b32 s30, s{S_HP}, 7", f"s_sub_u32 s31, {1024*2048}, s30"] \
            + srd(SRD_WO, 26, 27, 30, "s31") + ["s_mov_b32 s92, s46", "s_and_b32 s93, s47, 0xffff", "s_mov_b32 s94, 256", "s_mov_b32 s95, 0x00020000"]
    if WARMF:
        L[22] = [f"s_lshl_b32 s28, s{S_B}, 4", f"s_add_u32 s28, s28, s{S_HP}", "s_lshl_b32 s28, s28, 10", f"s_add_u32 s30, s28, {F1_OFF}",
                 f"s_lshl_b32 s28, s{S_B}, 3", f"s_add_u32 s28, s28, s{S_TM}", "s_lshl_b32 s28, s28, 11", f"s_add_u32 s31, s28, {F2_OFF}",
                 "s_mov_b32 s76, s48", "s_and_b32 s77, s49, 0xffff", f"s_mov_b32 s78, {34 << 20}", "s_mov_b32 s79, 0x00020000", "v_lshlrev_b32 v2, 7, v1",
                 "\n".join(if_vcc(["s_mov_b64 exec, 0xff", f"buffer_load_dword v{V_NON+1}, v2, s[76:79], s30 offen sc1",
                                   "s_mov_b64 exec, 0xffff", f"buffer_load_dword v{V_NON+1}, v2, s[76:79], s31 offen sc1", "s_mov_b64 exec, -1"], False))]
    L[27] = [f"v_mov_b32 v{AL['a']+i}, 0" for i in range(8)] + \
            [f"s_lshl_b32 s26, s{S_B}, 5", f"s_lshl_b32 s27, s{S_HP}, 1", "s_add_u32 s26, s26, s27",
             f"s_and_b32 s28, s{S_W}, 3", "s_lshl_b32 s29, s28, 12", "s_lshl_b32 s30, s26, 18", "s_add_u32 s31, s30, s29", "s_sub_u32 s50, 524288, s29"] \
            + srd(SRD_KV, 48, 49, 31, "s50") + [f"s_lshr_b32 s27, s{S_W}, 2", "s_add_u32 s26, s26, s27", "s_lshl_b32 s30, s26, 18"]
    L[28] = [f"buffer_load_dwordx2 {v(V_NON,2)}, v{V_PD+1}, s[92:95], 0 offen sc1",
             f"s_mov_b32 s{S_WOI}, -1", f"s_lshl_b32 s{S_WOB}, s{S_W}, 14", f"s_lshl_b32 s27, s{S_W}, 10", f"s_add_u32 s{S_WOM}, s27, 65536",
             f"s_lshl_b32 s{S_M0}, s{S_W}, 12", f"s_mov_b32 s{S_CIDX}, 16384", f"s_lshl_b32 s23, s{S_TM}, 15", f"s_lshr_b32 s51, s{S_W}, 1", f"s_mov_b32 s{S_EARLY}, 0"]
    L[29] = [f"s_lshl_b32 s27, s{S_TM}, 3", "s_lshl_b32 s28, s28, 1", "s_add_u32 s27, s27, s28", "s_lshl_b32 s29, s27, 12", "s_add_u32 s31, s30, s29"] \
            + srd(SRD_KVS, 48, 49, 31, 8192) + ["s_mov_b32 s50, 4096",
             f"s_lshl_b32 s28, s{S_B}, 22", "s_lshl_b32 s29, s27, 16", "s_add_u32 s31, s28, s29", "s_and_b32 s28, s26, 31", "s_lshl_b32 s28, s28, 10",
             "s_add_u32 s31, s31, s28", f"s_add_u32 s31, s31, {O_OFF}"] + srd(SRD_O, 48, 49, 31, 131072)
    L[30] = [f"s_lshl_b32 s28, s{S_B}, 4", f"s_add_u32 s28, s28, s{S_HP}", "s_lshl_b32 s28, s28, 10", f"s_add_u32 s31, s28, {F1_OFF}"] + srd(SRD_F, 48, 49, 31, 1024) \
            + [f"s_bitcmp0_b32 s{S_W}, 1\ns_cselect_b64 vcc, -1, 0", f"s_mov_b32 s26, {QSCALE}", f"s_mov_b32 s27, {QSCALE}"]
    L[23] = [f"s_lshl_b32 s28, s{S_B}, 3", f"s_add_u32 s28, s28, s{S_TM}", "s_lshl_b32 s28, s28, 11", f"s_add_u32 s30, s28, {F2_OFF}"] + srd(SRD_F2, 48, 49, 30, 2048) \
            + [f"s_lshl_b32 s28, s{S_B}, 22", f"s_lshl_b32 s29, s{S_TM}, 19", "s_add_u32 s30, s28, s29", f"s_lshl_b32 s29, s{S_W}, 16", "s_add_u32 s30, s30, s29",
               f"s_add_u32 s30, s30, {O_OFF}"] + srd(SRD_OL, 48, 49, 30, 65536)
    L[24] = [f"s_lshl_b32 s28, s{S_TM}, 20", f"s_lshl_b32 s29, s{S_W}, 17", "s_add_u32 s30, s28, s29", f"s_lshl_b32 s29, s{S_B}, 11", "s_add_u32 s30, s30, s29",
             f"s_lshl_b32 s29, s{S_HP}, 7", "s_add_u32 s30, s30, s29", f"s_sub_u32 s31, {2048*4096}, s30"] + srd(SRD_OUT, 44, 45, 30, "s31") \
            + [f"s_and_b32 s26, s{S_HP}, 8", "s_lshl_b32 s27, s26, 11", f"v_add_u32 v{P_OV[0][0]}, s27, v{AVO}", f"v_add_u32 v{P_OV[0][1]}, 32768, v{P_OV[0][0]}",
               f"v_xor_b32 v{P_OV[1][0]}, 16384, v{P_OV[0][0]}", f"v_xor_b32 v{P_OV[1][1]}, 16384, v{P_OV[0][1]}",
               "s_lshl_b32 s26, s26, 4", f"s_lshr_b32 s27, s{S_W}, 1", "s_lshl_b32 s27, s27, 9", f"s_add_u32 s{S_FL0}, s26, s27"]
    L[25] = [x for j in range(8) for x in (f"s_add_u32 s26, s{S_HP}, {j}", "s_and_b32 s26, s26, 7", f"s_lshl_b32 s{S_OSO+j}, s26, 11")]
    L[26] = [f"s_and_b32 s26, s{S_W}, 3", "s_lshl_b32 s26, s26, 6", f"s_lshr_b32 s27, s{S_W}, 2", "s_lshl_b32 s27, s27, 5", "s_add_u32 s26, s26, s27",
             f"s_and_b32 s27, s{S_HP}, 8", f"s_add_u32 s27, s27, s{S_HP}", "s_add_u32 s26, s26, s27", "s_lshl_b32 s26, s26, 3", f"v_mov_b32 v{V_FA2}, s26",
             "v_and_b32 v4, 15, v1", "v_lshlrev_b32 v4, 4, v4", "v_bfe_u32 v5, v1, 4, 1", "v_lshl_add_u32 v4, v5, 15, v4", "v_lshrrev_b32 v5, 5, v1", "v_lshl_add_u32 v6, v5, 8, v4"]
    L[30] += ["v_lshrrev_b32 v4, 4, v1", "v_bfe_u32 v2, v1, 2, 2", "v_and_b32 v3, 3, v1", "v_and_b32 v5, 1, v4", "v_lshrrev_b32 v4, 1, v4", "v_lshl_add_u32 v7, v5, 2, v2",
              "v_lshl_add_u32 v4, v4, 4, v7", "v_lshrrev_b32 v7, 1, v7", "v_lshlrev_b32 v7, 5, v7", "v_lshl_add_u32 v7, v3, 3, v7", "v_lshl_add_u32 v7, v4, 7, v7",
              f"v_add_u32 v{P_WR[0]}, 65536, v7\nv_xor_b32 v{P_WR[1]}, 32, v{P_WR[0]}", f"v_xor_b32 v{P_WR[2]}, 64, v{P_WR[0]}\nv_xor_b32 v{P_WR[3]}, 96, v{P_WR[0]}"]
    L[31] = []
    return L

UNITS = [('V',0,0,80), ('V',0,1,84), ('V',1,0,72), ('V',1,1,76), ('K',1,1,88), ('K',1,0,92), ('K',0,0,96), ('K',0,1,100)]
def unit_src(u):
    k, T, h, d = UNITS[u]
    return [(2*T, 4+h), (2*T+1, 4+h)] if k == 'V' else [(2*T+h, 2), (2*T+h, 3)]
def cvt4(regs, d): return [f"v_cvt_pk_bf16_f32 v{d+i}, v{regs[2*i]}, v{regs[2*i+1]}" for i in range(4)]
def unit_cvt(u):
    k, T, h, d = UNITS[u]
    regs = [acc(*x) + i for x in unit_src(u) for i in range(4)]
    w = f"ds_write_b128 v{V_VL}, {v(d,4)} offset:{T*4096 + (2048 if k == 'V' else 0) + h*256}"
    return cvt4(regs, d) + [w]
def kv_store(u):
    k, T, h, d = UNITS[u]
    return f"buffer_store_dwordx4 {v(d,4)}, v{V_VS}, s[{SRD_KVS}:{SRD_KVS+3}], {'0' if T == 0 else 's50'} offen offset:{(2048 if k == 'V' else 0) + h*256}{SC1}"
def q_cvt(tt):
    return [f"v_pk_mul_f32 {v(acc(tt,0)+2*i,2)}, {v(acc(tt,0)+2*i,2)}, s[26:27]" for i in range(4)] + cvt4([acc(tt,0)+i for i in range(8)], AQ[("ab"[tt >> 1], tt & 1)])

def last_step(a, sal):
    order = [(3, 0), (3, 1)] + [x for u in range(8) for x in unit_src(u)] + [(tt, f) for tt in range(3) for f in range(2)]
    gaps = [[] for _ in range(24)]
    gaps[10] += q_cvt(3)
    for u in range(6): gaps[12 + 2*u] += unit_cvt(u) + (if_vcc([kv_store(u - 1), kv_store(u)]) if u & 1 else [])
    for i, (tt, f) in enumerate(order):
        d = acc(tt, f)
        A, B = (WF[1][f], XF[1][tt]) if f < 4 else (XF[1][tt], WF[1][f])
        a(f"v_mfma_f32_16x16x32_bf16 {v(d,4)}, {v(A,4)}, {v(B,4)}, {v(d,4)}")
        for x in gaps[i]: a(x)
    for x in unit_cvt(6) + unit_cvt(7) + if_vcc([kv_store(6), kv_store(7)]): a(x)

def transition_ab(a):
    a(f"s_cmp_lt_u32 s{S_W}, 4\ns_setprio 1\ns_cbranch_scc0 Lyng0\ns_setprio 2\nLyng0:")
    a("s_waitcnt lgkmcnt(0)\ns_barrier")
    for j in range(2): a(f"ds_read_b128 {v(AK[0][j],4)}, v{AADK} offset:{1024*j}")
    for j in range(2): a(f"ds_read_b128 {v(AV[0][j],4)}, v{AADDR} offset:{2048+1024*j}")
    for tt in range(3):
        for x in q_cvt(tt): a(x)
    a("s_nop 1")
    for q in "ab":
        for i in range(4): a(f"v_permlane16_swap_b32 v{AQ[(q,0)]+i}, v{AQ[(q,1)]+i}")
    for q in "ab":
        for i in range(4): a(f"v_permlane32_swap_b32 v{AQ[(q,0)]+i}, v{AQ[(q,1)]+i}")
    a("s_waitcnt lgkmcnt(2)")
    a(qk1(AS[0],0,'a',"0")); a(qk2(AS[0],0,'a')); a(qk1(AS[1],0,'b',"0")); a(qk2(AS[1],0,'b'))
    a(f"""
    v_readfirstlane_b32 s{S_NONCE}, v{V_NON}
    v_readfirstlane_b32 s{S_NONCE+1}, v{V_NON+1}
    s_lshl_b32 s26, s{S_TM}, 4
    s_add_u32 s26, s26, s{S_W}
    s_lshl_b32 s28, s26, 3
    s_nop 3
    s_cmp_eq_u32 s{S_NONCE}, 0
    s_cbranch_scc1 Lnonce_spin
    Lnonce_ok:
    v_mov_b32 v{V_FA}, s28
    s_nop 0
    """)
    rowmax16(a, AS[0], 2, 3)
    rowmax16(a, AS[1], 4, 5)
    for i in range(8): a(f"v_pk_mul_f32 {v(AC['a']+2*i,2)}, v[2:3], -1.0 op_sel_hi:[0,0]")
    a(f"v_pk_mul_f32 {v(AC['b'],2)}, v[4:5], -1.0 op_sel_hi:[0,0]\nv_pk_mul_f32 {v(AC['b']+2,2)}, v[4:5], -1.0 op_sel_hi:[0,0]")
    a(qk1(AS[0],0,'a')); a(qk2(AS[0],0,'a'))
    for i in range(2, 8): a(f"v_pk_mul_f32 {v(AC['b']+2*i,2)}, v[4:5], -1.0 op_sel_hi:[0,0]")
    a("s_nop 4")

def rowmax16(a, S, m, t):
    a(f"v_max3_f32 v{m}, v{S}, v{S+1}, v{S+2}")
    for i in range(3, 15, 2): a(f"v_max3_f32 v{m}, v{m}, v{S+i}, v{S+i+1}")
    a(f"v_max_f32 v{m}, v{m}, v{S+15}")
    a(f"v_mov_b32 v{t}, v{m}\ns_nop 1\nv_permlane32_swap_b32 v{m}, v{t}\ns_nop 0\nv_max_f32 v{m}, v{m}, v{t}")

def attn_half(a, t, q, extra=None, skipz=False):
    hs = (2*t + (q == 'b')) % 4
    oq = 'b' if q == 'a' else 'a'
    X = AS[hs]; Y = AS[(hs+1) % 4]; Z = AS[(hs-1) % 4]
    kb = t % 2 if q == 'a' else (t+1) % 2
    vb = (t-1) % 2 if q == 'a' else t % 2
    nt = (t + 1) % 4
    M = {'Q1': qk1(Y,kb,oq), 'Q2': qk2(Y,kb,oq), 'P1': pv(Z,0,vb,oq), 'S1': sm(Z,0,oq), 'P2': pv(Z,1,vb,oq), 'S2': sm(Z,1,oq)}
    e = 0
    for tok in "Q1 W0 3 S1 L0 2 Q2 3 P1 3 S2 L1 2 P2 W1 3".split():
        if tok in M:
            if not (skipz and tok[0] != 'Q'): a(M[tok])
        elif tok in ('L0', 'L1'):
            j = int(tok[1])
            if q == 'a': a(f"ds_read_b128 {v(AK[(t+1)%2][j],4)}, v{AADK} offset:{nt*4096 + 1024*j}")
            else: a(f"ds_read_b128 {v(AV[(t+1)%2][j],4)}, v{AADDR} offset:{nt*4096 + 2048 + 1024*j}")
        elif tok == 'W0':
            if q == 'b': a("s_waitcnt lgkmcnt(0)")
        elif tok == 'W1':
            if q == 'a': a("s_waitcnt lgkmcnt(1)")
        else:
            for _ in range(int(tok)):
                a(f"v_exp_f32 v{X+e}, v{X+e}"); e += 1
        if extra and tok in extra:
            for x in extra[tok]: a(x)
    assert e == 16

def kv_dma(h): return [f"buffer_load_dwordx4 v{AVO}, s[{SRD_KV}:{SRD_KV+3}], s{S_CH if h == 0 else S_CH2} offen offset:{1024*i}{SC1} lds" for i in range(4)]
S_FSO = 24
def flag_load(srd=None):
    srd = SRD_F if srd is None else srd
    return f"buffer_load_dwordx2 {v(AFL,2)}, v{AFA}, s[{srd}:{srd+3}], s{S_FSO} offen sc1"
S_EARLY = 41
DEPTH = opt("odepth", 5)
OSL = [72, 80, 88, 96, 136, 144, 152, 160, 8, 16, 24, 32, 224, 232, 240, 248]
def oslot(p, tt): return OSL[p % 16] + 4 * tt
def oload_ins(p):
    return [f"buffer_load_dwordx4 {v(oslot(p, tt),4)}, v{P_OV[(p>>3)&1][tt]}, s[{SRD_OL}:{SRD_OL+3}], s{S_OSO + p%8} offen offset:{(p>>4)*1024}{SC1}" for tt in range(2)]
def chunk_scalars():
    return [f"s_add_u32 s{S_CIDX}, s{S_CIDX}, 16384", f"s_xor_b32 s{S_CH}, s{S_CIDX}, s23", f"s_add_u32 s{S_CH2}, s{S_CH}, 262144",
            f"s_bfe_u32 s26, s{S_CH}, 0x1000e", "s_lshl_b32 s26, s26, 1", f"s_add_u32 s{S_FIDX}, s26, s51"]
def line_cur(): return [f"s_lshr_b32 s26, s{S_CH}, 15", f"s_lshl_b32 s{S_FSO}, s26, 7"]
def line_next(): return [f"s_add_u32 s26, s{S_CIDX}, 16384", "s_xor_b32 s26, s26, s23", "s_bfe_u32 s26, s26, 0x3000f", f"s_lshl_b32 s{S_FSO}, s26, 7"]
def mask_test():
    return [f"s_lshr_b32 s26, s{S_MASK}, s{S_FIDX}", "s_andn2_b32 s26, 0x11, s26"]
def flag_cmp(): return f"v_cmp_eq_u64 s[{S_MASK}:{S_MASK+1}], s[{S_NONCE}:{S_NONCE+1}], {v(AFL,2)}"
def spin(a, name, test, lowprio=False):
    if lowprio:
        a(f"""
        {name}:
        s_mov_b32 s{S_SPIN}, {SPIN_LIMIT}
        {name}_l:
        {flag_load()}
        s_waitcnt vmcnt(0)
        {flag_cmp()}
        s_sub_u32 s{S_SPIN}, s{S_SPIN}, 1
        s_cbranch_scc1 {name}_x
        """)
        for x in test: a(x)
        a(f"s_cbranch_scc0 {name}_x\ns_setprio 0\ns_sleep {SLEEP}\ns_branch {name}_l\n{name}_x:\ns_cbranch_vccz {name}_r\ns_setprio 2\ns_branch {name}_r")
        return
    a(f"""
    {name}:
    s_mov_b32 s{S_SPIN}, {SPIN_LIMIT}
    {name}_l:
    {flag_load()}
    s_waitcnt vmcnt(0)
    {flag_cmp()}
    s_sub_u32 s{S_SPIN}, s{S_SPIN}, 1
    s_cbranch_scc1 {name}_r
    """)
    for x in test: a(x)
    a(f"s_cbranch_scc0 {name}_r\ns_sleep {SLEEP}\ns_branch {name}_l")
def spin_flags(a, name): spin(a, name, mask_test())
def wo_dma():
    return [f"s_add_u32 s{S_WOI}, s{S_WOI}, 1", f"s_add_u32 s26, s{S_WOI}, s{S_HP}", "s_and_b32 s26, s26, 7",
            f"s_xor_b32 s27, s{S_WOI}, s{S_HP}", "s_and_b32 s27, s27, 8", "s_or_b32 s26, s26, s27", "s_lshl_b32 s26, s26, 1",
            f"s_lshr_b32 s27, s{S_WOI}, 4", "s_add_u32 s26, s26, s27", "s_lshl_b32 s26, s26, 16", f"s_mov_b32 m0, s{S_WOM}",
            f"s_add_u32 s{S_WOS}, s26, s{S_WOB}", f"s_add_u32 s{S_WOM}, s{S_WOM}, 4096",
            f"buffer_load_dwordx4 v{AWD}, s[{SRD_WO}:{SRD_WO+3}], s{S_WOS} offen{NTW} lds"]
TOUCH = "--touch" in sys.argv
WARMF = "--nowarmf" not in sys.argv
def publish(fa=V_FA): return ["s_waitcnt vmcnt(0)", "s_mov_b64 exec, 1", f"buffer_store_dwordx2 {v(V_NON,2)}, v{fa}, s[{SRD_F}:{SRD_F+3}], 0 offen sc1", "s_mov_b64 exec, -1"]
def wo_rows(n):
    o = []
    for _ in range(n): o += wo_dma()
    return o
EARLY = '--noearly' not in sys.argv
LST = opt("lst", 2)
def attn_chunk(a, kind):
    tog = f"v_xor_b32 v{AADDR}, 32768, v{AADDR}\nv_xor_b32 v{AADK}, 32768, v{AADK}"
    for t in range(4):
        ea, eb = {}, {}
        if kind == 'c0':
            for k, e in enumerate((ea, eb)):
                j = 2*t + k - LST
                if 0 <= j < 4: e['P1'] = if_vcc([kv_store(2*j), kv_store(2*j + 1)], False)
        if kind == 'c1' and t == 0:
            eb['P2'] = [f"s_and_b32 s26, s{S_W}, 6", "s_cmp_eq_u32 s26, 2", "s_cbranch_scc0 Lpub2"] + publish() + ["Lpub2:"]
        if kind == 'c14' and t == 0:
            ea['Q2'] = old_only([f"s_lshl_b32 s28, s{S_W}, 1", f"s_add_u32 s28, s28, s{S_HP}", "v_lshrrev_b32 v2, 5, v1", "v_add_u32 v2, s28, v2", "v_and_b32 v2, 7, v2",
                                 f"s_and_b32 s28, s{S_HP}, 8", "s_xor_b32 s28, s28, 8", "v_or_b32 v2, s28, v2", "v_lshlrev_b32 v2, 17, v2", "v_and_b32 v3, 31, v1",
                                 "v_lshl_add_u32 v2, v3, 11, v2", "s_mov_b32 s28, 65536", f"buffer_load_dword v3, v2, s[{SRD_WO}:{SRD_WO+3}], s28 offen"])
        if kind == 'c15' and EARLY:
            if t == 2: ea['Q2'] = if_vcc([f"s_mov_b32 s{S_FSO}, s{S_FL0}", flag_load(SRD_F2)], False)
            if t == 3: ea['Q2'] = if_vcc(["s_waitcnt vmcnt(0)", flag_cmp(), "s_nop 0", f"s_cmp_lg_u32 s{S_MASK}, -1", "s_cbranch_scc1 Lnoearly", f"s_mov_b32 s{S_EARLY}, 1"]
                                         + [x for p in range(min(DEPTH, 4)) for x in oload_ins(p)] + ["Lnoearly:"], False)
        if t == 3:
            if kind == 'c0':
                stamp(a); a("s_waitcnt lgkmcnt(0)\ns_barrier"); stamp(a)
                for x in [f"s_cmp_lt_u32 s{S_W}, 4", "s_cselect_b64 vcc, -1, 0", f"s_and_b32 s26, s{S_W}, 6", "s_cmp_eq_u32 s26, 2", "s_cbranch_scc1 Lpub1"] + publish() + ["Lpub1:"]: a(x)
                stamp(a)
                ea['Q1'] = [tog]
            elif kind == 'c14':
                ea['Q1'] = [f"v_add_u32 v{AADDR}, 131072, v{AADDR}\nv_add_u32 v{AADK}, 131072, v{AADK}"]
            elif kind != 'c15':
                if kind == 'c1':
                    for x in old_only(chunk_scalars() + line_cur() + ["s_branch Lspin_c1a", "Lspin_c1a_r:", f"s_mov_b32 m0, s{S_M0}", "s_nop 0"] + kv_dma(0)
                                      + [f"s_add_u32 m0, s{S_M0}, 16384", "s_nop 0"] + kv_dma(1)): a(x)
                stamp(a); a("s_waitcnt vmcnt(0) lgkmcnt(0)"); stamp(a); a("s_barrier"); stamp(a)
                if kind in ('c1', 'loop'):
                    nm = "Lspin_" + kind
                    ea = {'Q1': [tog],
                          'Q2': old_only([flag_cmp(), f"s_xor_b32 s{S_M0}, s{S_M0}, 32768"] + chunk_scalars() + [f"s_mov_b32 m0, s{S_M0}"] + mask_test()
                                         + [f"s_cbranch_scc1 {nm}", f"{nm}_r:"] + kv_dma(0)),
                          'P2': old_only([f"s_add_u32 m0, s{S_M0}, 16384", "s_nop 0"] + kv_dma(1) + line_next() + [flag_load()])}
                    if kind == 'loop':
                        eb = {'Q2': old_only([f"s_cmp_gt_u32 s{S_CNT}, 3", "s_cbranch_scc0 Lnowo"] + wo_rows(2) + ["Lnowo:", f"s_cmp_eq_u32 s{S_CNT}, 1", "s_cbranch_scc0 Lno15"]
                                             + chunk_scalars() + [f"s_add_u32 m0, s{S_M0}, 131072"] + mask_test() + ["s_cbranch_scc1 Lspin_15", "Lspin_15_r:"] + kv_dma(0)
                                             + [f"s_add_u32 m0, s{S_M0}, {131072 + 16384}", "s_nop 0"] + kv_dma(1) + ["Lno15:"]),
                              'P2': [f"s_sub_u32 s{S_CNT}, s{S_CNT}, 1", f"s_cmp_lg_u32 s{S_CNT}, 0"]}
                elif kind == 'c13':
                    ea = {'Q1': [tog], 'Q2': old_only([f"s_lshl_b32 s{S_WOM}, s{S_W}, 10", f"s_add_u32 s{S_WOM}, s{S_WOM}, 32768"] + wo_rows(3)), 'P2': old_only(wo_rows(3))}
                    eb = {'Q2': old_only(wo_rows(2))}
        attn_half(a, t, 'a', ea, skipz=(kind == 'c0' and t == 0)); attn_half(a, t, 'b', eb)

def attention(a):
    attn_chunk(a, 'c0')
    attn_chunk(a, 'c1')
    a(f"s_mov_b32 s{S_CNT}, 11")
    a(".p2align 6")
    a.label("Lattn_loop")
    attn_chunk(a, 'loop')
    a("s_cbranch_scc1 Lattn_loop")
    attn_chunk(a, 'c13')
    for x in if_vcc(["s_barrier"], False): a(x)
    attn_chunk(a, 'c14')
    attn_chunk(a, 'c15')
    a("s_nop 1")
    stamp(a, 4)
    a(pv(AS[3],0,1,'b')); a(sm(AS[3],0,'b')); a(pv(AS[3],1,1,'b')); a(sm(AS[3],1,'b'))
    a(f"""
    s_mov_b32 s26, 0x4e800000        ; 2^30
    s_mov_b32 s27, 65536
    s_nop 5
    v_cmp_nge_f32 vcc, s26, v{AL['a']}
    v_cmp_nge_f32 s[28:29], s26, v{AL['b']}
    s_or_b64 vcc, vcc, s[28:29]
    s_cbranch_vccnz Lattn_fallback
    Lattn_fin:
    """)
    stamp(a, None, "e")
    a(f"""
    v_rcp_f32 v2, v{AL['a']}
    v_rcp_f32 v4, v{AL['b']}
    """)
    for qi, q in enumerate('ab'):
        for u in range(2):
            for i in range(4): a(f"v_pk_mul_f32 {v(AO[q]+8*u+2*i,2)}, {v(AO[q]+8*u+2*i,2)}, {v(2+2*qi,2)} op_sel_hi:[1,0]")
            d = AS[0] + 4*(2*qi+u)
            for x in cvt4([AO[q]+8*u+i for i in range(8)], d): a(x)
            a(f"buffer_store_dwordx4 {v(d,4)}, v6, s[{SRD_O}:{SRD_O+3}], {'0' if qi==0 else 's27'} offen offset:{512*u}{SC1}")

def fallback(a):
    a.label("Lattn_fallback")
    a(f"""
    s_waitcnt vmcnt(0)
    s_lshl_b32 s26, s{S_B}, 5
    s_lshl_b32 s28, s{S_HP}, 1
    s_add_u32 s26, s26, s28
    s_lshr_b32 s28, s{S_W}, 2
    s_add_u32 s26, s26, s28
    s_lshl_b32 s30, s26, 18
    """)
    make_srd(a, SRD_KV, 48, 49, 30, 262144)
    a(f"""
    s_mov_b32 s{S_SPIN}, {SPIN_LIMIT}
    v_lshrrev_b32 v2, 3, v1
    v_lshl_add_u32 v2, v2, 7, v{AFA}
    Lfb_poll:
    buffer_load_dwordx2 {v(AFL,2)}, v2, s[{SRD_F}:{SRD_F+3}], 0 offen sc1
    s_waitcnt vmcnt(0)
    v_cmp_eq_u64 vcc, s[{S_NONCE}:{S_NONCE+1}], {v(AFL,2)}
    s_sub_u32 s{S_SPIN}, s{S_SPIN}, 1
    s_cbranch_scc1 Lfb_go
    s_cmp_eq_u64 vcc, -1
    s_cbranch_scc0 Lfb_poll
    Lfb_go:
    """)
    for r in list(range(AO['a'], AO['a']+32)) + list(range(AL['a'], AL['a']+8)): a(f"v_mov_b32 v{r}, 0")
    Mr = {'a': AC['a'], 'b': AC['b']}
    a(f"v_mov_b32 v{Mr['a']}, 0xff800000\nv_mov_b32 v{Mr['b']}, 0xff800000\ns_mov_b32 s26, 0")
    a.label("Lfb_loop")
    for j in range(2): a(f"buffer_load_dwordx4 {v(AK[0][j],4)}, v{AVK}, s[{SRD_KV}:{SRD_KV+3}], s26 offen offset:{1024*j} sc1")
    for j in range(2): a(f"buffer_load_dwordx4 {v(AV[0][j],4)}, v{AVO}, s[{SRD_KV}:{SRD_KV+3}], s26 offen offset:{2048+1024*j} sc1")
    a("s_waitcnt vmcnt(0)")
    for q in 'ab':
        S = AS[0]
        a(qk1(S,0,q,"0")); a(qk2(S,0,q)); a("s_nop 15")
        rowmax16(a, S, 2, 3)
        a(f"v_max_f32 v2, v2, v{Mr[q]}\nv_sub_f32 v3, v{Mr[q]}, v2\nv_exp_f32 v3, v3\nv_mov_b32 v{Mr[q]}, v2")
        for i in range(16): a(f"v_sub_f32 v{S+i}, v{S+i}, v2")
        for i in range(16): a(f"v_exp_f32 v{S+i}, v{S+i}")
        for i in range(16): a(f"v_mul_f32 v{AO[q]+i}, v3, v{AO[q]+i}")
        for i in range(4): a(f"v_mul_f32 v{AL[q]+i}, v3, v{AL[q]+i}")
        a("s_nop 1")
        a(pv(S,0,0,q)); a(sm(S,0,q)); a(pv(S,1,0,q)); a(sm(S,1,q))
        a("s_nop 15")
    a("s_add_u32 s26, s26, 4096\ns_cmp_lt_u32 s26, 262144\ns_cbranch_scc1 Lfb_loop\ns_branch Lattn_fin")

PACC = 40
PWF = [104, 120]
POF = 168
POLLS = []
def proj_body(a, old):
    vm = VmTrack(); fpos = {}
    R = "o" if old else "y"
    def wreads(p):
        off = (p if p < 16 else p - 16 + 8 if p < 24 else (p - 24) % 4) * 4096
        return [f"ds_read_b64_tr_b16 {v(PWF[p&1]+4*ct+2*h,2)}, v{P_WR[ct]} offset:{off + h*1024}" for ct in range(4) for h in range(2)]
    def check(g, hi=False):
        nm = f"Lpoll{R}{g}"; POLLS.append((nm, hi))
        return [f"s_cmp_lg_u32 s{S_MASK}, -1", f"s_cbranch_scc1 {nm}", f"{nm}_r:"]
    def setline(g): return f"s_xor_b32 s{S_FSO}, s{S_FL0}, {(g & 1) * 128 + (g >> 1) * 256}"
    def force(g, hi=False): return [f"s_mov_b32 s{S_MASK}, 0", setline(g)] + check(g, hi)
    def oload(p):
        vm.issue(("O", p)); vm.issue(("O", p))
        return oload_ins(p)
    PX, YX3 = opt("px", 10), opt("yx3", 5)
    if old:
        a("s_waitcnt vmcnt(4)\ns_barrier")
        stamp(a, None, "e")
        for x in publish(V_FA2): a(x)
        stamp(a, 5)
        for x in [f"s_lshl_b32 s{S_WOM}, s{S_W}, 10"] + wo_rows(4) + [f"s_add_u32 s{S_WOM}, s{S_WOM}, {131072 - 16384}"] + wo_rows(4) + ["s_waitcnt vmcnt(8)"]: a(x)
        OPRE = opt("opre", 6)
        if opt("olow", 1): a("s_setprio 0")
        for p in range(OPRE):
            if p % 8 == 0:
                for x in force(p // 8, not opt("olow", 1)): a(x)
            for x in oload(p): a(x)
        a("s_setprio 0")
        nxt = OPRE
    else:
        stamp(a, None, "e")
        YPUB = opt("ypub", 2)
        if YPUB < 0:
            for x in publish(V_FA2): a(x)
        a(f"s_setprio {opt('yprio', 1)}")
        stamp(a, 5)
        a(f"s_cmp_eq_u32 s{S_EARLY}, 1\ns_cbranch_scc1 Learly")
        for x in force(0): a(x)
        for p in range(4):
            for x in oload(p): a(x)
        a.label("Learly")
        spos = len(vm.ops)
        for p in range(4, DEPTH):
            for x in oload(p): a(x)
        nxt = DEPTH
    for x in wreads(0): a(x)
    stamp(a, 6)
    for p in range(32):
        if p + 1 == 16:
            for ct in range(4): a(f"v_add_u32 v{P_WR[ct]}, {-65536 & 0xffffffff}, v{P_WR[ct]}")
        if p + 1 == 28:
            for ct in range(4): a(f"v_add_u32 v{P_WR[ct]}, 131072, v{P_WR[ct]}")
        wc = vm.wait_count({('O', p)})
        if not old and YPUB >= 0 and p < 4:
            a(f"s_cmp_eq_u32 s{S_EARLY}, 1\ns_cbranch_scc1 Lw{p}a\ns_waitcnt vmcnt({wc})\nLw{p}a:\ns_waitcnt vmcnt({wc + 4}) lgkmcnt(0)")
        else:
            a(f"s_waitcnt vmcnt({wc}) lgkmcnt(0)")
        if not old and p == YPUB:
            for x in [f"s_waitcnt vmcnt({len(vm.ops) - spos})"] + publish(V_FA2)[1:]: a(x)
        gaps = [[] for _ in range(8)]
        for i, r in enumerate(wreads(p + 1) if p + 1 < 32 else []): gaps[i // 2].append(r)
        if not old and p == YX3: gaps[0].append("s_barrier")
        todo = []
        if old:
            todo = list(range(nxt, min(32 if p >= PX else 16, nxt + 2, 16 + p, p + 1 + opt("odold", 6))))
        elif nxt < 32: todo = [nxt]
        gi = 4
        for n in todo:
            if n % 8 == 0:
                g = n // 8
                if old and g == 2: gaps[gi] += ["s_barrier"] + force(g)
                elif g in fpos: gaps[gi] += [f"s_waitcnt vmcnt({len(vm.ops) - fpos[g]})", flag_cmp(), "s_nop 0"] + check(g)
                else: gaps[gi] += force(g)
            o = oload(n)
            gaps[gi].append(o[0]); gaps[gi + 1].append(o[1]); gi += 2
            if (n + 3) % 8 == 0 and n + 3 < 32:
                g = (n + 3) // 8
                gaps[gi - 1] += [setline(g), flag_load()]
                fpos[g] = len(vm.ops)
            nxt = n + 1
        n = 0
        for tt in range(2):
            for ct in (range(4) if tt == 0 else range(3, -1, -1)):
                d = PACC + (tt*4+ct)*4
                a(f"v_mfma_f32_16x16x32_bf16 {v(d,4)}, {v(PWF[p&1]+4*ct,4)}, {v(oslot(p, tt),4)}, {'0' if p==0 else v(d,4)}")
                for x in gaps[n]: a(x)
                n += 1
        if p % 4 == 3: stamp(a, None, "p")
    assert nxt == 32

def proj(a):
    a(f"s_mov_b64 s[{SRD_F}:{SRD_F+1}], s[{SRD_F2}:{SRD_F2+1}]\ns_mov_b32 s{SRD_F+2}, 2048")
    a(f"s_cmp_lt_u32 s{S_W}, 4\ns_cselect_b64 vcc, -1, 0\ns_cbranch_scc0 Lproj_y")
    proj_body(a, True)
    a("s_branch Lproj_e\nLproj_y:")
    proj_body(a, False)
    a.label("Lproj_e")
    a(f"""
    v_lshrrev_b32 v4, 4, v1
    v_and_b32 v2, 15, v1
    v_lshlrev_b32 v2, 12, v2
    v_and_b32 v3, 1, v4
    v_lshl_add_u32 v2, v3, 5, v2
    v_lshrrev_b32 v3, 1, v4
    v_lshl_add_u32 v2, v3, 4, v2
    s_mov_b32 s26, 65536
    s_nop 3
    """)
    for tt in range(2):
        for pr in range(2):
            d = POF + (tt*2+pr)*4
            for x in range(2):
                s0 = PACC + (tt*4+2*pr+x)*4
                a(f"v_cvt_pk_bf16_f32 v{d+2*x}, v{s0}, v{s0+1}\nv_cvt_pk_bf16_f32 v{d+2*x+1}, v{s0+2}, v{s0+3}")
            a(f"s_nop 1\nv_permlane16_swap_b32 v{d}, v{d+2}\nv_permlane16_swap_b32 v{d+1}, v{d+3}")
            a(f"buffer_store_dwordx4 {v(d,4)}, v2, s[{SRD_OUT}:{SRD_OUT+3}], {'0' if tt==0 else 's26'} offen offset:{64*pr}{' ' + opt('ofl', 'nt').replace('_', ' ') if opt('ofl', 'nt') else ''}")

def build():
    a = Asm()
    decode(a, "Lend")
    gemm1_setup_dma(a)
    stamp(a, 0); dbgstamp(a, 0)
    gemm1_main(a, late_setup())
    stamp(a, 2); dbgstamp(a, 2)
    transition_ab(a)
    stamp(a, 3)
    attention(a)
    dbgstamp(a, 3)
    proj(a)
    stamp(a, 7); dbgstamp(a, 4); dbgflush(a)
    stamp_flush(a, 8)
    a.label("Lend")
    a("s_endpgm")
    for nm in ("Lspin_c1a", "Lspin_c1", "Lspin_loop", "Lspin_15"): spin_flags(a, nm)
    a(f"""
    Lnonce_spin:
    s_mov_b32 s{S_SPIN}, {SPIN_LIMIT}
    Lnonce_l:
    buffer_load_dwordx2 {v(V_NON,2)}, v{V_PD+1}, s[92:95], 0 offen sc1
    s_waitcnt vmcnt(0)
    v_readfirstlane_b32 s{S_NONCE}, v{V_NON}
    v_readfirstlane_b32 s{S_NONCE+1}, v{V_NON+1}
    s_sub_u32 s{S_SPIN}, s{S_SPIN}, 1
    s_cbranch_scc1 Lnonce_ok
    s_cmp_eq_u32 s{S_NONCE}, 0
    s_cbranch_scc1 Lnonce_l
    s_branch Lnonce_ok
    """)
    for nm, hi in POLLS: spin(a, nm, [f"s_cmp_lg_u32 s{S_MASK}, -1"], lowprio=hi)
    fallback(a)
    return a.text()

def main(out):
    P = "concat_heads__mha_block__softmax_full_mha__prompt_kernel"
    txt = f"""; fused QKV projection + attention + output projection (generated)
; @launch grid=(256,1,1) block=(512,1,1) lds=163840
.amdgcn_target "amdgcn-amd-amdhsa--gfx950"
.text
""" + kernel_header(P) + build() + '.section .rodata,"a"\n' + kernel_desc(P, 256, sgpr=102 if DBG else 96)
    open(out, "w").write(txt)

if __name__ == "__main__":
    args = [x for x in sys.argv[1:] if not x.startswith("--")]
    main(args[0] if args else "concat_heads__mha_block__softmax_full_mha__prompt.s")
```

```python
import sys, struct, math
from dsl import *

def opt(name, default):
    for x in sys.argv:
        if x.startswith(f"--{name}="): return type(default)(x[len(name) + 3:])
    return default
STAMP = "--stamp" in sys.argv
ROT = opt("rot", 0)
PRO = opt("pro", "X0,W0,Q0,B,W1,X1,W2").replace(",", " ")
STEPX = {}
for it in opt("stepx", "0:W3.X2.Q1;1:W4;8:Q2;16:Q3").split(";"):
    if it:
        k, val = it.split(":"); STEPX[int(k)] = val.split(".")
SC1 = "" if "--nosc1" in sys.argv else " sc1"
NTD = " nt" if "d" in opt("nt", "") else (" " + opt("dfl", "").replace("_", " ") if opt("dfl", "") else "")
NTP = " nt" if "p" in opt("nt", "") else ""
NTW = " nt" if "w" in opt("nt", "") else ""
ROTB = opt("rotb", -1)

KV_OFF = 0
O_OFF = 24 << 20
F1_OFF = 32 << 20
F2_OFF = 33 << 20
SLEEP = opt('sleep', 8)
ST_OFF = 64 << 20
QSCALE = struct.unpack("<I", struct.pack("<f", math.log2(math.e) / math.sqrt(32.0)))[0]
SPIN_LIMIT = 1 << 16

S_W, S_B, S_TM, S_HP = 16, 17, 18, 19
S_SOX, S_SOW, S_XB, S_WB = 20, 21, 22, 23
S_EXW = 24
S_NONCE = 80
S_MASK = 82
S_CIDX, S_M0, S_CNT, S_CH, S_WOS, S_WOM, S_FIDX, S_SPIN = 84, 85, 86, 87, 88, 89, 90, 91
S_WOI, S_WOB = 20, 21
PRIO = opt('prio', 1)
SRD_KV, SRD_F, SRD_WO, SRD_O = 4, 8, 52, 12
SRD_KVS = 56
SRD_OUT, SRD_OL, SRD_F2 = 36, 32, 76
S_FL0 = 40

def make_srd(a, d, lo, hi, off_sgpr, nrec):
    a(f"s_add_u32 s{d}, s{lo}, s{off_sgpr}\ns_addc_u32 s{d+1}, s{hi}, 0\ns_and_b32 s{d+1}, s{d+1}, 0xffff")
    a(f"s_mov_b32 s{d+2}, {nrec}\ns_mov_b32 s{d+3}, 0x00020000")

NST = [0]
STG = opt("stg", "m")
def stamp(a, i=None, g="m"):
    if not STAMP: return
    if i is None: g = "a" if g == "m" else g
    if g not in STG: return
    a("s_memrealtime s[60:61]\ns_memtime s[62:63]\ns_waitcnt lgkmcnt(0)\ns_lshl_b64 exec, 1, s64\nv_mov_b32 v0, s60\nv_mov_b32 v203, s62\ns_mov_b64 exec, -1\ns_add_u32 s64, s64, 1")
DBG = "--dbg" in sys.argv
def dbgstamp(a, i, inv=False):
    if DBG: a(f"s_memrealtime s[60:61]\ns_waitcnt lgkmcnt(0)\ns_mov_b32 s{96+i}, s60")
def dbgflush(a):
    if not DBG: return
    a(f"""
    s_cmp_lg_u32 s{S_W}, 7
    s_cbranch_scc1 Ldbg_e
    s_mov_b64 exec, 1
    s_and_b32 s26, s{S_HP}, 7
    s_lshl_b32 s26, s26, 2
    v_mov_b32 v2, s26
    s_sub_u32 s27, s98, s96
    v_mov_b32 v3, s27
    buffer_atomic_umax v3, v2, s[92:95], 0 offen offset:8
    v_mov_b32 v4, 0
    s_sub_u32 s27, s97, s96
    v_mov_b32 v5, s27
    buffer_atomic_umax v5, v4, s[92:95], 0 offen offset:40
    s_sub_u32 s27, s99, s98
    v_mov_b32 v6, s27
    buffer_atomic_umax v6, v4, s[92:95], 0 offen offset:44
    s_sub_u32 s27, s100, s99
    v_mov_b32 v7, s27
    buffer_atomic_umax v7, v4, s[92:95], 0 offen offset:48
    s_sub_u32 s27, s100, s96
    v_mov_b32 v8, s27
    buffer_atomic_umax v8, v4, s[92:95], 0 offen offset:52
    s_not_b32 s27, s96
    v_mov_b32 v9, s27
    buffer_atomic_umax v9, v4, s[92:95], 0 offen offset:56
    v_mov_b32 v10, s100
    buffer_atomic_umax v10, v4, s[92:95], 0 offen offset:60
    Ldbg_e:
    """)
def stamp_flush(a, n):
    if not STAMP: return
    a(f"""
    s_lshl_b32 s26, s2, 3
    s_add_u32 s26, s26, s{S_W}
    s_lshl_b32 s26, s26, 9
    s_add_u32 s30, s26, {ST_OFF}
    """)
    make_srd(a, 56, 48, 49, 30, 512)
    a("v_lshlrev_b32 v2, 3, v1\nv_mov_b32 v4, v0\nv_mov_b32 v5, v203\nbuffer_store_dwordx2 v[4:5], v2, s[56:59], 0 offen")

ACC = 8
def acc(tt, f): return ACC + (tt * 6 + f) * 4
XF = [[104 + 4*i for i in range(4)], [144 + 4*i for i in range(4)]]
WF = [[120 + 4*i for i in range(6)], [160 + 4*i for i in range(6)]]
V_XR = [208, 209]; V_WR = [210, 211]; V_XD = list(range(184, 192)); V_WD = [212, 213, 214]
V_PX, V_PW, V_PD = 218, 219, 220
V_NON = 222
LDS_W = 98304

def decode(a, end):
    a(f"""
    s_cmp_ge_u32 s2, 256
    s_cbranch_scc1 {end}
    s_load_dwordx16 s[32:47], s[0:1], 0
    s_load_dwordx2 s[48:49], s[0:1], 64
    v_lshrrev_b32 v1, 6, v0
    s_and_b32 s26, s2, 7
    s_lshr_b32 s27, s2, 3
    v_readfirstlane_b32 s{S_W}, v1
    s_lshr_b32 s{S_B}, s26, 2
    s_and_b32 s28, s26, 1
    s_lshl_b32 s28, s28, 2
    s_and_b32 s29, s27, 3
    s_add_u32 s{S_TM}, s28, s29
    s_bfe_u32 s28, s26, 0x10001
    s_lshl_b32 s28, s28, 3
    s_lshr_b32 s29, s27, 2
    s_add_u32 s{S_HP}, s28, s29
    v_and_b32 v1, 63, v0
    s_mul_i32 s51, {'s26' if ROTB < 0 else 's17'}, {ROT if ROTB < 0 else ROTB}
    s_and_b32 s51, s51, 15
    s_lshl_b32 s14, s51, 1
    s_lshl_b32 s15, s51, 7
    s_mov_b32 s64, 0
    """)

NLAB = [0]
ROLE = [None]
def if_vcc(ins, want=True):
    if ROLE[0] is not None: return list(ins) if ROLE[0] == want else []
    NLAB[0] += 1
    return [f"s_cbranch_vcc{'z' if want else 'nz'} Lskip{NLAB[0]}"] + ins + [f"Lskip{NLAB[0]}:"]
old_only = if_vcc

def gemm1_setup_dma(a):
    a(f"""
    s_cmp_lt_u32 s{S_W}, 4
    s_cselect_b64 vcc, -1, 0
    s_cbranch_scc0 Lsetup1
    s_setprio 1
    Lsetup1:
    s_mul_i32 s{S_XB}, s{S_W}, 24576
    s_mul_i32 s26, s{S_W}, 3072
    s_add_u32 s{S_WB}, s26, {LDS_W}
    v_lshrrev_b32 v2, 3, v1
    s_lshl_b32 s26, s{S_W}, 6
    v_add_u32 v7, s26, v2
    v_and_b32 v3, 7, v1
    v_lshrrev_b32 v4, 4, v1
    v_xor_b32 v5, v3, v4
    v_lshlrev_b32 v5, 4, v5
    v_lshl_add_u32 v{V_XD[0]}, v7, 11, v5
    v_xor_b32 v5, 64, v5
    v_lshl_add_u32 v{V_XD[1]}, v7, 11, v5
    v_add_u32 v{V_XD[1]}, {8*2048}, v{V_XD[1]}
    """)
    for q in range(2, 8): a(f"v_add_u32 v{V_XD[q]}, {16*2048}, v{V_XD[q-2]}")
    a(f"s_mul_i32 s26, s{S_W}, 24")
    for q in range(3):
        a(f"""
        v_add_u32 v7, s26, v2            ; R
        s_add_u32 s26, s26, 8
        v_lshrrev_b32 v4, 5, v7          ; sec
        v_and_b32 v7, 31, v7             ; k
        v_and_b32 v5, 2, v7
        v_bfe_u32 v6, v7, 3, 1
        v_lshl_or_b32 v5, v6, 2, v5      ; swz*2
        v_xor_b32 v5, v3, v5             ; chunk
        v_lshlrev_b32 v5, 4, v5
        v_lshl_add_u32 v5, v4, 11, v5
        v_mul_u32_u24 v7, 6144, v7
        v_add_u32 v{V_WD[q]}, v7, v5
        """)
    a(f"""
    s_waitcnt lgkmcnt(0)
    s_cmp_eq_u32 s{S_B}, 0
    s_cselect_b32 s26, s32, s38
    s_cselect_b32 s27, s33, s39
    s_cselect_b32 s28, s34, s40
    s_cselect_b32 s29, s35, s41
    s_lshl_b32 s30, s{S_TM}, 19
    """)
    make_srd(a, 4, 26, 27, 30, 524288)
    a(f"s_lshl_b32 s30, s{S_HP}, 7\ns_sub_u32 s31, {1024*6144}, s30")
    make_srd(a, 8, 28, 29, 30, "s31")

def gemm1_setup_rest(a):
    a(f"""
    s_and_b32 s30, s{S_W}, 3
    s_mul_i32 s30, s30, 24576
    v_and_b32 v2, 15, v1             ; c
    v_lshrrev_b32 v4, 4, v1          ; G
    v_lshrrev_b32 v5, 1, v2
    v_xor_b32 v5, v4, v5
    v_lshlrev_b32 v5, 4, v5
    v_lshl_add_u32 v5, v2, 7, v5
    v_add_u32 v{V_XR[0]}, s30, v5
    v_xor_b32 v{V_XR[1]}, 64, v{V_XR[0]}
    v_bfe_u32 v2, v1, 2, 2           ; r
    v_and_b32 v3, 3, v1              ; c4
    v_lshl_add_u32 v5, v4, 3, v2     ; k = 8G + r
    v_lshrrev_b32 v6, 1, v2
    v_and_b32 v7, 1, v4
    v_lshl_or_b32 v6, v7, 1, v6      ; swz
    s_lshr_b32 s30, s{S_W}, 2
    s_lshl_b32 s30, s30, 1
    v_xor_b32 v6, s30, v6
    v_lshlrev_b32 v6, 5, v6
    v_lshl_add_u32 v6, v3, 3, v6
    v_lshl_add_u32 v6, v5, 7, v6
    v_add_u32 v{V_WR[0]}, {LDS_W}, v6
    v_xor_b32 v{V_WR[1]}, 32, v{V_WR[0]}
    """)
    a(f"s_lshr_b32 s30, s{S_TM}, 2\ns_lshl_b32 s30, s30, 21")
    make_srd(a, 52, 26, 27, 30, 2 << 20)
    a(f"s_lshr_b32 s30, s{S_HP}, 3\ns_lshl_b32 s30, s30, 10\ns_sub_u32 s31, {1024*6144}, s30")
    make_srd(a, 56, 28, 29, 30, "s31")
    toks = PRO + " ".join(" ".join(x) for x in STEPX.values())
    if "Q" in toks or "R" in toks:
        for l in q_setup(): a(l)
    if "P" in toks: a(f"""
    s_lshr_b32 s26, s2, 3
    s_lshl_b32 s26, s26, 3
    s_add_u32 s26, s26, s{S_W}       ; u
    s_lshl_b32 s27, s26, 13
    v_and_b32 v2, 3, v1
    v_lshlrev_b32 v2, 11, v2
    v_lshrrev_b32 v3, 2, v1
    v_lshl_add_u32 v2, v3, 7, v2
    v_add_u32 v{V_PX}, s27, v2
    v_mul_u32_u24 v2, 43, v1
    v_lshrrev_b32 v2, 8, v2
    v_mul_u32_u24 v3, 6, v2
    v_sub_u32 v3, v1, v3
    s_and_b32 s27, s26, 3
    s_mul_i32 s27, s27, 6
    v_add_u32 v3, s27, v3
    v_lshrrev_b32 v4, 3, v3
    v_and_b32 v3, 7, v3
    v_lshlrev_b32 v3, 7, v3
    v_lshl_add_u32 v3, v4, 11, v3
    s_lshr_b32 s27, s26, 2
    v_lshl_add_u32 v2, v2, 6, s27
    v_mul_u32_u24 v2, 6144, v2
    v_add_u32 v{V_PW}, v2, v3
    """)
    a(f"""
    v_mov_b32 v{V_PD+1}, 0
    s_or_b32 s26, s2, s{S_W}
    s_cmp_lg_u32 s26, 0
    s_cbranch_scc1 Lnononce
    s_memrealtime s[26:27]
    s_mov_b32 s28, s46
    s_and_b32 s29, s47, 0xffff
    s_mov_b32 s30, 256
    s_mov_b32 s31, 0x00020000
    s_waitcnt lgkmcnt(0)
    s_or_b32 s26, s26, 1
    v_mov_b32 v2, s26
    v_mov_b32 v3, s27
    s_mov_b64 exec, 1
    buffer_store_dwordx2 v[2:3], v{V_PD+1}, s[28:31], 0 offen sc1
    s_mov_b64 exec, -1
    Lnononce:
    """)

def pf_batch(s0, n):
    return [f"s_add_u32 s13, s51, {s0}", "s_and_b32 s13, s13, 15", f"s_bfm_b64 exec, {6*n}, 0", f"s_mul_i32 s50, s13, {64*6144}",
            f"buffer_load_dword v{V_PD}, v{V_PW}, s[56:59], s50 offen{NTP}", "s_lshl_b32 s13, s13, 7",
            f"s_bfm_b64 exec, {4*n}, 0",
            f"buffer_load_dword v{V_PD}, v{V_PX}, s[52:55], s13 offen{NTP}", "s_mov_b64 exec, -1"]
V_QW, V_QX = 218, 219
SLOWC = opt("slowc", 3)
def q_setup():
    return [f"s_lshr_b32 s12, s2, 3", "s_lshl_b32 s12, s12, 3", f"s_add_u32 s12, s12, s{S_W}",
            f"v_lshlrev_b32 v{V_QW}, 11, v1", f"v_add_u32 v{V_QW}, {SLOWC*128}, v{V_QW}",
            "v_and_b32 v2, 3, v1", "v_lshlrev_b32 v2, 11, v2", "v_bfe_u32 v3, v1, 2, 1", "v_lshl_add_u32 v2, v3, 10, v2",
            "s_lshl_b32 s13, s12, 13", f"s_add_u32 s13, s13, {SLOWC*128}", f"v_add_u32 v{V_QX}, s13, v2",
            "s_lshl_b32 s13, s51, 6", "s_add_u32 s12, s12, s13"]
def q_batch(i):
    return [f"s_add_u32 s13, s12, {256*i}", "s_and_b32 s13, s13, 1023", "s_mov_b64 exec, 7", "s_mul_i32 s13, s13, 6144",
            f"buffer_load_dword v{V_NON+1}, v{V_QW}, s[56:59], s13 offen", "s_mov_b64 exec, -1"]
def r_batch():
    return ["s_mov_b64 exec, 0xff", f"buffer_load_dword v{V_NON+1}, v{V_QX}, s[52:55], 0 offen", "s_mov_b64 exec, -1"]
def dma_x(stage, q):
    return [f"s_add_u32 m0, s{S_XB}, {(stage % 3)*8192 + q*1024}", f"buffer_load_dwordx4 v{V_XD[q]}, s[4:7], s{S_SOX} offen{NTD} lds"]
def dma_w(step, q):
    return [f"s_add_u32 m0, s{S_WB}, {(step % 5)*12288 + q*1024}", f"buffer_load_dwordx4 v{V_WD[q]}, s[8:11], s{S_SOW} offen{NTD} lds"]
def frag_reads(step):
    p = step & 1; xs = (step >> 1) % 3; ws = step % 5
    X = [f"ds_read_b128 {v(XF[p][tt],4)}, v{V_XR[p]} offset:{xs*8192 + tt*2048}" for tt in range(4)]
    W = [[f"ds_read_b64_tr_b16 {v(WF[p][f]+2*h,2)}, v{V_WR[f&1]} offset:{ws*12288 + (f>>1)*4096 + h*512}" for h in range(2)] for f in range(6)]
    return [X[0]] + W[0] + W[1] + W[2] + [X[1]] + W[3] + W[4] + W[5] + [X[2], X[3]]
def gemm1_mfmas(step):
    p = step & 1; out = []
    for tt in range(4):
        for f in (range(6) if tt % 2 == 0 else range(5, -1, -1)):
            d = acc(tt, f)
            A, B = (WF[p][f], XF[p][tt]) if f < 4 else (XF[p][tt], WF[p][f])
            out.append(f"v_mfma_f32_16x16x32_bf16 {v(d,4)}, {v(A,4)}, {v(B,4)}, {'0' if step == 0 else v(d,4)}")
    return out

HB = opt('hb', 1)
RD0, DG0, DGS = opt('rd0', 0), opt('dg0', 1), opt('dgs', 10)
def gemm1_main(a, late):
    vm = VmTrack()
    def group(tok):
        if tok == "B": return [["s_barrier"]], []
        if tok[0] == "Q": return [q_batch(int(tok[1:]))], ["pf"]
        if tok[0] == "R": return [r_batch()], ["pf"]
        if tok[0] == "P":
            s0, n = map(int, tok[1:].split("_")); return [pf_batch(s0, n)], ["pf", "pf"]
        if tok[0] == "W":
            st = int(tok[1:]); g = [f"s_add_u32 s{S_SOW}, s14, {st}", f"s_and_b32 s{S_SOW}, s{S_SOW}, 31"]
            for q in range(3):
                m, l = dma_w(st, q); g += [m, f"s_mul_i32 s{S_SOW}, s{S_SOW}, {32*6144}" if q == 0 else "s_nop 0", l]
            return [old_only(g)], [("W", st)] * 3
        if tok[0] == "X":
            if "h" in tok: S, h = tok[1:].split("h"); S = int(S); qs = range(0, 4) if h == "0" else range(4, 8)
            else: S = int(tok[1:]); qs = range(8)
            g = [f"s_add_u32 s{S_SOX}, s15, {S*128}"]
            for q in qs:
                m, l = dma_x(S, q); g += [m, f"s_and_b32 s{S_SOX}, s{S_SOX}, 0x780" if q == qs[0] else "s_nop 0", l]
            return [old_only(g)], [("X", S)] * len(qs)
    first = True
    for tok in PRO.split():
        g, t = group(tok)
        for x in g:
            for y in x: a(y)
        for y in t: vm.issue(y)
        if tok == "W0":
            gemm1_setup_rest(a)
    a(f"s_waitcnt vmcnt({vm.wait_count({('X',0),('W',0)})})")
    a("s_barrier")
    stamp(a, 1); dbgstamp(a, 1)
    for l in frag_reads(0): a(l)
    for st in range(32):
        bar = (not HB) or st == 0 or st % 2 == 1
        if st == 31:
            a("s_waitcnt vmcnt(0) lgkmcnt(0)")
        elif bar:
            ahead = [st + 1] + ([st + 2] if HB and st % 2 == 1 else [])
            need = {("W", x) for x in ahead} | {("X", x >> 1) for x in ahead}
            for nd in need: assert vm.ops.count(nd) == (3 if nd[0] == "W" else 8), (st, nd)
            a(f"s_waitcnt vmcnt({min(63, vm.wait_count(need))}) lgkmcnt(0)")
        else:
            a("s_waitcnt lgkmcnt(0)")
        if bar: a("s_barrier")
        if st % 4 == 0: stamp(a, None, "g")
        M = gemm1_mfmas(st)
        if st == 31:
            a.label("Lgemm_end")
            last_step(a, late[31]); break
        R = frag_reads(st + 1) if st + 1 < 32 else []
        toks = list(STEPX.get(st, []))
        if not HB:
            if st + 5 < 32: toks.append(f"W{st+5}")
        elif st >= 1 and st + 4 < 32:
            toks.append(f"W{st+4}")
        if st >= 1 and ((st - 1) >> 1) + 3 < 16: toks.append(f"X{((st-1)>>1)+3}h{0 if st % 2 == 1 else 1}")
        D = []
        for tok in toks:
            g, t = group(tok); D += g
            for y in t: vm.issue(y)
        gaps = [[] for _ in range(24)]
        for i, r in enumerate(R): gaps[i + RD0].append(r)
        for i, d in enumerate(D): gaps[min(23, DG0 + (i * DGS if len(D) <= 3 else (i * (23 - DG0)) // len(D)))] += d
        lt = late.get(st, [])
        assert len(lt) <= 24
        for i, x in enumerate(lt):
            gaps[i].append(x)
            if x.startswith("buffer_"): vm.issue("late")
        for i, m in enumerate(M):
            a(m)
            for x in gaps[i]:
                if "--xnodma" in sys.argv and x.endswith("lds") and st > 3: continue
                if "--xnord" in sys.argv and x.startswith("ds_read") and st > 3: continue
                a(x)

AS = [8, 24, 40, 56]
AO = {'a': 224, 'b': 240}
AQ = {('a',0): 104, ('a',1): 108, ('b',0): 112, ('b',1): 116}
AC = {'a': 120, 'b': 136}
AK = [[152, 156], [160, 164]]
AV = [[168, 172], [176, 180]]
AL = {'a': 184, 'b': 188}
ASEL = 192; AIDX = 196; AADDR = 197; AVO = 198; AWD = 199
AFL = 200
AFA = 202
V_VS, V_VL = 205, 207
AADK, AVK = 204, 206
V_FA = 221
S_CH2 = 22
P_WR = [212, 213, 214, 215]; P_OV = [[216, 217], [218, 219]]; V_FA2 = 220
S_OSO = 64 if not STAMP else 66
def qk1(Y, kb, q, c=None): return f"v_mfma_f32_32x32x16_bf16 {v(Y,16)}, {v(AK[kb][0],4)}, {v(AQ[(q,0)],4)}, {v(AC[q],16) if c is None else c}"
def qk2(Y, kb, q): return f"v_mfma_f32_32x32x16_bf16 {v(Y,16)}, {v(AK[kb][1],4)}, {v(AQ[(q,1)],4)}, {v(Y,16)}"
def pv(Z, h, vb, q): return f"v_smfmac_f32_32x32x32_bf16 {v(AO[q],16)}, {v(AV[vb][h],4)}, {v(Z+8*h,8)}, v{AIDX}"
def sm(Z, h, q): return f"v_smfmac_f32_16x16x64_bf16 {v(AL[q],4)}, {v(ASEL,4)}, {v(Z+8*h,8)}, v{AIDX}"
def srd(d, lo, hi, off, nrec):
    return [f"s_add_u32 s{d}, s{lo}, s{off}\ns_addc_u32 s{d+1}, s{hi}, 0", f"s_and_b32 s{d+1}, s{d+1}, 0xffff", f"s_mov_b32 s{d+2}, {nrec}", f"s_mov_b32 s{d+3}, 0x00020000"]

CODEPF = opt('codepf', 12)
def late_setup():
    L = {}
    if CODEPF:
        L[CODEPF] = ["s_getpc_b64 s[26:27]\nLpcref:", f"s_and_b32 s28, s{S_W}, 3", "s_lshl_b32 s28, s28, 13", "v_lshlrev_b32 v2, 7, v1", "v_add_u32 v2, s28, v2",
                     "v_min_u32 v2, Lcode_end-Lgemm_end-4, v2", "s_add_u32 s26, s26, Lgemm_end-Lpcref\ns_addc_u32 s27, s27, 0", "v_mov_b32 v3, s27",
                     "v_add_co_u32 v2, s[28:29], s26, v2", "s_nop 1", "v_addc_co_u32 v3, s[28:29], 0, v3, s[28:29]",
                     "\n".join(if_vcc([f"global_load_dword v{V_NON+1}, v[2:3], off"], False))]
    L[18] = [f"v_mov_b32 v{AO['a']+i}, 0" for i in range(24)]
    L[19] = [f"v_mov_b32 v{AO['a']+24+i}, 0" for i in range(8)] + \
            [f"v_lshlrev_b32 v{AVO}, 4, v1", "v_and_b32 v2, 7, v1", f"v_lshlrev_b32 v{AFA}, 3, v2", f"s_lshr_b32 s26, s{S_W}, 2", "s_lshl_b32 s26, s26, 14",
             f"v_add_u32 v{AADDR}, s26, v{AVO}", f"v_mov_b32 v{AIDX}, 0xdddddddd",
             "v_bfe_u32 v2, v1, 2, 1", "v_mov_b32 v3, 0x3f803f80", "v_cmp_eq_u32 s[28:29], 0, v2", "s_nop 1",
             f"v_cndmask_b32 v{ASEL}, 0, v3, s[28:29]", f"v_cndmask_b32 v{ASEL+1}, 0, v3, s[28:29]", f"v_xor_b32 v{ASEL+2}, v3, v{ASEL}", f"v_xor_b32 v{ASEL+3}, v3, v{ASEL}"]
    L[20] = ["v_and_b32 v2, 15, v1", "v_lshrrev_b32 v4, 4, v1", "v_lshlrev_b32 v4, 9, v4", f"v_lshl_add_u32 v{V_VS}, v2, 4, v4",
             "v_bfe_u32 v2, v1, 2, 1", "v_bfe_u32 v3, v1, 3, 2", "v_and_b32 v4, 35, v1", "v_lshl_add_u32 v4, v2, 4, v4", "v_lshl_add_u32 v4, v3, 2, v4",
             f"v_lshlrev_b32 v{AVK}, 4, v4", f"v_sub_u32 v2, v{AADDR}, v{AVO}", f"v_add_u32 v{AADK}, v2, v{AVK}",
             f"s_and_b32 s26, s{S_W}, 2", "s_lshl_b32 s26, s26, 14", f"s_and_b32 s27, s{S_W}, 1", "s_lshl_b32 s27, s27, 13", "s_add_u32 s26, s26, s27",
             f"s_lshr_b32 s27, s{S_W}, 2", "s_lshl_b32 s27, s27, 14", "s_add_u32 s26, s26, s27", f"v_add_u32 v{V_VL}, s26, v{V_VS}"]
    L[21] = ["v_lshrrev_b32 v2, 3, v1", "v_and_b32 v3, 7, v1", "v_lshrrev_b32 v4, 4, v1", "v_lshlrev_b32 v4, 1, v4", "v_xor_b32 v4, v3, v4",
             "v_lshlrev_b32 v4, 4, v4", f"v_lshl_add_u32 v{AWD}, v2, 11, v4",
             f"s_cmp_eq_u32 s{S_B}, 0\ns_cselect_b32 s26, s36, s42\ns_cselect_b32 s27, s37, s43", f"s_lshl_b32 s30, s{S_HP}, 7", f"s_sub_u32 s31, {1024*2048}, s30"] \
            + srd(SRD_WO, 26, 27, 30, "s31") + ["s_mov_b32 s92, s46", "s_and_b32 s93, s47, 0xffff", "s_mov_b32 s94, 256", "s_mov_b32 s95, 0x00020000"]
    if WARMF:
        L[22] = [f"s_lshl_b32 s28, s{S_B}, 4", f"s_add_u32 s28, s28, s{S_HP}", "s_lshl_b32 s28, s28, 10", f"s_add_u32 s30, s28, {F1_OFF}",
                 f"s_lshl_b32 s28, s{S_B}, 3", f"s_add_u32 s28, s28, s{S_TM}", "s_lshl_b32 s28, s28, 11", f"s_add_u32 s31, s28, {F2_OFF}",
                 "s_mov_b32 s76, s48", "s_and_b32 s77, s49, 0xffff", f"s_mov_b32 s78, {34 << 20}", "s_mov_b32 s79, 0x00020000", "v_lshlrev_b32 v2, 7, v1",
                 "\n".join(if_vcc(["s_mov_b64 exec, 0xff", f"buffer_load_dword v{V_NON+1}, v2, s[76:79], s30 offen sc1",
                                   "s_mov_b64 exec, 0xffff", f"buffer_load_dword v{V_NON+1}, v2, s[76:79], s31 offen sc1", "s_mov_b64 exec, -1"], False))]
    L[27] = [f"v_mov_b32 v{AL['a']+i}, 0" for i in range(8)] + \
            [f"s_lshl_b32 s26, s{S_B}, 5", f"s_lshl_b32 s27, s{S_HP}, 1", "s_add_u32 s26, s26, s27",
             f"s_and_b32 s28, s{S_W}, 3", "s_lshl_b32 s29, s28, 12", "s_lshl_b32 s30, s26, 18", "s_add_u32 s31, s30, s29", "s_sub_u32 s50, 524288, s29"] \
            + srd(SRD_KV, 48, 49, 31, "s50") + [f"s_lshr_b32 s27, s{S_W}, 2", "s_add_u32 s26, s26, s27", "s_lshl_b32 s30, s26, 18"]
    L[28] = [f"buffer_load_dwordx2 {v(V_NON,2)}, v{V_PD+1}, s[92:95], 0 offen sc1",
             f"s_mov_b32 s{S_WOI}, -1", f"s_lshl_b32 s{S_WOB}, s{S_W}, 14", f"s_lshl_b32 s27, s{S_W}, 10", f"s_add_u32 s{S_WOM}, s27, 65536",
             f"s_lshl_b32 s{S_M0}, s{S_W}, 12", f"s_mov_b32 s{S_CIDX}, 16384", f"s_lshl_b32 s23, s{S_TM}, 15", f"s_lshr_b32 s51, s{S_W}, 1", f"s_mov_b32 s{S_EARLY}, 0"]
    L[29] = [f"s_lshl_b32 s27, s{S_TM}, 3", "s_lshl_b32 s28, s28, 1", "s_add_u32 s27, s27, s28", "s_lshl_b32 s29, s27, 12", "s_add_u32 s31, s30, s29"] \
            + srd(SRD_KVS, 48, 49, 31, 8192) + ["s_mov_b32 s50, 4096",
             f"s_lshl_b32 s28, s{S_B}, 22", "s_lshl_b32 s29, s27, 16", "s_add_u32 s31, s28, s29", "s_and_b32 s28, s26, 31", "s_lshl_b32 s28, s28, 10",
             "s_add_u32 s31, s31, s28", f"s_add_u32 s31, s31, {O_OFF}"] + srd(SRD_O, 48, 49, 31, 131072)
    L[30] = [f"s_lshl_b32 s28, s{S_B}, 4", f"s_add_u32 s28, s28, s{S_HP}", "s_lshl_b32 s28, s28, 10", f"s_add_u32 s31, s28, {F1_OFF}"] + srd(SRD_F, 48, 49, 31, 1024) \
            + [f"s_bitcmp0_b32 s{S_W}, 1\ns_cselect_b64 vcc, -1, 0", f"s_mov_b32 s26, {QSCALE}", f"s_mov_b32 s27, {QSCALE}"]
    L[23] = [f"s_lshl_b32 s28, s{S_B}, 3", f"s_add_u32 s28, s28, s{S_TM}", "s_lshl_b32 s28, s28, 11", f"s_add_u32 s30, s28, {F2_OFF}"] + srd(SRD_F2, 48, 49, 30, 2048) \
            + [f"s_lshl_b32 s28, s{S_B}, 22", f"s_lshl_b32 s29, s{S_TM}, 19", "s_add_u32 s30, s28, s29", f"s_lshl_b32 s29, s{S_W}, 16", "s_add_u32 s30, s30, s29",
               f"s_add_u32 s30, s30, {O_OFF}"] + srd(SRD_OL, 48, 49, 30, 65536)
    L[24] = [f"s_lshl_b32 s28, s{S_TM}, 20", f"s_lshl_b32 s29, s{S_W}, 17", "s_add_u32 s30, s28, s29", f"s_lshl_b32 s29, s{S_B}, 11", "s_add_u32 s30, s30, s29",
             f"s_lshl_b32 s29, s{S_HP}, 7", "s_add_u32 s30, s30, s29", f"s_sub_u32 s31, {2048*4096}, s30"] + srd(SRD_OUT, 44, 45, 30, "s31") \
            + [f"s_and_b32 s26, s{S_HP}, 8", "s_lshl_b32 s27, s26, 11", f"v_add_u32 v{P_OV[0][0]}, s27, v{AVO}", f"v_add_u32 v{P_OV[0][1]}, 32768, v{P_OV[0][0]}",
               f"v_xor_b32 v{P_OV[1][0]}, 16384, v{P_OV[0][0]}", f"v_xor_b32 v{P_OV[1][1]}, 16384, v{P_OV[0][1]}",
               "s_lshl_b32 s26, s26, 4", f"s_lshr_b32 s27, s{S_W}, 1", "s_lshl_b32 s27, s27, 9", f"s_add_u32 s{S_FL0}, s26, s27"]
    L[25] = [x for j in range(8) for x in (f"s_add_u32 s26, s{S_HP}, {j}", "s_and_b32 s26, s26, 7", f"s_lshl_b32 s{S_OSO+j}, s26, 11")]
    L[26] = [f"s_and_b32 s26, s{S_W}, 3", "s_lshl_b32 s26, s26, 6", f"s_lshr_b32 s27, s{S_W}, 2", "s_lshl_b32 s27, s27, 5", "s_add_u32 s26, s26, s27",
             f"s_and_b32 s27, s{S_HP}, 8", f"s_add_u32 s27, s27, s{S_HP}", "s_add_u32 s26, s26, s27", "s_lshl_b32 s26, s26, 3", f"v_mov_b32 v{V_FA2}, s26",
             "v_and_b32 v4, 15, v1", "v_lshlrev_b32 v4, 4, v4", "v_bfe_u32 v5, v1, 4, 1", "v_lshl_add_u32 v4, v5, 15, v4", "v_lshrrev_b32 v5, 5, v1", "v_lshl_add_u32 v6, v5, 8, v4"]
    L[30] += ["v_lshrrev_b32 v4, 4, v1", "v_bfe_u32 v2, v1, 2, 2", "v_and_b32 v3, 3, v1", "v_and_b32 v5, 1, v4", "v_lshrrev_b32 v4, 1, v4", "v_lshl_add_u32 v7, v5, 2, v2",
              "v_lshl_add_u32 v4, v4, 4, v7", "v_lshrrev_b32 v7, 1, v7", "v_lshlrev_b32 v7, 5, v7", "v_lshl_add_u32 v7, v3, 3, v7", "v_lshl_add_u32 v7, v4, 7, v7",
              f"v_add_u32 v{P_WR[0]}, 65536, v7\nv_xor_b32 v{P_WR[1]}, 32, v{P_WR[0]}", f"v_xor_b32 v{P_WR[2]}, 64, v{P_WR[0]}\nv_xor_b32 v{P_WR[3]}, 96, v{P_WR[0]}"]
    L[31] = []
    return L

UNITS = [('V',0,0,80), ('V',0,1,84), ('V',1,0,72), ('V',1,1,76), ('K',1,1,88), ('K',1,0,92), ('K',0,0,96), ('K',0,1,100)]
def unit_src(u):
    k, T, h, d = UNITS[u]
    return [(2*T, 4+h), (2*T+1, 4+h)] if k == 'V' else [(2*T+h, 2), (2*T+h, 3)]
def cvt4(regs, d): return [f"v_cvt_pk_bf16_f32 v{d+i}, v{regs[2*i]}, v{regs[2*i+1]}" for i in range(4)]
def unit_cvt(u):
    k, T, h, d = UNITS[u]
    regs = [acc(*x) + i for x in unit_src(u) for i in range(4)]
    w = f"ds_write_b128 v{V_VL}, {v(d,4)} offset:{T*4096 + (2048 if k == 'V' else 0) + h*256}"
    return cvt4(regs, d) + [w]
def kv_store(u):
    k, T, h, d = UNITS[u]
    return f"buffer_store_dwordx4 {v(d,4)}, v{V_VS}, s[{SRD_KVS}:{SRD_KVS+3}], {'0' if T == 0 else 's50'} offen offset:{(2048 if k == 'V' else 0) + h*256}{SC1}"
def q_cvt(tt):
    return [f"v_pk_mul_f32 {v(acc(tt,0)+2*i,2)}, {v(acc(tt,0)+2*i,2)}, s[26:27]" for i in range(4)] + cvt4([acc(tt,0)+i for i in range(8)], AQ[("ab"[tt >> 1], tt & 1)])

def last_step(a, sal):
    order = [(3, 0), (3, 1)] + [x for u in range(8) for x in unit_src(u)] + [(tt, f) for tt in range(3) for f in range(2)]
    gaps = [[] for _ in range(24)]
    gaps[10] += q_cvt(3)
    for u in range(6): gaps[12 + 2*u] += unit_cvt(u) + (if_vcc([kv_store(u - 1), kv_store(u)]) if u & 1 else [])
    for i, (tt, f) in enumerate(order):
        d = acc(tt, f)
        A, B = (WF[1][f], XF[1][tt]) if f < 4 else (XF[1][tt], WF[1][f])
        a(f"v_mfma_f32_16x16x32_bf16 {v(d,4)}, {v(A,4)}, {v(B,4)}, {v(d,4)}")
        for x in gaps[i]: a(x)
    for x in unit_cvt(6) + unit_cvt(7) + if_vcc([kv_store(6), kv_store(7)]): a(x)

def transition_ab(a):
    a(f"s_cmp_lt_u32 s{S_W}, 4\ns_setprio 1\ns_cbranch_scc0 Lyng0\ns_setprio 2\nLyng0:")
    a("s_waitcnt lgkmcnt(0)\ns_barrier")
    for j in range(2): a(f"ds_read_b128 {v(AK[0][j],4)}, v{AADK} offset:{1024*j}")
    for j in range(2): a(f"ds_read_b128 {v(AV[0][j],4)}, v{AADDR} offset:{2048+1024*j}")
    for tt in range(3):
        for x in q_cvt(tt): a(x)
    a("s_nop 1")
    for q in "ab":
        for i in range(4): a(f"v_permlane16_swap_b32 v{AQ[(q,0)]+i}, v{AQ[(q,1)]+i}")
    for q in "ab":
        for i in range(4): a(f"v_permlane32_swap_b32 v{AQ[(q,0)]+i}, v{AQ[(q,1)]+i}")
    a("s_waitcnt lgkmcnt(2)")
    a(qk1(AS[0],0,'a',"0")); a(qk2(AS[0],0,'a')); a(qk1(AS[1],0,'b',"0")); a(qk2(AS[1],0,'b'))
    a(f"""
    v_readfirstlane_b32 s{S_NONCE}, v{V_NON}
    v_readfirstlane_b32 s{S_NONCE+1}, v{V_NON+1}
    s_lshl_b32 s26, s{S_TM}, 4
    s_add_u32 s26, s26, s{S_W}
    s_lshl_b32 s28, s26, 3
    s_nop 3
    s_cmp_eq_u32 s{S_NONCE}, 0
    s_cbranch_scc1 Lnonce_spin
    Lnonce_ok:
    v_mov_b32 v{V_FA}, s28
    s_nop 0
    """)
    rowmax16(a, AS[0], 2, 3)
    rowmax16(a, AS[1], 4, 5)
    for i in range(8): a(f"v_pk_mul_f32 {v(AC['a']+2*i,2)}, v[2:3], -1.0 op_sel_hi:[0,0]")
    a(f"v_pk_mul_f32 {v(AC['b'],2)}, v[4:5], -1.0 op_sel_hi:[0,0]\nv_pk_mul_f32 {v(AC['b']+2,2)}, v[4:5], -1.0 op_sel_hi:[0,0]")
    a(qk1(AS[0],0,'a')); a(qk2(AS[0],0,'a'))
    for i in range(2, 8): a(f"v_pk_mul_f32 {v(AC['b']+2*i,2)}, v[4:5], -1.0 op_sel_hi:[0,0]")
    a("s_nop 4")

def rowmax16(a, S, m, t):
    a(f"v_max3_f32 v{m}, v{S}, v{S+1}, v{S+2}")
    for i in range(3, 15, 2): a(f"v_max3_f32 v{m}, v{m}, v{S+i}, v{S+i+1}")
    a(f"v_max_f32 v{m}, v{m}, v{S+15}")
    a(f"v_mov_b32 v{t}, v{m}\ns_nop 1\nv_permlane32_swap_b32 v{m}, v{t}\ns_nop 0\nv_max_f32 v{m}, v{m}, v{t}")

def attn_half(a, t, q, extra=None, skipz=False):
    hs = (2*t + (q == 'b')) % 4
    oq = 'b' if q == 'a' else 'a'
    X = AS[hs]; Y = AS[(hs+1) % 4]; Z = AS[(hs-1) % 4]
    kb = t % 2 if q == 'a' else (t+1) % 2
    vb = (t-1) % 2 if q == 'a' else t % 2
    nt = (t + 1) % 4
    M = {'Q1': qk1(Y,kb,oq), 'Q2': qk2(Y,kb,oq), 'P1': pv(Z,0,vb,oq), 'S1': sm(Z,0,oq), 'P2': pv(Z,1,vb,oq), 'S2': sm(Z,1,oq)}
    e = 0
    for tok in "Q1 W0 3 S1 L0 2 Q2 3 P1 3 S2 L1 2 P2 W1 3".split():
        if tok in M:
            if not (skipz and tok[0] != 'Q'): a(M[tok])
        elif tok in ('L0', 'L1'):
            j = int(tok[1])
            if q == 'a': a(f"ds_read_b128 {v(AK[(t+1)%2][j],4)}, v{AADK} offset:{nt*4096 + 1024*j}")
            else: a(f"ds_read_b128 {v(AV[(t+1)%2][j],4)}, v{AADDR} offset:{nt*4096 + 2048 + 1024*j}")
        elif tok == 'W0':
            if q == 'b': a("s_waitcnt lgkmcnt(0)")
        elif tok == 'W1':
            if q == 'a': a("s_waitcnt lgkmcnt(1)")
        else:
            for _ in range(int(tok)):
                a(f"v_exp_f32 v{X+e}, v{X+e}"); e += 1
        if extra and tok in extra:
            for x in extra[tok]: a(x)
    assert e == 16

def kv_dma(h): return [f"buffer_load_dwordx4 v{AVO}, s[{SRD_KV}:{SRD_KV+3}], s{S_CH if h == 0 else S_CH2} offen offset:{1024*i}{SC1} lds" for i in range(4)]
S_FSO = 24
def flag_load(srd=None):
    srd = SRD_F if srd is None else srd
    return f"buffer_load_dwordx2 {v(AFL,2)}, v{AFA}, s[{srd}:{srd+3}], s{S_FSO} offen sc1"
S_EARLY = 41
DEPTH = opt("odepth", 5)
OSL = [72, 80, 88, 96, 136, 144, 152, 160, 8, 16, 24, 32, 224, 232, 240, 248]
def oslot(p, tt): return OSL[p % 16] + 4 * tt
def oload_ins(p):
    return [f"buffer_load_dwordx4 {v(oslot(p, tt),4)}, v{P_OV[(p>>3)&1][tt]}, s[{SRD_OL}:{SRD_OL+3}], s{S_OSO + p%8} offen offset:{(p>>4)*1024}{SC1}" for tt in range(2)]
def chunk_scalars():
    return [f"s_add_u32 s{S_CIDX}, s{S_CIDX}, 16384", f"s_xor_b32 s{S_CH}, s{S_CIDX}, s23", f"s_add_u32 s{S_CH2}, s{S_CH}, 262144",
            f"s_bfe_u32 s26, s{S_CH}, 0x1000e", "s_lshl_b32 s26, s26, 1", f"s_add_u32 s{S_FIDX}, s26, s51"]
def line_cur(): return [f"s_lshr_b32 s26, s{S_CH}, 15", f"s_lshl_b32 s{S_FSO}, s26, 7"]
def line_next(): return [f"s_add_u32 s26, s{S_CIDX}, 16384", "s_xor_b32 s26, s26, s23", "s_bfe_u32 s26, s26, 0x3000f", f"s_lshl_b32 s{S_FSO}, s26, 7"]
def mask_test():
    return [f"s_lshr_b32 s26, s{S_MASK}, s{S_FIDX}", "s_andn2_b32 s26, 0x11, s26"]
def flag_cmp(): return f"v_cmp_eq_u64 s[{S_MASK}:{S_MASK+1}], s[{S_NONCE}:{S_NONCE+1}], {v(AFL,2)}"
def spin(a, name, test, lowprio=False):
    if lowprio:
        a(f"""
        {name}:
        s_mov_b32 s{S_SPIN}, {SPIN_LIMIT}
        {name}_l:
        {flag_load()}
        s_waitcnt vmcnt(0)
        {flag_cmp()}
        s_sub_u32 s{S_SPIN}, s{S_SPIN}, 1
        s_cbranch_scc1 {name}_x
        """)
        for x in test: a(x)
        a(f"s_cbranch_scc0 {name}_x\ns_setprio 0\ns_sleep {SLEEP}\ns_branch {name}_l\n{name}_x:\ns_cbranch_vccz {name}_r\ns_setprio 2\ns_branch {name}_r")
        return
    a(f"""
    {name}:
    s_mov_b32 s{S_SPIN}, {SPIN_LIMIT}
    {name}_l:
    {flag_load()}
    s_waitcnt vmcnt(0)
    {flag_cmp()}
    s_sub_u32 s{S_SPIN}, s{S_SPIN}, 1
    s_cbranch_scc1 {name}_r
    """)
    for x in test: a(x)
    a(f"s_cbranch_scc0 {name}_r\ns_sleep {SLEEP}\ns_branch {name}_l")
def spin_flags(a, name): spin(a, name, mask_test())
def wo_dma():
    return [f"s_add_u32 s{S_WOI}, s{S_WOI}, 1", f"s_add_u32 s26, s{S_WOI}, s{S_HP}", "s_and_b32 s26, s26, 7",
            f"s_xor_b32 s27, s{S_WOI}, s{S_HP}", "s_and_b32 s27, s27, 8", "s_or_b32 s26, s26, s27", "s_lshl_b32 s26, s26, 1",
            f"s_lshr_b32 s27, s{S_WOI}, 4", "s_add_u32 s26, s26, s27", "s_lshl_b32 s26, s26, 16", f"s_mov_b32 m0, s{S_WOM}",
            f"s_add_u32 s{S_WOS}, s26, s{S_WOB}", f"s_add_u32 s{S_WOM}, s{S_WOM}, 4096",
            f"buffer_load_dwordx4 v{AWD}, s[{SRD_WO}:{SRD_WO+3}], s{S_WOS} offen{NTW} lds"]
TOUCH = "--touch" in sys.argv
WARMF = "--nowarmf" not in sys.argv
def publish(fa=V_FA): return ["s_waitcnt vmcnt(0)", "s_mov_b64 exec, 1", f"buffer_store_dwordx2 {v(V_NON,2)}, v{fa}, s[{SRD_F}:{SRD_F+3}], 0 offen sc1", "s_mov_b64 exec, -1"]
def wo_rows(n):
    o = []
    for _ in range(n): o += wo_dma()
    return o
EARLY = '--noearly' not in sys.argv
XT = opt('xt', 1)
LST = opt("lst", 1)
def tailpf():
    if not opt("codepf2", 2): return []
    return [f"s_cmp_eq_u32 s{S_CNT}, {opt('codepf2', 2)}", "s_cbranch_scc0 Lnopf2", "s_getpc_b64 s[26:27]", "Lpcref2:", f"s_lshl_b32 s28, s{S_W}, 13",
            "v_lshlrev_b32 v2, 7, v1", "v_add_u32 v2, s28, v2", "v_min_u32 v2, Lattn_fallback-Lattn_j-4, v2", "s_add_u32 s26, s26, Lattn_j-Lpcref2", "s_addc_u32 s27, s27, 0",
            "v_mov_b32 v3, s27", "v_add_co_u32 v2, s[28:29], s26, v2", "s_nop 1", "v_addc_co_u32 v3, s[28:29], 0, v3, s[28:29]", "global_load_dword v4, v[2:3], off", "Lnopf2:"]
def attn_chunk(a, kind):
    tog = f"v_xor_b32 v{AADDR}, 32768, v{AADDR}\nv_xor_b32 v{AADK}, 32768, v{AADK}"
    for t in range(4):
        ea, eb = {}, {}
        if kind in ('c0', 'c1'): stamp(a, None, "c")
        if kind == 'c1' and t == opt("polt", 1) + 1: pass
        if kind == 'c1' and t == opt("polt", 1):
            for x in old_only(chunk_scalars() + line_cur() + ["s_branch Lspin_c1a", "Lspin_c1a_r:", f"s_mov_b32 m0, s{S_M0}", "s_nop 0"] + kv_dma(0)
                              + [f"s_add_u32 m0, s{S_M0}, 16384", "s_nop 0"] + kv_dma(1)): a(x)
            stamp(a, None, "c")
        if kind == 'c14' and t == XT:
            for x in if_vcc(["s_barrier"], False): a(x)
        if kind == 'c0':
            for k, e in enumerate((ea, eb)):
                j = 2*t + k - LST
                if 0 <= j < 4: e['P1'] = if_vcc([kv_store(2*j), kv_store(2*j + 1)], False)
        if kind == 'c1' and t == 0:
            eb['P2'] = [f"s_and_b32 s26, s{S_W}, 6", "s_cmp_eq_u32 s26, 2", "s_cbranch_scc0 Lpub2"] + publish() + ["Lpub2:"]
        if kind == 'c14' and t == 0:
            ea['Q2'] = old_only([f"s_lshl_b32 s28, s{S_W}, 1", f"s_add_u32 s28, s28, s{S_HP}", "v_lshrrev_b32 v2, 5, v1", "v_add_u32 v2, s28, v2", "v_and_b32 v2, 7, v2",
                                 f"s_and_b32 s28, s{S_HP}, 8", "s_xor_b32 s28, s28, 8", "v_or_b32 v2, s28, v2", "v_lshlrev_b32 v2, 17, v2", "v_and_b32 v3, 31, v1",
                                 "v_lshl_add_u32 v2, v3, 11, v2", "s_mov_b32 s28, 65536", f"buffer_load_dword v3, v2, s[{SRD_WO}:{SRD_WO+3}], s28 offen"])
        if kind == 'c15' and EARLY:
            if t == 2: ea['Q2'] = if_vcc([f"s_mov_b32 s{S_FSO}, s{S_FL0}", flag_load(SRD_F2)], False)
            if t == 3: ea['Q2'] = if_vcc(["s_waitcnt vmcnt(0)", flag_cmp(), "s_nop 0", f"s_cmp_lg_u32 s{S_MASK}, -1", "s_cbranch_scc1 Lnoearly", f"s_mov_b32 s{S_EARLY}, 1"]
                                         + [x for p in range(min(DEPTH, 4)) for x in oload_ins(p)] + ["Lnoearly:"], False)
        if t == 3:
            if kind == 'c0':
                stamp(a); a("s_waitcnt lgkmcnt(0)\ns_barrier"); stamp(a)
                for x in [f"s_cmp_lt_u32 s{S_W}, 4", "s_cselect_b64 vcc, -1, 0", f"s_and_b32 s26, s{S_W}, 6", "s_cmp_eq_u32 s26, 2", "s_cbranch_scc1 Lpub1"] + publish() + ["Lpub1:"]: a(x)
                stamp(a)
                ea['Q1'] = [tog]
            elif kind == 'c14':
                ea['Q1'] = [f"v_add_u32 v{AADDR}, 131072, v{AADDR}\nv_add_u32 v{AADK}, 131072, v{AADK}"]
            elif kind != 'c15':
                stamp(a); a("s_waitcnt vmcnt(0) lgkmcnt(0)"); stamp(a)
                if not ("--xnobar" in sys.argv and kind == 'loop'): a("s_barrier")
                stamp(a)
                if kind in ('c1', 'loop'):
                    nm = "Lspin_" + kind
                    ea = {'Q1': [tog],
                          'Q2': old_only([flag_cmp(), f"s_xor_b32 s{S_M0}, s{S_M0}, 32768"] + chunk_scalars() + [f"s_mov_b32 m0, s{S_M0}"] + mask_test()
                                         + [f"s_cbranch_scc1 {nm}", f"{nm}_r:"] + kv_dma(0)),
                          'P2': old_only([f"s_add_u32 m0, s{S_M0}, 16384", "s_nop 0"] + kv_dma(1) + line_next() + [flag_load()])}
                    if kind == 'loop':
                        eb = {'Q2': old_only([f"s_cmp_gt_u32 s{S_CNT}, 3", "s_cbranch_scc0 Lnowo"] + wo_rows(2) + ["Lnowo:"] + tailpf() + [f"s_cmp_eq_u32 s{S_CNT}, 1", "s_cbranch_scc0 Lno15"]
                                             + chunk_scalars() + [f"s_add_u32 m0, s{S_M0}, 131072"] + mask_test() + ["s_cbranch_scc1 Lspin_15", "Lspin_15_r:"] + kv_dma(0)
                                             + [f"s_add_u32 m0, s{S_M0}, {131072 + 16384}", "s_nop 0"] + kv_dma(1) + ["Lno15:"]),
                              'P2': [f"s_sub_u32 s{S_CNT}, s{S_CNT}, 1", f"s_cmp_lg_u32 s{S_CNT}, 0"]}
                elif kind == 'c13':
                    ea = {'Q1': [tog], 'Q2': old_only([f"s_lshl_b32 s{S_WOM}, s{S_W}, 10", f"s_add_u32 s{S_WOM}, s{S_WOM}, 32768"] + wo_rows(3)), 'P2': old_only(wo_rows(3))}
                    eb = {'Q2': old_only(wo_rows(2))}
        if "--xnoex" in sys.argv and kind == 'loop' and t == 3: ea = {'Q1': [tog]}; eb = {'P2': eb['P2']}
        attn_half(a, t, 'a', ea, skipz=(kind == 'c0' and t == 0)); attn_half(a, t, 'b', eb)

def attention(a):
    attn_chunk(a, 'c0')
    attn_chunk(a, 'c1')
    a(f"s_mov_b32 s{S_CNT}, 11")
    stamp(a, None, "l")
    SPLIT = opt("split", 1)
    def tail():
        stamp(a, None, "l")
        attn_chunk(a, 'c13')
        attn_chunk(a, 'c14')
        attn_chunk(a, 'c15')
    if SPLIT:
        a("s_cbranch_vccz Lattn_y")
        for role in (True, False):
            ROLE[0] = role
            nm = "Lattn_loop" if role else "Lattn_loop_y"
            if not role: a.label("Lattn_y")
            a(".p2align 6")
            a.label(nm)
            attn_chunk(a, 'loop')
            a(f"s_cbranch_scc1 {nm}")
            if SPLIT == 2: tail()
            if role: a("s_branch Lattn_j")
        ROLE[0] = None
        a.label("Lattn_j")
        if SPLIT == 1: tail()
    else:
        a(".p2align 6")
        a.label("Lattn_loop")
        attn_chunk(a, 'loop')
        a("s_cbranch_scc1 Lattn_loop")
        tail()
    a("s_nop 1")
    stamp(a, 4)
    a(pv(AS[3],0,1,'b')); a(sm(AS[3],0,'b')); a(pv(AS[3],1,1,'b')); a(sm(AS[3],1,'b'))
    a(f"""
    s_mov_b32 s26, 0x4e800000        ; 2^30
    s_mov_b32 s27, 65536
    s_nop 5
    v_cmp_nge_f32 vcc, s26, v{AL['a']}
    v_cmp_nge_f32 s[28:29], s26, v{AL['b']}
    s_nop 0
    s_or_b64 vcc, vcc, s[28:29]
    s_cbranch_vccnz Lattn_fallback
    Lattn_fin:
    """)
    stamp(a, None, "e")
    a(f"""
    v_rcp_f32 v2, v{AL['a']}
    v_rcp_f32 v4, v{AL['b']}
    """)
    for qi, q in enumerate('ab'):
        for u in range(2):
            for i in range(4): a(f"v_pk_mul_f32 {v(AO[q]+8*u+2*i,2)}, {v(AO[q]+8*u+2*i,2)}, {v(2+2*qi,2)} op_sel_hi:[1,0]")
            d = AS[0] + 4*(2*qi+u)
            for x in cvt4([AO[q]+8*u+i for i in range(8)], d): a(x)
            a(f"buffer_store_dwordx4 {v(d,4)}, v6, s[{SRD_O}:{SRD_O+3}], {'0' if qi==0 else 's27'} offen offset:{512*u}{SC1}")

def fallback(a):
    a.label("Lattn_fallback")
    a(f"""
    s_waitcnt vmcnt(0) lgkmcnt(0)
    s_lshl_b32 s26, s{S_B}, 5
    s_lshl_b32 s28, s{S_HP}, 1
    s_add_u32 s26, s26, s28
    s_lshr_b32 s28, s{S_W}, 2
    s_add_u32 s26, s26, s28
    s_lshl_b32 s30, s26, 18
    """)
    make_srd(a, SRD_KV, 48, 49, 30, 262144)
    a(f"""
    s_mov_b32 s{S_SPIN}, {SPIN_LIMIT}
    v_lshrrev_b32 v2, 3, v1
    v_lshl_add_u32 v2, v2, 7, v{AFA}
    Lfb_poll:
    buffer_load_dwordx2 {v(AFL,2)}, v2, s[{SRD_F}:{SRD_F+3}], 0 offen sc1
    s_waitcnt vmcnt(0)
    v_cmp_eq_u64 vcc, s[{S_NONCE}:{S_NONCE+1}], {v(AFL,2)}
    s_sub_u32 s{S_SPIN}, s{S_SPIN}, 1
    s_cbranch_scc1 Lfb_go
    s_cmp_eq_u64 vcc, -1
    s_cbranch_scc0 Lfb_poll
    Lfb_go:
    """)
    for r in list(range(AO['a'], AO['a']+32)) + list(range(AL['a'], AL['a']+8)): a(f"v_mov_b32 v{r}, 0")
    Mr = {'a': AC['a'], 'b': AC['b']}
    a(f"v_mov_b32 v{Mr['a']}, 0xff800000\nv_mov_b32 v{Mr['b']}, 0xff800000\ns_mov_b32 s26, 0")
    a.label("Lfb_loop")
    for j in range(2): a(f"buffer_load_dwordx4 {v(AK[0][j],4)}, v{AVK}, s[{SRD_KV}:{SRD_KV+3}], s26 offen offset:{1024*j} sc1")
    for j in range(2): a(f"buffer_load_dwordx4 {v(AV[0][j],4)}, v{AVO}, s[{SRD_KV}:{SRD_KV+3}], s26 offen offset:{2048+1024*j} sc1")
    a("s_waitcnt vmcnt(0)")
    for q in 'ab':
        S = AS[0]
        a(qk1(S,0,q,"0")); a(qk2(S,0,q)); a("s_nop 15")
        rowmax16(a, S, 2, 3)
        a(f"v_max_f32 v2, v2, v{Mr[q]}\nv_sub_f32 v3, v{Mr[q]}, v2\nv_exp_f32 v3, v3\nv_mov_b32 v{Mr[q]}, v2")
        for i in range(16): a(f"v_sub_f32 v{S+i}, v{S+i}, v2")
        for i in range(16): a(f"v_exp_f32 v{S+i}, v{S+i}")
        for i in range(16): a(f"v_mul_f32 v{AO[q]+i}, v3, v{AO[q]+i}")
        for i in range(4): a(f"v_mul_f32 v{AL[q]+i}, v3, v{AL[q]+i}")
        a("s_nop 1")
        a(pv(S,0,0,q)); a(sm(S,0,q)); a(pv(S,1,0,q)); a(sm(S,1,q))
        a("s_nop 15")
    a("s_add_u32 s26, s26, 4096\ns_cmp_lt_u32 s26, 262144\ns_cbranch_scc1 Lfb_loop\ns_branch Lattn_fin")

PACC = 40
PWF = [104, 120]
POF = 168
POLLS = []
def proj_body(a, old):
    vm = VmTrack(); fpos = {}
    R = "o" if old else "y"
    def wreads(p):
        off = (p if p < 16 else p - 16 + 8 if p < 24 else (p - 24) % 4) * 4096
        return [f"ds_read_b64_tr_b16 {v(PWF[p&1]+4*ct+2*h,2)}, v{P_WR[ct]} offset:{off + h*1024}" for ct in range(4) for h in range(2)]
    def check(g, hi=False):
        nm = f"Lpoll{R}{g}"; POLLS.append((nm, hi))
        return [f"s_cmp_lg_u32 s{S_MASK}, -1", f"s_cbranch_scc1 {nm}", f"{nm}_r:"]
    def setline(g): return f"s_xor_b32 s{S_FSO}, s{S_FL0}, {(g & 1) * 128 + (g >> 1) * 256}"
    def force(g, hi=False): return [f"s_mov_b32 s{S_MASK}, 0", setline(g)] + check(g, hi)
    def oload(p):
        vm.issue(("O", p)); vm.issue(("O", p))
        return oload_ins(p)
    PX, YX3 = opt("px", 10), opt("yx3", 5)
    if old:
        a("s_waitcnt vmcnt(4)\ns_barrier")
        stamp(a, None, "e")
        for x in publish(V_FA2): a(x)
        stamp(a, 5)
        for x in [f"s_lshl_b32 s{S_WOM}, s{S_W}, 10"] + wo_rows(4) + [f"s_add_u32 s{S_WOM}, s{S_WOM}, {131072 - 16384}"] + wo_rows(4) + ["s_waitcnt vmcnt(8)"]: a(x)
        OPRE = opt("opre", 6)
        if opt("olow", 1): a("s_setprio 0")
        for p in range(OPRE):
            if p % 8 == 0:
                for x in force(p // 8, not opt("olow", 1)): a(x)
            for x in oload(p): a(x)
        a("s_setprio 0")
        nxt = OPRE
    else:
        stamp(a, None, "e")
        YPUB = opt("ypub", 2)
        if YPUB < 0:
            for x in publish(V_FA2): a(x)
        a(f"s_setprio {opt('yprio', 1)}")
        stamp(a, 5)
        a(f"s_cmp_eq_u32 s{S_EARLY}, 1\ns_cbranch_scc1 Learly")
        for x in force(0): a(x)
        for p in range(4):
            for x in oload(p): a(x)
        a.label("Learly")
        spos = len(vm.ops)
        for p in range(4, DEPTH):
            for x in oload(p): a(x)
        nxt = DEPTH
    for x in wreads(0): a(x)
    stamp(a, 6)
    for p in range(32):
        if p + 1 == 16:
            for ct in range(4): a(f"v_add_u32 v{P_WR[ct]}, {-65536 & 0xffffffff}, v{P_WR[ct]}")
        if p + 1 == 28:
            for ct in range(4): a(f"v_add_u32 v{P_WR[ct]}, 131072, v{P_WR[ct]}")
        wc = vm.wait_count({('O', p)})
        if not old and YPUB >= 0 and p < 4:
            a(f"s_cmp_eq_u32 s{S_EARLY}, 1\ns_cbranch_scc1 Lw{p}a\ns_waitcnt vmcnt({wc})\nLw{p}a:\ns_waitcnt vmcnt({wc + 4}) lgkmcnt(0)")
        else:
            a(f"s_waitcnt vmcnt({wc}) lgkmcnt(0)")
        if not old and p == YPUB:
            for x in [f"s_waitcnt vmcnt({len(vm.ops) - spos})"] + publish(V_FA2)[1:]: a(x)
        gaps = [[] for _ in range(8)]
        for i, r in enumerate(wreads(p + 1) if p + 1 < 32 else []): gaps[i // 2].append(r)
        if not old and p == YX3: gaps[0].append("s_barrier")
        todo = []
        if old:
            todo = list(range(nxt, min(32 if p >= PX else 16, nxt + 2, 16 + p, p + 1 + opt("odold", 6))))
        elif nxt < 32: todo = [nxt]
        gi = 4
        for n in todo:
            if n % 8 == 0:
                g = n // 8
                if old and g == 2: gaps[gi] += ["s_barrier"] + force(g)
                elif g in fpos: gaps[gi] += [f"s_waitcnt vmcnt({len(vm.ops) - fpos[g]})", flag_cmp(), "s_nop 0"] + check(g)
                else: gaps[gi] += force(g)
            o = oload(n)
            gaps[gi].append(o[0]); gaps[gi + 1].append(o[1]); gi += 2
            if (n + 3) % 8 == 0 and n + 3 < 32:
                g = (n + 3) // 8
                gaps[gi - 1] += [setline(g), flag_load()]
                fpos[g] = len(vm.ops)
            nxt = n + 1
        n = 0
        for tt in range(2):
            for ct in (range(4) if tt == 0 else range(3, -1, -1)):
                d = PACC + (tt*4+ct)*4
                a(f"v_mfma_f32_16x16x32_bf16 {v(d,4)}, {v(PWF[p&1]+4*ct,4)}, {v(oslot(p, tt),4)}, {'0' if p==0 else v(d,4)}")
                for x in gaps[n]: a(x)
                n += 1
        if p % 4 == 3: stamp(a, None, "p")
    assert nxt == 32

def proj(a):
    a(f"s_mov_b64 s[{SRD_F}:{SRD_F+1}], s[{SRD_F2}:{SRD_F2+1}]\ns_mov_b32 s{SRD_F+2}, 2048")
    a(f"s_cmp_lt_u32 s{S_W}, 4\ns_cselect_b64 vcc, -1, 0\ns_cbranch_scc0 Lproj_y")
    proj_body(a, True)
    a("s_branch Lproj_e\nLproj_y:")
    proj_body(a, False)
    a.label("Lproj_e")
    a(f"""
    v_lshrrev_b32 v4, 4, v1
    v_and_b32 v2, 15, v1
    v_lshlrev_b32 v2, 12, v2
    v_and_b32 v3, 1, v4
    v_lshl_add_u32 v2, v3, 5, v2
    v_lshrrev_b32 v3, 1, v4
    v_lshl_add_u32 v2, v3, 4, v2
    s_mov_b32 s26, 65536
    s_nop 3
    """)
    for tt in range(2):
        for pr in range(2):
            d = POF + (tt*2+pr)*4
            for x in range(2):
                s0 = PACC + (tt*4+2*pr+x)*4
                a(f"v_cvt_pk_bf16_f32 v{d+2*x}, v{s0}, v{s0+1}\nv_cvt_pk_bf16_f32 v{d+2*x+1}, v{s0+2}, v{s0+3}")
            a(f"s_nop 1\nv_permlane16_swap_b32 v{d}, v{d+2}\nv_permlane16_swap_b32 v{d+1}, v{d+3}")
            a(f"buffer_store_dwordx4 {v(d,4)}, v2, s[{SRD_OUT}:{SRD_OUT+3}], {'0' if tt==0 else 's26'} offen offset:{64*pr}{' ' + opt('ofl', 'nt').replace('_', ' ') if opt('ofl', 'nt') else ''}")

def build():
    a = Asm()
    decode(a, "Lend")
    gemm1_setup_dma(a)
    stamp(a, 0); dbgstamp(a, 0)
    gemm1_main(a, late_setup())
    stamp(a, 2); dbgstamp(a, 2)
    transition_ab(a)
    stamp(a, 3)
    attention(a)
    dbgstamp(a, 3)
    proj(a)
    stamp(a, 7); dbgstamp(a, 4); dbgflush(a)
    stamp_flush(a, 8)
    a.label("Lend")
    a("s_endpgm")
    for nm in ("Lspin_c1a", "Lspin_c1", "Lspin_loop", "Lspin_15"): spin_flags(a, nm)
    a(f"""
    Lnonce_spin:
    s_mov_b32 s{S_SPIN}, {SPIN_LIMIT}
    Lnonce_l:
    buffer_load_dwordx2 {v(V_NON,2)}, v{V_PD+1}, s[92:95], 0 offen sc1
    s_waitcnt vmcnt(0)
    v_readfirstlane_b32 s{S_NONCE}, v{V_NON}
    v_readfirstlane_b32 s{S_NONCE+1}, v{V_NON+1}
    s_sub_u32 s{S_SPIN}, s{S_SPIN}, 1
    s_cbranch_scc1 Lnonce_ok
    s_cmp_eq_u32 s{S_NONCE}, 0
    s_cbranch_scc1 Lnonce_l
    s_branch Lnonce_ok
    """)
    for nm, hi in POLLS: spin(a, nm, [f"s_cmp_lg_u32 s{S_MASK}, -1"], lowprio=hi)
    fallback(a)
    a.label("Lcode_end")
    return a.text()

def main(out):
    P = "concat_heads__mha_block__softmax_full_mha__prompt_kernel"
    txt = f"""; fused QKV projection + attention + output projection (generated)
; @launch grid=(256,1,1) block=(512,1,1) lds=163840
.amdgcn_target "amdgcn-amd-amdhsa--gfx950"
.text
""" + kernel_header(P) + build() + '.section .rodata,"a"\n' + kernel_desc(P, 256, sgpr=102 if DBG else 96)
    open(out, "w").write(txt)

if __name__ == "__main__":
    args = [x for x in sys.argv[1:] if not x.startswith("--")]
    main(args[0] if args else "concat_heads__mha_block__softmax_full_mha__prompt.s")
```

```python
import sys, struct, math
from dsl import *

def opt(name, default):
    for x in sys.argv:
        if x.startswith(f"--{name}="): return type(default)(x[len(name) + 3:])
    return default
STAMP = "--stamp" in sys.argv
ROT = opt("rot", 0)
PRO = opt("pro", "X0,W0,Q0,B,W1,X1,W2").replace(",", " ")
STEPX = {}
for it in opt("stepx", "0:W3.X2.Q1;1:W4;8:Q2;16:Q3").split(";"):
    if it:
        k, val = it.split(":"); STEPX[int(k)] = val.split(".")
SC1 = "" if "--nosc1" in sys.argv else " sc1"
NTD = " nt" if "d" in opt("nt", "") else (" " + opt("dfl", "").replace("_", " ") if opt("dfl", "") else "")
NTP = " nt" if "p" in opt("nt", "") else ""
NTW = " nt" if "w" in opt("nt", "") else ""
ROTB = opt("rotb", -1)

KV_OFF = 0
O_OFF = 24 << 20
F1_OFF = 32 << 20
F2_OFF = 33 << 20
SLEEP = opt('sleep', 8)
ST_OFF = 64 << 20
QSCALE = struct.unpack("<I", struct.pack("<f", math.log2(math.e) / math.sqrt(32.0)))[0]
SPIN_LIMIT = 1 << 16

S_W, S_B, S_TM, S_HP = 16, 17, 18, 19
S_SOX, S_SOW, S_XB, S_WB = 20, 21, 22, 23
S_EXW = 24
S_NONCE = 80
S_MASK = 82
S_CIDX, S_M0, S_CNT, S_CH, S_WOS, S_WOM, S_FIDX, S_SPIN = 84, 85, 86, 87, 88, 89, 90, 91
S_WOI, S_WOB = 20, 21
PRIO = opt('prio', 1)
SRD_KV, SRD_F, SRD_WO, SRD_O = 4, 8, 52, 12
SRD_KVS = 56
SRD_OUT, SRD_OL, SRD_F2 = 36, 32, 76
S_FL0 = 40

def make_srd(a, d, lo, hi, off_sgpr, nrec):
    a(f"s_add_u32 s{d}, s{lo}, s{off_sgpr}\ns_addc_u32 s{d+1}, s{hi}, 0\ns_and_b32 s{d+1}, s{d+1}, 0xffff")
    a(f"s_mov_b32 s{d+2}, {nrec}\ns_mov_b32 s{d+3}, 0x00020000")

NST = [0]
STG = opt("stg", "m")
def stamp(a, i=None, g="m"):
    if not STAMP: return
    if i is None: g = "a" if g == "m" else g
    if g not in STG: return
    a("s_memrealtime s[60:61]\ns_memtime s[62:63]\ns_waitcnt lgkmcnt(0)\ns_lshl_b64 exec, 1, s64\nv_mov_b32 v0, s60\nv_mov_b32 v203, s62\ns_mov_b64 exec, -1\ns_add_u32 s64, s64, 1")
DBG = "--dbg" in sys.argv
def dbgstamp(a, i, inv=False):
    if DBG: a(f"s_memrealtime s[60:61]\ns_waitcnt lgkmcnt(0)\ns_mov_b32 s{96+i}, s60")
def dbgflush(a):
    if not DBG: return
    a(f"""
    s_cmp_lg_u32 s{S_W}, 7
    s_cbranch_scc1 Ldbg_e
    s_mov_b64 exec, 1
    s_and_b32 s26, s{S_HP}, 7
    s_lshl_b32 s26, s26, 2
    v_mov_b32 v2, s26
    s_sub_u32 s27, s98, s96
    v_mov_b32 v3, s27
    buffer_atomic_umax v3, v2, s[92:95], 0 offen offset:8
    v_mov_b32 v4, 0
    s_sub_u32 s27, s97, s96
    v_mov_b32 v5, s27
    buffer_atomic_umax v5, v4, s[92:95], 0 offen offset:40
    s_sub_u32 s27, s99, s98
    v_mov_b32 v6, s27
    buffer_atomic_umax v6, v4, s[92:95], 0 offen offset:44
    s_sub_u32 s27, s100, s99
    v_mov_b32 v7, s27
    buffer_atomic_umax v7, v4, s[92:95], 0 offen offset:48
    s_sub_u32 s27, s100, s96
    v_mov_b32 v8, s27
    buffer_atomic_umax v8, v4, s[92:95], 0 offen offset:52
    s_not_b32 s27, s96
    v_mov_b32 v9, s27
    buffer_atomic_umax v9, v4, s[92:95], 0 offen offset:56
    v_mov_b32 v10, s100
    buffer_atomic_umax v10, v4, s[92:95], 0 offen offset:60
    Ldbg_e:
    """)
JIT = opt("jit", 0)
JC = [0]
def jitter(a):
    if not JIT: return
    JC[0] += 1
    k = JC[0]
    a(f"""
    s_mul_i32 s96, s2, {37 + 2 * k}
    s_mul_i32 s97, s{S_W}, {JIT * 11 + k}
    s_add_u32 s96, s96, s97
    s_lshr_b32 s97, s96, 3
    s_xor_b32 s96, s96, s97
    s_and_b32 s96, s96, 31
    Ljit{k}:
    s_cmp_eq_u32 s96, 0
    s_cbranch_scc1 Ljit{k}e
    s_sleep {JIT}
    s_sub_u32 s96, s96, 1
    s_branch Ljit{k}
    Ljit{k}e:
    """)
def stamp_flush(a, n):
    if not STAMP: return
    a(f"""
    s_lshl_b32 s26, s2, 3
    s_add_u32 s26, s26, s{S_W}
    s_lshl_b32 s26, s26, 9
    s_add_u32 s30, s26, {ST_OFF}
    """)
    make_srd(a, 56, 48, 49, 30, 512)
    a("v_lshlrev_b32 v2, 3, v1\nv_mov_b32 v4, v0\nv_mov_b32 v5, v203\nbuffer_store_dwordx2 v[4:5], v2, s[56:59], 0 offen")

ACC = 8
def acc(tt, f): return ACC + (tt * 6 + f) * 4
XF = [[104 + 4*i for i in range(4)], [144 + 4*i for i in range(4)]]
WF = [[120 + 4*i for i in range(6)], [160 + 4*i for i in range(6)]]
V_XR = [208, 209]; V_WR = [210, 211]; V_XD = list(range(184, 192)); V_WD = [212, 213, 214]
V_PX, V_PW, V_PD = 218, 219, 220
V_NON = 222
LDS_W = 98304

def decode(a, end):
    a(f"""
    s_cmp_ge_u32 s2, 256
    s_cbranch_scc1 {end}
    s_load_dwordx16 s[32:47], s[0:1], 0
    s_load_dwordx2 s[48:49], s[0:1], 64
    v_lshrrev_b32 v1, 6, v0
    s_and_b32 s26, s2, 7
    s_lshr_b32 s27, s2, 3
    v_readfirstlane_b32 s{S_W}, v1
    s_lshr_b32 s{S_B}, s26, 2
    s_and_b32 s28, s26, 1
    s_lshl_b32 s28, s28, 2
    s_and_b32 s29, s27, 3
    s_add_u32 s{S_TM}, s28, s29
    s_bfe_u32 s28, s26, 0x10001
    s_lshl_b32 s28, s28, 3
    s_lshr_b32 s29, s27, 2
    s_add_u32 s{S_HP}, s28, s29
    v_and_b32 v1, 63, v0
    s_mul_i32 s51, {'s26' if ROTB < 0 else 's17'}, {ROT if ROTB < 0 else ROTB}
    s_and_b32 s51, s51, 15
    s_lshl_b32 s14, s51, 1
    s_lshl_b32 s15, s51, 7
    s_mov_b32 s64, 0
    """)

NLAB = [0]
ROLE = [None]
def if_vcc(ins, want=True):
    if ROLE[0] is not None: return list(ins) if ROLE[0] == want else []
    NLAB[0] += 1
    return [f"s_cbranch_vcc{'z' if want else 'nz'} Lskip{NLAB[0]}"] + ins + [f"Lskip{NLAB[0]}:"]
old_only = if_vcc

def gemm1_setup_dma(a):
    a(f"""
    s_cmp_lt_u32 s{S_W}, 4
    s_cselect_b64 vcc, -1, 0
    s_cbranch_scc0 Lsetup1
    s_setprio 1
    Lsetup1:
    s_and_b32 s30, s{S_W}, 3
    s_mul_i32 s{S_XB}, s30, 24576
    s_mul_i32 s26, s30, 3072
    s_add_u32 s{S_WB}, s26, {LDS_W}
    v_lshrrev_b32 v2, 3, v1
    s_lshl_b32 s26, s30, 6
    v_add_u32 v7, s26, v2
    v_and_b32 v3, 7, v1
    v_lshrrev_b32 v4, 4, v1
    v_xor_b32 v5, v3, v4
    v_lshlrev_b32 v5, 4, v5
    v_lshl_add_u32 v{V_XD[0]}, v7, 11, v5
    v_xor_b32 v5, 64, v5
    v_lshl_add_u32 v{V_XD[1]}, v7, 11, v5
    v_add_u32 v{V_XD[1]}, {8*2048}, v{V_XD[1]}
    """)
    for q in range(2, 8): a(f"v_add_u32 v{V_XD[q]}, {16*2048}, v{V_XD[q-2]}")
    a(f"s_mul_i32 s26, s30, 24")
    for q in range(3):
        a(f"""
        v_add_u32 v7, s26, v2            ; R
        s_add_u32 s26, s26, 8
        v_lshrrev_b32 v4, 5, v7          ; sec
        v_and_b32 v7, 31, v7             ; k
        v_and_b32 v5, 2, v7
        v_bfe_u32 v6, v7, 3, 1
        v_lshl_or_b32 v5, v6, 2, v5      ; swz*2
        v_xor_b32 v5, v3, v5             ; chunk
        v_lshlrev_b32 v5, 4, v5
        v_lshl_add_u32 v5, v4, 11, v5
        v_mul_u32_u24 v7, 6144, v7
        v_add_u32 v{V_WD[q]}, v7, v5
        """)
    a(f"""
    s_waitcnt lgkmcnt(0)
    s_cmp_eq_u32 s{S_B}, 0
    s_cselect_b32 s26, s32, s38
    s_cselect_b32 s27, s33, s39
    s_cselect_b32 s28, s34, s40
    s_cselect_b32 s29, s35, s41
    s_lshl_b32 s30, s{S_TM}, 19
    """)
    make_srd(a, 4, 26, 27, 30, 524288)
    a(f"s_lshl_b32 s30, s{S_HP}, 7\ns_sub_u32 s31, {1024*6144}, s30")
    make_srd(a, 8, 28, 29, 30, "s31")

def gemm1_setup_rest(a):
    a(f"""
    s_and_b32 s30, s{S_W}, 3
    s_mul_i32 s30, s30, 24576
    v_and_b32 v2, 15, v1             ; c
    v_lshrrev_b32 v4, 4, v1          ; G
    v_lshrrev_b32 v5, 1, v2
    v_xor_b32 v5, v4, v5
    v_lshlrev_b32 v5, 4, v5
    v_lshl_add_u32 v5, v2, 7, v5
    v_add_u32 v{V_XR[0]}, s30, v5
    v_xor_b32 v{V_XR[1]}, 64, v{V_XR[0]}
    v_bfe_u32 v2, v1, 2, 2           ; r
    v_and_b32 v3, 3, v1              ; c4
    v_lshl_add_u32 v5, v4, 3, v2     ; k = 8G + r
    v_lshrrev_b32 v6, 1, v2
    v_and_b32 v7, 1, v4
    v_lshl_or_b32 v6, v7, 1, v6      ; swz
    s_lshr_b32 s30, s{S_W}, 2
    s_lshl_b32 s30, s30, 1
    v_xor_b32 v6, s30, v6
    v_lshlrev_b32 v6, 5, v6
    v_lshl_add_u32 v6, v3, 3, v6
    v_lshl_add_u32 v6, v5, 7, v6
    v_add_u32 v{V_WR[0]}, {LDS_W}, v6
    v_xor_b32 v{V_WR[1]}, 32, v{V_WR[0]}
    """)
    a(f"s_lshr_b32 s30, s{S_TM}, 2\ns_lshl_b32 s30, s30, 21")
    make_srd(a, 52, 26, 27, 30, 2 << 20)
    a(f"s_lshr_b32 s30, s{S_HP}, 3\ns_lshl_b32 s30, s30, 10\ns_sub_u32 s31, {1024*6144}, s30")
    make_srd(a, 56, 28, 29, 30, "s31")
    toks = PRO + " ".join(" ".join(x) for x in STEPX.values())
    if "Q" in toks or "R" in toks:
        for l in q_setup(): a(l)
    if "P" in toks: a(f"""
    s_lshr_b32 s26, s2, 3
    s_lshl_b32 s26, s26, 3
    s_add_u32 s26, s26, s{S_W}       ; u
    s_lshl_b32 s27, s26, 13
    v_and_b32 v2, 3, v1
    v_lshlrev_b32 v2, 11, v2
    v_lshrrev_b32 v3, 2, v1
    v_lshl_add_u32 v2, v3, 7, v2
    v_add_u32 v{V_PX}, s27, v2
    v_mul_u32_u24 v2, 43, v1
    v_lshrrev_b32 v2, 8, v2
    v_mul_u32_u24 v3, 6, v2
    v_sub_u32 v3, v1, v3
    s_and_b32 s27, s26, 3
    s_mul_i32 s27, s27, 6
    v_add_u32 v3, s27, v3
    v_lshrrev_b32 v4, 3, v3
    v_and_b32 v3, 7, v3
    v_lshlrev_b32 v3, 7, v3
    v_lshl_add_u32 v3, v4, 11, v3
    s_lshr_b32 s27, s26, 2
    v_lshl_add_u32 v2, v2, 6, s27
    v_mul_u32_u24 v2, 6144, v2
    v_add_u32 v{V_PW}, v2, v3
    """)
    a(f"""
    v_mov_b32 v{V_PD+1}, 0
    s_or_b32 s26, s2, s{S_W}
    s_cmp_lg_u32 s26, 0
    s_cbranch_scc1 Lnononce
    s_memrealtime s[26:27]
    s_mov_b32 s28, s46
    s_and_b32 s29, s47, 0xffff
    s_mov_b32 s30, 256
    s_mov_b32 s31, 0x00020000
    s_waitcnt lgkmcnt(0)
    s_or_b32 s26, s26, 1
    v_mov_b32 v2, s26
    v_mov_b32 v3, s27
    s_mov_b64 exec, 1
    buffer_store_dwordx2 v[2:3], v{V_PD+1}, s[28:31], 0 offen sc1
    s_mov_b64 exec, -1
    Lnononce:
    """)

def pf_batch(s0, n):
    return [f"s_add_u32 s13, s51, {s0}", "s_and_b32 s13, s13, 15", f"s_bfm_b64 exec, {6*n}, 0", f"s_mul_i32 s50, s13, {64*6144}",
            f"buffer_load_dword v{V_PD}, v{V_PW}, s[56:59], s50 offen{NTP}", "s_lshl_b32 s13, s13, 7",
            f"s_bfm_b64 exec, {4*n}, 0",
            f"buffer_load_dword v{V_PD}, v{V_PX}, s[52:55], s13 offen{NTP}", "s_mov_b64 exec, -1"]
V_QW, V_QX = 218, 219
SLOWC = opt("slowc", 3)
def q_setup():
    return [f"s_lshr_b32 s12, s2, 3", "s_lshl_b32 s12, s12, 3", f"s_add_u32 s12, s12, s{S_W}",
            f"v_lshlrev_b32 v{V_QW}, 11, v1", f"v_add_u32 v{V_QW}, {SLOWC*128}, v{V_QW}",
            "v_and_b32 v2, 3, v1", "v_lshlrev_b32 v2, 11, v2", "v_bfe_u32 v3, v1, 2, 1", "v_lshl_add_u32 v2, v3, 10, v2",
            "s_lshl_b32 s13, s12, 13", f"s_add_u32 s13, s13, {SLOWC*128}", f"v_add_u32 v{V_QX}, s13, v2",
            "s_lshl_b32 s13, s51, 6", "s_add_u32 s12, s12, s13"]
def q_batch(i):
    return [f"s_add_u32 s13, s12, {256*i}", "s_and_b32 s13, s13, 1023", "s_mov_b64 exec, 7", "s_mul_i32 s13, s13, 6144",
            f"buffer_load_dword v{V_NON+1}, v{V_QW}, s[56:59], s13 offen", "s_mov_b64 exec, -1"]
def r_batch():
    return ["s_mov_b64 exec, 0xff", f"buffer_load_dword v{V_NON+1}, v{V_QX}, s[52:55], 0 offen", "s_mov_b64 exec, -1"]
def dma_x(stage, q):
    return [f"s_add_u32 m0, s{S_XB}, {(stage % 3)*8192 + q*1024}", f"buffer_load_dwordx4 v{V_XD[q]}, s[4:7], s{S_SOX} offen{NTD} lds"]
def dma_w(step, q):
    return [f"s_add_u32 m0, s{S_WB}, {(step % 5)*12288 + q*1024}", f"buffer_load_dwordx4 v{V_WD[q]}, s[8:11], s{S_SOW} offen{NTD} lds"]
def frag_reads(step):
    p = step & 1; xs = (step >> 1) % 3; ws = step % 5
    X = [f"ds_read_b128 {v(XF[p][tt],4)}, v{V_XR[p]} offset:{xs*8192 + tt*2048}" for tt in range(4)]
    W = [[f"ds_read_b64_tr_b16 {v(WF[p][f]+2*h,2)}, v{V_WR[f&1]} offset:{ws*12288 + (f>>1)*4096 + h*512}" for h in range(2)] for f in range(6)]
    return [X[0]] + W[0] + W[1] + W[2] + [X[1]] + W[3] + W[4] + W[5] + [X[2], X[3]]
def gemm1_mfmas(step):
    p = step & 1; out = []
    if opt("gord", 1):
        order = [(tt, f) for tt in range(4) for f in (range(4) if tt % 2 == 0 else range(3, -1, -1))] + [(tt, f) for tt in range(3, -1, -1) for f in ((4, 5) if tt % 2 else (5, 4))]
    else:
        order = [(tt, f) for tt in range(4) for f in (range(6) if tt % 2 == 0 else range(5, -1, -1))]
    for tt, f in order:
        d = acc(tt, f)
        A, B = (WF[p][f], XF[p][tt]) if f < 4 else (XF[p][tt], WF[p][f])
        out.append(f"v_mfma_f32_16x16x32_bf16 {v(d,4)}, {v(A,4)}, {v(B,4)}, {'0' if step == 0 else v(d,4)}")
    return out

HB = opt('hb', 1)
RD0, DG0, DGS = opt('rd0', 0), opt('dg0', 1), opt('dgs', 10)
def gemm1_main(a, late):
    vm = VmTrack()
    def group(tok):
        if tok == "B": return [["s_barrier"]], []
        if tok[0] == "Q": return [q_batch(int(tok[1:]))], ["pf"]
        if tok[0] == "R": return [r_batch()], ["pf"]
        if tok[0] == "P":
            s0, n = map(int, tok[1:].split("_")); return [pf_batch(s0, n)], ["pf", "pf"]
        if tok[0] == "W":
            st = int(tok[1:]); g = [f"s_add_u32 s{S_SOW}, s14, {st}", f"s_and_b32 s{S_SOW}, s{S_SOW}, 31"]
            for q in range(3):
                m, l = dma_w(st, q); g += [m, f"s_mul_i32 s{S_SOW}, s{S_SOW}, {32*6144}" if q == 0 else "s_nop 0", l]
            return [old_only(g)], [("W", st)] * 3
        if tok == "Y0":
            g = {}
            for role, qs in ((True, range(0, 4)), (False, range(4, 8))):
                g[role] = [f"s_and_b32 s{S_SOX}, s15, 0x780"]
                for q in qs:
                    m, l = dma_x(0, q); g[role] += [m, "s_nop 0", l]
            return [if_vcc(g[True], True) + if_vcc(g[False], False)], [("X", 0)] * 4
        if tok[0] == "X":
            if "h" in tok: S, h = tok[1:].split("h"); S = int(S); qs = range(0, 4) if h == "0" else range(4, 8)
            else: S = int(tok[1:]); qs = range(8)
            g = [f"s_add_u32 s{S_SOX}, s15, {S*128}"]
            for q in qs:
                m, l = dma_x(S, q); g += [m, f"s_and_b32 s{S_SOX}, s{S_SOX}, 0x780" if q == qs[0] else "s_nop 0", l]
            return [old_only(g)], [("X", S)] * len(qs)
    first = True
    for tok in PRO.split():
        g, t = group(tok)
        for x in g:
            for y in x: a(y)
        for y in t: vm.issue(y)
        if tok == "W0":
            gemm1_setup_rest(a)
    if "Y0" in PRO:
        for x in if_vcc(["s_waitcnt vmcnt(0)"], False): a(x)
    a(f"s_waitcnt vmcnt({vm.wait_count({('X',0),('W',0)})})")
    a("s_barrier")
    stamp(a, 1); dbgstamp(a, 1)
    for l in frag_reads(0): a(l)
    for st in range(32):
        bar = (not HB) or st == 0 or st % 2 == 1
        if st == 31:
            a("s_waitcnt vmcnt(0) lgkmcnt(0)")
        elif bar:
            ahead = [st + 1] + ([st + 2] if HB and st % 2 == 1 else [])
            need = {("W", x) for x in ahead} | {("X", x >> 1) for x in ahead}
            for nd in need: assert vm.ops.count(nd) == (3 if nd[0] == "W" else 8) or nd == ("X", 0), (st, nd)
            a(f"s_waitcnt vmcnt({min(63, vm.wait_count(need))}) lgkmcnt(0)")
        else:
            a("s_waitcnt lgkmcnt(0)")
        if bar: a("s_barrier")
        if st % 4 == 0: stamp(a, None, "g")
        if st in (2, 9, 30): jitter(a)
        M = gemm1_mfmas(st)
        if st == 31:
            a.label("Lgemm_end")
            last_step(a, late[31]); break
        R = frag_reads(st + 1) if st + 1 < 32 else []
        toks = list(STEPX.get(st, []))
        if not HB:
            if st + 5 < 32: toks.append(f"W{st+5}")
        elif st >= 1 and st + 4 < 32:
            toks.append(f"W{st+4}")
        if st >= 1 and ((st - 1) >> 1) + 3 < 16: toks.append(f"X{((st-1)>>1)+3}h{0 if st % 2 == 1 else 1}")
        D = []
        for tok in toks:
            g, t = group(tok); D += g
            for y in t: vm.issue(y)
        gaps = [[] for _ in range(24)]
        for i, r in enumerate(R): gaps[i + RD0].append(r)
        for i, d in enumerate(D): gaps[min(23, DG0 + (i * DGS if len(D) <= 3 else (i * (23 - DG0)) // len(D)))] += d
        lt = late.get(st, [])
        assert len(lt) <= 24
        for i, x in enumerate(lt):
            gaps[i].append(x)
            if x.startswith("buffer_"): vm.issue("late")
        for i, m in enumerate(M):
            a(m)
            for x in gaps[i]:
                if "--xnodma" in sys.argv and x.endswith("lds") and st > 3: continue
                if "--xnord" in sys.argv and x.startswith("ds_read") and st > 3: continue
                a(x)

AS = [8, 24, 40, 56]
AO = {'a': 224, 'b': 240}
AQ = {('a',0): 104, ('a',1): 108, ('b',0): 112, ('b',1): 116}
AC = {'a': 120, 'b': 136}
AK = [[152, 156], [160, 164]]
AV = [[168, 172], [176, 180]]
AL = {'a': 184, 'b': 188}
ASEL = 192; AIDX = 196; AADDR = 197; AVO = 198; AWD = 199
AFL = 200
AFA = 202
V_VS, V_VL = 205, 207
AADK, AVK = 204, 206
V_FA = 221
S_CH2 = 22
P_WR = [212, 213, 214, 215]; P_OV = [[216, 217], [218, 219]]; V_FA2 = 220
S_OSO = 64 if not STAMP else 66
def qk1(Y, kb, q, c=None): return f"v_mfma_f32_32x32x16_bf16 {v(Y,16)}, {v(AK[kb][0],4)}, {v(AQ[(q,0)],4)}, {v(AC[q],16) if c is None else c}"
def qk2(Y, kb, q): return f"v_mfma_f32_32x32x16_bf16 {v(Y,16)}, {v(AK[kb][1],4)}, {v(AQ[(q,1)],4)}, {v(Y,16)}"
def pv(Z, h, vb, q): return f"v_smfmac_f32_32x32x32_bf16 {v(AO[q],16)}, {v(AV[vb][h],4)}, {v(Z+8*h,8)}, v{AIDX}"
def sm(Z, h, q): return f"v_smfmac_f32_16x16x64_bf16 {v(AL[q],4)}, {v(ASEL,4)}, {v(Z+8*h,8)}, v{AIDX}"
def srd(d, lo, hi, off, nrec):
    return [f"s_add_u32 s{d}, s{lo}, s{off}\ns_addc_u32 s{d+1}, s{hi}, 0", f"s_and_b32 s{d+1}, s{d+1}, 0xffff", f"s_mov_b32 s{d+2}, {nrec}", f"s_mov_b32 s{d+3}, 0x00020000"]

CODEPF = opt('codepf', 12)
SEL2 = opt('sel2', 0)
def lbroadcast():
    if not SEL2: return []
    return [f"v_mov_b32 v{AL[q]+1}, v{AL[q]}" for q in 'ab'] + ['s_nop 1'] + [f"v_permlane32_swap_b32 v{AL[q]}, v{AL[q]+1}" for q in 'ab']
def late_setup():
    L = {}
    if CODEPF:
        L[CODEPF] = ["s_getpc_b64 s[26:27]\nLpcref:", f"s_and_b32 s28, s{S_W}, 3", "s_lshl_b32 s28, s28, 13", "v_lshlrev_b32 v2, 7, v1", "v_add_u32 v2, s28, v2",
                     "v_min_u32 v2, Lcode_end-Lgemm_end-4, v2", "s_add_u32 s26, s26, Lgemm_end-Lpcref\ns_addc_u32 s27, s27, 0", "v_mov_b32 v3, s27",
                     "v_add_co_u32 v2, s[28:29], s26, v2", "s_nop 1", "v_addc_co_u32 v3, s[28:29], 0, v3, s[28:29]",
                     "\n".join(if_vcc([f"global_load_dword v{V_NON+1}, v[2:3], off"], False))]
    L[18] = [f"v_mov_b32 v{AO['a']+i}, 0" for i in range(24)]
    L19OLD = [f"v_mov_b32 v{AO['a']+24+i}, 0" for i in range(8)] + \
            [f"v_lshlrev_b32 v{AVO}, 4, v1", "v_and_b32 v2, 7, v1", f"v_lshlrev_b32 v{AFA}, 3, v2", f"s_lshr_b32 s26, s{S_W}, 2", "s_lshl_b32 s26, s26, 14",
             f"v_add_u32 v{AADDR}, s26, v{AVO}", f"v_mov_b32 v{AIDX}, 0xdddddddd",
             "v_bfe_u32 v2, v1, 2, 1", "v_mov_b32 v3, 0x3f803f80", "v_cmp_eq_u32 s[28:29], 0, v2", "s_nop 1",
             f"v_cndmask_b32 v{ASEL}, 0, v3, s[28:29]", f"v_cndmask_b32 v{ASEL+1}, 0, v3, s[28:29]", f"v_xor_b32 v{ASEL+2}, v3, v{ASEL}", f"v_xor_b32 v{ASEL+3}, v3, v{ASEL}"]
    L[19] = [f"v_mov_b32 v{AO['a']+24+i}, 0" for i in range(8)] + \
            [f"v_lshlrev_b32 v{AVO}, 4, v1", "v_and_b32 v2, 7, v1", f"v_lshlrev_b32 v{AFA}, 3, v2", f"s_lshr_b32 s26, s{S_W}, 2", "s_lshl_b32 s26, s26, 14",
             f"v_add_u32 v{AADDR}, s26, v{AVO}", f"v_mov_b32 v{AIDX}, 0xdddddddd",
             f"v_and_b32 v2, {15 if SEL2 else 7}, v1", "v_mov_b32 v3, 0x3f803f80", "v_cmp_eq_u32 s[28:29], 0, v2", f"v_cmp_eq_u32 s[30:31], 4, v2",
             f"v_cndmask_b32 v{ASEL}, 0, v3, s[28:29]", f"v_cndmask_b32 v{ASEL+1}, 0, v3, s[28:29]", f"v_cndmask_b32 v{ASEL+2}, 0, v3, s[30:31]", f"v_cndmask_b32 v{ASEL+3}, 0, v3, s[30:31]"] \
            if opt("sel1", 1) else L19OLD
    L[20] = ["v_and_b32 v2, 15, v1", "v_lshrrev_b32 v4, 4, v1", "v_lshlrev_b32 v4, 9, v4", f"v_lshl_add_u32 v{V_VS}, v2, 4, v4",
             "v_bfe_u32 v2, v1, 2, 1", "v_bfe_u32 v3, v1, 3, 2", "v_and_b32 v4, 35, v1", "v_lshl_add_u32 v4, v2, 4, v4", "v_lshl_add_u32 v4, v3, 2, v4",
             f"v_lshlrev_b32 v{AVK}, 4, v4", f"v_sub_u32 v2, v{AADDR}, v{AVO}", f"v_add_u32 v{AADK}, v2, v{AVK}",
             f"s_and_b32 s26, s{S_W}, 2", "s_lshl_b32 s26, s26, 14", f"s_and_b32 s27, s{S_W}, 1", "s_lshl_b32 s27, s27, 13", "s_add_u32 s26, s26, s27",
             f"s_lshr_b32 s27, s{S_W}, 2", "s_lshl_b32 s27, s27, 14", "s_add_u32 s26, s26, s27", f"v_add_u32 v{V_VL}, s26, v{V_VS}"]
    L[21] = ["v_lshrrev_b32 v2, 3, v1", "v_and_b32 v3, 7, v1", "v_lshrrev_b32 v4, 4, v1", "v_lshlrev_b32 v4, 1, v4", "v_xor_b32 v4, v3, v4",
             "v_lshlrev_b32 v4, 4, v4", f"v_lshl_add_u32 v{AWD}, v2, 11, v4",
             f"s_cmp_eq_u32 s{S_B}, 0\ns_cselect_b32 s26, s36, s42\ns_cselect_b32 s27, s37, s43", f"s_lshl_b32 s30, s{S_HP}, 7", f"s_sub_u32 s31, {1024*2048}, s30"] \
            + srd(SRD_WO, 26, 27, 30, "s31") + ["s_mov_b32 s92, s46", "s_and_b32 s93, s47, 0xffff", "s_mov_b32 s94, 256", "s_mov_b32 s95, 0x00020000"]
    if WARMF:
        L[22] = [f"s_lshl_b32 s28, s{S_B}, 4", f"s_add_u32 s28, s28, s{S_HP}", "s_lshl_b32 s28, s28, 10", f"s_add_u32 s30, s28, {F1_OFF}",
                 f"s_lshl_b32 s28, s{S_B}, 3", f"s_add_u32 s28, s28, s{S_TM}", "s_lshl_b32 s28, s28, 11", f"s_add_u32 s31, s28, {F2_OFF}",
                 "s_mov_b32 s76, s48", "s_and_b32 s77, s49, 0xffff", f"s_mov_b32 s78, {34 << 20}", "s_mov_b32 s79, 0x00020000", "v_lshlrev_b32 v2, 7, v1",
                 "\n".join(if_vcc(["s_mov_b64 exec, 0xff", f"buffer_load_dword v{V_NON+1}, v2, s[76:79], s30 offen sc1",
                                   "s_mov_b64 exec, 0xffff", f"buffer_load_dword v{V_NON+1}, v2, s[76:79], s31 offen sc1", "s_mov_b64 exec, -1"], False))]
    L[27] = [f"v_mov_b32 v{AL['a']+i}, 0" for i in range(8)] + \
            [f"s_lshl_b32 s26, s{S_B}, 5", f"s_lshl_b32 s27, s{S_HP}, 1", "s_add_u32 s26, s26, s27",
             f"s_and_b32 s28, s{S_W}, 3", "s_lshl_b32 s29, s28, 12", "s_lshl_b32 s30, s26, 18", "s_add_u32 s31, s30, s29", "s_sub_u32 s50, 524288, s29"] \
            + srd(SRD_KV, 48, 49, 31, "s50") + [f"s_lshr_b32 s27, s{S_W}, 2", "s_add_u32 s26, s26, s27", "s_lshl_b32 s30, s26, 18"]
    L[28] = [f"buffer_load_dwordx2 {v(V_NON,2)}, v{V_PD+1}, s[92:95], 0 offen sc1",
             f"s_mov_b32 s{S_WOI}, -1", f"s_lshl_b32 s{S_WOB}, s{S_W}, 14", f"s_lshl_b32 s27, s{S_W}, 10", f"s_add_u32 s{S_WOM}, s27, 65536",
             f"s_lshl_b32 s{S_M0}, s{S_W}, 12", f"s_mov_b32 s{S_CIDX}, 16384", f"s_lshl_b32 s23, s{S_TM}, 15", f"s_lshr_b32 s51, s{S_W}, 1", f"s_mov_b32 s{S_EARLY}, 0"]
    L[29] = [f"s_lshl_b32 s27, s{S_TM}, 3", "s_lshl_b32 s28, s28, 1", "s_add_u32 s27, s27, s28", "s_lshl_b32 s29, s27, 12", "s_add_u32 s31, s30, s29"] \
            + srd(SRD_KVS, 48, 49, 31, 8192) + ["s_mov_b32 s50, 4096",
             f"s_lshl_b32 s28, s{S_B}, 22", "s_lshl_b32 s29, s27, 16", "s_add_u32 s31, s28, s29", "s_and_b32 s28, s26, 31", "s_lshl_b32 s28, s28, 10",
             "s_add_u32 s31, s31, s28", f"s_add_u32 s31, s31, {O_OFF}"] + srd(SRD_O, 48, 49, 31, 131072)
    L[30] = [f"s_lshl_b32 s28, s{S_B}, 4", f"s_add_u32 s28, s28, s{S_HP}", "s_lshl_b32 s28, s28, 10", f"s_add_u32 s31, s28, {F1_OFF}"] + srd(SRD_F, 48, 49, 31, 1024) \
            + [f"s_bitcmp0_b32 s{S_W}, 1\ns_cselect_b64 vcc, -1, 0", f"s_mov_b32 s26, {QSCALE}", f"s_mov_b32 s27, {QSCALE}"]
    L[23] = [f"s_lshl_b32 s28, s{S_B}, 3", f"s_add_u32 s28, s28, s{S_TM}", "s_lshl_b32 s28, s28, 11", f"s_add_u32 s30, s28, {F2_OFF}"] + srd(SRD_F2, 48, 49, 30, 2048) \
            + [f"s_lshl_b32 s28, s{S_B}, 22", f"s_lshl_b32 s29, s{S_TM}, 19", "s_add_u32 s30, s28, s29", f"s_lshl_b32 s29, s{S_W}, 16", "s_add_u32 s30, s30, s29",
               f"s_add_u32 s30, s30, {O_OFF}"] + srd(SRD_OL, 48, 49, 30, 65536)
    L[24] = [f"s_lshl_b32 s28, s{S_TM}, 20", f"s_lshl_b32 s29, s{S_W}, 17", "s_add_u32 s30, s28, s29", f"s_lshl_b32 s29, s{S_B}, 11", "s_add_u32 s30, s30, s29",
             f"s_lshl_b32 s29, s{S_HP}, 7", "s_add_u32 s30, s30, s29", f"s_sub_u32 s31, {2048*4096}, s30"] + srd(SRD_OUT, 44, 45, 30, "s31") \
            + [f"s_and_b32 s26, s{S_HP}, 8", "s_lshl_b32 s27, s26, 11", f"v_add_u32 v{P_OV[0][0]}, s27, v{AVO}", f"v_add_u32 v{P_OV[0][1]}, 32768, v{P_OV[0][0]}",
               f"v_xor_b32 v{P_OV[1][0]}, 16384, v{P_OV[0][0]}", f"v_xor_b32 v{P_OV[1][1]}, 16384, v{P_OV[0][1]}",
               "s_lshl_b32 s26, s26, 4", f"s_lshr_b32 s27, s{S_W}, 1", "s_lshl_b32 s27, s27, 9", f"s_add_u32 s{S_FL0}, s26, s27"]
    L[25] = [x for j in range(8) for x in (f"s_add_u32 s26, s{S_HP}, {j}", "s_and_b32 s26, s26, 7", f"s_lshl_b32 s{S_OSO+j}, s26, 11")]
    L[26] = [f"s_and_b32 s26, s{S_W}, 3", "s_lshl_b32 s26, s26, 6", f"s_lshr_b32 s27, s{S_W}, 2", "s_lshl_b32 s27, s27, 5", "s_add_u32 s26, s26, s27",
             f"s_and_b32 s27, s{S_HP}, 8", f"s_add_u32 s27, s27, s{S_HP}", "s_add_u32 s26, s26, s27", "s_lshl_b32 s26, s26, 3", f"v_mov_b32 v{V_FA2}, s26",
             "v_and_b32 v4, 15, v1", "v_lshlrev_b32 v4, 4, v4", "v_bfe_u32 v5, v1, 4, 1", "v_lshl_add_u32 v4, v5, 15, v4", "v_lshrrev_b32 v5, 5, v1", "v_lshl_add_u32 v6, v5, 8, v4"]
    L[30] += ["v_lshrrev_b32 v4, 4, v1", "v_bfe_u32 v2, v1, 2, 2", "v_and_b32 v3, 3, v1", "v_and_b32 v5, 1, v4", "v_lshrrev_b32 v4, 1, v4", "v_lshl_add_u32 v7, v5, 2, v2",
              "v_lshl_add_u32 v4, v4, 4, v7", "v_lshrrev_b32 v7, 1, v7", "v_lshlrev_b32 v7, 5, v7", "v_lshl_add_u32 v7, v3, 3, v7", "v_lshl_add_u32 v7, v4, 7, v7",
              f"v_add_u32 v{P_WR[0]}, 65536, v7\nv_xor_b32 v{P_WR[1]}, 32, v{P_WR[0]}", f"v_xor_b32 v{P_WR[2]}, 64, v{P_WR[0]}\nv_xor_b32 v{P_WR[3]}, 96, v{P_WR[0]}"]
    L[31] = []
    return L

UNITS = [('V',0,0,80), ('V',0,1,84), ('V',1,0,72), ('V',1,1,76), ('K',1,1,88), ('K',1,0,92), ('K',0,0,96), ('K',0,1,100)]
def unit_src(u):
    k, T, h, d = UNITS[u]
    return [(2*T, 4+h), (2*T+1, 4+h)] if k == 'V' else [(2*T+h, 2), (2*T+h, 3)]
def cvt4(regs, d): return [f"v_cvt_pk_bf16_f32 v{d+i}, v{regs[2*i]}, v{regs[2*i+1]}" for i in range(4)]
def unit_cvt(u):
    k, T, h, d = UNITS[u]
    regs = [acc(*x) + i for x in unit_src(u) for i in range(4)]
    w = f"ds_write_b128 v{V_VL}, {v(d,4)} offset:{T*4096 + (2048 if k == 'V' else 0) + h*256}"
    return cvt4(regs, d) + [w]
def kv_store(u):
    k, T, h, d = UNITS[u]
    return f"buffer_store_dwordx4 {v(d,4)}, v{V_VS}, s[{SRD_KVS}:{SRD_KVS+3}], {'0' if T == 0 else 's50'} offen offset:{(2048 if k == 'V' else 0) + h*256}{SC1}"
def q_cvt(tt):
    return [f"v_pk_mul_f32 {v(acc(tt,0)+2*i,2)}, {v(acc(tt,0)+2*i,2)}, s[26:27]" for i in range(4)] + cvt4([acc(tt,0)+i for i in range(8)], AQ[("ab"[tt >> 1], tt & 1)])

NEP = opt('nep', 4)
def last_step(a, sal):
    order = [(3, 0), (3, 1)] + [x for u in range(8) for x in unit_src(u)] + [(tt, f) for tt in range(3) for f in range(2)]
    gaps = [[] for _ in range(24)]
    gaps[10] += q_cvt(3)
    for u in range(6): gaps[12 + 2*u] += unit_cvt(u) + (if_vcc([kv_store(u - 1), kv_store(u)]) if u & 1 and u < NEP else [])
    for i, (tt, f) in enumerate(order):
        d = acc(tt, f)
        A, B = (WF[1][f], XF[1][tt]) if f < 4 else (XF[1][tt], WF[1][f])
        a(f"v_mfma_f32_16x16x32_bf16 {v(d,4)}, {v(A,4)}, {v(B,4)}, {v(d,4)}")
        for x in gaps[i]: a(x)
    for x in unit_cvt(6) + unit_cvt(7) + (if_vcc([kv_store(6), kv_store(7)]) if NEP == 8 else []): a(x)

def transition_ab(a):
    a(f"s_cmp_lt_u32 s{S_W}, 4\ns_setprio 1\ns_cbranch_scc0 Lyng0\ns_setprio 2\nLyng0:")
    a("s_waitcnt lgkmcnt(0)\ns_barrier")
    for j in range(2): a(f"ds_read_b128 {v(AK[0][j],4)}, v{AADK} offset:{1024*j}")
    for j in range(2): a(f"ds_read_b128 {v(AV[0][j],4)}, v{AADDR} offset:{2048+1024*j}")
    rest = list(range(NEP, 8))
    for tt in range(3):
        if rest and (tt < 2 or NEP < 4):
            k = 2 if tt < 2 else len(rest)
            for x in if_vcc([kv_store(u) for u in rest[:k]]): a(x)
            rest = rest[k:]
        for x in q_cvt(tt): a(x)
    assert not rest
    a("s_nop 1")
    for q in "ab":
        for i in range(4): a(f"v_permlane16_swap_b32 v{AQ[(q,0)]+i}, v{AQ[(q,1)]+i}")
    for q in "ab":
        for i in range(4): a(f"v_permlane32_swap_b32 v{AQ[(q,0)]+i}, v{AQ[(q,1)]+i}")
    a("s_waitcnt lgkmcnt(2)")
    a(qk1(AS[0],0,'a',"0")); a(qk2(AS[0],0,'a')); a(qk1(AS[1],0,'b',"0")); a(qk2(AS[1],0,'b'))
    a(f"""
    v_readfirstlane_b32 s{S_NONCE}, v{V_NON}
    v_readfirstlane_b32 s{S_NONCE+1}, v{V_NON+1}
    s_lshl_b32 s26, s{S_TM}, 4
    s_add_u32 s26, s26, s{S_W}
    s_lshl_b32 s28, s26, 3
    s_nop 3
    s_cmp_eq_u32 s{S_NONCE}, 0
    s_cbranch_scc1 Lnonce_spin
    Lnonce_ok:
    v_mov_b32 v{V_FA}, s28
    s_nop 0
    """)
    rowmax16(a, AS[0], 2, 3)
    rowmax16(a, AS[1], 4, 5)
    MOFF = struct.unpack("<I", struct.pack("<f", float(opt("moff", 19))))[0]
    if MOFF: a(f"v_add_f32 v2, {MOFF:#x}, v2\nv_add_f32 v4, {MOFF:#x}, v4")
    for i in range(8): a(f"v_pk_mul_f32 {v(AC['a']+2*i,2)}, v[2:3], -1.0 op_sel_hi:[0,0]")
    a(f"v_pk_mul_f32 {v(AC['b'],2)}, v[4:5], -1.0 op_sel_hi:[0,0]\nv_pk_mul_f32 {v(AC['b']+2,2)}, v[4:5], -1.0 op_sel_hi:[0,0]")
    a(qk1(AS[0],0,'a')); a(qk2(AS[0],0,'a'))
    for i in range(2, 8): a(f"v_pk_mul_f32 {v(AC['b']+2*i,2)}, v[4:5], -1.0 op_sel_hi:[0,0]")
    a("s_nop 4")

def rowmax16(a, S, m, t):
    a(f"v_max3_f32 v{m}, v{S}, v{S+1}, v{S+2}")
    for i in range(3, 15, 2): a(f"v_max3_f32 v{m}, v{m}, v{S+i}, v{S+i+1}")
    a(f"v_max_f32 v{m}, v{m}, v{S+15}")
    a(f"v_mov_b32 v{t}, v{m}\ns_nop 1\nv_permlane32_swap_b32 v{m}, v{t}\ns_nop 0\nv_max_f32 v{m}, v{m}, v{t}")

def attn_half(a, t, q, extra=None, skipz=False):
    hs = (2*t + (q == 'b')) % 4
    oq = 'b' if q == 'a' else 'a'
    X = AS[hs]; Y = AS[(hs+1) % 4]; Z = AS[(hs-1) % 4]
    kb = t % 2 if q == 'a' else (t+1) % 2
    vb = (t-1) % 2 if q == 'a' else t % 2
    nt = (t + 1) % 4
    M = {'Q1': qk1(Y,kb,oq), 'Q2': qk2(Y,kb,oq), 'P1': pv(Z,0,vb,oq), 'S1': sm(Z,0,oq), 'P2': pv(Z,1,vb,oq), 'S2': sm(Z,1,oq)}
    e = 0
    for tok in "Q1 W0 3 S1 L0 2 Q2 3 P1 3 S2 L1 2 P2 W1 3".split():
        if tok in M:
            if not (skipz and tok[0] != 'Q'): a(M[tok])
        elif tok in ('L0', 'L1'):
            j = int(tok[1])
            if q == 'a': a(f"ds_read_b128 {v(AK[(t+1)%2][j],4)}, v{AADK} offset:{nt*4096 + 1024*j}")
            else: a(f"ds_read_b128 {v(AV[(t+1)%2][j],4)}, v{AADDR} offset:{nt*4096 + 2048 + 1024*j}")
        elif tok == 'W0':
            if q == 'b': a("s_waitcnt lgkmcnt(0)")
        elif tok == 'W1':
            if q == 'a': a("s_waitcnt lgkmcnt(1)")
        else:
            for _ in range(int(tok)):
                a(f"v_exp_f32 v{X+e}, v{X+e}"); e += 1
        if extra and tok in extra:
            for x in extra[tok]: a(x)
    assert e == 16

def kv_dma(h): return [f"buffer_load_dwordx4 v{AVO}, s[{SRD_KV}:{SRD_KV+3}], s{S_CH if h == 0 else S_CH2} offen offset:{1024*i}{SC1} lds" for i in range(4)]
S_FSO = 24
def flag_load(srd=None):
    srd = SRD_F if srd is None else srd
    return f"buffer_load_dwordx2 {v(AFL,2)}, v{AFA}, s[{srd}:{srd+3}], s{S_FSO} offen sc1"
S_EARLY = 41
DEPTH = opt("odepth", 5)
OSL = [72, 80, 88, 96, 136, 144, 152, 160, 8, 16, 24, 32, 224, 232, 240, 248]
def oslot(p, tt): return OSL[p % 16] + 4 * tt
def oload_ins(p):
    return [f"buffer_load_dwordx4 {v(oslot(p, tt),4)}, v{P_OV[(p>>3)&1][tt]}, s[{SRD_OL}:{SRD_OL+3}], s{S_OSO + p%8} offen offset:{(p>>4)*1024}{SC1}" for tt in range(2)]
def chunk_scalars():
    return [f"s_add_u32 s{S_CIDX}, s{S_CIDX}, 16384", f"s_xor_b32 s{S_CH}, s{S_CIDX}, s23", f"s_add_u32 s{S_CH2}, s{S_CH}, 262144",
            f"s_bfe_u32 s26, s{S_CH}, 0x1000e", "s_lshl_b32 s26, s26, 1", f"s_add_u32 s{S_FIDX}, s26, s51"]
def line_cur(): return [f"s_lshr_b32 s26, s{S_CH}, 15", f"s_lshl_b32 s{S_FSO}, s26, 7"]
def line_next(): return [f"s_add_u32 s26, s{S_CIDX}, 16384", "s_xor_b32 s26, s26, s23", "s_bfe_u32 s26, s26, 0x3000f", f"s_lshl_b32 s{S_FSO}, s26, 7"]
def mask_test():
    return [f"s_lshr_b32 s26, s{S_MASK}, s{S_FIDX}", "s_andn2_b32 s26, 0x11, s26"]
def flag_cmp(): return f"v_cmp_eq_u64 s[{S_MASK}:{S_MASK+1}], s[{S_NONCE}:{S_NONCE+1}], {v(AFL,2)}"
def spin(a, name, test, lowprio=False):
    if lowprio:
        a(f"""
        {name}:
        s_mov_b32 s{S_SPIN}, {SPIN_LIMIT}
        {name}_l:
        {flag_load()}
        s_waitcnt vmcnt(0)
        {flag_cmp()}
        s_sub_u32 s{S_SPIN}, s{S_SPIN}, 1
        s_cbranch_scc1 {name}_x
        """)
        for x in test: a(x)
        a(f"s_cbranch_scc0 {name}_x\ns_setprio 0\ns_sleep {SLEEP}\ns_branch {name}_l\n{name}_x:\ns_cbranch_vccz {name}_r\ns_setprio 2\ns_branch {name}_r")
        return
    a(f"""
    {name}:
    s_mov_b32 s{S_SPIN}, {SPIN_LIMIT}
    {name}_l:
    {flag_load()}
    s_waitcnt vmcnt(0)
    {flag_cmp()}
    s_sub_u32 s{S_SPIN}, s{S_SPIN}, 1
    s_cbranch_scc1 {name}_r
    """)
    for x in test: a(x)
    a(f"s_cbranch_scc0 {name}_r\ns_sleep {SLEEP}\ns_branch {name}_l")
def spin_flags(a, name): spin(a, name, mask_test())
def wo_dma():
    return [f"s_add_u32 s{S_WOI}, s{S_WOI}, 1", f"s_add_u32 s26, s{S_WOI}, s{S_HP}", "s_and_b32 s26, s26, 7",
            f"s_xor_b32 s27, s{S_WOI}, s{S_HP}", "s_and_b32 s27, s27, 8", "s_or_b32 s26, s26, s27", "s_lshl_b32 s26, s26, 1",
            f"s_lshr_b32 s27, s{S_WOI}, 4", "s_add_u32 s26, s26, s27", "s_lshl_b32 s26, s26, 16", f"s_mov_b32 m0, s{S_WOM}",
            f"s_add_u32 s{S_WOS}, s26, s{S_WOB}", f"s_add_u32 s{S_WOM}, s{S_WOM}, 4096",
            f"buffer_load_dwordx4 v{AWD}, s[{SRD_WO}:{SRD_WO+3}], s{S_WOS} offen{NTW} lds"]
TOUCH = "--touch" in sys.argv
WARMF = "--nowarmf" not in sys.argv
def publish(fa=V_FA): return ["s_waitcnt vmcnt(0)", "s_mov_b64 exec, 1", f"buffer_store_dwordx2 {v(V_NON,2)}, v{fa}, s[{SRD_F}:{SRD_F+3}], 0 offen sc1", "s_mov_b64 exec, -1"]
def wo_rows(n):
    o = []
    for _ in range(n): o += wo_dma()
    return o
EARLY = '--noearly' not in sys.argv
XT = opt('xt', 1)
LST = opt("lst", 1)
def tailpf():
    if not opt("codepf2", 2): return []
    return [f"s_cmp_eq_u32 s{S_CNT}, {opt('codepf2', 2)}", "s_cbranch_scc0 Lnopf2", "s_getpc_b64 s[26:27]", "Lpcref2:", f"s_lshl_b32 s28, s{S_W}, 13",
            "v_lshlrev_b32 v2, 7, v1", "v_add_u32 v2, s28, v2", "v_min_u32 v2, Lattn_fallback-Lattn_j-4, v2", "s_add_u32 s26, s26, Lattn_j-Lpcref2", "s_addc_u32 s27, s27, 0",
            "v_mov_b32 v3, s27", "v_add_co_u32 v2, s[28:29], s26, v2", "s_nop 1", "v_addc_co_u32 v3, s[28:29], 0, v3, s[28:29]", "global_load_dword v4, v[2:3], off", "Lnopf2:"]
def attn_chunk(a, kind):
    tog = f"v_xor_b32 v{AADDR}, 32768, v{AADDR}\nv_xor_b32 v{AADK}, 32768, v{AADK}"
    for t in range(4):
        ea, eb = {}, {}
        if kind in ('c0', 'c1'): stamp(a, None, "c")
        if t in (1, 3): jitter(a)
        if kind == 'c1' and t == opt("polt", 1) + 1: pass
        if kind == 'c1' and t == opt("polt", 1):
            for x in old_only(chunk_scalars() + line_cur() + ["s_branch Lspin_c1a", "Lspin_c1a_r:", f"s_mov_b32 m0, s{S_M0}", "s_nop 0"] + kv_dma(0)
                              + [f"s_add_u32 m0, s{S_M0}, 16384", "s_nop 0"] + kv_dma(1)): a(x)
            stamp(a, None, "c")
        if kind == 'c14' and t == XT:
            for x in if_vcc(["s_barrier"], False): a(x)
        if kind == 'c0':
            for k, e in enumerate((ea, eb)):
                j = 2*t + k - LST
                if 0 <= j < 4: e['P1'] = if_vcc([kv_store(2*j), kv_store(2*j + 1)], False)
        if kind == 'c1' and t == 0:
            eb['P2'] = [f"s_and_b32 s26, s{S_W}, 6", "s_cmp_eq_u32 s26, 2", "s_cbranch_scc0 Lpub2"] + publish() + ["Lpub2:"]
        if kind == 'c14' and t == 0:
            ea['Q2'] = old_only([f"s_lshl_b32 s28, s{S_W}, 1", f"s_add_u32 s28, s28, s{S_HP}", "v_lshrrev_b32 v2, 5, v1", "v_add_u32 v2, s28, v2", "v_and_b32 v2, 7, v2",
                                 f"s_and_b32 s28, s{S_HP}, 8", "s_xor_b32 s28, s28, 8", "v_or_b32 v2, s28, v2", "v_lshlrev_b32 v2, 17, v2", "v_and_b32 v3, 31, v1",
                                 "v_lshl_add_u32 v2, v3, 11, v2", "s_mov_b32 s28, 65536", f"buffer_load_dword v3, v2, s[{SRD_WO}:{SRD_WO+3}], s28 offen"])
        if kind == 'c15' and EARLY:
            if t == 2: ea['Q2'] = if_vcc([f"s_mov_b32 s{S_FSO}, s{S_FL0}", flag_load(SRD_F2)], False)
            if t == 3: ea['Q2'] = if_vcc(["s_waitcnt vmcnt(0)", flag_cmp(), "s_nop 0", f"s_cmp_lg_u32 s{S_MASK}, -1", "s_cbranch_scc1 Lnoearly", f"s_mov_b32 s{S_EARLY}, 1"]
                                         + [x for p in range(min(DEPTH, 4)) for x in oload_ins(p)] + ["Lnoearly:"], False)
        if t == 3:
            if kind == 'c0':
                stamp(a); a("s_waitcnt lgkmcnt(0)\ns_barrier"); stamp(a)
                for x in [f"s_cmp_lt_u32 s{S_W}, 4", "s_cselect_b64 vcc, -1, 0", f"s_and_b32 s26, s{S_W}, 6", "s_cmp_eq_u32 s26, 2", "s_cbranch_scc1 Lpub1"] + publish() + ["Lpub1:"]: a(x)
                stamp(a)
                ea['Q1'] = [tog]
            elif kind == 'c14':
                ea['Q1'] = [f"v_add_u32 v{AADDR}, 131072, v{AADDR}\nv_add_u32 v{AADK}, 131072, v{AADK}"]
            elif kind != 'c15':
                stamp(a); a("s_waitcnt vmcnt(0) lgkmcnt(0)"); stamp(a)
                if not ("--xnobar" in sys.argv and kind == 'loop'): a("s_barrier")
                stamp(a)
                if kind in ('c1', 'loop'):
                    nm = "Lspin_" + kind
                    ea = {'Q1': [tog],
                          'Q2': old_only([flag_cmp(), f"s_xor_b32 s{S_M0}, s{S_M0}, 32768"] + chunk_scalars() + [f"s_mov_b32 m0, s{S_M0}"] + mask_test()
                                         + [f"s_cbranch_scc1 {nm}", f"{nm}_r:"] + kv_dma(0)),
                          'P2': old_only([f"s_add_u32 m0, s{S_M0}, 16384", "s_nop 0"] + kv_dma(1) + line_next() + [flag_load()])}
                    if kind == 'loop':
                        eb = {'Q2': old_only([f"s_cmp_gt_u32 s{S_CNT}, 3", "s_cbranch_scc0 Lnowo"] + wo_rows(2) + ["Lnowo:"] + tailpf() + [f"s_cmp_eq_u32 s{S_CNT}, 1", "s_cbranch_scc0 Lno15"]
                                             + chunk_scalars() + [f"s_add_u32 m0, s{S_M0}, 131072"] + mask_test() + ["s_cbranch_scc1 Lspin_15", "Lspin_15_r:"] + kv_dma(0)
                                             + [f"s_add_u32 m0, s{S_M0}, {131072 + 16384}", "s_nop 0"] + kv_dma(1) + ["Lno15:"]),
                              'P2': [f"s_sub_u32 s{S_CNT}, s{S_CNT}, 1", f"s_cmp_lg_u32 s{S_CNT}, 0"]}
                elif kind == 'c13':
                    ea = {'Q1': [tog], 'Q2': old_only([f"s_lshl_b32 s{S_WOM}, s{S_W}, 10", f"s_add_u32 s{S_WOM}, s{S_WOM}, 32768"] + wo_rows(3)), 'P2': old_only(wo_rows(3))}
                    eb = {'Q2': old_only(wo_rows(2))}
        if "--xnoex" in sys.argv and kind == 'loop' and t == 3: ea = {'Q1': [tog]}; eb = {'P2': eb['P2']}
        attn_half(a, t, 'a', ea, skipz=(kind == 'c0' and t == 0)); attn_half(a, t, 'b', eb)

def attention(a):
    attn_chunk(a, 'c0')
    attn_chunk(a, 'c1')
    a(f"s_mov_b32 s{S_CNT}, 11")
    stamp(a, None, "l")
    SPLIT = opt("split", 1)
    def tail():
        stamp(a, None, "l")
        attn_chunk(a, 'c13')
        attn_chunk(a, 'c14')
        attn_chunk(a, 'c15')
    if SPLIT:
        a("s_cbranch_vccz Lattn_y")
        for role in (True, False):
            ROLE[0] = role
            nm = "Lattn_loop" if role else "Lattn_loop_y"
            if not role: a.label("Lattn_y")
            a(".p2align 6")
            a.label(nm)
            attn_chunk(a, 'loop')
            a(f"s_cbranch_scc1 {nm}")
            if SPLIT == 2: tail()
            if role: a("s_branch Lattn_j")
        ROLE[0] = None
        a.label("Lattn_j")
        if SPLIT == 1: tail()
    else:
        a(".p2align 6")
        a.label("Lattn_loop")
        attn_chunk(a, 'loop')
        a("s_cbranch_scc1 Lattn_loop")
        tail()
    a("s_nop 1")
    stamp(a, 4)
    a(pv(AS[3],0,1,'b')); a(sm(AS[3],0,'b')); a(pv(AS[3],1,1,'b')); a(sm(AS[3],1,'b'))
    a(f"""
    s_mov_b32 s26, 0x4e800000        ; 2^30
    s_mov_b32 s27, 65536
    s_nop 5
    """)
    for x in lbroadcast(): a(x)
    a(f"""
    v_cmp_nge_f32 vcc, s26, v{AL['a']}
    v_cmp_nge_f32 s[28:29], s26, v{AL['b']}
    s_nop 0
    s_or_b64 vcc, vcc, s[28:29]
    s_cbranch_vccnz Lattn_fallback
    Lattn_fin:
    """)
    stamp(a, None, "e")
    a(f"""
    v_rcp_f32 v2, v{AL['a']}
    v_rcp_f32 v4, v{AL['b']}
    """)
    for qi, q in enumerate('ab'):
        for u in range(2):
            for i in range(4): a(f"v_pk_mul_f32 {v(AO[q]+8*u+2*i,2)}, {v(AO[q]+8*u+2*i,2)}, {v(2+2*qi,2)} op_sel_hi:[1,0]")
            d = AS[0] + 4*(2*qi+u)
            for x in cvt4([AO[q]+8*u+i for i in range(8)], d): a(x)
            a(f"buffer_store_dwordx4 {v(d,4)}, v6, s[{SRD_O}:{SRD_O+3}], {'0' if qi==0 else 's27'} offen offset:{512*u}{SC1}")

def fallback(a):
    a.label("Lattn_fallback")
    a(f"""
    s_waitcnt vmcnt(0) lgkmcnt(0)
    s_lshl_b32 s26, s{S_B}, 5
    s_lshl_b32 s28, s{S_HP}, 1
    s_add_u32 s26, s26, s28
    s_lshr_b32 s28, s{S_W}, 2
    s_add_u32 s26, s26, s28
    s_lshl_b32 s30, s26, 18
    """)
    make_srd(a, SRD_KV, 48, 49, 30, 262144)
    a(f"""
    s_mov_b32 s{S_SPIN}, {SPIN_LIMIT}
    v_lshrrev_b32 v2, 3, v1
    v_lshl_add_u32 v2, v2, 7, v{AFA}
    Lfb_poll:
    buffer_load_dwordx2 {v(AFL,2)}, v2, s[{SRD_F}:{SRD_F+3}], 0 offen sc1
    s_waitcnt vmcnt(0)
    v_cmp_eq_u64 vcc, s[{S_NONCE}:{S_NONCE+1}], {v(AFL,2)}
    s_sub_u32 s{S_SPIN}, s{S_SPIN}, 1
    s_cbranch_scc1 Lfb_go
    s_cmp_eq_u64 vcc, -1
    s_cbranch_scc0 Lfb_poll
    Lfb_go:
    """)
    for r in list(range(AO['a'], AO['a']+32)) + list(range(AL['a'], AL['a']+8)): a(f"v_mov_b32 v{r}, 0")
    Mr = {'a': AC['a'], 'b': AC['b']}
    a(f"v_mov_b32 v{Mr['a']}, 0xff800000\nv_mov_b32 v{Mr['b']}, 0xff800000\ns_mov_b32 s26, 0")
    a.label("Lfb_loop")
    for j in range(2): a(f"buffer_load_dwordx4 {v(AK[0][j],4)}, v{AVK}, s[{SRD_KV}:{SRD_KV+3}], s26 offen offset:{1024*j} sc1")
    for j in range(2): a(f"buffer_load_dwordx4 {v(AV[0][j],4)}, v{AVO}, s[{SRD_KV}:{SRD_KV+3}], s26 offen offset:{2048+1024*j} sc1")
    a("s_waitcnt vmcnt(0)")
    for q in 'ab':
        S = AS[0]
        a(qk1(S,0,q,"0")); a(qk2(S,0,q)); a("s_nop 15")
        rowmax16(a, S, 2, 3)
        a(f"v_max_f32 v2, v2, v{Mr[q]}\nv_sub_f32 v3, v{Mr[q]}, v2\nv_exp_f32 v3, v3\nv_mov_b32 v{Mr[q]}, v2")
        for i in range(16): a(f"v_sub_f32 v{S+i}, v{S+i}, v2")
        for i in range(16): a(f"v_exp_f32 v{S+i}, v{S+i}")
        for i in range(16): a(f"v_mul_f32 v{AO[q]+i}, v3, v{AO[q]+i}")
        for i in range(4): a(f"v_mul_f32 v{AL[q]+i}, v3, v{AL[q]+i}")
        a("s_nop 1")
        a(pv(S,0,0,q)); a(sm(S,0,q)); a(pv(S,1,0,q)); a(sm(S,1,q))
        a("s_nop 15")
    a("s_add_u32 s26, s26, 4096\ns_cmp_lt_u32 s26, 262144\ns_cbranch_scc1 Lfb_loop")
    for x in lbroadcast(): a(x)
    a("s_branch Lattn_fin")

PACC = 40
PWF = [104, 120]
POF = 168
POLLS = []
def proj_body(a, old):
    vm = VmTrack(); fpos = {}
    R = "o" if old else "y"
    def wreads(p):
        off = (p if p < 16 else p - 16 + 8 if p < 24 else (p - 24) % 4) * 4096
        return [f"ds_read_b64_tr_b16 {v(PWF[p&1]+4*ct+2*h,2)}, v{P_WR[ct]} offset:{off + h*1024}" for ct in range(4) for h in range(2)]
    def check(g, hi=False):
        nm = f"Lpoll{R}{g}"; POLLS.append((nm, hi))
        return [f"s_cmp_lg_u32 s{S_MASK}, -1", f"s_cbranch_scc1 {nm}", f"{nm}_r:"]
    def setline(g): return f"s_xor_b32 s{S_FSO}, s{S_FL0}, {(g & 1) * 128 + (g >> 1) * 256}"
    def force(g, hi=False): return [f"s_mov_b32 s{S_MASK}, 0", setline(g)] + check(g, hi)
    def oload(p):
        vm.issue(("O", p)); vm.issue(("O", p))
        return oload_ins(p)
    PX, YX3 = opt("px", 10), opt("yx3", 5)
    if old:
        a("s_waitcnt vmcnt(4)\ns_barrier")
        stamp(a, None, "e")
        for x in publish(V_FA2): a(x)
        stamp(a, 5)
        for x in [f"s_lshl_b32 s{S_WOM}, s{S_W}, 10"] + wo_rows(4) + [f"s_add_u32 s{S_WOM}, s{S_WOM}, {131072 - 16384}"] + wo_rows(4) + ["s_waitcnt vmcnt(8)"]: a(x)
        OPRE = opt("opre", 6)
        if opt("olow", 1): a("s_setprio 0")
        stamp(a, None, "o")
        for p in range(OPRE):
            if p % 8 == 0:
                for x in force(p // 8, not opt("olow", 1)): a(x)
                stamp(a, None, "o")
            for x in oload(p): a(x)
        a("s_setprio 0")
        nxt = OPRE
    else:
        stamp(a, None, "e")
        YPUB = opt("ypub", 2)
        if YPUB < 0:
            for x in publish(V_FA2): a(x)
        a(f"s_setprio {opt('yprio', 1)}")
        stamp(a, 5)
        a(f"s_cmp_eq_u32 s{S_EARLY}, 1\ns_cbranch_scc1 Learly")
        for x in force(0): a(x)
        for p in range(4):
            for x in oload(p): a(x)
        a.label("Learly")
        for _ in range(1 + (opt("opre", 6) + 7) // 8): stamp(a, None, "o")
        spos = len(vm.ops)
        for p in range(4, DEPTH):
            for x in oload(p): a(x)
        nxt = DEPTH
    for x in wreads(0): a(x)
    stamp(a, 6)
    for p in range(32):
        if p + 1 == 16:
            for ct in range(4): a(f"v_add_u32 v{P_WR[ct]}, {-65536 & 0xffffffff}, v{P_WR[ct]}")
        if p + 1 == 28:
            for ct in range(4): a(f"v_add_u32 v{P_WR[ct]}, 131072, v{P_WR[ct]}")
        wc = vm.wait_count({('O', p)})
        if not old and YPUB >= 0 and p < 4:
            a(f"s_cmp_eq_u32 s{S_EARLY}, 1\ns_cbranch_scc1 Lw{p}a\ns_waitcnt vmcnt({wc})\nLw{p}a:\ns_waitcnt vmcnt({wc + 4}) lgkmcnt(0)")
        else:
            a(f"s_waitcnt vmcnt({wc}) lgkmcnt(0)")
        if not old and p == YPUB:
            for x in [f"s_waitcnt vmcnt({len(vm.ops) - spos})"] + publish(V_FA2)[1:]: a(x)
        gaps = [[] for _ in range(8)]
        for i, r in enumerate(wreads(p + 1) if p + 1 < 32 else []): gaps[i // 2].append(r)
        if not old and p == YX3: gaps[0].append("s_barrier")
        todo = []
        if old:
            todo = list(range(nxt, min(32 if p >= PX else 16, nxt + 2, 16 + p, p + 1 + opt("odold", 6))))
        elif nxt < 32: todo = [nxt]
        gi = 4
        for n in todo:
            if n % 8 == 0:
                g = n // 8
                if old and g == 2: gaps[gi] += ["s_barrier"] + force(g)
                elif g in fpos: gaps[gi] += [f"s_waitcnt vmcnt({len(vm.ops) - fpos[g]})", flag_cmp(), "s_nop 0"] + check(g)
                else: gaps[gi] += force(g)
            o = oload(n)
            gaps[gi].append(o[0]); gaps[gi + 1].append(o[1]); gi += 2
            if (n + 3) % 8 == 0 and n + 3 < 32:
                g = (n + 3) // 8
                gaps[gi - 1] += [setline(g), flag_load()]
                fpos[g] = len(vm.ops)
            nxt = n + 1
        n = 0
        for tt in range(2):
            for ct in (range(4) if tt == 0 else range(3, -1, -1)):
                d = PACC + (tt*4+ct)*4
                a(f"v_mfma_f32_16x16x32_bf16 {v(d,4)}, {v(PWF[p&1]+4*ct,4)}, {v(oslot(p, tt),4)}, {'0' if p==0 else v(d,4)}")
                for x in gaps[n]: a(x)
                n += 1
        if p % 4 == 3: stamp(a, None, "p")
        if p in (1, 9, 20): jitter(a)
    assert nxt == 32

def proj(a):
    a(f"s_mov_b64 s[{SRD_F}:{SRD_F+1}], s[{SRD_F2}:{SRD_F2+1}]\ns_mov_b32 s{SRD_F+2}, 2048")
    a(f"s_cmp_lt_u32 s{S_W}, 4\ns_cselect_b64 vcc, -1, 0\ns_cbranch_scc0 Lproj_y")
    proj_body(a, True)
    a("s_branch Lproj_e\nLproj_y:")
    proj_body(a, False)
    a.label("Lproj_e")
    a(f"""
    v_lshrrev_b32 v4, 4, v1
    v_and_b32 v2, 15, v1
    v_lshlrev_b32 v2, 12, v2
    v_and_b32 v3, 1, v4
    v_lshl_add_u32 v2, v3, 5, v2
    v_lshrrev_b32 v3, 1, v4
    v_lshl_add_u32 v2, v3, 4, v2
    s_mov_b32 s26, 65536
    s_nop 3
    """)
    for tt in range(2):
        for pr in range(2):
            d = POF + (tt*2+pr)*4
            for x in range(2):
                s0 = PACC + (tt*4+2*pr+x)*4
                a(f"v_cvt_pk_bf16_f32 v{d+2*x}, v{s0}, v{s0+1}\nv_cvt_pk_bf16_f32 v{d+2*x+1}, v{s0+2}, v{s0+3}")
            a(f"s_nop 1\nv_permlane16_swap_b32 v{d}, v{d+2}\nv_permlane16_swap_b32 v{d+1}, v{d+3}")
            a(f"buffer_store_dwordx4 {v(d,4)}, v2, s[{SRD_OUT}:{SRD_OUT+3}], {'0' if tt==0 else 's26'} offen offset:{64*pr}{' ' + opt('ofl', 'nt').replace('_', ' ') if opt('ofl', 'nt') else ''}")

def build():
    a = Asm()
    decode(a, "Lend")
    gemm1_setup_dma(a)
    jitter(a)
    stamp(a, 0); dbgstamp(a, 0)
    gemm1_main(a, late_setup())
    stamp(a, 2); dbgstamp(a, 2)
    transition_ab(a)
    stamp(a, 3); jitter(a)
    attention(a)
    jitter(a)
    dbgstamp(a, 3)
    proj(a)
    stamp(a, 7); dbgstamp(a, 4); dbgflush(a)
    stamp_flush(a, 8)
    a.label("Lend")
    a("s_endpgm")
    for nm in ("Lspin_c1a", "Lspin_c1", "Lspin_loop", "Lspin_15"): spin_flags(a, nm)
    a(f"""
    Lnonce_spin:
    s_mov_b32 s{S_SPIN}, {SPIN_LIMIT}
    Lnonce_l:
    buffer_load_dwordx2 {v(V_NON,2)}, v{V_PD+1}, s[92:95], 0 offen sc1
    s_waitcnt vmcnt(0)
    v_readfirstlane_b32 s{S_NONCE}, v{V_NON}
    v_readfirstlane_b32 s{S_NONCE+1}, v{V_NON+1}
    s_sub_u32 s{S_SPIN}, s{S_SPIN}, 1
    s_cbranch_scc1 Lnonce_ok
    s_cmp_eq_u32 s{S_NONCE}, 0
    s_cbranch_scc1 Lnonce_l
    s_branch Lnonce_ok
    """)
    for nm, hi in POLLS: spin(a, nm, [f"s_cmp_lg_u32 s{S_MASK}, -1"], lowprio=hi)
    fallback(a)
    a.label("Lcode_end")
    return a.text()

def main(out):
    P = "concat_heads__mha_block__softmax_full_mha__prompt_kernel"
    txt = f"""; fused QKV projection + attention + output projection (generated)
; @launch grid=(256,1,1) block=(512,1,1) lds=163840
.amdgcn_target "amdgcn-amd-amdhsa--gfx950"
.text
""" + kernel_header(P) + build() + '.section .rodata,"a"\n' + kernel_desc(P, 256, sgpr=102 if DBG or JIT else 96)
    open(out, "w").write(txt)

if __name__ == "__main__":
    args = [x for x in sys.argv[1:] if not x.startswith("--")]
    main(args[0] if args else "concat_heads__mha_block__softmax_full_mha__prompt.s")
```

```python
import sys, struct, math
from dsl import *

def opt(name, default):
    for x in sys.argv:
        if x.startswith(f"--{name}="): return type(default)(x[len(name) + 3:])
    return default
STAMP = "--stamp" in sys.argv
ROT = opt("rot", 0)
PRO = opt("pro", "X0,W0,Q0,B,W1,X1,W2").replace(",", " ")
STEPX = {}
for it in opt("stepx", "0:W3.X2.Q1;1:W4;8:Q2;16:Q3").split(";"):
    if it:
        k, val = it.split(":"); STEPX[int(k)] = val.split(".")
SC1 = "" if "--nosc1" in sys.argv else " sc1"
NTD = " nt" if "d" in opt("nt", "") else (" " + opt("dfl", "").replace("_", " ") if opt("dfl", "") else "")
NTP = " nt" if "p" in opt("nt", "") else ""
NTW = " nt" if "w" in opt("nt", "") else ""
ROTB = opt("rotb", -1)

KV_OFF = 0
O_OFF = 24 << 20
F1_OFF = 32 << 20
F2_OFF = 33 << 20
SLEEP = opt('sleep', 8)
ST_OFF = 64 << 20
QSCALE = struct.unpack("<I", struct.pack("<f", math.log2(math.e) / math.sqrt(32.0)))[0]
SPIN_LIMIT = 1 << 16

S_W, S_B, S_TM, S_HP = 16, 17, 18, 19
S_SOX, S_SOW, S_XB, S_WB = 20, 21, 22, 23
S_EXW = 24
S_NONCE = 80
S_MASK = 82
S_CIDX, S_M0, S_CNT, S_CH, S_WOS, S_WOM, S_FIDX, S_SPIN = 84, 85, 86, 87, 88, 89, 90, 91
S_WOI, S_WOB = 20, 21
PRIO = opt('prio', 1)
SRD_KV, SRD_F, SRD_WO, SRD_O = 4, 8, 52, 12
SRD_KVS = 56
SRD_OUT, SRD_OL, SRD_F2 = 36, 32, 76
S_FL0 = 40

def make_srd(a, d, lo, hi, off_sgpr, nrec):
    a(f"s_add_u32 s{d}, s{lo}, s{off_sgpr}\ns_addc_u32 s{d+1}, s{hi}, 0\ns_and_b32 s{d+1}, s{d+1}, 0xffff")
    a(f"s_mov_b32 s{d+2}, {nrec}\ns_mov_b32 s{d+3}, 0x00020000")

NST = [0]
STG = opt("stg", "m")
def stamp(a, i=None, g="m"):
    if not STAMP: return
    if i is None: g = "a" if g == "m" else g
    if g not in STG: return
    a("s_memrealtime s[60:61]\ns_memtime s[62:63]\ns_waitcnt lgkmcnt(0)\ns_lshl_b64 exec, 1, s64\nv_mov_b32 v0, s60\nv_mov_b32 v203, s62\ns_mov_b64 exec, -1\ns_add_u32 s64, s64, 1")
DBG = "--dbg" in sys.argv
def dbgstamp(a, i, inv=False):
    if DBG: a(f"s_memrealtime s[60:61]\ns_waitcnt lgkmcnt(0)\ns_mov_b32 s{96+i}, s60")
def dbgflush(a):
    if not DBG: return
    a(f"""
    s_cmp_lg_u32 s{S_W}, 7
    s_cbranch_scc1 Ldbg_e
    s_mov_b64 exec, 1
    s_and_b32 s26, s{S_HP}, 7
    s_lshl_b32 s26, s26, 2
    v_mov_b32 v2, s26
    s_sub_u32 s27, s98, s96
    v_mov_b32 v3, s27
    buffer_atomic_umax v3, v2, s[92:95], 0 offen offset:8
    v_mov_b32 v4, 0
    s_sub_u32 s27, s97, s96
    v_mov_b32 v5, s27
    buffer_atomic_umax v5, v4, s[92:95], 0 offen offset:40
    s_sub_u32 s27, s99, s98
    v_mov_b32 v6, s27
    buffer_atomic_umax v6, v4, s[92:95], 0 offen offset:44
    s_sub_u32 s27, s100, s99
    v_mov_b32 v7, s27
    buffer_atomic_umax v7, v4, s[92:95], 0 offen offset:48
    s_sub_u32 s27, s100, s96
    v_mov_b32 v8, s27
    buffer_atomic_umax v8, v4, s[92:95], 0 offen offset:52
    s_not_b32 s27, s96
    v_mov_b32 v9, s27
    buffer_atomic_umax v9, v4, s[92:95], 0 offen offset:56
    v_mov_b32 v10, s100
    buffer_atomic_umax v10, v4, s[92:95], 0 offen offset:60
    Ldbg_e:
    """)
JIT = opt("jit", 0)
JC = [0]
def jitter(a):
    if not JIT: return
    JC[0] += 1
    k = JC[0]
    a(f"""
    s_mul_i32 s96, s2, {37 + 2 * k}
    s_mul_i32 s97, s{S_W}, {JIT * 11 + k}
    s_add_u32 s96, s96, s97
    s_lshr_b32 s97, s96, 3
    s_xor_b32 s96, s96, s97
    s_and_b32 s96, s96, 31
    Ljit{k}:
    s_cmp_eq_u32 s96, 0
    s_cbranch_scc1 Ljit{k}e
    s_sleep {JIT}
    s_sub_u32 s96, s96, 1
    s_branch Ljit{k}
    Ljit{k}e:
    """)
def stamp_flush(a, n):
    if not STAMP: return
    a(f"""
    s_lshl_b32 s26, s2, 3
    s_add_u32 s26, s26, s{S_W}
    s_lshl_b32 s26, s26, 9
    s_add_u32 s30, s26, {ST_OFF}
    """)
    make_srd(a, 56, 48, 49, 30, 512)
    a("v_lshlrev_b32 v2, 3, v1\nv_mov_b32 v4, v0\nv_mov_b32 v5, v203\nbuffer_store_dwordx2 v[4:5], v2, s[56:59], 0 offen")

ACC = 8
def acc(tt, f): return ACC + (tt * 6 + f) * 4
XF = [[104 + 4*i for i in range(4)], [144 + 4*i for i in range(4)]]
WF = [[120 + 4*i for i in range(6)], [160 + 4*i for i in range(6)]]
V_XR = [208, 209]; V_WR = [210, 211]; V_XD = list(range(184, 192)); V_WD = [212, 213, 214]
V_PX, V_PW, V_PD = 218, 219, 220
V_NON = 222
LDS_W = 98304

def decode(a, end):
    a(f"""
    s_cmp_ge_u32 s2, 256
    s_cbranch_scc1 {end}
    s_load_dwordx16 s[32:47], s[0:1], 0
    s_load_dwordx2 s[48:49], s[0:1], 64
    v_lshrrev_b32 v1, 6, v0
    s_and_b32 s26, s2, 7
    s_lshr_b32 s27, s2, 3
    v_readfirstlane_b32 s{S_W}, v1
    s_lshr_b32 s{S_B}, s26, 2
    s_and_b32 s28, s26, 1
    s_lshl_b32 s28, s28, 2
    s_and_b32 s29, s27, 3
    s_add_u32 s{S_TM}, s28, s29
    s_bfe_u32 s28, s26, 0x10001
    s_lshl_b32 s28, s28, 3
    s_lshr_b32 s29, s27, 2
    s_add_u32 s{S_HP}, s28, s29
    v_and_b32 v1, 63, v0
    s_mul_i32 s51, {'s26' if ROTB < 0 else 's17'}, {ROT if ROTB < 0 else ROTB}
    s_and_b32 s51, s51, 15
    s_lshl_b32 s14, s51, 1
    s_lshl_b32 s15, s51, 7
    s_mov_b32 s64, 0
    """)

NLAB = [0]
ROLE = [None]
def if_vcc(ins, want=True):
    if ROLE[0] is not None: return list(ins) if ROLE[0] == want else []
    NLAB[0] += 1
    return [f"s_cbranch_vcc{'z' if want else 'nz'} Lskip{NLAB[0]}"] + ins + [f"Lskip{NLAB[0]}:"]
old_only = if_vcc

def gemm1_setup_dma(a):
    a(f"""
    s_cmp_lt_u32 s{S_W}, 4
    s_cselect_b64 vcc, -1, 0
    s_cbranch_scc0 Lsetup1
    s_setprio 1
    Lsetup1:
    s_and_b32 s30, s{S_W}, 3
    s_mul_i32 s{S_XB}, s30, 24576
    s_mul_i32 s26, s30, 3072
    s_add_u32 s{S_WB}, s26, {LDS_W}
    v_lshrrev_b32 v2, 3, v1
    s_lshl_b32 s26, s30, 6
    v_add_u32 v7, s26, v2
    v_and_b32 v3, 7, v1
    v_lshrrev_b32 v4, 4, v1
    v_xor_b32 v5, v3, v4
    v_lshlrev_b32 v5, 4, v5
    v_lshl_add_u32 v{V_XD[0]}, v7, 11, v5
    v_xor_b32 v5, 64, v5
    v_lshl_add_u32 v{V_XD[1]}, v7, 11, v5
    v_add_u32 v{V_XD[1]}, {8*2048}, v{V_XD[1]}
    """)
    for q in range(2, 8): a(f"v_add_u32 v{V_XD[q]}, {16*2048}, v{V_XD[q-2]}")
    a(f"s_mul_i32 s26, s30, 24")
    for q in range(3):
        a(f"""
        v_add_u32 v7, s26, v2            ; R
        s_add_u32 s26, s26, 8
        v_lshrrev_b32 v4, 5, v7          ; sec
        v_and_b32 v7, 31, v7             ; k
        v_and_b32 v5, 2, v7
        v_bfe_u32 v6, v7, 3, 1
        v_lshl_or_b32 v5, v6, 2, v5      ; swz*2
        v_xor_b32 v5, v3, v5             ; chunk
        v_lshlrev_b32 v5, 4, v5
        v_lshl_add_u32 v5, v4, 11, v5
        v_mul_u32_u24 v7, 6144, v7
        v_add_u32 v{V_WD[q]}, v7, v5
        """)
    a(f"""
    s_waitcnt lgkmcnt(0)
    s_cmp_eq_u32 s{S_B}, 0
    s_cselect_b32 s26, s32, s38
    s_cselect_b32 s27, s33, s39
    s_cselect_b32 s28, s34, s40
    s_cselect_b32 s29, s35, s41
    s_lshl_b32 s30, s{S_TM}, 19
    """)
    make_srd(a, 4, 26, 27, 30, 524288)
    a(f"s_lshl_b32 s30, s{S_HP}, 7\ns_sub_u32 s31, {1024*6144}, s30")
    make_srd(a, 8, 28, 29, 30, "s31")

def gemm1_setup_rest(a):
    a(f"""
    s_and_b32 s30, s{S_W}, 3
    s_mul_i32 s30, s30, 24576
    v_and_b32 v2, 15, v1             ; c
    v_lshrrev_b32 v4, 4, v1          ; G
    v_lshrrev_b32 v5, 1, v2
    v_xor_b32 v5, v4, v5
    v_lshlrev_b32 v5, 4, v5
    v_lshl_add_u32 v5, v2, 7, v5
    v_add_u32 v{V_XR[0]}, s30, v5
    v_xor_b32 v{V_XR[1]}, 64, v{V_XR[0]}
    v_bfe_u32 v2, v1, 2, 2           ; r
    v_and_b32 v3, 3, v1              ; c4
    v_lshl_add_u32 v5, v4, 3, v2     ; k = 8G + r
    v_lshrrev_b32 v6, 1, v2
    v_and_b32 v7, 1, v4
    v_lshl_or_b32 v6, v7, 1, v6      ; swz
    s_lshr_b32 s30, s{S_W}, 2
    s_lshl_b32 s30, s30, 1
    v_xor_b32 v6, s30, v6
    v_lshlrev_b32 v6, 5, v6
    v_lshl_add_u32 v6, v3, 3, v6
    v_lshl_add_u32 v6, v5, 7, v6
    v_add_u32 v{V_WR[0]}, {LDS_W}, v6
    v_xor_b32 v{V_WR[1]}, 32, v{V_WR[0]}
    """)
    a(f"s_lshr_b32 s30, s{S_TM}, 2\ns_lshl_b32 s30, s30, 21")
    make_srd(a, 52, 26, 27, 30, 2 << 20)
    a(f"s_lshr_b32 s30, s{S_HP}, 3\ns_lshl_b32 s30, s30, 10\ns_sub_u32 s31, {1024*6144}, s30")
    make_srd(a, 56, 28, 29, 30, "s31")
    toks = PRO + " ".join(" ".join(x) for x in STEPX.values())
    if "Q" in toks or "R" in toks:
        for l in q_setup(): a(l)
    if "P" in toks: a(f"""
    s_lshr_b32 s26, s2, 3
    s_lshl_b32 s26, s26, 3
    s_add_u32 s26, s26, s{S_W}       ; u
    s_lshl_b32 s27, s26, 13
    v_and_b32 v2, 3, v1
    v_lshlrev_b32 v2, 11, v2
    v_lshrrev_b32 v3, 2, v1
    v_lshl_add_u32 v2, v3, 7, v2
    v_add_u32 v{V_PX}, s27, v2
    v_mul_u32_u24 v2, 43, v1
    v_lshrrev_b32 v2, 8, v2
    v_mul_u32_u24 v3, 6, v2
    v_sub_u32 v3, v1, v3
    s_and_b32 s27, s26, 3
    s_mul_i32 s27, s27, 6
    v_add_u32 v3, s27, v3
    v_lshrrev_b32 v4, 3, v3
    v_and_b32 v3, 7, v3
    v_lshlrev_b32 v3, 7, v3
    v_lshl_add_u32 v3, v4, 11, v3
    s_lshr_b32 s27, s26, 2
    v_lshl_add_u32 v2, v2, 6, s27
    v_mul_u32_u24 v2, 6144, v2
    v_add_u32 v{V_PW}, v2, v3
    """)
    a(f"""
    v_mov_b32 v{V_PD+1}, 0
    s_or_b32 s26, s2, s{S_W}
    s_cmp_lg_u32 s26, 0
    s_cbranch_scc1 Lnononce
    s_memrealtime s[26:27]
    s_mov_b32 s28, s46
    s_and_b32 s29, s47, 0xffff
    s_mov_b32 s30, 256
    s_mov_b32 s31, 0x00020000
    s_waitcnt lgkmcnt(0)
    s_or_b32 s26, s26, 1
    v_mov_b32 v2, s26
    v_mov_b32 v3, s27
    s_mov_b64 exec, 1
    buffer_store_dwordx2 v[2:3], v{V_PD+1}, s[28:31], 0 offen sc1
    s_mov_b64 exec, -1
    Lnononce:
    """)

def pf_batch(s0, n):
    return [f"s_add_u32 s13, s51, {s0}", "s_and_b32 s13, s13, 15", f"s_bfm_b64 exec, {6*n}, 0", f"s_mul_i32 s50, s13, {64*6144}",
            f"buffer_load_dword v{V_PD}, v{V_PW}, s[56:59], s50 offen{NTP}", "s_lshl_b32 s13, s13, 7",
            f"s_bfm_b64 exec, {4*n}, 0",
            f"buffer_load_dword v{V_PD}, v{V_PX}, s[52:55], s13 offen{NTP}", "s_mov_b64 exec, -1"]
V_QW, V_QX = 218, 219
SLOWC = opt("slowc", 3)
def q_setup():
    return [f"s_lshr_b32 s12, s2, 3", "s_lshl_b32 s12, s12, 3", f"s_add_u32 s12, s12, s{S_W}",
            f"v_lshlrev_b32 v{V_QW}, 11, v1", f"v_add_u32 v{V_QW}, {SLOWC*128}, v{V_QW}",
            "v_and_b32 v2, 3, v1", "v_lshlrev_b32 v2, 11, v2", "v_bfe_u32 v3, v1, 2, 1", "v_lshl_add_u32 v2, v3, 10, v2",
            "s_lshl_b32 s13, s12, 13", f"s_add_u32 s13, s13, {SLOWC*128}", f"v_add_u32 v{V_QX}, s13, v2",
            "s_lshl_b32 s13, s51, 6", "s_add_u32 s12, s12, s13"]
def q_batch(i):
    return [f"s_add_u32 s13, s12, {256*i}", "s_and_b32 s13, s13, 1023", "s_mov_b64 exec, 7", "s_mul_i32 s13, s13, 6144",
            f"buffer_load_dword v{V_NON+1}, v{V_QW}, s[56:59], s13 offen", "s_mov_b64 exec, -1"]
def r_batch():
    return ["s_mov_b64 exec, 0xff", f"buffer_load_dword v{V_NON+1}, v{V_QX}, s[52:55], 0 offen", "s_mov_b64 exec, -1"]
def dma_x(stage, q):
    return [f"s_add_u32 m0, s{S_XB}, {(stage % 3)*8192 + q*1024}", f"buffer_load_dwordx4 v{V_XD[q]}, s[4:7], s{S_SOX} offen{NTD} lds"]
def dma_w(step, q):
    return [f"s_add_u32 m0, s{S_WB}, {(step % 5)*12288 + q*1024}", f"buffer_load_dwordx4 v{V_WD[q]}, s[8:11], s{S_SOW} offen{NTD} lds"]
def frag_reads(step):
    p = step & 1; xs = (step >> 1) % 3; ws = step % 5
    X = [f"ds_read_b128 {v(XF[p][tt],4)}, v{V_XR[p]} offset:{xs*8192 + tt*2048}" for tt in range(4)]
    W = [[f"ds_read_b64_tr_b16 {v(WF[p][f]+2*h,2)}, v{V_WR[f&1]} offset:{ws*12288 + (f>>1)*4096 + h*512}" for h in range(2)] for f in range(6)]
    return [X[0]] + W[0] + W[1] + W[2] + [X[1]] + W[3] + W[4] + W[5] + [X[2], X[3]]
def gemm1_mfmas(step):
    p = step & 1; out = []
    if opt("gord", 1):
        order = [(tt, f) for tt in range(4) for f in (range(4) if tt % 2 == 0 else range(3, -1, -1))] + [(tt, f) for tt in range(3, -1, -1) for f in ((4, 5) if tt % 2 else (5, 4))]
    else:
        order = [(tt, f) for tt in range(4) for f in (range(6) if tt % 2 == 0 else range(5, -1, -1))]
    for tt, f in order:
        d = acc(tt, f)
        A, B = (WF[p][f], XF[p][tt]) if f < 4 else (XF[p][tt], WF[p][f])
        out.append(f"v_mfma_f32_16x16x32_bf16 {v(d,4)}, {v(A,4)}, {v(B,4)}, {'0' if step == 0 else v(d,4)}")
    return out

HB = opt('hb', 1)
RD0, DG0, DGS = opt('rd0', 0), opt('dg0', 1), opt('dgs', 10)
def gemm1_main(a, late):
    vm = VmTrack()
    def group(tok):
        if tok == "B": return [["s_barrier"]], []
        if tok[0] == "Q": return [q_batch(int(tok[1:]))], ["pf"]
        if tok[0] == "R": return [r_batch()], ["pf"]
        if tok[0] == "P":
            s0, n = map(int, tok[1:].split("_")); return [pf_batch(s0, n)], ["pf", "pf"]
        if tok[0] == "W":
            st = int(tok[1:]); g = [f"s_add_u32 s{S_SOW}, s14, {st}", f"s_and_b32 s{S_SOW}, s{S_SOW}, 31"]
            for q in range(3):
                m, l = dma_w(st, q); g += [m, f"s_mul_i32 s{S_SOW}, s{S_SOW}, {32*6144}" if q == 0 else "s_nop 0", l]
            return [old_only(g)], [("W", st)] * 3
        if tok == "Y0":
            g = {}
            for role, qs in ((True, range(0, 4)), (False, range(4, 8))):
                g[role] = [f"s_and_b32 s{S_SOX}, s15, 0x780"]
                for q in qs:
                    m, l = dma_x(0, q); g[role] += [m, "s_nop 0", l]
            return [if_vcc(g[True], True) + if_vcc(g[False], False)], [("X", 0)] * 4
        if tok[0] == "X":
            if "h" in tok: S, h = tok[1:].split("h"); S = int(S); qs = range(0, 4) if h == "0" else range(4, 8)
            else: S = int(tok[1:]); qs = range(8)
            g = [f"s_add_u32 s{S_SOX}, s15, {S*128}"]
            for q in qs:
                m, l = dma_x(S, q); g += [m, f"s_and_b32 s{S_SOX}, s{S_SOX}, 0x780" if q == qs[0] else "s_nop 0", l]
            return [old_only(g)], [("X", S)] * len(qs)
    first = True
    for tok in PRO.split():
        g, t = group(tok)
        for x in g:
            for y in x: a(y)
        for y in t: vm.issue(y)
        if tok == "W0":
            gemm1_setup_rest(a)
    if "Y0" in PRO:
        for x in if_vcc(["s_waitcnt vmcnt(0)"], False): a(x)
    a(f"s_waitcnt vmcnt({vm.wait_count({('X',0),('W',0)})})")
    a("s_barrier")
    stamp(a, 1); dbgstamp(a, 1)
    for l in frag_reads(0): a(l)
    for st in range(32):
        bar = (not HB) or st == 0 or st % 2 == 1
        if st == 31:
            a("s_waitcnt vmcnt(0) lgkmcnt(0)")
        elif bar:
            ahead = [st + 1] + ([st + 2] if HB and st % 2 == 1 else [])
            need = {("W", x) for x in ahead} | {("X", x >> 1) for x in ahead}
            for nd in need: assert vm.ops.count(nd) == (3 if nd[0] == "W" else 8) or nd == ("X", 0), (st, nd)
            a(f"s_waitcnt vmcnt({min(63, vm.wait_count(need))}) lgkmcnt(0)")
        else:
            a("s_waitcnt lgkmcnt(0)")
        if bar: a("s_barrier")
        if st % 4 == 0: stamp(a, None, "g")
        if st in (2, 9, 30): jitter(a)
        M = gemm1_mfmas(st)
        if st == 31:
            a.label("Lgemm_end")
            last_step(a, late[31]); break
        R = frag_reads(st + 1) if st + 1 < 32 else []
        toks = list(STEPX.get(st, []))
        if not HB:
            if st + 5 < 32: toks.append(f"W{st+5}")
        elif st >= 1 and st + 4 < 32:
            toks.append(f"W{st+4}")
        if st >= 1 and ((st - 1) >> 1) + 3 < 16: toks.append(f"X{((st-1)>>1)+3}h{0 if st % 2 == 1 else 1}")
        D = []
        for tok in toks:
            g, t = group(tok); D += g
            for y in t: vm.issue(y)
        gaps = [[] for _ in range(24)]
        for i, r in enumerate(R): gaps[i + RD0].append(r)
        for i, d in enumerate(D): gaps[min(23, DG0 + (i * DGS if len(D) <= 3 else (i * (23 - DG0)) // len(D)))] += d
        lt = late.get(st, [])
        assert len(lt) <= 24
        for i, x in enumerate(lt):
            gaps[i].append(x)
            if x.startswith("buffer_"): vm.issue("late")
        for i, m in enumerate(M):
            a(m)
            for x in gaps[i]:
                if "--xnodma" in sys.argv and x.endswith("lds") and st > 3: continue
                if "--xnord" in sys.argv and x.startswith("ds_read") and st > 3: continue
                a(x)

AS = [8, 24, 40, 56]
AO = {'a': 224, 'b': 240}
AQ = {('a',0): 104, ('a',1): 108, ('b',0): 112, ('b',1): 116}
AC = {'a': 120, 'b': 136}
AK = [[152, 156], [160, 164]]
AV = [[168, 172], [176, 180]]
AL = {'a': 184, 'b': 188}
ASEL = 192; AIDX = 196; AADDR = 197; AVO = 198; AWD = 199
AFL = 200
AFA = 202
V_VS, V_VL = 205, 207
AADK, AVK = 204, 206
V_FA = 221
S_CH2 = 22
P_WR = [212, 213, 214, 215]; P_OV = [[216, 217], [218, 219]]; V_FA2 = 220
S_OSO = 64 if not STAMP else 66
def qk1(Y, kb, q, c=None): return f"v_mfma_f32_32x32x16_bf16 {v(Y,16)}, {v(AK[kb][0],4)}, {v(AQ[(q,0)],4)}, {v(AC[q],16) if c is None else c}"
def qk2(Y, kb, q): return f"v_mfma_f32_32x32x16_bf16 {v(Y,16)}, {v(AK[kb][1],4)}, {v(AQ[(q,1)],4)}, {v(Y,16)}"
def pv(Z, h, vb, q): return f"v_smfmac_f32_32x32x32_bf16 {v(AO[q],16)}, {v(AV[vb][h],4)}, {v(Z+8*h,8)}, v{AIDX}"
def sm(Z, h, q): return f"v_smfmac_f32_16x16x64_bf16 {v(AL[q],4)}, {v(ASEL,4)}, {v(Z+8*h,8)}, v{AIDX}"
def srd(d, lo, hi, off, nrec):
    return [f"s_add_u32 s{d}, s{lo}, s{off}\ns_addc_u32 s{d+1}, s{hi}, 0", f"s_and_b32 s{d+1}, s{d+1}, 0xffff", f"s_mov_b32 s{d+2}, {nrec}", f"s_mov_b32 s{d+3}, 0x00020000"]

CODEPF = opt('codepf', 12)
SEL2 = opt('sel2', 0)
def lbroadcast():
    if not SEL2: return []
    return [f"v_mov_b32 v{AL[q]+1}, v{AL[q]}" for q in 'ab'] + ['s_nop 1'] + [f"v_permlane32_swap_b32 v{AL[q]}, v{AL[q]+1}" for q in 'ab']
def late_setup():
    L = {}
    if CODEPF:
        L[CODEPF] = ["s_getpc_b64 s[26:27]\nLpcref:", f"s_and_b32 s28, s{S_W}, 3", "s_lshl_b32 s28, s28, 13", "v_lshlrev_b32 v2, 7, v1", "v_add_u32 v2, s28, v2",
                     "v_min_u32 v2, Lcode_end-Lgemm_end-4, v2", "s_add_u32 s26, s26, Lgemm_end-Lpcref\ns_addc_u32 s27, s27, 0", "v_mov_b32 v3, s27",
                     "v_add_co_u32 v2, s[28:29], s26, v2", "s_nop 1", "v_addc_co_u32 v3, s[28:29], 0, v3, s[28:29]",
                     "\n".join(if_vcc([f"global_load_dword v{V_NON+1}, v[2:3], off"], False))]
    L[18] = [f"v_mov_b32 v{AO['a']+i}, 0" for i in range(24)]
    L19OLD = [f"v_mov_b32 v{AO['a']+24+i}, 0" for i in range(8)] + \
            [f"v_lshlrev_b32 v{AVO}, 4, v1", "v_and_b32 v2, 7, v1", f"v_lshlrev_b32 v{AFA}, 3, v2", f"s_lshr_b32 s26, s{S_W}, 2", "s_lshl_b32 s26, s26, 14",
             f"v_add_u32 v{AADDR}, s26, v{AVO}", f"v_mov_b32 v{AIDX}, 0xdddddddd",
             "v_bfe_u32 v2, v1, 2, 1", "v_mov_b32 v3, 0x3f803f80", "v_cmp_eq_u32 s[28:29], 0, v2", "s_nop 1",
             f"v_cndmask_b32 v{ASEL}, 0, v3, s[28:29]", f"v_cndmask_b32 v{ASEL+1}, 0, v3, s[28:29]", f"v_xor_b32 v{ASEL+2}, v3, v{ASEL}", f"v_xor_b32 v{ASEL+3}, v3, v{ASEL}"]
    L[19] = [f"v_mov_b32 v{AO['a']+24+i}, 0" for i in range(8)] + \
            [f"v_lshlrev_b32 v{AVO}, 4, v1", "v_and_b32 v2, 7, v1", f"v_lshlrev_b32 v{AFA}, 3, v2", f"s_lshr_b32 s26, s{S_W}, 2", "s_lshl_b32 s26, s26, 14",
             f"v_add_u32 v{AADDR}, s26, v{AVO}", f"v_mov_b32 v{AIDX}, 0xdddddddd",
             f"v_and_b32 v2, {15 if SEL2 else 7}, v1", "v_mov_b32 v3, 0x3f803f80", "v_cmp_eq_u32 s[28:29], 0, v2", f"v_cmp_eq_u32 s[30:31], 4, v2",
             f"v_cndmask_b32 v{ASEL}, 0, v3, s[28:29]", f"v_cndmask_b32 v{ASEL+1}, 0, v3, s[28:29]", f"v_cndmask_b32 v{ASEL+2}, 0, v3, s[30:31]", f"v_cndmask_b32 v{ASEL+3}, 0, v3, s[30:31]"] \
            if opt("sel1", 1) else L19OLD
    L[20] = ["v_and_b32 v2, 15, v1", "v_lshrrev_b32 v4, 4, v1", "v_lshlrev_b32 v4, 9, v4", f"v_lshl_add_u32 v{V_VS}, v2, 4, v4",
             "v_bfe_u32 v2, v1, 2, 1", "v_bfe_u32 v3, v1, 3, 2", "v_and_b32 v4, 35, v1", "v_lshl_add_u32 v4, v2, 4, v4", "v_lshl_add_u32 v4, v3, 2, v4",
             f"v_lshlrev_b32 v{AVK}, 4, v4", f"v_sub_u32 v2, v{AADDR}, v{AVO}", f"v_add_u32 v{AADK}, v2, v{AVK}",
             f"s_and_b32 s26, s{S_W}, 2", "s_lshl_b32 s26, s26, 14", f"s_and_b32 s27, s{S_W}, 1", "s_lshl_b32 s27, s27, 13", "s_add_u32 s26, s26, s27",
             f"s_lshr_b32 s27, s{S_W}, 2", "s_lshl_b32 s27, s27, 14", "s_add_u32 s26, s26, s27", f"v_add_u32 v{V_VL}, s26, v{V_VS}"]
    L[21] = ["v_lshrrev_b32 v2, 3, v1", "v_and_b32 v3, 7, v1", "v_lshrrev_b32 v4, 4, v1", "v_lshlrev_b32 v4, 1, v4", "v_xor_b32 v4, v3, v4",
             "v_lshlrev_b32 v4, 4, v4", f"v_lshl_add_u32 v{AWD}, v2, 11, v4",
             f"s_cmp_eq_u32 s{S_B}, 0\ns_cselect_b32 s26, s36, s42\ns_cselect_b32 s27, s37, s43", f"s_lshl_b32 s30, s{S_HP}, 7", f"s_sub_u32 s31, {1024*2048}, s30"] \
            + srd(SRD_WO, 26, 27, 30, "s31") + ["s_mov_b32 s92, s46", "s_and_b32 s93, s47, 0xffff", "s_mov_b32 s94, 256", "s_mov_b32 s95, 0x00020000"]
    if WARMF:
        L[22] = [f"s_lshl_b32 s28, s{S_B}, 4", f"s_add_u32 s28, s28, s{S_HP}", "s_lshl_b32 s28, s28, 10", f"s_add_u32 s30, s28, {F1_OFF}",
                 f"s_lshl_b32 s28, s{S_B}, 3", f"s_add_u32 s28, s28, s{S_TM}", "s_lshl_b32 s28, s28, 11", f"s_add_u32 s31, s28, {F2_OFF}",
                 "s_mov_b32 s76, s48", "s_and_b32 s77, s49, 0xffff", f"s_mov_b32 s78, {34 << 20}", "s_mov_b32 s79, 0x00020000", "v_lshlrev_b32 v2, 7, v1",
                 "\n".join(if_vcc(["s_mov_b64 exec, 0xff", f"buffer_load_dword v{V_NON+1}, v2, s[76:79], s30 offen sc1",
                                   "s_mov_b64 exec, 0xffff", f"buffer_load_dword v{V_NON+1}, v2, s[76:79], s31 offen sc1", "s_mov_b64 exec, -1"], False))]
    L[27] = [f"v_mov_b32 v{AL['a']+i}, 0" for i in range(8)] + \
            [f"s_lshl_b32 s26, s{S_B}, 5", f"s_lshl_b32 s27, s{S_HP}, 1", "s_add_u32 s26, s26, s27",
             f"s_and_b32 s28, s{S_W}, 3", "s_lshl_b32 s29, s28, 12", "s_lshl_b32 s30, s26, 18", "s_add_u32 s31, s30, s29", "s_sub_u32 s50, 524288, s29"] \
            + srd(SRD_KV, 48, 49, 31, "s50") + [f"s_lshr_b32 s27, s{S_W}, 2", "s_add_u32 s26, s26, s27", "s_lshl_b32 s30, s26, 18"]
    L[28] = [f"buffer_load_dwordx2 {v(V_NON,2)}, v{V_PD+1}, s[92:95], 0 offen sc1",
             f"s_mov_b32 s{S_WOI}, -1", f"s_lshl_b32 s{S_WOB}, s{S_W}, 14", f"s_lshl_b32 s27, s{S_W}, 10", f"s_add_u32 s{S_WOM}, s27, 65536",
             f"s_lshl_b32 s{S_M0}, s{S_W}, 12", f"s_mov_b32 s{S_CIDX}, 16384", f"s_lshl_b32 s23, s{S_TM}, 15", f"s_lshr_b32 s51, s{S_W}, 1", f"s_mov_b32 s{S_EARLY}, 0"]
    L[29] = [f"s_lshl_b32 s27, s{S_TM}, 3", "s_lshl_b32 s28, s28, 1", "s_add_u32 s27, s27, s28", "s_lshl_b32 s29, s27, 12", "s_add_u32 s31, s30, s29"] \
            + srd(SRD_KVS, 48, 49, 31, 8192) + ["s_mov_b32 s50, 4096",
             f"s_lshl_b32 s28, s{S_B}, 22", "s_lshl_b32 s29, s27, 16", "s_add_u32 s31, s28, s29", "s_and_b32 s28, s26, 31", "s_lshl_b32 s28, s28, 10",
             "s_add_u32 s31, s31, s28", f"s_add_u32 s31, s31, {O_OFF}"] + srd(SRD_O, 48, 49, 31, 131072)
    L[30] = [f"s_lshl_b32 s28, s{S_B}, 4", f"s_add_u32 s28, s28, s{S_HP}", "s_lshl_b32 s28, s28, 10", f"s_add_u32 s31, s28, {F1_OFF}"] + srd(SRD_F, 48, 49, 31, 1024) \
            + [f"s_bitcmp0_b32 s{S_W}, 1\ns_cselect_b64 vcc, -1, 0", f"s_mov_b32 s26, {QSCALE}", f"s_mov_b32 s27, {QSCALE}"]
    L[23] = [f"s_lshl_b32 s28, s{S_B}, 3", f"s_add_u32 s28, s28, s{S_TM}", "s_lshl_b32 s28, s28, 11", f"s_add_u32 s30, s28, {F2_OFF}"] + srd(SRD_F2, 48, 49, 30, 2048) \
            + [f"s_lshl_b32 s28, s{S_B}, 22", f"s_lshl_b32 s29, s{S_TM}, 19", "s_add_u32 s30, s28, s29", f"s_lshl_b32 s29, s{S_W}, 16", "s_add_u32 s30, s30, s29",
               f"s_add_u32 s30, s30, {O_OFF}"] + srd(SRD_OL, 48, 49, 30, 65536)
    L[24] = [f"s_lshl_b32 s28, s{S_TM}, 20", f"s_lshl_b32 s29, s{S_W}, 17", "s_add_u32 s30, s28, s29", f"s_lshl_b32 s29, s{S_B}, 11", "s_add_u32 s30, s30, s29",
             f"s_lshl_b32 s29, s{S_HP}, 7", "s_add_u32 s30, s30, s29", f"s_sub_u32 s31, {2048*4096}, s30"] + srd(SRD_OUT, 44, 45, 30, "s31") \
            + [f"s_and_b32 s26, s{S_HP}, 8", "s_lshl_b32 s27, s26, 11", f"v_add_u32 v{P_OV[0][0]}, s27, v{AVO}", f"v_add_u32 v{P_OV[0][1]}, 32768, v{P_OV[0][0]}",
               f"v_xor_b32 v{P_OV[1][0]}, 16384, v{P_OV[0][0]}", f"v_xor_b32 v{P_OV[1][1]}, 16384, v{P_OV[0][1]}",
               "s_lshl_b32 s26, s26, 4", f"s_lshr_b32 s27, s{S_W}, 1", "s_lshl_b32 s27, s27, 9", f"s_add_u32 s{S_FL0}, s26, s27"]
    L[25] = [x for j in range(8) for x in (f"s_add_u32 s26, s{S_HP}, {j}", "s_and_b32 s26, s26, 7", f"s_lshl_b32 s{S_OSO+j}, s26, 11")]
    L[26] = [f"s_and_b32 s26, s{S_W}, 3", "s_lshl_b32 s26, s26, 6", f"s_lshr_b32 s27, s{S_W}, 2", "s_lshl_b32 s27, s27, 5", "s_add_u32 s26, s26, s27",
             f"s_and_b32 s27, s{S_HP}, 8", f"s_add_u32 s27, s27, s{S_HP}", "s_add_u32 s26, s26, s27", "s_lshl_b32 s26, s26, 3", f"v_mov_b32 v{V_FA2}, s26",
             "v_and_b32 v4, 15, v1", "v_lshlrev_b32 v4, 4, v4", "v_bfe_u32 v5, v1, 4, 1", "v_lshl_add_u32 v4, v5, 15, v4", "v_lshrrev_b32 v5, 5, v1", "v_lshl_add_u32 v6, v5, 8, v4"]
    L[30] += ["v_lshrrev_b32 v4, 4, v1", "v_bfe_u32 v2, v1, 2, 2", "v_and_b32 v3, 3, v1", "v_and_b32 v5, 1, v4", "v_lshrrev_b32 v4, 1, v4", "v_lshl_add_u32 v7, v5, 2, v2",
              "v_lshl_add_u32 v4, v4, 4, v7", "v_lshrrev_b32 v7, 1, v7", "v_lshlrev_b32 v7, 5, v7", "v_lshl_add_u32 v7, v3, 3, v7", "v_lshl_add_u32 v7, v4, 7, v7",
              f"v_add_u32 v{P_WR[0]}, 65536, v7\nv_xor_b32 v{P_WR[1]}, 32, v{P_WR[0]}", f"v_xor_b32 v{P_WR[2]}, 64, v{P_WR[0]}\nv_xor_b32 v{P_WR[3]}, 96, v{P_WR[0]}"]
    L[31] = []
    return L

UNITS = [('V',0,0,80), ('V',0,1,84), ('V',1,0,72), ('V',1,1,76), ('K',1,1,88), ('K',1,0,92), ('K',0,0,96), ('K',0,1,100)]
def unit_src(u):
    k, T, h, d = UNITS[u]
    return [(2*T, 4+h), (2*T+1, 4+h)] if k == 'V' else [(2*T+h, 2), (2*T+h, 3)]
def cvt4(regs, d): return [f"v_cvt_pk_bf16_f32 v{d+i}, v{regs[2*i]}, v{regs[2*i+1]}" for i in range(4)]
def unit_cvt(u):
    k, T, h, d = UNITS[u]
    regs = [acc(*x) + i for x in unit_src(u) for i in range(4)]
    w = f"ds_write_b128 v{V_VL}, {v(d,4)} offset:{T*4096 + (2048 if k == 'V' else 0) + h*256}"
    return cvt4(regs, d) + [w]
def kv_store(u):
    k, T, h, d = UNITS[u]
    return f"buffer_store_dwordx4 {v(d,4)}, v{V_VS}, s[{SRD_KVS}:{SRD_KVS+3}], {'0' if T == 0 else 's50'} offen offset:{(2048 if k == 'V' else 0) + h*256}{SC1}"
def q_cvt(tt):
    return [f"v_pk_mul_f32 {v(acc(tt,0)+2*i,2)}, {v(acc(tt,0)+2*i,2)}, s[26:27]" for i in range(4)] + cvt4([acc(tt,0)+i for i in range(8)], AQ[("ab"[tt >> 1], tt & 1)])

NEP = opt('nep', 4)
def last_step(a, sal):
    order = [(3, 0), (3, 1)] + [x for u in range(8) for x in unit_src(u)] + [(tt, f) for tt in range(3) for f in range(2)]
    gaps = [[] for _ in range(24)]
    gaps[10] += q_cvt(3)
    for u in range(6): gaps[12 + 2*u] += unit_cvt(u) + (if_vcc([kv_store(u - 1), kv_store(u)]) if u & 1 and u < NEP else [])
    for i, (tt, f) in enumerate(order):
        d = acc(tt, f)
        A, B = (WF[1][f], XF[1][tt]) if f < 4 else (XF[1][tt], WF[1][f])
        a(f"v_mfma_f32_16x16x32_bf16 {v(d,4)}, {v(A,4)}, {v(B,4)}, {v(d,4)}")
        for x in gaps[i]: a(x)
    for x in unit_cvt(6) + unit_cvt(7) + (if_vcc([kv_store(6), kv_store(7)]) if NEP == 8 else []): a(x)

def transition_ab(a):
    a(f"s_cmp_lt_u32 s{S_W}, 4\ns_setprio 1\ns_cbranch_scc0 Lyng0\ns_setprio 2\nLyng0:")
    a("s_waitcnt lgkmcnt(0)\ns_barrier")
    for j in range(2): a(f"ds_read_b128 {v(AK[0][j],4)}, v{AADK} offset:{1024*j}")
    for j in range(2): a(f"ds_read_b128 {v(AV[0][j],4)}, v{AADDR} offset:{2048+1024*j}")
    rest = list(range(NEP, 8))
    for tt in range(3):
        if rest and (tt < 2 or NEP < 4):
            k = 2 if tt < 2 else len(rest)
            for x in if_vcc([kv_store(u) for u in rest[:k]]): a(x)
            rest = rest[k:]
        for x in q_cvt(tt): a(x)
    assert not rest
    a("s_nop 1")
    for q in "ab":
        for i in range(4): a(f"v_permlane16_swap_b32 v{AQ[(q,0)]+i}, v{AQ[(q,1)]+i}")
    for q in "ab":
        for i in range(4): a(f"v_permlane32_swap_b32 v{AQ[(q,0)]+i}, v{AQ[(q,1)]+i}")
    a("s_waitcnt lgkmcnt(2)")
    a(qk1(AS[0],0,'a',"0")); a(qk2(AS[0],0,'a')); a(qk1(AS[1],0,'b',"0")); a(qk2(AS[1],0,'b'))
    a(f"""
    v_readfirstlane_b32 s{S_NONCE}, v{V_NON}
    v_readfirstlane_b32 s{S_NONCE+1}, v{V_NON+1}
    s_lshl_b32 s26, s{S_TM}, 4
    s_add_u32 s26, s26, s{S_W}
    s_lshl_b32 s28, s26, 3
    s_nop 3
    s_cmp_eq_u32 s{S_NONCE}, 0
    s_cbranch_scc1 Lnonce_spin
    Lnonce_ok:
    v_mov_b32 v{V_FA}, s28
    s_nop 0
    """)
    rowmax16(a, AS[0], 2, 3)
    rowmax16(a, AS[1], 4, 5)
    MOFF = struct.unpack("<I", struct.pack("<f", float(opt("moff", 19))))[0]
    if MOFF: a(f"v_add_f32 v2, {MOFF:#x}, v2\nv_add_f32 v4, {MOFF:#x}, v4")
    for i in range(8): a(f"v_pk_mul_f32 {v(AC['a']+2*i,2)}, v[2:3], -1.0 op_sel_hi:[0,0]")
    a(f"v_pk_mul_f32 {v(AC['b'],2)}, v[4:5], -1.0 op_sel_hi:[0,0]\nv_pk_mul_f32 {v(AC['b']+2,2)}, v[4:5], -1.0 op_sel_hi:[0,0]")
    a(qk1(AS[0],0,'a')); a(qk2(AS[0],0,'a'))
    for i in range(2, 8): a(f"v_pk_mul_f32 {v(AC['b']+2*i,2)}, v[4:5], -1.0 op_sel_hi:[0,0]")
    a("s_nop 4")

def rowmax16(a, S, m, t):
    a(f"v_max3_f32 v{m}, v{S}, v{S+1}, v{S+2}")
    for i in range(3, 15, 2): a(f"v_max3_f32 v{m}, v{m}, v{S+i}, v{S+i+1}")
    a(f"v_max_f32 v{m}, v{m}, v{S+15}")
    a(f"v_mov_b32 v{t}, v{m}\ns_nop 1\nv_permlane32_swap_b32 v{m}, v{t}\ns_nop 0\nv_max_f32 v{m}, v{m}, v{t}")

def attn_half(a, t, q, extra=None, skipz=False):
    hs = (2*t + (q == 'b')) % 4
    oq = 'b' if q == 'a' else 'a'
    X = AS[hs]; Y = AS[(hs+1) % 4]; Z = AS[(hs-1) % 4]
    kb = t % 2 if q == 'a' else (t+1) % 2
    vb = (t-1) % 2 if q == 'a' else t % 2
    nt = (t + 1) % 4
    M = {'Q1': qk1(Y,kb,oq), 'Q2': qk2(Y,kb,oq), 'P1': pv(Z,0,vb,oq), 'S1': sm(Z,0,oq), 'P2': pv(Z,1,vb,oq), 'S2': sm(Z,1,oq)}
    e = 0
    for tok in "Q1 W0 3 S1 L0 2 Q2 3 P1 3 S2 L1 2 P2 W1 3".split():
        if tok in M:
            if not (skipz and tok[0] != 'Q'): a(M[tok])
        elif tok in ('L0', 'L1'):
            j = int(tok[1])
            if q == 'a': a(f"ds_read_b128 {v(AK[(t+1)%2][j],4)}, v{AADK} offset:{nt*4096 + 1024*j}")
            else: a(f"ds_read_b128 {v(AV[(t+1)%2][j],4)}, v{AADDR} offset:{nt*4096 + 2048 + 1024*j}")
        elif tok == 'W0':
            if q == 'b': a("s_waitcnt lgkmcnt(0)")
        elif tok == 'W1':
            if q == 'a': a("s_waitcnt lgkmcnt(1)")
        else:
            for _ in range(int(tok)):
                a(f"v_exp_f32 v{X+e}, v{X+e}"); e += 1
        if extra and tok in extra:
            for x in extra[tok]: a(x)
    assert e == 16

def kv_dma(h): return [f"buffer_load_dwordx4 v{AVO}, s[{SRD_KV}:{SRD_KV+3}], s{S_CH if h == 0 else S_CH2} offen offset:{1024*i}{SC1} lds" for i in range(4)]
S_FSO = 24
def flag_load(srd=None):
    srd = SRD_F if srd is None else srd
    return f"buffer_load_dwordx2 {v(AFL,2)}, v{AFA}, s[{srd}:{srd+3}], s{S_FSO} offen sc1"
S_EARLY = 41
DEPTH = opt("odepth", 5)
OSL = [72, 80, 88, 96, 136, 144, 152, 160, 8, 16, 24, 32, 224, 232, 240, 248]
def oslot(p, tt): return OSL[p % 16] + 4 * tt
def oload_ins(p):
    return [f"buffer_load_dwordx4 {v(oslot(p, tt),4)}, v{P_OV[(p>>3)&1][tt]}, s[{SRD_OL}:{SRD_OL+3}], s{S_OSO + p%8} offen offset:{(p>>4)*1024}{SC1}" for tt in range(2)]
def chunk_scalars():
    return [f"s_add_u32 s{S_CIDX}, s{S_CIDX}, 16384", f"s_xor_b32 s{S_CH}, s{S_CIDX}, s23", f"s_add_u32 s{S_CH2}, s{S_CH}, 262144",
            f"s_bfe_u32 s26, s{S_CH}, 0x1000e", "s_lshl_b32 s26, s26, 1", f"s_add_u32 s{S_FIDX}, s26, s51"]
def line_cur(): return [f"s_lshr_b32 s26, s{S_CH}, 15", f"s_lshl_b32 s{S_FSO}, s26, 7"]
def line_next(): return [f"s_add_u32 s26, s{S_CIDX}, 16384", "s_xor_b32 s26, s26, s23", "s_bfe_u32 s26, s26, 0x3000f", f"s_lshl_b32 s{S_FSO}, s26, 7"]
def mask_test():
    return [f"s_lshr_b32 s26, s{S_MASK}, s{S_FIDX}", "s_andn2_b32 s26, 0x11, s26"]
def flag_cmp(): return f"v_cmp_eq_u64 s[{S_MASK}:{S_MASK+1}], s[{S_NONCE}:{S_NONCE+1}], {v(AFL,2)}"
def spin(a, name, test, lowprio=False):
    if lowprio:
        a(f"""
        {name}:
        s_mov_b32 s{S_SPIN}, {SPIN_LIMIT}
        {name}_l:
        {flag_load()}
        s_waitcnt vmcnt(0)
        {flag_cmp()}
        s_sub_u32 s{S_SPIN}, s{S_SPIN}, 1
        s_cbranch_scc1 {name}_x
        """)
        for x in test: a(x)
        a(f"s_cbranch_scc0 {name}_x\ns_setprio 0\ns_sleep {SLEEP}\ns_branch {name}_l\n{name}_x:\ns_cbranch_vccz {name}_r\ns_setprio 2\ns_branch {name}_r")
        return
    a(f"""
    {name}:
    s_mov_b32 s{S_SPIN}, {SPIN_LIMIT}
    {name}_l:
    {flag_load()}
    s_waitcnt vmcnt(0)
    {flag_cmp()}
    s_sub_u32 s{S_SPIN}, s{S_SPIN}, 1
    s_cbranch_scc1 {name}_r
    """)
    for x in test: a(x)
    a(f"s_cbranch_scc0 {name}_r\ns_sleep {SLEEP}\ns_branch {name}_l")
def spin_flags(a, name): spin(a, name, mask_test())
def wo_dma():
    return [f"s_add_u32 s{S_WOI}, s{S_WOI}, 1", f"s_add_u32 s26, s{S_WOI}, s{S_HP}", "s_and_b32 s26, s26, 7",
            f"s_xor_b32 s27, s{S_WOI}, s{S_HP}", "s_and_b32 s27, s27, 8", "s_or_b32 s26, s26, s27", "s_lshl_b32 s26, s26, 1",
            f"s_lshr_b32 s27, s{S_WOI}, 4", "s_add_u32 s26, s26, s27", "s_lshl_b32 s26, s26, 16", f"s_mov_b32 m0, s{S_WOM}",
            f"s_add_u32 s{S_WOS}, s26, s{S_WOB}", f"s_add_u32 s{S_WOM}, s{S_WOM}, 4096",
            f"buffer_load_dwordx4 v{AWD}, s[{SRD_WO}:{SRD_WO+3}], s{S_WOS} offen{NTW} lds"]
TOUCH = "--touch" in sys.argv
WARMF = "--nowarmf" not in sys.argv
def publish(fa=V_FA): return ["s_waitcnt vmcnt(0)", "s_mov_b64 exec, 1", f"buffer_store_dwordx2 {v(V_NON,2)}, v{fa}, s[{SRD_F}:{SRD_F+3}], 0 offen sc1", "s_mov_b64 exec, -1"]
def wo_rows(n):
    o = []
    for _ in range(n): o += wo_dma()
    return o
EARLY = '--noearly' not in sys.argv
XT = opt('xt', 1)
LST = opt("lst", 1)
def tailpf():
    if not opt("codepf2", 2): return []
    return [f"s_cmp_eq_u32 s{S_CNT}, {opt('codepf2', 2)}", "s_cbranch_scc0 Lnopf2", "s_getpc_b64 s[26:27]", "Lpcref2:", f"s_lshl_b32 s28, s{S_W}, 13",
            "v_lshlrev_b32 v2, 7, v1", "v_add_u32 v2, s28, v2", "v_min_u32 v2, Lattn_fallback-Lattn_j-4, v2", "s_add_u32 s26, s26, Lattn_j-Lpcref2", "s_addc_u32 s27, s27, 0",
            "v_mov_b32 v3, s27", "v_add_co_u32 v2, s[28:29], s26, v2", "s_nop 1", "v_addc_co_u32 v3, s[28:29], 0, v3, s[28:29]", "global_load_dword v4, v[2:3], off", "Lnopf2:"]
def attn_chunk(a, kind):
    tog = f"v_xor_b32 v{AADDR}, 32768, v{AADDR}\nv_xor_b32 v{AADK}, 32768, v{AADK}"
    for t in range(4):
        ea, eb = {}, {}
        if kind in ('c0', 'c1'): stamp(a, None, "c")
        if t in (1, 3): jitter(a)
        if kind == 'c1' and t == opt("polt", 1) + 1: pass
        if kind == 'c1' and t == opt("polt", 1):
            for x in old_only(chunk_scalars() + line_cur() + ["s_branch Lspin_c1a", "Lspin_c1a_r:", f"s_mov_b32 m0, s{S_M0}", "s_nop 0"] + kv_dma(0)
                              + [f"s_add_u32 m0, s{S_M0}, 16384", "s_nop 0"] + kv_dma(1)): a(x)
            stamp(a, None, "c")
        if kind == 'c14' and t == XT:
            for x in if_vcc(["s_barrier"], False): a(x)
        if kind == 'c0':
            for k, e in enumerate((ea, eb)):
                j = 2*t + k - LST
                if 0 <= j < 4: e['P1'] = if_vcc([kv_store(2*j), kv_store(2*j + 1)], False)
        if kind == 'c1' and t == 0:
            eb['P2'] = [f"s_and_b32 s26, s{S_W}, 6", "s_cmp_eq_u32 s26, 2", "s_cbranch_scc0 Lpub2"] + publish() + ["Lpub2:"]
        if kind == 'c14' and t == 0:
            ea['Q2'] = old_only([f"s_lshl_b32 s28, s{S_W}, 1", f"s_add_u32 s28, s28, s{S_HP}", "v_lshrrev_b32 v2, 5, v1", "v_add_u32 v2, s28, v2", "v_and_b32 v2, 7, v2",
                                 f"s_and_b32 s28, s{S_HP}, 8", "s_xor_b32 s28, s28, 8", "v_or_b32 v2, s28, v2", "v_lshlrev_b32 v2, 17, v2", "v_and_b32 v3, 31, v1",
                                 "v_lshl_add_u32 v2, v3, 11, v2", "s_mov_b32 s28, 65536", f"buffer_load_dword v3, v2, s[{SRD_WO}:{SRD_WO+3}], s28 offen"])
        if kind == 'c15' and EARLY:
            if t == 2: ea['Q2'] = if_vcc([f"s_mov_b32 s{S_FSO}, s{S_FL0}", flag_load(SRD_F2)], False)
            if t == 3: ea['Q2'] = if_vcc(["s_waitcnt vmcnt(0)", flag_cmp(), "s_nop 0", f"s_cmp_lg_u32 s{S_MASK}, -1", "s_cbranch_scc1 Lnoearly", f"s_mov_b32 s{S_EARLY}, 1"]
                                         + [x for p in range(min(DEPTH, 4)) for x in oload_ins(p)] + ["Lnoearly:"], False)
        if t == 3:
            if kind == 'c0':
                stamp(a); a("s_waitcnt lgkmcnt(0)\ns_barrier"); stamp(a)
                for x in [f"s_cmp_lt_u32 s{S_W}, 4", "s_cselect_b64 vcc, -1, 0", f"s_and_b32 s26, s{S_W}, 6", "s_cmp_eq_u32 s26, 2", "s_cbranch_scc1 Lpub1"] + publish() + ["Lpub1:"]: a(x)
                stamp(a)
                ea['Q1'] = [tog]
            elif kind == 'c14':
                ea['Q1'] = [f"v_add_u32 v{AADDR}, 131072, v{AADDR}\nv_add_u32 v{AADK}, 131072, v{AADK}"]
            elif kind != 'c15':
                stamp(a); a("s_waitcnt vmcnt(0) lgkmcnt(0)"); stamp(a)
                if not ("--xnobar" in sys.argv and kind == 'loop'): a("s_barrier")
                stamp(a)
                if kind in ('c1', 'loop'):
                    nm = "Lspin_" + kind
                    ea = {'Q1': [tog],
                          'Q2': old_only([flag_cmp(), f"s_xor_b32 s{S_M0}, s{S_M0}, 32768"] + chunk_scalars() + [f"s_mov_b32 m0, s{S_M0}"] + mask_test()
                                         + [f"s_cbranch_scc1 {nm}", f"{nm}_r:"] + kv_dma(0)),
                          'P2': old_only([f"s_add_u32 m0, s{S_M0}, 16384", "s_nop 0"] + kv_dma(1) + line_next() + [flag_load()])}
                    if kind == 'loop':
                        eb = {'Q2': old_only([f"s_cmp_gt_u32 s{S_CNT}, 3", "s_cbranch_scc0 Lnowo"] + wo_rows(2) + ["Lnowo:"] + tailpf() + [f"s_cmp_eq_u32 s{S_CNT}, 1", "s_cbranch_scc0 Lno15"]
                                             + chunk_scalars() + [f"s_add_u32 m0, s{S_M0}, 131072"] + mask_test() + ["s_cbranch_scc1 Lspin_15", "Lspin_15_r:"] + kv_dma(0)
                                             + [f"s_add_u32 m0, s{S_M0}, {131072 + 16384}", "s_nop 0"] + kv_dma(1) + ["Lno15:"]),
                              'P2': [f"s_sub_u32 s{S_CNT}, s{S_CNT}, 1", f"s_cmp_lg_u32 s{S_CNT}, 0"]}
                elif kind == 'c13':
                    ea = {'Q1': [tog], 'Q2': old_only([f"s_lshl_b32 s{S_WOM}, s{S_W}, 10", f"s_add_u32 s{S_WOM}, s{S_WOM}, 32768"] + wo_rows(3)), 'P2': old_only(wo_rows(3))}
                    eb = {'Q2': old_only(wo_rows(2))}
        if "--xnoex" in sys.argv and kind == 'loop' and t == 3: ea = {'Q1': [tog]}; eb = {'P2': eb['P2']}
        attn_half(a, t, 'a', ea, skipz=(kind == 'c0' and t == 0)); attn_half(a, t, 'b', eb)

def attention(a):
    attn_chunk(a, 'c0')
    attn_chunk(a, 'c1')
    a(f"s_mov_b32 s{S_CNT}, 11")
    stamp(a, None, "l")
    SPLIT = opt("split", 1)
    def tail():
        stamp(a, None, "l")
        attn_chunk(a, 'c13')
        attn_chunk(a, 'c14')
        attn_chunk(a, 'c15')
    if SPLIT:
        a("s_cbranch_vccz Lattn_y")
        for role in (True, False):
            ROLE[0] = role
            nm = "Lattn_loop" if role else "Lattn_loop_y"
            if not role: a.label("Lattn_y")
            a(".p2align 6")
            a.label(nm)
            attn_chunk(a, 'loop')
            a(f"s_cbranch_scc1 {nm}")
            if SPLIT == 2: tail()
            if role: a("s_branch Lattn_j")
        ROLE[0] = None
        a.label("Lattn_j")
        if SPLIT == 1: tail()
    else:
        a(".p2align 6")
        a.label("Lattn_loop")
        attn_chunk(a, 'loop')
        a("s_cbranch_scc1 Lattn_loop")
        tail()
    a("s_nop 1")
    stamp(a, 4)
    a(pv(AS[3],0,1,'b')); a(sm(AS[3],0,'b')); a(pv(AS[3],1,1,'b')); a(sm(AS[3],1,'b'))
    a(f"""
    s_mov_b32 s26, 0x4e800000        ; 2^30
    s_mov_b32 s27, 65536
    s_nop 5
    """)
    for x in lbroadcast(): a(x)
    a(f"""
    v_cmp_nge_f32 vcc, s26, v{AL['a']}
    v_cmp_nge_f32 s[28:29], s26, v{AL['b']}
    s_nop 0
    s_or_b64 vcc, vcc, s[28:29]
    s_cbranch_vccnz Lattn_fallback
    Lattn_fin:
    """)
    stamp(a, None, "e")
    a(f"""
    v_rcp_f32 v2, v{AL['a']}
    v_rcp_f32 v4, v{AL['b']}
    """)
    for qi, q in enumerate('ab'):
        for u in range(2):
            for i in range(4): a(f"v_pk_mul_f32 {v(AO[q]+8*u+2*i,2)}, {v(AO[q]+8*u+2*i,2)}, {v(2+2*qi,2)} op_sel_hi:[1,0]")
            d = AS[0] + 4*(2*qi+u)
            for x in cvt4([AO[q]+8*u+i for i in range(8)], d): a(x)
            a(f"buffer_store_dwordx4 {v(d,4)}, v6, s[{SRD_O}:{SRD_O+3}], {'0' if qi==0 else 's27'} offen offset:{512*u}{SC1}")

def fallback(a):
    a.label("Lattn_fallback")
    a(f"""
    s_waitcnt vmcnt(0) lgkmcnt(0)
    s_lshl_b32 s26, s{S_B}, 5
    s_lshl_b32 s28, s{S_HP}, 1
    s_add_u32 s26, s26, s28
    s_lshr_b32 s28, s{S_W}, 2
    s_add_u32 s26, s26, s28
    s_lshl_b32 s30, s26, 18
    """)
    make_srd(a, SRD_KV, 48, 49, 30, 262144)
    a(f"""
    s_mov_b32 s{S_SPIN}, {SPIN_LIMIT}
    v_lshrrev_b32 v2, 3, v1
    v_lshl_add_u32 v2, v2, 7, v{AFA}
    Lfb_poll:
    buffer_load_dwordx2 {v(AFL,2)}, v2, s[{SRD_F}:{SRD_F+3}], 0 offen sc1
    s_waitcnt vmcnt(0)
    v_cmp_eq_u64 vcc, s[{S_NONCE}:{S_NONCE+1}], {v(AFL,2)}
    s_sub_u32 s{S_SPIN}, s{S_SPIN}, 1
    s_cbranch_scc1 Lfb_go
    s_cmp_eq_u64 vcc, -1
    s_cbranch_scc0 Lfb_poll
    Lfb_go:
    """)
    for r in list(range(AO['a'], AO['a']+32)) + list(range(AL['a'], AL['a']+8)): a(f"v_mov_b32 v{r}, 0")
    Mr = {'a': AC['a'], 'b': AC['b']}
    a(f"v_mov_b32 v{Mr['a']}, 0xff800000\nv_mov_b32 v{Mr['b']}, 0xff800000\ns_mov_b32 s26, 0")
    a.label("Lfb_loop")
    for j in range(2): a(f"buffer_load_dwordx4 {v(AK[0][j],4)}, v{AVK}, s[{SRD_KV}:{SRD_KV+3}], s26 offen offset:{1024*j} sc1")
    for j in range(2): a(f"buffer_load_dwordx4 {v(AV[0][j],4)}, v{AVO}, s[{SRD_KV}:{SRD_KV+3}], s26 offen offset:{2048+1024*j} sc1")
    a("s_waitcnt vmcnt(0)")
    for q in 'ab':
        S = AS[0]
        a(qk1(S,0,q,"0")); a(qk2(S,0,q)); a("s_nop 15")
        rowmax16(a, S, 2, 3)
        a(f"v_max_f32 v2, v2, v{Mr[q]}\nv_sub_f32 v3, v{Mr[q]}, v2\nv_exp_f32 v3, v3\nv_mov_b32 v{Mr[q]}, v2")
        for i in range(16): a(f"v_sub_f32 v{S+i}, v{S+i}, v2")
        for i in range(16): a(f"v_exp_f32 v{S+i}, v{S+i}")
        for i in range(16): a(f"v_mul_f32 v{AO[q]+i}, v3, v{AO[q]+i}")
        for i in range(4): a(f"v_mul_f32 v{AL[q]+i}, v3, v{AL[q]+i}")
        a("s_nop 1")
        a(pv(S,0,0,q)); a(sm(S,0,q)); a(pv(S,1,0,q)); a(sm(S,1,q))
        a("s_nop 15")
    a("s_add_u32 s26, s26, 4096\ns_cmp_lt_u32 s26, 262144\ns_cbranch_scc1 Lfb_loop")
    for x in lbroadcast(): a(x)
    a("s_branch Lattn_fin")

PACC = 40
PWF = [104, 120]
POF = 168
POLLS = []
def proj_body(a, old):
    vm = VmTrack(); fpos = {}
    R = "o" if old else "y"
    def wreads(p):
        off = (p if p < 16 else p - 16 + 8 if p < 24 else (p - 24) % 4) * 4096
        return [f"ds_read_b64_tr_b16 {v(PWF[p&1]+4*ct+2*h,2)}, v{P_WR[ct]} offset:{off + h*1024}" for ct in range(4) for h in range(2)]
    def check(g, hi=False):
        nm = f"Lpoll{R}{g}"; POLLS.append((nm, hi))
        return [f"s_cmp_lg_u32 s{S_MASK}, -1", f"s_cbranch_scc1 {nm}", f"{nm}_r:"]
    def setline(g): return f"s_xor_b32 s{S_FSO}, s{S_FL0}, {(g & 1) * 128 + (g >> 1) * 256}"
    def force(g, hi=False): return [f"s_mov_b32 s{S_MASK}, 0", setline(g)] + check(g, hi)
    def oload(p):
        vm.issue(("O", p)); vm.issue(("O", p))
        return oload_ins(p)
    PX, YX3 = opt("px", 10), opt("yx3", 5)
    if old:
        a("s_waitcnt vmcnt(4)\ns_barrier")
        stamp(a, None, "e")
        for x in publish(V_FA2): a(x)
        stamp(a, 5)
        for x in [f"s_lshl_b32 s{S_WOM}, s{S_W}, 10"] + wo_rows(4) + [f"s_add_u32 s{S_WOM}, s{S_WOM}, {131072 - 16384}"] + wo_rows(4) + ["s_waitcnt vmcnt(8)"]: a(x)
        OPRE = opt("opre", 6)
        if opt("olow", 1): a("s_setprio 0")
        stamp(a, None, "o")
        for p in range(OPRE):
            if p % 8 == 0:
                for x in force(p // 8, not opt("olow", 1)): a(x)
                stamp(a, None, "o")
            for x in oload(p): a(x)
        a("s_setprio 0")
        nxt = OPRE
    else:
        stamp(a, None, "e")
        YPUB = opt("ypub", 2)
        if YPUB < 0:
            for x in publish(V_FA2): a(x)
        a(f"s_setprio {opt('yprio', 1)}")
        stamp(a, 5)
        a(f"s_cmp_eq_u32 s{S_EARLY}, 1\ns_cbranch_scc1 Learly")
        for x in force(0): a(x)
        for p in range(4):
            for x in oload(p): a(x)
        a.label("Learly")
        for _ in range(1 + (opt("opre", 6) + 7) // 8): stamp(a, None, "o")
        spos = len(vm.ops)
        for p in range(4, DEPTH):
            for x in oload(p): a(x)
        nxt = DEPTH
    for x in wreads(0): a(x)
    stamp(a, 6)
    for p in range(32):
        if p + 1 == 16:
            for ct in range(4): a(f"v_add_u32 v{P_WR[ct]}, {-65536 & 0xffffffff}, v{P_WR[ct]}")
        if p + 1 == 28:
            for ct in range(4): a(f"v_add_u32 v{P_WR[ct]}, 131072, v{P_WR[ct]}")
        wc = vm.wait_count({('O', p)})
        if not old and YPUB >= 0 and p < 4:
            a(f"s_cmp_eq_u32 s{S_EARLY}, 1\ns_cbranch_scc1 Lw{p}a\ns_waitcnt vmcnt({wc})\nLw{p}a:\ns_waitcnt vmcnt({wc + 4}) lgkmcnt(0)")
        else:
            a(f"s_waitcnt vmcnt({wc}) lgkmcnt(0)")
        if not old and p == YPUB:
            for x in [f"s_waitcnt vmcnt({len(vm.ops) - spos})"] + publish(V_FA2)[1:]: a(x)
        gaps = [[] for _ in range(8)]
        for i, r in enumerate(wreads(p + 1) if p + 1 < 32 else []): gaps[i // 2].append(r)
        if not old and p == YX3: gaps[0].append("s_barrier")
        todo = []
        if old:
            todo = list(range(nxt, min(32 if p >= PX else 16, nxt + 2, 16 + p, p + 1 + opt("odold", 6))))
        elif nxt < 32: todo = [nxt]
        gi = 4
        for n in todo:
            if n % 8 == 0:
                g = n // 8
                if old and g == 2: gaps[gi] += ["s_barrier"] + force(g)
                elif g in fpos: gaps[gi] += [f"s_waitcnt vmcnt({len(vm.ops) - fpos[g]})", flag_cmp(), "s_nop 0"] + check(g)
                else: gaps[gi] += force(g)
            o = oload(n)
            gaps[gi].append(o[0]); gaps[gi + 1].append(o[1]); gi += 2
            if (n + 3) % 8 == 0 and n + 3 < 32:
                g = (n + 3) // 8
                gaps[gi - 1] += [setline(g), flag_load()]
                fpos[g] = len(vm.ops)
            nxt = n + 1
        n = 0
        for tt in range(2):
            for ct in (range(4) if tt == 0 else range(3, -1, -1)):
                d = PACC + (tt*4+ct)*4
                a(f"v_mfma_f32_16x16x32_bf16 {v(d,4)}, {v(PWF[p&1]+4*ct,4)}, {v(oslot(p, tt),4)}, {'0' if p==0 else v(d,4)}")
                for x in gaps[n]: a(x)
                n += 1
        if p % 4 == 3: stamp(a, None, "p")
        if p in (1, 9, 20): jitter(a)
    assert nxt == 32

def proj(a):
    a(f"s_mov_b64 s[{SRD_F}:{SRD_F+1}], s[{SRD_F2}:{SRD_F2+1}]\ns_mov_b32 s{SRD_F+2}, 2048")
    a(f"s_cmp_lt_u32 s{S_W}, 4\ns_cselect_b64 vcc, -1, 0\ns_cbranch_scc0 Lproj_y")
    proj_body(a, True)
    a("s_branch Lproj_e\nLproj_y:")
    proj_body(a, False)
    a.label("Lproj_e")
    a(f"""
    v_lshrrev_b32 v4, 4, v1
    v_and_b32 v2, 15, v1
    v_lshlrev_b32 v2, 12, v2
    v_and_b32 v3, 1, v4
    v_lshl_add_u32 v2, v3, 5, v2
    v_lshrrev_b32 v3, 1, v4
    v_lshl_add_u32 v2, v3, 4, v2
    s_mov_b32 s26, 65536
    s_nop 3
    """)
    for tt in range(2):
        for pr in range(2):
            d = POF + (tt*2+pr)*4
            for x in range(2):
                s0 = PACC + (tt*4+2*pr+x)*4
                a(f"v_cvt_pk_bf16_f32 v{d+2*x}, v{s0}, v{s0+1}\nv_cvt_pk_bf16_f32 v{d+2*x+1}, v{s0+2}, v{s0+3}")
            a(f"s_nop 1\nv_permlane16_swap_b32 v{d}, v{d+2}\nv_permlane16_swap_b32 v{d+1}, v{d+3}")
            a(f"buffer_store_dwordx4 {v(d,4)}, v2, s[{SRD_OUT}:{SRD_OUT+3}], {'0' if tt==0 else 's26'} offen offset:{64*pr}{' ' + opt('ofl', 'nt').replace('_', ' ') if opt('ofl', 'nt') else ''}")

def build():
    a = Asm()
    decode(a, "Lend")
    gemm1_setup_dma(a)
    jitter(a)
    stamp(a, 0); dbgstamp(a, 0)
    gemm1_main(a, late_setup())
    stamp(a, 2); dbgstamp(a, 2)
    transition_ab(a)
    stamp(a, 3); jitter(a)
    attention(a)
    jitter(a)
    dbgstamp(a, 3)
    proj(a)
    stamp(a, 7); dbgstamp(a, 4); dbgflush(a)
    stamp_flush(a, 8)
    a.label("Lend")
    a("s_endpgm")
    for nm in ("Lspin_c1a", "Lspin_c1", "Lspin_loop", "Lspin_15"): spin_flags(a, nm)
    a(f"""
    Lnonce_spin:
    s_mov_b32 s{S_SPIN}, {SPIN_LIMIT}
    Lnonce_l:
    buffer_load_dwordx2 {v(V_NON,2)}, v{V_PD+1}, s[92:95], 0 offen sc1
    s_waitcnt vmcnt(0)
    v_readfirstlane_b32 s{S_NONCE}, v{V_NON}
    v_readfirstlane_b32 s{S_NONCE+1}, v{V_NON+1}
    s_sub_u32 s{S_SPIN}, s{S_SPIN}, 1
    s_cbranch_scc1 Lnonce_ok
    s_cmp_eq_u32 s{S_NONCE}, 0
    s_cbranch_scc1 Lnonce_l
    s_branch Lnonce_ok
    """)
    for nm, hi in POLLS: spin(a, nm, [f"s_cmp_lg_u32 s{S_MASK}, -1"], lowprio=hi)
    fallback(a)
    a.label("Lcode_end")
    return a.text()

def main(out):
    P = "concat_heads__mha_block__softmax_full_mha__prompt_kernel"
    txt = f"""; Kernarg layout (72 bytes, pointers only, base s[0:1]):
;   0 A_x  8 A_wqkv  16 A_wo  24 B_x  32 B_wqkv  40 B_wo  48 d_out  56 d_debug  64 d_ws
; One fused kernel, 256 workgroups (one per CU) x 8 waves; workgroup = (block b, 256 tokens tm, head pair hp).
;   phase A  QKV projection 256x192x1024 (LDS-DMA ring, 16x16x32 MFMA); Q stays in registers, K/V go to LDS and to d_ws
;   phase B  softmax(QK^T)V for 2 heads x 256 queries. exp2 results feed v_smfmac directly (high halves = bf16).
;            Shift = max of the first key tile (carried in the MFMA C operand); a run-time check of the row sums
;            falls back to an exact running-max loop when that shift could overflow.
;   phase C  output projection 256x64x1024, O fragments from d_ws
; Hand-offs between workgroups: write-through stores, then a per-wave flag holding a per-launch nonce (kept in d_debug).
; @launch grid=(256,1,1) block=(512,1,1) lds=163840
.amdgcn_target "amdgcn-amd-amdhsa--gfx950"
.text
""" + kernel_header(P) + build() + '.section .rodata,"a"\n' + kernel_desc(P, 256, sgpr=102 if DBG or JIT else 96)
    open(out, "w").write(txt)

if __name__ == "__main__":
    args = [x for x in sys.argv[1:] if not x.startswith("--")]
    main(args[0] if args else "concat_heads__mha_block__softmax_full_mha__prompt.s")
```

```python
import sys, struct, math
from dsl import *

def opt(name, default):
    for x in sys.argv:
        if x.startswith(f"--{name}="): return type(default)(x[len(name) + 3:])
    return default
STAMP = "--stamp" in sys.argv
ROT = opt("rot", 2)
PRO = opt("pro", "X0,W0,Q0,B,W1,X1,W2").replace(",", " ")
STEPX = {}
for it in opt("stepx", "0:W3.X2.Q1;1:W4;8:Q2;16:Q3").split(";"):
    if it:
        k, val = it.split(":"); STEPX[int(k)] = val.split(".")
SC1 = "" if "--nosc1" in sys.argv else " sc1"
NTD = " nt" if "d" in opt("nt", "") else (" " + opt("dfl", "").replace("_", " ") if opt("dfl", "") else "")
NTP = " nt" if "p" in opt("nt", "") else ""
NTW = " nt" if "w" in opt("nt", "") else ""
ROTB = opt("rotb", -1)

KV_OFF = 0
O_OFF = 24 << 20
F1_OFF = 32 << 20
F2_OFF = 33 << 20
SLEEP = opt('sleep', 0)
ST_OFF = 64 << 20
QSCALE = struct.unpack("<I", struct.pack("<f", math.log2(math.e) / math.sqrt(32.0)))[0]
SPIN_LIMIT = 1 << 17

S_W, S_B, S_TM, S_HP = 16, 17, 18, 19
S_SOX, S_SOW, S_XB, S_WB = 20, 21, 22, 23
S_EXW = 24
S_NONCE = 80
S_MASK = 82
S_CIDX, S_M0, S_CNT, S_CH, S_WOS, S_WOM, S_FIDX, S_SPIN = 84, 85, 86, 87, 88, 89, 90, 91
S_WOI, S_WOB = 20, 21
PRIO = opt('prio', 1)
SRD_KV, SRD_F, SRD_WO, SRD_O = 4, 8, 52, 12
SRD_KVS = 56
SRD_OUT, SRD_OL, SRD_F2 = 36, 32, 76
S_FL0 = 40

def make_srd(a, d, lo, hi, off_sgpr, nrec):
    a(f"s_add_u32 s{d}, s{lo}, s{off_sgpr}\ns_addc_u32 s{d+1}, s{hi}, 0\ns_and_b32 s{d+1}, s{d+1}, 0xffff")
    a(f"s_mov_b32 s{d+2}, {nrec}\ns_mov_b32 s{d+3}, 0x00020000")

NST = [0]
STG = opt("stg", "m")
def stamp(a, i=None, g="m"):
    if not STAMP: return
    if i is None: g = "a" if g == "m" else g
    if g not in STG: return
    a("s_memrealtime s[60:61]\ns_memtime s[62:63]\ns_waitcnt lgkmcnt(0)\ns_lshl_b64 exec, 1, s64\nv_mov_b32 v0, s60\nv_mov_b32 v203, s62\ns_mov_b64 exec, -1\ns_add_u32 s64, s64, 1")
DBG = "--dbg" in sys.argv
def dbgstamp(a, i, inv=False):
    if DBG: a(f"s_memrealtime s[60:61]\ns_waitcnt lgkmcnt(0)\ns_mov_b32 s{96+i}, s60")
def dbgflush(a):
    if not DBG: return
    a(f"""
    s_cmp_lg_u32 s{S_W}, 7
    s_cbranch_scc1 Ldbg_e
    s_mov_b64 exec, 1
    s_and_b32 s26, s{S_HP}, 7
    s_lshl_b32 s26, s26, 2
    v_mov_b32 v2, s26
    s_sub_u32 s27, s98, s96
    v_mov_b32 v3, s27
    buffer_atomic_umax v3, v2, s[92:95], 0 offen offset:8
    v_mov_b32 v4, 0
    s_sub_u32 s27, s97, s96
    v_mov_b32 v5, s27
    buffer_atomic_umax v5, v4, s[92:95], 0 offen offset:40
    s_sub_u32 s27, s99, s98
    v_mov_b32 v6, s27
    buffer_atomic_umax v6, v4, s[92:95], 0 offen offset:44
    s_sub_u32 s27, s100, s99
    v_mov_b32 v7, s27
    buffer_atomic_umax v7, v4, s[92:95], 0 offen offset:48
    s_sub_u32 s27, s100, s96
    v_mov_b32 v8, s27
    buffer_atomic_umax v8, v4, s[92:95], 0 offen offset:52
    s_not_b32 s27, s96
    v_mov_b32 v9, s27
    buffer_atomic_umax v9, v4, s[92:95], 0 offen offset:56
    v_mov_b32 v10, s100
    buffer_atomic_umax v10, v4, s[92:95], 0 offen offset:60
    Ldbg_e:
    """)
JIT = opt("jit", 0)
JC = [0]
def jitter(a):
    if not JIT: return
    JC[0] += 1
    k = JC[0]
    a(f"""
    s_mul_i32 s96, s2, {37 + 2 * k}
    s_mul_i32 s97, s{S_W}, {JIT * 11 + k}
    s_add_u32 s96, s96, s97
    s_lshr_b32 s97, s96, 3
    s_xor_b32 s96, s96, s97
    s_and_b32 s96, s96, 31
    Ljit{k}:
    s_cmp_eq_u32 s96, 0
    s_cbranch_scc1 Ljit{k}e
    s_sleep {JIT}
    s_sub_u32 s96, s96, 1
    s_branch Ljit{k}
    Ljit{k}e:
    """)
def stamp_flush(a, n):
    if not STAMP: return
    a(f"""
    s_lshl_b32 s26, s2, 3
    s_add_u32 s26, s26, s{S_W}
    s_lshl_b32 s26, s26, 9
    s_add_u32 s30, s26, {ST_OFF}
    """)
    make_srd(a, 56, 48, 49, 30, 512)
    a("v_lshlrev_b32 v2, 3, v1\nv_mov_b32 v4, v0\nv_mov_b32 v5, v203\nbuffer_store_dwordx2 v[4:5], v2, s[56:59], 0 offen")

ACC = 8
def acc(tt, f): return ACC + (tt * 6 + f) * 4
XF = [[104 + 4*i for i in range(4)], [144 + 4*i for i in range(4)]]
WF = [[120 + 4*i for i in range(6)], [160 + 4*i for i in range(6)]]
V_XR = [208, 209]; V_WR = [210, 211]; V_XD = list(range(184, 192)); V_WD = [212, 213, 214]
V_PX, V_PW, V_PD = 218, 219, 220
V_NON = 222
LDS_W = 98304

def decode(a, end):
    a(f"""
    s_cmp_ge_u32 s2, 256
    s_cbranch_scc1 {end}
    s_load_dwordx16 s[32:47], s[0:1], 0
    s_load_dwordx2 s[48:49], s[0:1], 64
    v_lshrrev_b32 v1, 6, v0
    s_and_b32 s26, s2, 7
    s_lshr_b32 s27, s2, 3
    v_readfirstlane_b32 s{S_W}, v1
    s_lshr_b32 s{S_B}, s26, 2
    s_and_b32 s28, s26, 1
    s_lshl_b32 s28, s28, 2
    s_and_b32 s29, s27, 3
    s_add_u32 s{S_TM}, s28, s29
    s_bfe_u32 s28, s26, 0x10001
    s_lshl_b32 s28, s28, 3
    s_lshr_b32 s29, s27, 2
    s_add_u32 s{S_HP}, s28, s29
    v_and_b32 v1, 63, v0
    s_mul_i32 s51, {'s26' if ROTB < 0 else 's17'}, {ROT if ROTB < 0 else ROTB}
    s_and_b32 s51, s51, 15
    s_lshl_b32 s14, s51, 1
    s_lshl_b32 s15, s51, 7
    s_mov_b32 s64, 0
    """)

NLAB = [0]
ROLE = [None]
def if_vcc(ins, want=True):
    if ROLE[0] is not None: return list(ins) if ROLE[0] == want else []
    NLAB[0] += 1
    return [f"s_cbranch_vcc{'z' if want else 'nz'} Lskip{NLAB[0]}"] + ins + [f"Lskip{NLAB[0]}:"]
old_only = if_vcc

def gemm1_setup_dma(a):
    a(f"""
    s_cmp_lt_u32 s{S_W}, 4
    s_cselect_b64 vcc, -1, 0
    s_cbranch_scc0 Lsetup1
    s_setprio 1
    Lsetup1:
    s_and_b32 s30, s{S_W}, 3
    s_mul_i32 s{S_XB}, s30, 24576
    s_mul_i32 s26, s30, 3072
    s_add_u32 s{S_WB}, s26, {LDS_W}
    v_lshrrev_b32 v2, 3, v1
    s_lshl_b32 s26, s30, 6
    v_add_u32 v7, s26, v2
    v_and_b32 v3, 7, v1
    v_lshrrev_b32 v4, 4, v1
    v_xor_b32 v5, v3, v4
    v_lshlrev_b32 v5, 4, v5
    v_lshl_add_u32 v{V_XD[0]}, v7, 11, v5
    v_xor_b32 v5, 64, v5
    v_lshl_add_u32 v{V_XD[1]}, v7, 11, v5
    v_add_u32 v{V_XD[1]}, {8*2048}, v{V_XD[1]}
    """)
    for q in range(2, 8): a(f"v_add_u32 v{V_XD[q]}, {16*2048}, v{V_XD[q-2]}")
    a(f"s_mul_i32 s26, s30, 24")
    for q in range(3):
        a(f"""
        v_add_u32 v7, s26, v2            ; R
        s_add_u32 s26, s26, 8
        v_lshrrev_b32 v4, 5, v7          ; sec
        v_and_b32 v7, 31, v7             ; k
        v_and_b32 v5, 2, v7
        v_bfe_u32 v6, v7, 3, 1
        v_lshl_or_b32 v5, v6, 2, v5      ; swz*2
        v_xor_b32 v5, v3, v5             ; chunk
        v_lshlrev_b32 v5, 4, v5
        v_lshl_add_u32 v5, v4, 11, v5
        v_mul_u32_u24 v7, 6144, v7
        v_add_u32 v{V_WD[q]}, v7, v5
        """)
    a(f"""
    s_waitcnt lgkmcnt(0)
    s_cmp_eq_u32 s{S_B}, 0
    s_cselect_b32 s26, s32, s38
    s_cselect_b32 s27, s33, s39
    s_cselect_b32 s28, s34, s40
    s_cselect_b32 s29, s35, s41
    s_lshl_b32 s30, s{S_TM}, 19
    """)
    make_srd(a, 4, 26, 27, 30, 524288)
    a(f"s_lshl_b32 s30, s{S_HP}, 7\ns_sub_u32 s31, {1024*6144}, s30")
    make_srd(a, 8, 28, 29, 30, "s31")

def gemm1_setup_rest(a):
    a(f"""
    s_and_b32 s30, s{S_W}, 3
    s_mul_i32 s30, s30, 24576
    v_and_b32 v2, 15, v1             ; c
    v_lshrrev_b32 v4, 4, v1          ; G
    v_lshrrev_b32 v5, 1, v2
    v_xor_b32 v5, v4, v5
    v_lshlrev_b32 v5, 4, v5
    v_lshl_add_u32 v5, v2, 7, v5
    v_add_u32 v{V_XR[0]}, s30, v5
    v_xor_b32 v{V_XR[1]}, 64, v{V_XR[0]}
    v_bfe_u32 v2, v1, 2, 2           ; r
    v_and_b32 v3, 3, v1              ; c4
    v_lshl_add_u32 v5, v4, 3, v2     ; k = 8G + r
    v_lshrrev_b32 v6, 1, v2
    v_and_b32 v7, 1, v4
    v_lshl_or_b32 v6, v7, 1, v6      ; swz
    s_lshr_b32 s30, s{S_W}, 2
    s_lshl_b32 s30, s30, 1
    v_xor_b32 v6, s30, v6
    v_lshlrev_b32 v6, 5, v6
    v_lshl_add_u32 v6, v3, 3, v6
    v_lshl_add_u32 v6, v5, 7, v6
    v_add_u32 v{V_WR[0]}, {LDS_W}, v6
    v_xor_b32 v{V_WR[1]}, 32, v{V_WR[0]}
    """)
    a(f"s_lshr_b32 s30, s{S_TM}, 2\ns_lshl_b32 s30, s30, 21")
    make_srd(a, 52, 26, 27, 30, 2 << 20)
    a(f"s_lshr_b32 s30, s{S_HP}, 3\ns_lshl_b32 s30, s30, 10\ns_sub_u32 s31, {1024*6144}, s30")
    make_srd(a, 56, 28, 29, 30, "s31")
    toks = PRO + " ".join(" ".join(x) for x in STEPX.values())
    if "Q" in toks or "R" in toks:
        for l in q_setup(): a(l)
    if "P" in toks: a(f"""
    s_lshr_b32 s26, s2, 3
    s_lshl_b32 s26, s26, 3
    s_add_u32 s26, s26, s{S_W}       ; u
    s_lshl_b32 s27, s26, 13
    v_and_b32 v2, 3, v1
    v_lshlrev_b32 v2, 11, v2
    v_lshrrev_b32 v3, 2, v1
    v_lshl_add_u32 v2, v3, 7, v2
    v_add_u32 v{V_PX}, s27, v2
    v_mul_u32_u24 v2, 43, v1
    v_lshrrev_b32 v2, 8, v2
    v_mul_u32_u24 v3, 6, v2
    v_sub_u32 v3, v1, v3
    s_and_b32 s27, s26, 3
    s_mul_i32 s27, s27, 6
    v_add_u32 v3, s27, v3
    v_lshrrev_b32 v4, 3, v3
    v_and_b32 v3, 7, v3
    v_lshlrev_b32 v3, 7, v3
    v_lshl_add_u32 v3, v4, 11, v3
    s_lshr_b32 s27, s26, 2
    v_lshl_add_u32 v2, v2, 6, s27
    v_mul_u32_u24 v2, 6144, v2
    v_add_u32 v{V_PW}, v2, v3
    """)
    a(f"""
    v_mov_b32 v{V_PD+1}, 0
    s_or_b32 s26, s2, s{S_W}
    s_cmp_lg_u32 s26, 0
    s_cbranch_scc1 Lnononce
    s_memrealtime s[26:27]
    s_mov_b32 s28, s46
    s_and_b32 s29, s47, 0xffff
    s_mov_b32 s30, 256
    s_mov_b32 s31, 0x00020000
    s_waitcnt lgkmcnt(0)
    s_or_b32 s26, s26, 1
    v_mov_b32 v2, s26
    v_mov_b32 v3, s27
    s_mov_b64 exec, 1
    buffer_store_dwordx2 v[2:3], v{V_PD+1}, s[28:31], 0 offen sc1
    s_mov_b64 exec, -1
    Lnononce:
    """)

def pf_batch(s0, n):
    return [f"s_add_u32 s13, s51, {s0}", "s_and_b32 s13, s13, 15", f"s_bfm_b64 exec, {6*n}, 0", f"s_mul_i32 s50, s13, {64*6144}",
            f"buffer_load_dword v{V_PD}, v{V_PW}, s[56:59], s50 offen{NTP}", "s_lshl_b32 s13, s13, 7",
            f"s_bfm_b64 exec, {4*n}, 0",
            f"buffer_load_dword v{V_PD}, v{V_PX}, s[52:55], s13 offen{NTP}", "s_mov_b64 exec, -1"]
V_QW, V_QX = 218, 219
SLOWC = opt("slowc", 3)
def q_setup():
    return [f"s_lshr_b32 s12, s2, 3", "s_lshl_b32 s12, s12, 3", f"s_add_u32 s12, s12, s{S_W}",
            f"v_lshlrev_b32 v{V_QW}, 11, v1", f"v_add_u32 v{V_QW}, {SLOWC*128}, v{V_QW}",
            "v_and_b32 v2, 3, v1", "v_lshlrev_b32 v2, 11, v2", "v_bfe_u32 v3, v1, 2, 1", "v_lshl_add_u32 v2, v3, 10, v2",
            "s_lshl_b32 s13, s12, 13", f"s_add_u32 s13, s13, {SLOWC*128}", f"v_add_u32 v{V_QX}, s13, v2",
            "s_lshl_b32 s13, s51, 6", "s_add_u32 s12, s12, s13"]
def q_batch(i):
    return [f"s_add_u32 s13, s12, {256*i}", "s_and_b32 s13, s13, 1023", "s_mov_b64 exec, 7", "s_mul_i32 s13, s13, 6144",
            f"buffer_load_dword v{V_NON+1}, v{V_QW}, s[56:59], s13 offen", "s_mov_b64 exec, -1"]
def r_batch():
    return ["s_mov_b64 exec, 0xff", f"buffer_load_dword v{V_NON+1}, v{V_QX}, s[52:55], 0 offen", "s_mov_b64 exec, -1"]
def dma_x(stage, q):
    return [f"s_add_u32 m0, s{S_XB}, {(stage % 3)*8192 + q*1024}", f"buffer_load_dwordx4 v{V_XD[q]}, s[4:7], s{S_SOX} offen{NTD} lds"]
def dma_w(step, q):
    return [f"s_add_u32 m0, s{S_WB}, {(step % 5)*12288 + q*1024}", f"buffer_load_dwordx4 v{V_WD[q]}, s[8:11], s{S_SOW} offen{NTD} lds"]
def frag_reads(step):
    p = step & 1; xs = (step >> 1) % 3; ws = step % 5
    X = [f"ds_read_b128 {v(XF[p][tt],4)}, v{V_XR[p]} offset:{xs*8192 + tt*2048}" for tt in range(4)]
    W = [[f"ds_read_b64_tr_b16 {v(WF[p][f]+2*h,2)}, v{V_WR[f&1]} offset:{ws*12288 + (f>>1)*4096 + h*512}" for h in range(2)] for f in range(6)]
    return [X[0]] + W[0] + W[1] + W[2] + [X[1]] + W[3] + W[4] + W[5] + [X[2], X[3]]
def gemm1_mfmas(step):
    p = step & 1; out = []
    if opt("gord", 1):
        order = [(tt, f) for tt in range(4) for f in (range(4) if tt % 2 == 0 else range(3, -1, -1))] + [(tt, f) for tt in range(3, -1, -1) for f in ((4, 5) if tt % 2 else (5, 4))]
    else:
        order = [(tt, f) for tt in range(4) for f in (range(6) if tt % 2 == 0 else range(5, -1, -1))]
    for tt, f in order:
        d = acc(tt, f)
        A, B = (WF[p][f], XF[p][tt]) if f < 4 else (XF[p][tt], WF[p][f])
        out.append(f"v_mfma_f32_16x16x32_bf16 {v(d,4)}, {v(A,4)}, {v(B,4)}, {'0' if step == 0 else v(d,4)}")
    return out

HB = opt('hb', 1)
RD0, DG0, DGS = opt('rd0', 0), opt('dg0', 1), opt('dgs', 10)
def gemm1_main(a, late):
    vm = VmTrack()
    def group(tok):
        if tok == "B": return [["s_barrier"]], []
        if tok[0] == "Q": return [q_batch(int(tok[1:]))], ["pf"]
        if tok[0] == "R": return [r_batch()], ["pf"]
        if tok[0] == "P":
            s0, n = map(int, tok[1:].split("_")); return [pf_batch(s0, n)], ["pf", "pf"]
        if tok[0] == "W":
            st = int(tok[1:]); g = [f"s_add_u32 s{S_SOW}, s14, {st}", f"s_and_b32 s{S_SOW}, s{S_SOW}, 31"]
            for q in range(3):
                m, l = dma_w(st, q); g += [m, f"s_mul_i32 s{S_SOW}, s{S_SOW}, {32*6144}" if q == 0 else "s_nop 0", l]
            return [old_only(g)], [("W", st)] * 3
        if tok == "Y0":
            g = {}
            for role, qs in ((True, range(0, 4)), (False, range(4, 8))):
                g[role] = [f"s_and_b32 s{S_SOX}, s15, 0x780"]
                for q in qs:
                    m, l = dma_x(0, q); g[role] += [m, "s_nop 0", l]
            return [if_vcc(g[True], True) + if_vcc(g[False], False)], [("X", 0)] * 4
        if tok[0] == "X":
            if "h" in tok: S, h = tok[1:].split("h"); S = int(S); qs = range(0, 4) if h == "0" else range(4, 8)
            else: S = int(tok[1:]); qs = range(8)
            g = [f"s_add_u32 s{S_SOX}, s15, {S*128}"]
            for q in qs:
                m, l = dma_x(S, q); g += [m, f"s_and_b32 s{S_SOX}, s{S_SOX}, 0x780" if q == qs[0] else "s_nop 0", l]
            return [old_only(g)], [("X", S)] * len(qs)
    first = True
    for tok in PRO.split():
        g, t = group(tok)
        for x in g:
            for y in x: a(y)
        for y in t: vm.issue(y)
        if tok == "W0":
            gemm1_setup_rest(a)
    if "Y0" in PRO:
        for x in if_vcc(["s_waitcnt vmcnt(0)"], False): a(x)
    a(f"s_waitcnt vmcnt({vm.wait_count({('X',0),('W',0)})})")
    a("s_barrier")
    stamp(a, 1); dbgstamp(a, 1)
    for l in frag_reads(0): a(l)
    for st in range(32):
        bar = (not HB) or st == 0 or st % 2 == 1
        if st == 31:
            a("s_waitcnt vmcnt(0) lgkmcnt(0)")
        elif bar:
            ahead = [st + 1] + ([st + 2] if HB and st % 2 == 1 else [])
            need = {("W", x) for x in ahead} | {("X", x >> 1) for x in ahead}
            for nd in need: assert vm.ops.count(nd) == (3 if nd[0] == "W" else 8) or nd == ("X", 0), (st, nd)
            a(f"s_waitcnt vmcnt({min(63, vm.wait_count(need))}) lgkmcnt(0)")
        else:
            a("s_waitcnt lgkmcnt(0)")
        if bar: a("s_barrier")
        if st % 4 == 0: stamp(a, None, "g")
        if st in (2, 9, 30): jitter(a)
        M = gemm1_mfmas(st)
        if st == 31:
            a.label("Lgemm_end")
            last_step(a, late[31]); break
        R = frag_reads(st + 1) if st + 1 < 32 else []
        toks = list(STEPX.get(st, []))
        if not HB:
            if st + 5 < 32: toks.append(f"W{st+5}")
        elif st >= 1 and st + 4 < 32:
            toks.append(f"W{st+4}")
        if st >= 1 and ((st - 1) >> 1) + 3 < 16: toks.append(f"X{((st-1)>>1)+3}h{0 if st % 2 == 1 else 1}")
        D = []
        for tok in toks:
            g, t = group(tok); D += g
            for y in t: vm.issue(y)
        gaps = [[] for _ in range(24)]
        for i, r in enumerate(R): gaps[i + RD0].append(r)
        for i, d in enumerate(D): gaps[min(23, DG0 + (i * DGS if len(D) <= 3 else (i * (23 - DG0)) // len(D)))] += d
        lt = late.get(st, [])
        assert len(lt) <= 24
        for i, x in enumerate(lt):
            gaps[i].append(x)
            if x.startswith("buffer_"): vm.issue("late")
        for i, m in enumerate(M):
            a(m)
            for x in gaps[i]:
                if "--xnodma" in sys.argv and x.endswith("lds") and st > 3: continue
                if "--xnord" in sys.argv and x.startswith("ds_read") and st > 3: continue
                a(x)

AS = [8, 24, 40, 56]
AO = {'a': 224, 'b': 240}
AQ = {('a',0): 104, ('a',1): 108, ('b',0): 112, ('b',1): 116}
AC = {'a': 120, 'b': 136}
AK = [[152, 156], [160, 164]]
AV = [[168, 172], [176, 180]]
AL = {'a': 184, 'b': 188}
ASEL = 192; AIDX = 196; AADDR = 197; AVO = 198; AWD = 199
AFL = 200
AFA = 202
V_VS, V_VL = 205, 207
AADK, AVK = 204, 206
V_FA = 221
S_CH2 = 22
P_WR = [212, 213, 214, 215]; P_OV = [[216, 217], [218, 219]]; V_FA2 = 220
S_OSO = 64 if not STAMP else 66
def qk1(Y, kb, q, c=None): return f"v_mfma_f32_32x32x16_bf16 {v(Y,16)}, {v(AK[kb][0],4)}, {v(AQ[(q,0)],4)}, {v(AC[q],16) if c is None else c}"
def qk2(Y, kb, q): return f"v_mfma_f32_32x32x16_bf16 {v(Y,16)}, {v(AK[kb][1],4)}, {v(AQ[(q,1)],4)}, {v(Y,16)}"
def pv(Z, h, vb, q): return f"v_smfmac_f32_32x32x32_bf16 {v(AO[q],16)}, {v(AV[vb][h],4)}, {v(Z+8*h,8)}, v{AIDX}"
def sm(Z, h, q): return f"v_smfmac_f32_16x16x64_bf16 {v(AL[q],4)}, {v(ASEL,4)}, {v(Z+8*h,8)}, v{AIDX}"
def srd(d, lo, hi, off, nrec):
    return [f"s_add_u32 s{d}, s{lo}, s{off}\ns_addc_u32 s{d+1}, s{hi}, 0", f"s_and_b32 s{d+1}, s{d+1}, 0xffff", f"s_mov_b32 s{d+2}, {nrec}", f"s_mov_b32 s{d+3}, 0x00020000"]

CODEPF = opt('codepf', 12)
SEL2 = opt('sel2', 0)
def lbroadcast():
    if not SEL2: return []
    return [f"v_mov_b32 v{AL[q]+1}, v{AL[q]}" for q in 'ab'] + ['s_nop 1'] + [f"v_permlane32_swap_b32 v{AL[q]}, v{AL[q]+1}" for q in 'ab']
def late_setup():
    L = {}
    if CODEPF:
        L[CODEPF] = ["s_getpc_b64 s[26:27]\nLpcref:", f"s_and_b32 s28, s{S_W}, 3", "s_lshl_b32 s28, s28, 13", "v_lshlrev_b32 v2, 7, v1", "v_add_u32 v2, s28, v2",
                     "v_min_u32 v2, Lcode_end-Lgemm_end-4, v2", "s_add_u32 s26, s26, Lgemm_end-Lpcref\ns_addc_u32 s27, s27, 0", "v_mov_b32 v3, s27",
                     "v_add_co_u32 v2, s[28:29], s26, v2", "s_nop 1", "v_addc_co_u32 v3, s[28:29], 0, v3, s[28:29]",
                     "\n".join(if_vcc([f"global_load_dword v{V_NON+1}, v[2:3], off"], False))]
    L[18] = [f"v_mov_b32 v{AO['a']+i}, 0" for i in range(24)]
    L19OLD = [f"v_mov_b32 v{AO['a']+24+i}, 0" for i in range(8)] + \
            [f"v_lshlrev_b32 v{AVO}, 4, v1", "v_and_b32 v2, 7, v1", f"v_lshlrev_b32 v{AFA}, 3, v2", f"s_lshr_b32 s26, s{S_W}, 2", "s_lshl_b32 s26, s26, 14",
             f"v_add_u32 v{AADDR}, s26, v{AVO}", f"v_mov_b32 v{AIDX}, 0xdddddddd",
             "v_bfe_u32 v2, v1, 2, 1", "v_mov_b32 v3, 0x3f803f80", "v_cmp_eq_u32 s[28:29], 0, v2", "s_nop 1",
             f"v_cndmask_b32 v{ASEL}, 0, v3, s[28:29]", f"v_cndmask_b32 v{ASEL+1}, 0, v3, s[28:29]", f"v_xor_b32 v{ASEL+2}, v3, v{ASEL}", f"v_xor_b32 v{ASEL+3}, v3, v{ASEL}"]
    L[19] = [f"v_mov_b32 v{AO['a']+24+i}, 0" for i in range(8)] + \
            [f"v_lshlrev_b32 v{AVO}, 4, v1", "v_and_b32 v2, 7, v1", f"v_lshlrev_b32 v{AFA}, 3, v2", f"s_lshr_b32 s26, s{S_W}, 2", "s_lshl_b32 s26, s26, 14",
             f"v_add_u32 v{AADDR}, s26, v{AVO}", f"v_mov_b32 v{AIDX}, 0xdddddddd",
             f"v_and_b32 v2, {15 if SEL2 else 7}, v1", "v_mov_b32 v3, 0x3f803f80", "v_cmp_eq_u32 s[28:29], 0, v2", f"v_cmp_eq_u32 s[30:31], 4, v2",
             f"v_cndmask_b32 v{ASEL}, 0, v3, s[28:29]", f"v_cndmask_b32 v{ASEL+1}, 0, v3, s[28:29]", f"v_cndmask_b32 v{ASEL+2}, 0, v3, s[30:31]", f"v_cndmask_b32 v{ASEL+3}, 0, v3, s[30:31]"] \
            if opt("sel1", 1) else L19OLD
    L[20] = ["v_and_b32 v2, 15, v1", "v_lshrrev_b32 v4, 4, v1", "v_lshlrev_b32 v4, 9, v4", f"v_lshl_add_u32 v{V_VS}, v2, 4, v4",
             "v_bfe_u32 v2, v1, 2, 1", "v_bfe_u32 v3, v1, 3, 2", "v_and_b32 v4, 35, v1", "v_lshl_add_u32 v4, v2, 4, v4", "v_lshl_add_u32 v4, v3, 2, v4",
             f"v_lshlrev_b32 v{AVK}, 4, v4", f"v_sub_u32 v2, v{AADDR}, v{AVO}", f"v_add_u32 v{AADK}, v2, v{AVK}",
             f"s_and_b32 s26, s{S_W}, 2", "s_lshl_b32 s26, s26, 14", f"s_and_b32 s27, s{S_W}, 1", "s_lshl_b32 s27, s27, 13", "s_add_u32 s26, s26, s27",
             f"s_lshr_b32 s27, s{S_W}, 2", "s_lshl_b32 s27, s27, 14", "s_add_u32 s26, s26, s27", f"v_add_u32 v{V_VL}, s26, v{V_VS}"]
    L[21] = ["v_lshrrev_b32 v2, 3, v1", "v_and_b32 v3, 7, v1", "v_lshrrev_b32 v4, 4, v1", "v_lshlrev_b32 v4, 1, v4", "v_xor_b32 v4, v3, v4",
             "v_lshlrev_b32 v4, 4, v4", f"v_lshl_add_u32 v{AWD}, v2, 11, v4",
             f"s_cmp_eq_u32 s{S_B}, 0\ns_cselect_b32 s26, s36, s42\ns_cselect_b32 s27, s37, s43", f"s_lshl_b32 s30, s{S_HP}, 7", f"s_sub_u32 s31, {1024*2048}, s30"] \
            + srd(SRD_WO, 26, 27, 30, "s31") + ["s_mov_b32 s92, s46", "s_and_b32 s93, s47, 0xffff", "s_mov_b32 s94, 256", "s_mov_b32 s95, 0x00020000"]
    if WARMF:
        L[22] = [f"s_lshl_b32 s28, s{S_B}, 4", f"s_add_u32 s28, s28, s{S_HP}", "s_lshl_b32 s28, s28, 10", f"s_add_u32 s30, s28, {F1_OFF}",
                 f"s_lshl_b32 s28, s{S_B}, 3", f"s_add_u32 s28, s28, s{S_TM}", "s_lshl_b32 s28, s28, 11", f"s_add_u32 s31, s28, {F2_OFF}",
                 "s_mov_b32 s76, s48", "s_and_b32 s77, s49, 0xffff", f"s_mov_b32 s78, {34 << 20}", "s_mov_b32 s79, 0x00020000", "v_lshlrev_b32 v2, 7, v1",
                 "\n".join(if_vcc(["s_mov_b64 exec, 0xff", f"buffer_load_dword v{V_NON+1}, v2, s[76:79], s30 offen sc1",
                                   "s_mov_b64 exec, 0xffff", f"buffer_load_dword v{V_NON+1}, v2, s[76:79], s31 offen sc1", "s_mov_b64 exec, -1"], False))]
    if opt("tlb", 0):
        L[17] = [f"s_lshl_b32 s28, s{S_B}, 4", f"s_add_u32 s28, s28, s{S_HP}", "s_lshl_b32 s28, s28, 19", f"s_lshl_b32 s29, s{S_TM}, 15", "s_add_u32 s30, s28, s29",
                 f"s_lshl_b32 s28, s{S_B}, 22", f"s_lshl_b32 s29, s{S_TM}, 19", "s_add_u32 s31, s28, s29", f"s_lshl_b32 s29, s{S_HP}, 11", "s_add_u32 s31, s31, s29", f"s_add_u32 s31, s31, {O_OFF}",
                 "s_mov_b32 s76, s48", "s_and_b32 s77, s49, 0xffff", f"s_mov_b32 s78, {34 << 20}", "s_mov_b32 s79, 0x00020000",
                 "\n".join(if_vcc(["s_mov_b64 exec, 1", f"buffer_load_dword v{V_NON+1}, v{V_PD+1}, s[76:79], s30 offen sc1",
                                   f"buffer_load_dword v{V_NON+1}, v{V_PD+1}, s[76:79], s31 offen sc1", "s_mov_b64 exec, -1"], False))]
    L[27] = [f"v_mov_b32 v{AL['a']+i}, 0" for i in range(8)] + \
            [f"s_lshl_b32 s26, s{S_B}, 5", f"s_lshl_b32 s27, s{S_HP}, 1", "s_add_u32 s26, s26, s27",
             f"s_and_b32 s28, s{S_W}, 3", "s_lshl_b32 s29, s28, 12", "s_lshl_b32 s30, s26, 18", "s_add_u32 s31, s30, s29", "s_sub_u32 s50, 524288, s29"] \
            + srd(SRD_KV, 48, 49, 31, "s50") + [f"s_lshr_b32 s27, s{S_W}, 2", "s_add_u32 s26, s26, s27", "s_lshl_b32 s30, s26, 18"]
    L[28] = [f"buffer_load_dwordx2 {v(V_NON,2)}, v{V_PD+1}, s[92:95], 0 offen sc1",
             f"s_mov_b32 s{S_WOI}, -1", f"s_lshl_b32 s{S_WOB}, s{S_W}, 14", f"s_lshl_b32 s27, s{S_W}, 10", f"s_add_u32 s{S_WOM}, s27, 65536",
             f"s_lshl_b32 s{S_M0}, s{S_W}, 12", f"s_mov_b32 s{S_CIDX}, 16384", f"s_lshl_b32 s23, s{S_TM}, 15", f"s_lshr_b32 s51, s{S_W}, 1", f"s_mov_b32 s{S_EARLY}, 0"]
    L[29] = [f"s_lshl_b32 s27, s{S_TM}, 3", "s_lshl_b32 s28, s28, 1", "s_add_u32 s27, s27, s28", "s_lshl_b32 s29, s27, 12", "s_add_u32 s31, s30, s29"] \
            + srd(SRD_KVS, 48, 49, 31, 8192) + ["s_mov_b32 s50, 4096",
             f"s_lshl_b32 s28, s{S_B}, 22", "s_lshl_b32 s29, s27, 16", "s_add_u32 s31, s28, s29", "s_and_b32 s28, s26, 31", "s_lshl_b32 s28, s28, 10",
             "s_add_u32 s31, s31, s28", f"s_add_u32 s31, s31, {O_OFF}"] + srd(SRD_O, 48, 49, 31, 131072)
    L[30] = [f"s_lshl_b32 s28, s{S_B}, 4", f"s_add_u32 s28, s28, s{S_HP}", "s_lshl_b32 s28, s28, 10", f"s_add_u32 s31, s28, {F1_OFF}"] + srd(SRD_F, 48, 49, 31, 1024) \
            + [f"s_bitcmp0_b32 s{S_W}, 1\ns_cselect_b64 vcc, -1, 0", f"s_mov_b32 s26, {QSCALE}", f"s_mov_b32 s27, {QSCALE}"]
    L[23] = [f"s_lshl_b32 s28, s{S_B}, 3", f"s_add_u32 s28, s28, s{S_TM}", "s_lshl_b32 s28, s28, 11", f"s_add_u32 s30, s28, {F2_OFF}"] + srd(SRD_F2, 48, 49, 30, 2048) \
            + [f"s_lshl_b32 s28, s{S_B}, 22", f"s_lshl_b32 s29, s{S_TM}, 19", "s_add_u32 s30, s28, s29", f"s_lshl_b32 s29, s{S_W}, 16", "s_add_u32 s30, s30, s29",
               f"s_add_u32 s30, s30, {O_OFF}"] + srd(SRD_OL, 48, 49, 30, 65536)
    L[24] = [f"s_lshl_b32 s28, s{S_TM}, 20", f"s_lshl_b32 s29, s{S_W}, 17", "s_add_u32 s30, s28, s29", f"s_lshl_b32 s29, s{S_B}, 11", "s_add_u32 s30, s30, s29",
             f"s_lshl_b32 s29, s{S_HP}, 7", "s_add_u32 s30, s30, s29", f"s_sub_u32 s31, {2048*4096}, s30"] + srd(SRD_OUT, 44, 45, 30, "s31") \
            + [f"s_and_b32 s26, s{S_HP}, 8", "s_lshl_b32 s27, s26, 11", f"v_add_u32 v{P_OV[0][0]}, s27, v{AVO}", f"v_add_u32 v{P_OV[0][1]}, 32768, v{P_OV[0][0]}",
               f"v_xor_b32 v{P_OV[1][0]}, 16384, v{P_OV[0][0]}", f"v_xor_b32 v{P_OV[1][1]}, 16384, v{P_OV[0][1]}",
               "s_lshl_b32 s26, s26, 4", f"s_lshr_b32 s27, s{S_W}, 1", "s_lshl_b32 s27, s27, 9", f"s_add_u32 s{S_FL0}, s26, s27"]
    L[25] = [x for j in range(8) for x in (f"s_add_u32 s26, s{S_HP}, {j}", "s_and_b32 s26, s26, 7", f"s_lshl_b32 s{S_OSO+j}, s26, 11")]
    L[26] = [f"s_and_b32 s26, s{S_W}, 3", "s_lshl_b32 s26, s26, 6", f"s_lshr_b32 s27, s{S_W}, 2", "s_lshl_b32 s27, s27, 5", "s_add_u32 s26, s26, s27",
             f"s_and_b32 s27, s{S_HP}, 8", f"s_add_u32 s27, s27, s{S_HP}", "s_add_u32 s26, s26, s27", "s_lshl_b32 s26, s26, 3", f"v_mov_b32 v{V_FA2}, s26",
             "v_and_b32 v4, 15, v1", "v_lshlrev_b32 v4, 4, v4", "v_bfe_u32 v5, v1, 4, 1", "v_lshl_add_u32 v4, v5, 15, v4", "v_lshrrev_b32 v5, 5, v1", "v_lshl_add_u32 v6, v5, 8, v4"]
    L[30] += ["v_lshrrev_b32 v4, 4, v1", "v_bfe_u32 v2, v1, 2, 2", "v_and_b32 v3, 3, v1", "v_and_b32 v5, 1, v4", "v_lshrrev_b32 v4, 1, v4", "v_lshl_add_u32 v7, v5, 2, v2",
              "v_lshl_add_u32 v4, v4, 4, v7", "v_lshrrev_b32 v7, 1, v7", "v_lshlrev_b32 v7, 5, v7", "v_lshl_add_u32 v7, v3, 3, v7", "v_lshl_add_u32 v7, v4, 7, v7",
              f"v_add_u32 v{P_WR[0]}, 65536, v7\nv_xor_b32 v{P_WR[1]}, 32, v{P_WR[0]}", f"v_xor_b32 v{P_WR[2]}, 64, v{P_WR[0]}\nv_xor_b32 v{P_WR[3]}, 96, v{P_WR[0]}"]
    if opt("tlb", 0):
        L[26] += ["\n".join(if_vcc(["s_mov_b64 exec, 1", f"buffer_load_dword v{V_NON+1}, v{V_PD+1}, s[{SRD_WO}:{SRD_WO+3}], 0 offen",
                                    f"buffer_load_dword v{V_NON+1}, v{V_PD+1}, s[{SRD_OUT}:{SRD_OUT+3}], 0 offen sc1", "s_mov_b64 exec, -1"], False))]
    L[31] = []
    return L

UNITS = [('V',0,0,80), ('V',0,1,84), ('V',1,0,72), ('V',1,1,76), ('K',1,1,88), ('K',1,0,92), ('K',0,0,96), ('K',0,1,100)]
def unit_src(u):
    k, T, h, d = UNITS[u]
    return [(2*T, 4+h), (2*T+1, 4+h)] if k == 'V' else [(2*T+h, 2), (2*T+h, 3)]
def cvt4(regs, d): return [f"v_cvt_pk_bf16_f32 v{d+i}, v{regs[2*i]}, v{regs[2*i+1]}" for i in range(4)]
def unit_cvt(u):
    k, T, h, d = UNITS[u]
    regs = [acc(*x) + i for x in unit_src(u) for i in range(4)]
    w = f"ds_write_b128 v{V_VL}, {v(d,4)} offset:{T*4096 + (2048 if k == 'V' else 0) + h*256}"
    return cvt4(regs, d) + [w]
def kv_store(u):
    k, T, h, d = UNITS[u]
    return f"buffer_store_dwordx4 {v(d,4)}, v{V_VS}, s[{SRD_KVS}:{SRD_KVS+3}], {'0' if T == 0 else 's50'} offen offset:{(2048 if k == 'V' else 0) + h*256}{SC1}"
def q_cvt(tt):
    return [f"v_pk_mul_f32 {v(acc(tt,0)+2*i,2)}, {v(acc(tt,0)+2*i,2)}, s[26:27]" for i in range(4)] + cvt4([acc(tt,0)+i for i in range(8)], AQ[("ab"[tt >> 1], tt & 1)])

NEP = opt('nep', 4)
def last_step(a, sal):
    order = [(3, 0), (3, 1)] + [x for u in range(8) for x in unit_src(u)] + [(tt, f) for tt in range(3) for f in range(2)]
    gaps = [[] for _ in range(24)]
    gaps[10] += q_cvt(3)
    for u in range(6): gaps[12 + 2*u] += unit_cvt(u) + (if_vcc([kv_store(u - 1), kv_store(u)]) if u & 1 and u < NEP else [])
    for i, (tt, f) in enumerate(order):
        d = acc(tt, f)
        A, B = (WF[1][f], XF[1][tt]) if f < 4 else (XF[1][tt], WF[1][f])
        a(f"v_mfma_f32_16x16x32_bf16 {v(d,4)}, {v(A,4)}, {v(B,4)}, {v(d,4)}")
        for x in gaps[i]: a(x)
    for x in unit_cvt(6) + unit_cvt(7) + (if_vcc([kv_store(6), kv_store(7)]) if NEP == 8 else []): a(x)

def transition_ab(a):
    a(f"s_cmp_lt_u32 s{S_W}, 4\ns_setprio 1\ns_cbranch_scc0 Lyng0\ns_setprio 2\nLyng0:")
    a("s_waitcnt lgkmcnt(0)\ns_barrier")
    for j in range(2): a(f"ds_read_b128 {v(AK[0][j],4)}, v{AADK} offset:{1024*j}")
    for j in range(2): a(f"ds_read_b128 {v(AV[0][j],4)}, v{AADDR} offset:{2048+1024*j}")
    rest = list(range(NEP, 8))
    for tt in range(3):
        if rest and (tt < 2 or NEP < 4):
            k = 2 if tt < 2 else len(rest)
            for x in if_vcc([kv_store(u) for u in rest[:k]]): a(x)
            rest = rest[k:]
        for x in q_cvt(tt): a(x)
    assert not rest
    a("s_nop 1")
    for q in "ab":
        for i in range(4): a(f"v_permlane16_swap_b32 v{AQ[(q,0)]+i}, v{AQ[(q,1)]+i}")
    for q in "ab":
        for i in range(4): a(f"v_permlane32_swap_b32 v{AQ[(q,0)]+i}, v{AQ[(q,1)]+i}")
    a("s_waitcnt lgkmcnt(2)")
    a(qk1(AS[0],0,'a',"0")); a(qk2(AS[0],0,'a')); a(qk1(AS[1],0,'b',"0")); a(qk2(AS[1],0,'b'))
    a(f"""
    v_readfirstlane_b32 s{S_NONCE}, v{V_NON}
    v_readfirstlane_b32 s{S_NONCE+1}, v{V_NON+1}
    s_lshl_b32 s26, s{S_TM}, 4
    s_add_u32 s26, s26, s{S_W}
    s_lshl_b32 s28, s26, 3
    s_nop 3
    s_cmp_eq_u32 s{S_NONCE}, 0
    s_cbranch_scc1 Lnonce_spin
    Lnonce_ok:
    v_mov_b32 v{V_FA}, s28
    s_nop 0
    """)
    rowmax16(a, AS[0], 2, 3)
    rowmax16(a, AS[1], 4, 5)
    MOFF = struct.unpack("<I", struct.pack("<f", float(opt("moff", 19))))[0]
    if MOFF: a(f"v_add_f32 v2, {MOFF:#x}, v2\nv_add_f32 v4, {MOFF:#x}, v4")
    for i in range(8): a(f"v_pk_mul_f32 {v(AC['a']+2*i,2)}, v[2:3], -1.0 op_sel_hi:[0,0]")
    a(f"v_pk_mul_f32 {v(AC['b'],2)}, v[4:5], -1.0 op_sel_hi:[0,0]\nv_pk_mul_f32 {v(AC['b']+2,2)}, v[4:5], -1.0 op_sel_hi:[0,0]")
    a(qk1(AS[0],0,'a')); a(qk2(AS[0],0,'a'))
    for i in range(2, 8): a(f"v_pk_mul_f32 {v(AC['b']+2*i,2)}, v[4:5], -1.0 op_sel_hi:[0,0]")
    a("s_nop 4")

def rowmax16(a, S, m, t):
    a(f"v_max3_f32 v{m}, v{S}, v{S+1}, v{S+2}")
    for i in range(3, 15, 2): a(f"v_max3_f32 v{m}, v{m}, v{S+i}, v{S+i+1}")
    a(f"v_max_f32 v{m}, v{m}, v{S+15}")
    a(f"v_mov_b32 v{t}, v{m}\ns_nop 1\nv_permlane32_swap_b32 v{m}, v{t}\ns_nop 0\nv_max_f32 v{m}, v{m}, v{t}")

def attn_half(a, t, q, extra=None, skipz=False):
    hs = (2*t + (q == 'b')) % 4
    oq = 'b' if q == 'a' else 'a'
    X = AS[hs]; Y = AS[(hs+1) % 4]; Z = AS[(hs-1) % 4]
    kb = t % 2 if q == 'a' else (t+1) % 2
    vb = (t-1) % 2 if q == 'a' else t % 2
    nt = (t + 1) % 4
    M = {'Q1': qk1(Y,kb,oq), 'Q2': qk2(Y,kb,oq), 'P1': pv(Z,0,vb,oq), 'S1': sm(Z,0,oq), 'P2': pv(Z,1,vb,oq), 'S2': sm(Z,1,oq)}
    e = 0
    for tok in "Q1 W0 3 S1 L0 2 Q2 3 P1 3 S2 L1 2 P2 W1 3".split():
        if tok in M:
            if not (skipz and tok[0] != 'Q'): a(M[tok])
        elif tok in ('L0', 'L1'):
            j = int(tok[1])
            if q == 'a': a(f"ds_read_b128 {v(AK[(t+1)%2][j],4)}, v{AADK} offset:{nt*4096 + 1024*j}")
            else: a(f"ds_read_b128 {v(AV[(t+1)%2][j],4)}, v{AADDR} offset:{nt*4096 + 2048 + 1024*j}")
        elif tok == 'W0':
            if q == 'b': a("s_waitcnt lgkmcnt(0)")
        elif tok == 'W1':
            if q == 'a': a("s_waitcnt lgkmcnt(1)")
        else:
            for _ in range(int(tok)):
                a(f"v_exp_f32 v{X+e}, v{X+e}"); e += 1
        if extra and tok in extra:
            for x in extra[tok]: a(x)
    assert e == 16

def kv_dma(h): return [f"buffer_load_dwordx4 v{AVO}, s[{SRD_KV}:{SRD_KV+3}], s{S_CH if h == 0 else S_CH2} offen offset:{1024*i}{SC1} lds" for i in range(4)]
S_FSO = 24
def flag_load(srd=None):
    srd = SRD_F if srd is None else srd
    return f"buffer_load_dwordx2 {v(AFL,2)}, v{AFA}, s[{srd}:{srd+3}], s{S_FSO} offen sc1"
S_EARLY = 41
DEPTH = opt("odepth", 5)
OSL = [72, 80, 88, 96, 136, 144, 152, 160, 8, 16, 24, 32, 224, 232, 240, 248]
def oslot(p, tt): return OSL[p % 16] + 4 * tt
def oload_ins(p):
    return [f"buffer_load_dwordx4 {v(oslot(p, tt),4)}, v{P_OV[(p>>3)&1][tt]}, s[{SRD_OL}:{SRD_OL+3}], s{S_OSO + p%8} offen offset:{(p>>4)*1024}{SC1}" for tt in range(2)]
def chunk_scalars():
    return [f"s_add_u32 s{S_CIDX}, s{S_CIDX}, 16384", f"s_xor_b32 s{S_CH}, s{S_CIDX}, s23", f"s_add_u32 s{S_CH2}, s{S_CH}, 262144",
            f"s_bfe_u32 s26, s{S_CH}, 0x1000e", "s_lshl_b32 s26, s26, 1", f"s_add_u32 s{S_FIDX}, s26, s51"]
def line_cur(): return [f"s_lshr_b32 s26, s{S_CH}, 15", f"s_lshl_b32 s{S_FSO}, s26, 7"]
def line_next(): return [f"s_add_u32 s26, s{S_CIDX}, 16384", "s_xor_b32 s26, s26, s23", "s_bfe_u32 s26, s26, 0x3000f", f"s_lshl_b32 s{S_FSO}, s26, 7"]
def mask_test():
    return [f"s_lshr_b32 s26, s{S_MASK}, s{S_FIDX}", "s_andn2_b32 s26, 0x11, s26"]
def flag_cmp(): return f"v_cmp_eq_u64 s[{S_MASK}:{S_MASK+1}], s[{S_NONCE}:{S_NONCE+1}], {v(AFL,2)}"
def spin(a, name, test, lowprio=False, SLEEP=SLEEP):
    if lowprio:
        a(f"""
        {name}:
        s_mov_b32 s{S_SPIN}, {SPIN_LIMIT}
        {name}_l:
        {flag_load()}
        s_waitcnt vmcnt(0)
        {flag_cmp()}
        s_sub_u32 s{S_SPIN}, s{S_SPIN}, 1
        s_cbranch_scc1 {name}_x
        """)
        for x in test: a(x)
        a(f"s_cbranch_scc0 {name}_x\ns_setprio 0\ns_branch {name}_l\n{name}_x:\ns_cbranch_vccz {name}_r\ns_setprio 2\ns_branch {name}_r")
        return
    a(f"""
    {name}:
    s_mov_b32 s{S_SPIN}, {SPIN_LIMIT}
    {name}_l:
    {flag_load()}
    s_waitcnt vmcnt(0)
    {flag_cmp()}
    s_sub_u32 s{S_SPIN}, s{S_SPIN}, 1
    s_cbranch_scc1 {name}_r
    """)
    for x in test: a(x)
    if SLEEP: a(f"s_cbranch_scc0 {name}_r\ns_sleep {SLEEP}\ns_branch {name}_l")
    else: a(f"s_cbranch_scc1 {name}_l\ns_branch {name}_r")
def spin_flags(a, name): spin(a, name, mask_test())
def wo_dma():
    return [f"s_add_u32 s{S_WOI}, s{S_WOI}, 1", f"s_add_u32 s26, s{S_WOI}, s{S_HP}", "s_and_b32 s26, s26, 7",
            f"s_xor_b32 s27, s{S_WOI}, s{S_HP}", "s_and_b32 s27, s27, 8", "s_or_b32 s26, s26, s27", "s_lshl_b32 s26, s26, 1",
            f"s_lshr_b32 s27, s{S_WOI}, 4", "s_add_u32 s26, s26, s27", "s_lshl_b32 s26, s26, 16", f"s_mov_b32 m0, s{S_WOM}",
            f"s_add_u32 s{S_WOS}, s26, s{S_WOB}", f"s_add_u32 s{S_WOM}, s{S_WOM}, 4096",
            f"buffer_load_dwordx4 v{AWD}, s[{SRD_WO}:{SRD_WO+3}], s{S_WOS} offen{NTW} lds"]
TOUCH = "--touch" in sys.argv
WARMF = "--nowarmf" not in sys.argv
def publish(fa=V_FA): return ["s_waitcnt vmcnt(0)", "s_mov_b64 exec, 1", f"buffer_store_dwordx2 {v(V_NON,2)}, v{fa}, s[{SRD_F}:{SRD_F+3}], 0 offen sc1", "s_mov_b64 exec, -1"]
def wo_rows(n):
    o = []
    for _ in range(n): o += wo_dma()
    return o
EARLY = '--noearly' not in sys.argv
XT = opt('xt', 1)
LST = opt("lst", 1)
def tailpf():
    if not opt("codepf2", 2): return []
    return [f"s_cmp_eq_u32 s{S_CNT}, {opt('codepf2', 2)}", "s_cbranch_scc0 Lnopf2", "s_getpc_b64 s[26:27]", "Lpcref2:", f"s_lshl_b32 s28, s{S_W}, 13",
            "v_lshlrev_b32 v2, 7, v1", "v_add_u32 v2, s28, v2", "v_min_u32 v2, Lattn_fallback-Lattn_j-4, v2", "s_add_u32 s26, s26, Lattn_j-Lpcref2", "s_addc_u32 s27, s27, 0",
            "v_mov_b32 v3, s27", "v_add_co_u32 v2, s[28:29], s26, v2", "s_nop 1", "v_addc_co_u32 v3, s[28:29], 0, v3, s[28:29]", "global_load_dword v4, v[2:3], off", "Lnopf2:"]
def attn_chunk(a, kind):
    tog = f"v_xor_b32 v{AADDR}, 32768, v{AADDR}\nv_xor_b32 v{AADK}, 32768, v{AADK}"
    for t in range(4):
        ea, eb = {}, {}
        if kind in ('c0', 'c1'): stamp(a, None, "c")
        if t in (1, 3): jitter(a)
        if kind == 'c1' and t == opt("polt", 1) + 1: pass
        if kind == 'c1' and t == opt("polt", 1):
            for x in old_only(chunk_scalars() + line_cur() + ["s_branch Lspin_c1a", "Lspin_c1a_r:", f"s_mov_b32 m0, s{S_M0}", "s_nop 0"] + kv_dma(0)
                              + [f"s_add_u32 m0, s{S_M0}, 16384", "s_nop 0"] + kv_dma(1)): a(x)
            stamp(a, None, "c")
        if kind == 'c14' and t == XT:
            for x in if_vcc(["s_barrier"], False): a(x)
        if kind == 'c0':
            for k, e in enumerate((ea, eb)):
                j = 2*t + k - LST
                if 0 <= j < 4: e['P1'] = if_vcc([kv_store(2*j), kv_store(2*j + 1)], False)
        if kind == 'c1' and t == 0:
            eb['P2'] = [f"s_and_b32 s26, s{S_W}, 6", "s_cmp_eq_u32 s26, 2", "s_cbranch_scc0 Lpub2"] + publish() + ["Lpub2:"]
        if kind == 'c14' and t == 0:
            ea['Q2'] = old_only([f"s_lshl_b32 s28, s{S_W}, 1", f"s_add_u32 s28, s28, s{S_HP}", "v_lshrrev_b32 v2, 5, v1", "v_add_u32 v2, s28, v2", "v_and_b32 v2, 7, v2",
                                 f"s_and_b32 s28, s{S_HP}, 8", "s_xor_b32 s28, s28, 8", "v_or_b32 v2, s28, v2", "v_lshlrev_b32 v2, 17, v2", "v_and_b32 v3, 31, v1",
                                 "v_lshl_add_u32 v2, v3, 11, v2", "s_mov_b32 s28, 65536", f"buffer_load_dword v3, v2, s[{SRD_WO}:{SRD_WO+3}], s28 offen"])
        if kind == 'c15' and EARLY:
            if t == 2: ea['Q2'] = if_vcc([f"s_mov_b32 s{S_FSO}, s{S_FL0}", flag_load(SRD_F2)], False)
            if t == 3: ea['Q2'] = if_vcc(["s_waitcnt vmcnt(0)", flag_cmp(), "s_nop 0", f"s_cmp_lg_u32 s{S_MASK}, -1", "s_cbranch_scc1 Lnoearly", f"s_mov_b32 s{S_EARLY}, 1"]
                                         + [x for p in range(min(DEPTH, 4)) for x in oload_ins(p)] + ["Lnoearly:"], False)
        if t == 3:
            if kind == 'c0':
                stamp(a); a("s_waitcnt lgkmcnt(0)\ns_barrier"); stamp(a)
                for x in [f"s_cmp_lt_u32 s{S_W}, 4", "s_cselect_b64 vcc, -1, 0", f"s_and_b32 s26, s{S_W}, 6", "s_cmp_eq_u32 s26, 2", "s_cbranch_scc1 Lpub1"] + publish() + ["Lpub1:"]: a(x)
                stamp(a)
                ea['Q1'] = [tog]
            elif kind == 'c14':
                ea['Q1'] = [f"v_add_u32 v{AADDR}, 131072, v{AADDR}\nv_add_u32 v{AADK}, 131072, v{AADK}"]
            elif kind != 'c15':
                stamp(a); a("s_waitcnt vmcnt(0) lgkmcnt(0)"); stamp(a)
                if not ("--xnobar" in sys.argv and kind == 'loop'): a("s_barrier")
                stamp(a)
                if kind in ('c1', 'loop'):
                    nm = "Lspin_" + kind
                    ea = {'Q1': [tog],
                          'Q2': old_only([flag_cmp(), f"s_xor_b32 s{S_M0}, s{S_M0}, 32768"] + chunk_scalars() + [f"s_mov_b32 m0, s{S_M0}"] + mask_test()
                                         + [f"s_cbranch_scc1 {nm}", f"{nm}_r:"] + kv_dma(0)),
                          'P2': old_only([f"s_add_u32 m0, s{S_M0}, 16384", "s_nop 0"] + kv_dma(1) + line_next() + [flag_load()])}
                    if kind == 'loop':
                        eb = {'Q2': old_only([f"s_cmp_gt_u32 s{S_CNT}, 3", "s_cbranch_scc0 Lnowo"] + wo_rows(2) + ["Lnowo:"] + tailpf() + [f"s_cmp_eq_u32 s{S_CNT}, 1", "s_cbranch_scc0 Lno15"]
                                             + chunk_scalars() + [f"s_add_u32 m0, s{S_M0}, 131072"] + mask_test() + ["s_cbranch_scc1 Lspin_15", "Lspin_15_r:"] + kv_dma(0)
                                             + [f"s_add_u32 m0, s{S_M0}, {131072 + 16384}", "s_nop 0"] + kv_dma(1) + ["Lno15:"]),
                              'P2': [f"s_sub_u32 s{S_CNT}, s{S_CNT}, 1", f"s_cmp_lg_u32 s{S_CNT}, 0"]}
                elif kind == 'c13':
                    ea = {'Q1': [tog], 'Q2': old_only([f"s_lshl_b32 s{S_WOM}, s{S_W}, 10", f"s_add_u32 s{S_WOM}, s{S_WOM}, 32768"] + wo_rows(3)), 'P2': old_only(wo_rows(3))}
                    eb = {'Q2': old_only(wo_rows(2))}
        if "--xnoex" in sys.argv and kind == 'loop' and t == 3: ea = {'Q1': [tog]}; eb = {'P2': eb['P2']}
        attn_half(a, t, 'a', ea, skipz=(kind == 'c0' and t == 0)); attn_half(a, t, 'b', eb)

def attention(a):
    attn_chunk(a, 'c0')
    attn_chunk(a, 'c1')
    a(f"s_mov_b32 s{S_CNT}, 11")
    stamp(a, None, "l")
    SPLIT = opt("split", 1)
    def tail():
        stamp(a, None, "l")
        attn_chunk(a, 'c13')
        attn_chunk(a, 'c14')
        attn_chunk(a, 'c15')
    if SPLIT:
        a("s_cbranch_vccz Lattn_y")
        for role in (True, False):
            ROLE[0] = role
            nm = "Lattn_loop" if role else "Lattn_loop_y"
            if not role: a.label("Lattn_y")
            a(".p2align 6")
            a.label(nm)
            attn_chunk(a, 'loop')
            a(f"s_cbranch_scc1 {nm}")
            if SPLIT == 2: tail()
            if role: a("s_branch Lattn_j")
        ROLE[0] = None
        a.label("Lattn_j")
        if SPLIT == 1: tail()
    else:
        a(".p2align 6")
        a.label("Lattn_loop")
        attn_chunk(a, 'loop')
        a("s_cbranch_scc1 Lattn_loop")
        tail()
    a("s_nop 1")
    stamp(a, 4)
    a(pv(AS[3],0,1,'b')); a(sm(AS[3],0,'b')); a(pv(AS[3],1,1,'b')); a(sm(AS[3],1,'b'))
    a(f"""
    s_mov_b32 s26, 0x4e800000        ; 2^30
    s_mov_b32 s27, 65536
    s_nop 5
    """)
    for x in lbroadcast(): a(x)
    a(f"""
    v_cmp_nge_f32 vcc, s26, v{AL['a']}
    v_cmp_nge_f32 s[28:29], s26, v{AL['b']}
    s_nop 0
    s_or_b64 vcc, vcc, s[28:29]
    s_cbranch_vccnz Lattn_fallback
    Lattn_fin:
    """)
    stamp(a, None, "e")
    a(f"""
    v_rcp_f32 v2, v{AL['a']}
    v_rcp_f32 v4, v{AL['b']}
    """)
    for qi, q in enumerate('ab'):
        for u in range(2):
            for i in range(4): a(f"v_pk_mul_f32 {v(AO[q]+8*u+2*i,2)}, {v(AO[q]+8*u+2*i,2)}, {v(2+2*qi,2)} op_sel_hi:[1,0]")
            d = AS[0] + 4*(2*qi+u)
            for x in cvt4([AO[q]+8*u+i for i in range(8)], d): a(x)
            a(f"buffer_store_dwordx4 {v(d,4)}, v6, s[{SRD_O}:{SRD_O+3}], {'0' if qi==0 else 's27'} offen offset:{512*u}{SC1}")

def fallback(a):
    a.label("Lattn_fallback")
    a(f"""
    s_waitcnt vmcnt(0) lgkmcnt(0)
    s_lshl_b32 s26, s{S_B}, 5
    s_lshl_b32 s28, s{S_HP}, 1
    s_add_u32 s26, s26, s28
    s_lshr_b32 s28, s{S_W}, 2
    s_add_u32 s26, s26, s28
    s_lshl_b32 s30, s26, 18
    """)
    make_srd(a, SRD_KV, 48, 49, 30, 262144)
    a(f"""
    s_mov_b32 s{S_SPIN}, {SPIN_LIMIT}
    v_lshrrev_b32 v2, 3, v1
    v_lshl_add_u32 v2, v2, 7, v{AFA}
    Lfb_poll:
    buffer_load_dwordx2 {v(AFL,2)}, v2, s[{SRD_F}:{SRD_F+3}], 0 offen sc1
    s_waitcnt vmcnt(0)
    v_cmp_eq_u64 vcc, s[{S_NONCE}:{S_NONCE+1}], {v(AFL,2)}
    s_sub_u32 s{S_SPIN}, s{S_SPIN}, 1
    s_cbranch_scc1 Lfb_go
    s_cmp_eq_u64 vcc, -1
    s_cbranch_scc0 Lfb_poll
    Lfb_go:
    """)
    for r in list(range(AO['a'], AO['a']+32)) + list(range(AL['a'], AL['a']+8)): a(f"v_mov_b32 v{r}, 0")
    Mr = {'a': AC['a'], 'b': AC['b']}
    a(f"v_mov_b32 v{Mr['a']}, 0xff800000\nv_mov_b32 v{Mr['b']}, 0xff800000\ns_mov_b32 s26, 0")
    a.label("Lfb_loop")
    for j in range(2): a(f"buffer_load_dwordx4 {v(AK[0][j],4)}, v{AVK}, s[{SRD_KV}:{SRD_KV+3}], s26 offen offset:{1024*j} sc1")
    for j in range(2): a(f"buffer_load_dwordx4 {v(AV[0][j],4)}, v{AVO}, s[{SRD_KV}:{SRD_KV+3}], s26 offen offset:{2048+1024*j} sc1")
    a("s_waitcnt vmcnt(0)")
    for q in 'ab':
        S = AS[0]
        a(qk1(S,0,q,"0")); a(qk2(S,0,q)); a("s_nop 15")
        rowmax16(a, S, 2, 3)
        a(f"v_max_f32 v2, v2, v{Mr[q]}\nv_sub_f32 v3, v{Mr[q]}, v2\nv_exp_f32 v3, v3\nv_mov_b32 v{Mr[q]}, v2")
        for i in range(16): a(f"v_sub_f32 v{S+i}, v{S+i}, v2")
        for i in range(16): a(f"v_exp_f32 v{S+i}, v{S+i}")
        for i in range(16): a(f"v_mul_f32 v{AO[q]+i}, v3, v{AO[q]+i}")
        for i in range(4): a(f"v_mul_f32 v{AL[q]+i}, v3, v{AL[q]+i}")
        a("s_nop 1")
        a(pv(S,0,0,q)); a(sm(S,0,q)); a(pv(S,1,0,q)); a(sm(S,1,q))
        a("s_nop 15")
    a("s_add_u32 s26, s26, 4096\ns_cmp_lt_u32 s26, 262144\ns_cbranch_scc1 Lfb_loop")
    for x in lbroadcast(): a(x)
    a("s_branch Lattn_fin")

PACC = 40
PWF = [104, 120]
POF = 168
POLLS = []
def proj_body(a, old):
    vm = VmTrack(); fpos = {}
    R = "o" if old else "y"
    def wreads(p):
        off = (p if p < 16 else p - 16 + 8 if p < 24 else (p - 24) % 4) * 4096
        return [f"ds_read_b64_tr_b16 {v(PWF[p&1]+4*ct+2*h,2)}, v{P_WR[ct]} offset:{off + h*1024}" for ct in range(4) for h in range(2)]
    def check(g, hi=False):
        nm = f"Lpoll{R}{g}"; POLLS.append((nm, hi))
        return [f"s_cmp_lg_u32 s{S_MASK}, -1", f"s_cbranch_scc1 {nm}", f"{nm}_r:"]
    def setline(g): return f"s_xor_b32 s{S_FSO}, s{S_FL0}, {(g & 1) * 128 + (g >> 1) * 256}"
    def force(g, hi=False): return [f"s_mov_b32 s{S_MASK}, 0", setline(g)] + check(g, hi)
    def oload(p):
        vm.issue(("O", p)); vm.issue(("O", p))
        return oload_ins(p)
    PX, YX3 = opt("px", 10), opt("yx3", 5)
    if old:
        a("s_waitcnt vmcnt(4)\ns_barrier")
        stamp(a, None, "e")
        for x in publish(V_FA2): a(x)
        stamp(a, 5)
        for x in [f"s_lshl_b32 s{S_WOM}, s{S_W}, 10"] + wo_rows(4) + [f"s_add_u32 s{S_WOM}, s{S_WOM}, {131072 - 16384}"] + wo_rows(4) + ["s_waitcnt vmcnt(8)"]: a(x)
        OPRE = opt("opre", 6)
        if opt("olow", 1): a("s_setprio 0")
        stamp(a, None, "o")
        for p in range(OPRE):
            if p % 8 == 0:
                for x in force(p // 8, not opt("olow", 1)): a(x)
                stamp(a, None, "o")
            for x in oload(p): a(x)
        a("s_setprio 0")
        nxt = OPRE
    else:
        stamp(a, None, "e")
        YPUB = opt("ypub", 2)
        if YPUB < 0:
            for x in publish(V_FA2): a(x)
        a(f"s_setprio {opt('yprio', 1)}")
        stamp(a, 5)
        a(f"s_cmp_eq_u32 s{S_EARLY}, 1\ns_cbranch_scc1 Learly")
        for x in force(0): a(x)
        for p in range(4):
            for x in oload(p): a(x)
        a.label("Learly")
        for _ in range(1 + (opt("opre", 6) + 7) // 8): stamp(a, None, "o")
        spos = len(vm.ops)
        for p in range(4, DEPTH):
            for x in oload(p): a(x)
        nxt = DEPTH
    for x in wreads(0): a(x)
    stamp(a, 6)
    for p in range(32):
        if p + 1 == 16:
            for ct in range(4): a(f"v_add_u32 v{P_WR[ct]}, {-65536 & 0xffffffff}, v{P_WR[ct]}")
        if p + 1 == 28:
            for ct in range(4): a(f"v_add_u32 v{P_WR[ct]}, 131072, v{P_WR[ct]}")
        wc = vm.wait_count({('O', p)})
        if not old and YPUB >= 0 and p < 4:
            a(f"s_cmp_eq_u32 s{S_EARLY}, 1\ns_cbranch_scc1 Lw{p}a\ns_waitcnt vmcnt({wc})\nLw{p}a:\ns_waitcnt vmcnt({wc + 4}) lgkmcnt(0)")
        else:
            a(f"s_waitcnt vmcnt({wc}) lgkmcnt(0)")
        if not old and p == YPUB:
            for x in [f"s_waitcnt vmcnt({len(vm.ops) - spos})"] + publish(V_FA2)[1:]: a(x)
        gaps = [[] for _ in range(8)]
        for i, r in enumerate(wreads(p + 1) if p + 1 < 32 else []): gaps[i // 2].append(r)
        if not old and p == YX3: gaps[0].append("s_barrier")
        todo = []
        if old:
            todo = list(range(nxt, min(32 if p >= PX else 16, nxt + 2, 16 + p, p + 1 + opt("odold", 6))))
        elif nxt < 32: todo = [nxt]
        gi = 4
        for n in todo:
            if n % 8 == 0:
                g = n // 8
                if old and g == 2: gaps[gi] += ["s_barrier"] + force(g)
                elif g in fpos: gaps[gi] += [f"s_waitcnt vmcnt({len(vm.ops) - fpos[g]})", flag_cmp(), "s_nop 0"] + check(g)
                else: gaps[gi] += force(g)
            o = oload(n)
            gaps[gi].append(o[0]); gaps[gi + 1].append(o[1]); gi += 2
            if (n + 3) % 8 == 0 and n + 3 < 32:
                g = (n + 3) // 8
                gaps[gi - 1] += [setline(g), flag_load()]
                fpos[g] = len(vm.ops)
            nxt = n + 1
        n = 0
        for tt in range(2):
            for ct in (range(4) if tt == 0 else range(3, -1, -1)):
                d = PACC + (tt*4+ct)*4
                a(f"v_mfma_f32_16x16x32_bf16 {v(d,4)}, {v(PWF[p&1]+4*ct,4)}, {v(oslot(p, tt),4)}, {'0' if p==0 else v(d,4)}")
                for x in gaps[n]: a(x)
                n += 1
        if p % 4 == 3: stamp(a, None, "p")
        if p in (1, 9, 20): jitter(a)
    assert nxt == 32

def proj(a):
    a(f"s_mov_b64 s[{SRD_F}:{SRD_F+1}], s[{SRD_F2}:{SRD_F2+1}]\ns_mov_b32 s{SRD_F+2}, 2048")
    a(f"s_cmp_lt_u32 s{S_W}, 4\ns_cselect_b64 vcc, -1, 0\ns_cbranch_scc0 Lproj_y")
    proj_body(a, True)
    a("s_branch Lproj_e\nLproj_y:")
    proj_body(a, False)
    a.label("Lproj_e")
    a(f"""
    v_lshrrev_b32 v4, 4, v1
    v_and_b32 v2, 15, v1
    v_lshlrev_b32 v2, 12, v2
    v_and_b32 v3, 1, v4
    v_lshl_add_u32 v2, v3, 5, v2
    v_lshrrev_b32 v3, 1, v4
    v_lshl_add_u32 v2, v3, 4, v2
    s_mov_b32 s26, 65536
    s_nop 3
    """)
    for tt in range(2):
        for pr in range(2):
            d = POF + (tt*2+pr)*4
            for x in range(2):
                s0 = PACC + (tt*4+2*pr+x)*4
                a(f"v_cvt_pk_bf16_f32 v{d+2*x}, v{s0}, v{s0+1}\nv_cvt_pk_bf16_f32 v{d+2*x+1}, v{s0+2}, v{s0+3}")
            a(f"s_nop 1\nv_permlane16_swap_b32 v{d}, v{d+2}\nv_permlane16_swap_b32 v{d+1}, v{d+3}")
            a(f"buffer_store_dwordx4 {v(d,4)}, v2, s[{SRD_OUT}:{SRD_OUT+3}], {'0' if tt==0 else 's26'} offen offset:{64*pr}{' ' + opt('ofl', 'nt').replace('_', ' ') if opt('ofl', 'nt') else ''}")

def build():
    a = Asm()
    decode(a, "Lend")
    gemm1_setup_dma(a)
    jitter(a)
    stamp(a, 0); dbgstamp(a, 0)
    gemm1_main(a, late_setup())
    stamp(a, 2); dbgstamp(a, 2)
    transition_ab(a)
    stamp(a, 3); jitter(a)
    attention(a)
    jitter(a)
    dbgstamp(a, 3)
    proj(a)
    stamp(a, 7); dbgstamp(a, 4); dbgflush(a)
    stamp_flush(a, 8)
    a.label("Lend")
    a("s_endpgm")
    for nm in ("Lspin_c1a", "Lspin_c1", "Lspin_loop", "Lspin_15"): spin_flags(a, nm)
    a(f"""
    Lnonce_spin:
    s_mov_b32 s{S_SPIN}, {SPIN_LIMIT}
    Lnonce_l:
    buffer_load_dwordx2 {v(V_NON,2)}, v{V_PD+1}, s[92:95], 0 offen sc1
    s_waitcnt vmcnt(0)
    v_readfirstlane_b32 s{S_NONCE}, v{V_NON}
    v_readfirstlane_b32 s{S_NONCE+1}, v{V_NON+1}
    s_sub_u32 s{S_SPIN}, s{S_SPIN}, 1
    s_cbranch_scc1 Lnonce_ok
    s_cmp_eq_u32 s{S_NONCE}, 0
    s_cbranch_scc1 Lnonce_l
    s_branch Lnonce_ok
    """)
    for nm, hi in POLLS: spin(a, nm, [f"s_cmp_lg_u32 s{S_MASK}, -1"], lowprio=hi, SLEEP=opt("sleep2", 0) if nm[-1] in "13" else SLEEP)
    fallback(a)
    a.label("Lcode_end")
    return a.text()

def main(out):
    P = "concat_heads__mha_block__softmax_full_mha__prompt_kernel"
    txt = f"""; Kernarg layout (72 bytes, pointers only, base s[0:1]):
;   0 A_x  8 A_wqkv  16 A_wo  24 B_x  32 B_wqkv  40 B_wo  48 d_out  56 d_debug  64 d_ws
; One fused kernel, 256 workgroups (one per CU) x 8 waves; workgroup = (block b, 256 tokens tm, head pair hp).
;   phase A  QKV projection 256x192x1024 (LDS-DMA ring, 16x16x32 MFMA); Q stays in registers, K/V go to LDS and to d_ws
;   phase B  softmax(QK^T)V for 2 heads x 256 queries. exp2 results feed v_smfmac directly (high halves = bf16).
;            Shift = max of the first key tile (carried in the MFMA C operand); a run-time check of the row sums
;            falls back to an exact running-max loop when that shift could overflow.
;   phase C  output projection 256x64x1024, O fragments from d_ws
; Hand-offs between workgroups: write-through stores, then a per-wave flag holding a per-launch nonce (kept in d_debug).
; @launch grid=(256,1,1) block=(512,1,1) lds=163840
.amdgcn_target "amdgcn-amd-amdhsa--gfx950"
.text
""" + kernel_header(P) + build() + '.section .rodata,"a"\n' + kernel_desc(P, 256, sgpr=102 if DBG or JIT else 96)
    open(out, "w").write(txt)

if __name__ == "__main__":
    args = [x for x in sys.argv[1:] if not x.startswith("--")]
    main(args[0] if args else "concat_heads__mha_block__softmax_full_mha__prompt.s")
```

```python
import sys, struct, math
from dsl import *

def opt(name, default):
    for x in sys.argv:
        if x.startswith(f"--{name}="): return type(default)(x[len(name) + 3:])
    return default
STAMP = "--stamp" in sys.argv
ROT = opt("rot", 2)
PRO = opt("pro", "X0,W0,Q0,B,W1,X1,W2").replace(",", " ")
STEPX = {}
for it in opt("stepx", "0:W3.X2.Q1;1:W4;8:Q2;16:Q3").split(";"):
    if it:
        k, val = it.split(":"); STEPX[int(k)] = val.split(".")
SC1 = "" if "--nosc1" in sys.argv else " sc1"
NTD = " nt" if "d" in opt("nt", "") else (" " + opt("dfl", "").replace("_", " ") if opt("dfl", "") else "")
NTP = " nt" if "p" in opt("nt", "") else ""
NTW = " nt" if "w" in opt("nt", "") else ""
ROTB = opt("rotb", -1)

KV_OFF = 0
O_OFF = 24 << 20
F1_OFF = 32 << 20
F2_OFF = 33 << 20
SLEEP = opt('sleep', 0)
ST_OFF = 64 << 20
QSCALE = struct.unpack("<I", struct.pack("<f", math.log2(math.e) / math.sqrt(32.0)))[0]
SPIN_LIMIT = 1 << 17

S_W, S_B, S_TM, S_HP = 16, 17, 18, 19
S_SOX, S_SOW, S_XB, S_WB = 20, 21, 22, 23
S_EXW = 24
S_NONCE = 80
S_MASK = 82
S_CIDX, S_M0, S_CNT, S_CH, S_WOS, S_WOM, S_FIDX, S_SPIN = 84, 85, 86, 87, 88, 89, 90, 91
S_WOI, S_WOB = 20, 21
PRIO = opt('prio', 1)
SRD_KV, SRD_F, SRD_WO, SRD_O = 4, 8, 52, 12
SRD_KVS = 56
SRD_OUT, SRD_OL, SRD_F2 = 36, 32, 76
S_FL0 = 40

def make_srd(a, d, lo, hi, off_sgpr, nrec):
    a(f"s_add_u32 s{d}, s{lo}, s{off_sgpr}\ns_addc_u32 s{d+1}, s{hi}, 0\ns_and_b32 s{d+1}, s{d+1}, 0xffff")
    a(f"s_mov_b32 s{d+2}, {nrec}\ns_mov_b32 s{d+3}, 0x00020000")

NST = [0]
STG = opt("stg", "m")
def stamp(a, i=None, g="m"):
    if not STAMP: return
    if i is None: g = "a" if g == "m" else g
    if g not in STG: return
    a("s_memrealtime s[60:61]\ns_memtime s[62:63]\ns_waitcnt lgkmcnt(0)\ns_lshl_b64 exec, 1, s64\nv_mov_b32 v0, s60\nv_mov_b32 v203, s62\ns_mov_b64 exec, -1\ns_add_u32 s64, s64, 1")
DBG = "--dbg" in sys.argv
def dbgstamp(a, i, inv=False):
    if DBG: a(f"s_memrealtime s[60:61]\ns_waitcnt lgkmcnt(0)\ns_mov_b32 s{96+i}, s60")
def dbgflush(a):
    if not DBG: return
    a(f"""
    s_cmp_lg_u32 s{S_W}, 7
    s_cbranch_scc1 Ldbg_e
    s_mov_b64 exec, 1
    s_and_b32 s26, s{S_HP}, 7
    s_lshl_b32 s26, s26, 2
    v_mov_b32 v2, s26
    s_sub_u32 s27, s98, s96
    v_mov_b32 v3, s27
    buffer_atomic_umax v3, v2, s[92:95], 0 offen offset:8
    v_mov_b32 v4, 0
    s_sub_u32 s27, s97, s96
    v_mov_b32 v5, s27
    buffer_atomic_umax v5, v4, s[92:95], 0 offen offset:40
    s_sub_u32 s27, s99, s98
    v_mov_b32 v6, s27
    buffer_atomic_umax v6, v4, s[92:95], 0 offen offset:44
    s_sub_u32 s27, s100, s99
    v_mov_b32 v7, s27
    buffer_atomic_umax v7, v4, s[92:95], 0 offen offset:48
    s_sub_u32 s27, s100, s96
    v_mov_b32 v8, s27
    buffer_atomic_umax v8, v4, s[92:95], 0 offen offset:52
    s_not_b32 s27, s96
    v_mov_b32 v9, s27
    buffer_atomic_umax v9, v4, s[92:95], 0 offen offset:56
    v_mov_b32 v10, s100
    buffer_atomic_umax v10, v4, s[92:95], 0 offen offset:60
    Ldbg_e:
    """)
JIT = opt("jit", 0)
JC = [0]
def jitter(a):
    if not JIT: return
    JC[0] += 1
    k = JC[0]
    a(f"""
    s_mul_i32 s96, s2, {37 + 2 * k}
    s_mul_i32 s97, s{S_W}, {JIT * 11 + k}
    s_add_u32 s96, s96, s97
    s_lshr_b32 s97, s96, 3
    s_xor_b32 s96, s96, s97
    s_and_b32 s96, s96, 31
    Ljit{k}:
    s_cmp_eq_u32 s96, 0
    s_cbranch_scc1 Ljit{k}e
    s_sleep {JIT}
    s_sub_u32 s96, s96, 1
    s_branch Ljit{k}
    Ljit{k}e:
    """)
def stamp_flush(a, n):
    if not STAMP: return
    a(f"""
    s_lshl_b32 s26, s2, 3
    s_add_u32 s26, s26, s{S_W}
    s_lshl_b32 s26, s26, 9
    s_add_u32 s30, s26, {ST_OFF}
    """)
    make_srd(a, 56, 48, 49, 30, 512)
    a("v_lshlrev_b32 v2, 3, v1\nv_mov_b32 v4, v0\nv_mov_b32 v5, v203\nbuffer_store_dwordx2 v[4:5], v2, s[56:59], 0 offen")

ACC = 8
def acc(tt, f): return ACC + (tt * 6 + f) * 4
XF = [[104 + 4*i for i in range(4)], [144 + 4*i for i in range(4)]]
WF = [[120 + 4*i for i in range(6)], [160 + 4*i for i in range(6)]]
V_XR = [208, 209]; V_WR = [210, 211]; V_XD = list(range(184, 192)); V_WD = [212, 213, 214]
V_PX, V_PW, V_PD = 218, 219, 220
V_NON = 222
LDS_W = 98304

EPF = opt("epf", 1)
def entry_pf():
    if EPF == 0: return ""
    if EPF == 1:
        addr = """
        v_subrev_u32 v2, 448, v0
        v_cmp_gt_u32 vcc, 48, v2
        s_and_saveexec_b64 s[30:31], vcc
        s_cbranch_execz Lepf_e
        s_lshr_b32 s28, s2, 3
        s_lshl_b32 s28, s28, 4
        v_cmp_le_u32 vcc, 32, v2
        v_mov_b32 v3, s28
        s_nop 0
        v_cndmask_b32 v3, 0, v3, vcc
        v_add_u32 v2, v2, v3
        """
    else:
        addr = f"""
        v_xor_b32 v2, 256, v0
        v_cmp_gt_u32 vcc, {256 if EPF == 2 else 512}, v2
        s_and_saveexec_b64 s[30:31], vcc
        s_cbranch_execz Lepf_e
        """
    return addr + f"""
        s_getpc_b64 s[26:27]
        Lpcref0:
        v_lshlrev_b32 v2, 7, v2
        v_min_u32 v2, Lcode_end-Lpcref0-4, v2
        v_mov_b32 v3, s27
        v_add_co_u32 v2, vcc, s26, v2
        s_nop 1
        v_addc_co_u32 v3, vcc, 0, v3, vcc
        global_load_dword v{V_NON+1}, v[2:3], off
        Lepf_e:
        s_mov_b64 exec, -1
        """
def decode(a, end):
    a(f"""
    s_cmp_ge_u32 s2, 256
    s_cbranch_scc1 {end}
    s_load_dwordx16 s[32:47], s[0:1], 0
    s_load_dwordx2 s[48:49], s[0:1], 64
    {entry_pf()}
    v_lshrrev_b32 v1, 6, v0
    s_and_b32 s26, s2, 7
    s_lshr_b32 s27, s2, 3
    v_readfirstlane_b32 s{S_W}, v1
    s_lshr_b32 s{S_B}, s26, 2
    s_and_b32 s28, s26, 1
    s_lshl_b32 s28, s28, 2
    s_and_b32 s29, s27, 3
    s_add_u32 s{S_TM}, s28, s29
    s_bfe_u32 s28, s26, 0x10001
    s_lshl_b32 s28, s28, 3
    s_lshr_b32 s29, s27, 2
    s_add_u32 s{S_HP}, s28, s29
    v_and_b32 v1, 63, v0
    s_mul_i32 s51, {'s26' if ROTB < 0 else 's17'}, {ROT if ROTB < 0 else ROTB}
    s_and_b32 s51, s51, 15
    s_lshl_b32 s14, s51, 1
    s_lshl_b32 s15, s51, 7
    s_mov_b32 s64, 0
    """)

NLAB = [0]
ROLE = [None]
def if_vcc(ins, want=True):
    if ROLE[0] is not None: return list(ins) if ROLE[0] == want else []
    NLAB[0] += 1
    return [f"s_cbranch_vcc{'z' if want else 'nz'} Lskip{NLAB[0]}"] + ins + [f"Lskip{NLAB[0]}:"]
old_only = if_vcc

def gemm1_setup_dma(a):
    a(f"""
    s_cmp_lt_u32 s{S_W}, 4
    s_cselect_b64 vcc, -1, 0
    s_cbranch_scc0 Lsetup1
    s_setprio 1
    Lsetup1:
    s_and_b32 s30, s{S_W}, 3
    s_mul_i32 s{S_XB}, s30, 24576
    s_mul_i32 s26, s30, 3072
    s_add_u32 s{S_WB}, s26, {LDS_W}
    v_lshrrev_b32 v2, 3, v1
    s_lshl_b32 s26, s30, 6
    v_add_u32 v7, s26, v2
    v_and_b32 v3, 7, v1
    v_lshrrev_b32 v4, 4, v1
    v_xor_b32 v5, v3, v4
    v_lshlrev_b32 v5, 4, v5
    v_lshl_add_u32 v{V_XD[0]}, v7, 11, v5
    v_xor_b32 v5, 64, v5
    v_lshl_add_u32 v{V_XD[1]}, v7, 11, v5
    v_add_u32 v{V_XD[1]}, {8*2048}, v{V_XD[1]}
    """)
    for q in range(2, 8): a(f"v_add_u32 v{V_XD[q]}, {16*2048}, v{V_XD[q-2]}")
    a(f"s_mul_i32 s26, s30, 24")
    for q in range(3):
        a(f"""
        v_add_u32 v7, s26, v2            ; R
        s_add_u32 s26, s26, 8
        v_lshrrev_b32 v4, 5, v7          ; sec
        v_and_b32 v7, 31, v7             ; k
        v_and_b32 v5, 2, v7
        v_bfe_u32 v6, v7, 3, 1
        v_lshl_or_b32 v5, v6, 2, v5      ; swz*2
        v_xor_b32 v5, v3, v5             ; chunk
        v_lshlrev_b32 v5, 4, v5
        v_lshl_add_u32 v5, v4, 11, v5
        v_mul_u32_u24 v7, 6144, v7
        v_add_u32 v{V_WD[q]}, v7, v5
        """)
    a(f"""
    s_waitcnt lgkmcnt(0)
    s_cmp_eq_u32 s{S_B}, 0
    s_cselect_b32 s26, s32, s38
    s_cselect_b32 s27, s33, s39
    s_cselect_b32 s28, s34, s40
    s_cselect_b32 s29, s35, s41
    s_lshl_b32 s30, s{S_TM}, 19
    """)
    make_srd(a, 4, 26, 27, 30, 524288)
    a(f"s_lshl_b32 s30, s{S_HP}, 7\ns_sub_u32 s31, {1024*6144}, s30")
    make_srd(a, 8, 28, 29, 30, "s31")

def gemm1_setup_rest(a):
    a(f"""
    s_and_b32 s30, s{S_W}, 3
    s_mul_i32 s30, s30, 24576
    v_and_b32 v2, 15, v1             ; c
    v_lshrrev_b32 v4, 4, v1          ; G
    v_lshrrev_b32 v5, 1, v2
    v_xor_b32 v5, v4, v5
    v_lshlrev_b32 v5, 4, v5
    v_lshl_add_u32 v5, v2, 7, v5
    v_add_u32 v{V_XR[0]}, s30, v5
    v_xor_b32 v{V_XR[1]}, 64, v{V_XR[0]}
    v_bfe_u32 v2, v1, 2, 2           ; r
    v_and_b32 v3, 3, v1              ; c4
    v_lshl_add_u32 v5, v4, 3, v2     ; k = 8G + r
    v_lshrrev_b32 v6, 1, v2
    v_and_b32 v7, 1, v4
    v_lshl_or_b32 v6, v7, 1, v6      ; swz
    s_lshr_b32 s30, s{S_W}, 2
    s_lshl_b32 s30, s30, 1
    v_xor_b32 v6, s30, v6
    v_lshlrev_b32 v6, 5, v6
    v_lshl_add_u32 v6, v3, 3, v6
    v_lshl_add_u32 v6, v5, 7, v6
    v_add_u32 v{V_WR[0]}, {LDS_W}, v6
    v_xor_b32 v{V_WR[1]}, 32, v{V_WR[0]}
    """)
    a(f"s_lshr_b32 s30, s{S_TM}, 2\ns_lshl_b32 s30, s30, 21")
    make_srd(a, 52, 26, 27, 30, 2 << 20)
    a(f"s_lshr_b32 s30, s{S_HP}, 3\ns_lshl_b32 s30, s30, 10\ns_sub_u32 s31, {1024*6144}, s30")
    make_srd(a, 56, 28, 29, 30, "s31")
    toks = PRO + " ".join(" ".join(x) for x in STEPX.values())
    if "Q" in toks or "R" in toks:
        for l in q_setup(): a(l)
    if "P" in toks: a(f"""
    s_lshr_b32 s26, s2, 3
    s_lshl_b32 s26, s26, 3
    s_add_u32 s26, s26, s{S_W}       ; u
    s_lshl_b32 s27, s26, 13
    v_and_b32 v2, 3, v1
    v_lshlrev_b32 v2, 11, v2
    v_lshrrev_b32 v3, 2, v1
    v_lshl_add_u32 v2, v3, 7, v2
    v_add_u32 v{V_PX}, s27, v2
    v_mul_u32_u24 v2, 43, v1
    v_lshrrev_b32 v2, 8, v2
    v_mul_u32_u24 v3, 6, v2
    v_sub_u32 v3, v1, v3
    s_and_b32 s27, s26, 3
    s_mul_i32 s27, s27, 6
    v_add_u32 v3, s27, v3
    v_lshrrev_b32 v4, 3, v3
    v_and_b32 v3, 7, v3
    v_lshlrev_b32 v3, 7, v3
    v_lshl_add_u32 v3, v4, 11, v3
    s_lshr_b32 s27, s26, 2
    v_lshl_add_u32 v2, v2, 6, s27
    v_mul_u32_u24 v2, 6144, v2
    v_add_u32 v{V_PW}, v2, v3
    """)
    a(f"""
    v_mov_b32 v{V_PD+1}, 0
    s_or_b32 s26, s2, s{S_W}
    s_cmp_lg_u32 s26, 0
    s_cbranch_scc1 Lnononce
    s_memrealtime s[26:27]
    s_mov_b32 s28, s46
    s_and_b32 s29, s47, 0xffff
    s_mov_b32 s30, 256
    s_mov_b32 s31, 0x00020000
    s_waitcnt lgkmcnt(0)
    s_or_b32 s26, s26, 1
    v_mov_b32 v2, s26
    v_mov_b32 v3, s27
    s_mov_b64 exec, 1
    buffer_store_dwordx2 v[2:3], v{V_PD+1}, s[28:31], 0 offen sc1
    s_mov_b64 exec, -1
    Lnononce:
    """)

def pf_batch(s0, n):
    return [f"s_add_u32 s13, s51, {s0}", "s_and_b32 s13, s13, 15", f"s_bfm_b64 exec, {6*n}, 0", f"s_mul_i32 s50, s13, {64*6144}",
            f"buffer_load_dword v{V_PD}, v{V_PW}, s[56:59], s50 offen{NTP}", "s_lshl_b32 s13, s13, 7",
            f"s_bfm_b64 exec, {4*n}, 0",
            f"buffer_load_dword v{V_PD}, v{V_PX}, s[52:55], s13 offen{NTP}", "s_mov_b64 exec, -1"]
V_QW, V_QX = 218, 219
SLOWC = opt("slowc", 3)
def q_setup():
    return [f"s_lshr_b32 s12, s2, 3", "s_lshl_b32 s12, s12, 3", f"s_add_u32 s12, s12, s{S_W}",
            f"v_lshlrev_b32 v{V_QW}, 11, v1", f"v_add_u32 v{V_QW}, {SLOWC*128}, v{V_QW}",
            "v_and_b32 v2, 3, v1", "v_lshlrev_b32 v2, 11, v2", "v_bfe_u32 v3, v1, 2, 1", "v_lshl_add_u32 v2, v3, 10, v2",
            "s_lshl_b32 s13, s12, 13", f"s_add_u32 s13, s13, {SLOWC*128}", f"v_add_u32 v{V_QX}, s13, v2",
            "s_lshl_b32 s13, s51, 6", "s_add_u32 s12, s12, s13"]
def q_batch(i):
    return [f"s_add_u32 s13, s12, {256*i}", "s_and_b32 s13, s13, 1023", "s_mov_b64 exec, 7", "s_mul_i32 s13, s13, 6144",
            f"buffer_load_dword v{V_NON+1}, v{V_QW}, s[56:59], s13 offen", "s_mov_b64 exec, -1"]
def r_batch():
    return ["s_mov_b64 exec, 0xff", f"buffer_load_dword v{V_NON+1}, v{V_QX}, s[52:55], 0 offen", "s_mov_b64 exec, -1"]
def dma_x(stage, q):
    return [f"s_add_u32 m0, s{S_XB}, {(stage % 3)*8192 + q*1024}", f"buffer_load_dwordx4 v{V_XD[q]}, s[4:7], s{S_SOX} offen{NTD} lds"]
def dma_w(step, q):
    return [f"s_add_u32 m0, s{S_WB}, {(step % 5)*12288 + q*1024}", f"buffer_load_dwordx4 v{V_WD[q]}, s[8:11], s{S_SOW} offen{NTD} lds"]
def frag_reads(step):
    p = step & 1; xs = (step >> 1) % 3; ws = step % 5
    X = [f"ds_read_b128 {v(XF[p][tt],4)}, v{V_XR[p]} offset:{xs*8192 + tt*2048}" for tt in range(4)]
    W = [[f"ds_read_b64_tr_b16 {v(WF[p][f]+2*h,2)}, v{V_WR[f&1]} offset:{ws*12288 + (f>>1)*4096 + h*512}" for h in range(2)] for f in range(6)]
    return [X[0]] + W[0] + W[1] + W[2] + [X[1]] + W[3] + W[4] + W[5] + [X[2], X[3]]
def gemm1_mfmas(step):
    p = step & 1; out = []
    if opt("gord", 1):
        order = [(tt, f) for tt in range(4) for f in (range(4) if tt % 2 == 0 else range(3, -1, -1))] + [(tt, f) for tt in range(3, -1, -1) for f in ((4, 5) if tt % 2 else (5, 4))]
    else:
        order = [(tt, f) for tt in range(4) for f in (range(6) if tt % 2 == 0 else range(5, -1, -1))]
    for tt, f in order:
        d = acc(tt, f)
        A, B = (WF[p][f], XF[p][tt]) if f < 4 else (XF[p][tt], WF[p][f])
        out.append(f"v_mfma_f32_16x16x32_bf16 {v(d,4)}, {v(A,4)}, {v(B,4)}, {'0' if step == 0 else v(d,4)}")
    return out

HB = opt('hb', 1)
RD0, DG0, DGS = opt('rd0', 0), opt('dg0', 1), opt('dgs', 10)
def gemm1_main(a, late):
    vm = VmTrack()
    def group(tok):
        if tok == "B": return [["s_barrier"]], []
        if tok[0] == "Q": return [q_batch(int(tok[1:]))], ["pf"]
        if tok[0] == "R": return [r_batch()], ["pf"]
        if tok[0] == "P":
            s0, n = map(int, tok[1:].split("_")); return [pf_batch(s0, n)], ["pf", "pf"]
        if tok[0] == "W":
            st = int(tok[1:]); g = [f"s_add_u32 s{S_SOW}, s14, {st}", f"s_and_b32 s{S_SOW}, s{S_SOW}, 31"]
            for q in range(3):
                m, l = dma_w(st, q); g += [m, f"s_mul_i32 s{S_SOW}, s{S_SOW}, {32*6144}" if q == 0 else "s_nop 0", l]
            return [old_only(g)], [("W", st)] * 3
        if tok == "Y0":
            g = {}
            for role, qs in ((True, range(0, 4)), (False, range(4, 8))):
                g[role] = [f"s_and_b32 s{S_SOX}, s15, 0x780"]
                for q in qs:
                    m, l = dma_x(0, q); g[role] += [m, "s_nop 0", l]
            return [if_vcc(g[True], True) + if_vcc(g[False], False)], [("X", 0)] * 4
        if tok[0] == "X":
            if "h" in tok: S, h = tok[1:].split("h"); S = int(S); qs = range(0, 4) if h == "0" else range(4, 8)
            else: S = int(tok[1:]); qs = range(8)
            g = [f"s_add_u32 s{S_SOX}, s15, {S*128}"]
            for q in qs:
                m, l = dma_x(S, q); g += [m, f"s_and_b32 s{S_SOX}, s{S_SOX}, 0x780" if q == qs[0] else "s_nop 0", l]
            return [old_only(g)], [("X", S)] * len(qs)
    first = True
    for tok in PRO.split():
        g, t = group(tok)
        for x in g:
            for y in x: a(y)
        for y in t: vm.issue(y)
        if tok == "W0":
            gemm1_setup_rest(a)
    if "Y0" in PRO:
        for x in if_vcc(["s_waitcnt vmcnt(0)"], False): a(x)
    a(f"s_waitcnt vmcnt({vm.wait_count({('X',0),('W',0)})})")
    a("s_barrier")
    stamp(a, 1); dbgstamp(a, 1)
    for l in frag_reads(0): a(l)
    for st in range(32):
        bar = (not HB) or st == 0 or st % 2 == 1
        if st == 31:
            a("s_waitcnt vmcnt(0) lgkmcnt(0)")
        elif bar:
            ahead = [st + 1] + ([st + 2] if HB and st % 2 == 1 else [])
            need = {("W", x) for x in ahead} | {("X", x >> 1) for x in ahead}
            for nd in need: assert vm.ops.count(nd) == (3 if nd[0] == "W" else 8) or nd == ("X", 0), (st, nd)
            a(f"s_waitcnt vmcnt({min(63, vm.wait_count(need))}) lgkmcnt(0)")
        else:
            a("s_waitcnt lgkmcnt(0)")
        if bar: a("s_barrier")
        if st % 4 == 0: stamp(a, None, "g")
        if st in (2, 9, 30): jitter(a)
        M = gemm1_mfmas(st)
        if st == 31:
            a.label("Lgemm_end")
            last_step(a, late[31]); break
        R = frag_reads(st + 1) if st + 1 < 32 else []
        toks = list(STEPX.get(st, []))
        if not HB:
            if st + 5 < 32: toks.append(f"W{st+5}")
        elif st >= 1 and st + 4 < 32:
            toks.append(f"W{st+4}")
        if st >= 1 and ((st - 1) >> 1) + 3 < 16: toks.append(f"X{((st-1)>>1)+3}h{0 if st % 2 == 1 else 1}")
        D = []
        for tok in toks:
            g, t = group(tok); D += g
            for y in t: vm.issue(y)
        gaps = [[] for _ in range(24)]
        for i, r in enumerate(R): gaps[i + RD0].append(r)
        for i, d in enumerate(D): gaps[min(23, DG0 + (i * DGS if len(D) <= 3 else (i * (23 - DG0)) // len(D)))] += d
        lt = late.get(st, [])
        assert len(lt) <= 24
        for i, x in enumerate(lt):
            gaps[i].append(x)
            if x.startswith("buffer_"): vm.issue("late")
        for i, m in enumerate(M):
            a(m)
            for x in gaps[i]:
                if "--xnodma" in sys.argv and x.endswith("lds") and st > 3: continue
                if "--xnord" in sys.argv and x.startswith("ds_read") and st > 3: continue
                a(x)

AS = [8, 24, 40, 56]
AO = {'a': 224, 'b': 240}
AQ = {('a',0): 104, ('a',1): 108, ('b',0): 112, ('b',1): 116}
AC = {'a': 120, 'b': 136}
AK = [[152, 156], [160, 164]]
AV = [[168, 172], [176, 180]]
AL = {'a': 184, 'b': 188}
ASEL = 192; AIDX = 196; AADDR = 197; AVO = 198; AWD = 199
AFL = 200
AFA = 202
V_VS, V_VL = 205, 207
AADK, AVK = 204, 206
V_FA = 221
S_CH2 = 22
P_WR = [212, 213, 214, 215]; P_OV = [[216, 217], [218, 219]]; V_FA2 = 220
S_OSO = 64 if not STAMP else 66
def qk1(Y, kb, q, c=None): return f"v_mfma_f32_32x32x16_bf16 {v(Y,16)}, {v(AK[kb][0],4)}, {v(AQ[(q,0)],4)}, {v(AC[q],16) if c is None else c}"
def qk2(Y, kb, q): return f"v_mfma_f32_32x32x16_bf16 {v(Y,16)}, {v(AK[kb][1],4)}, {v(AQ[(q,1)],4)}, {v(Y,16)}"
def pv(Z, h, vb, q): return f"v_smfmac_f32_32x32x32_bf16 {v(AO[q],16)}, {v(AV[vb][h],4)}, {v(Z+8*h,8)}, v{AIDX}"
def sm(Z, h, q): return f"v_smfmac_f32_16x16x64_bf16 {v(AL[q],4)}, {v(ASEL,4)}, {v(Z+8*h,8)}, v{AIDX}"
def srd(d, lo, hi, off, nrec):
    return [f"s_add_u32 s{d}, s{lo}, s{off}\ns_addc_u32 s{d+1}, s{hi}, 0", f"s_and_b32 s{d+1}, s{d+1}, 0xffff", f"s_mov_b32 s{d+2}, {nrec}", f"s_mov_b32 s{d+3}, 0x00020000"]

CODEPF = opt('codepf', 12)
SEL2 = opt('sel2', 0)
def lbroadcast():
    if not SEL2: return []
    return [f"v_mov_b32 v{AL[q]+1}, v{AL[q]}" for q in 'ab'] + ['s_nop 1'] + [f"v_permlane32_swap_b32 v{AL[q]}, v{AL[q]+1}" for q in 'ab']
def late_setup():
    L = {}
    if CODEPF:
        L[CODEPF] = ["s_getpc_b64 s[26:27]\nLpcref:", f"s_and_b32 s28, s{S_W}, 3", "s_lshl_b32 s28, s28, 13", "v_lshlrev_b32 v2, 7, v1", "v_add_u32 v2, s28, v2",
                     "v_min_u32 v2, Lcode_end-Lgemm_end-4, v2", "s_add_u32 s26, s26, Lgemm_end-Lpcref\ns_addc_u32 s27, s27, 0", "v_mov_b32 v3, s27",
                     "v_add_co_u32 v2, s[28:29], s26, v2", "s_nop 1", "v_addc_co_u32 v3, s[28:29], 0, v3, s[28:29]",
                     "\n".join(if_vcc([f"global_load_dword v{V_NON+1}, v[2:3], off"], False))]
    L[18] = [f"v_mov_b32 v{AO['a']+i}, 0" for i in range(24)]
    L19OLD = [f"v_mov_b32 v{AO['a']+24+i}, 0" for i in range(8)] + \
            [f"v_lshlrev_b32 v{AVO}, 4, v1", "v_and_b32 v2, 7, v1", f"v_lshlrev_b32 v{AFA}, 3, v2", f"s_lshr_b32 s26, s{S_W}, 2", "s_lshl_b32 s26, s26, 14",
             f"v_add_u32 v{AADDR}, s26, v{AVO}", f"v_mov_b32 v{AIDX}, 0xdddddddd",
             "v_bfe_u32 v2, v1, 2, 1", "v_mov_b32 v3, 0x3f803f80", "v_cmp_eq_u32 s[28:29], 0, v2", "s_nop 1",
             f"v_cndmask_b32 v{ASEL}, 0, v3, s[28:29]", f"v_cndmask_b32 v{ASEL+1}, 0, v3, s[28:29]", f"v_xor_b32 v{ASEL+2}, v3, v{ASEL}", f"v_xor_b32 v{ASEL+3}, v3, v{ASEL}"]
    L[19] = [f"v_mov_b32 v{AO['a']+24+i}, 0" for i in range(8)] + \
            [f"v_lshlrev_b32 v{AVO}, 4, v1", "v_and_b32 v2, 7, v1", f"v_lshlrev_b32 v{AFA}, 3, v2", f"s_lshr_b32 s26, s{S_W}, 2", "s_lshl_b32 s26, s26, 14",
             f"v_add_u32 v{AADDR}, s26, v{AVO}", f"v_mov_b32 v{AIDX}, 0xdddddddd",
             f"v_and_b32 v2, {15 if SEL2 else 7}, v1", "v_mov_b32 v3, 0x3f803f80", "v_cmp_eq_u32 s[28:29], 0, v2", f"v_cmp_eq_u32 s[30:31], 4, v2",
             f"v_cndmask_b32 v{ASEL}, 0, v3, s[28:29]", f"v_cndmask_b32 v{ASEL+1}, 0, v3, s[28:29]", f"v_cndmask_b32 v{ASEL+2}, 0, v3, s[30:31]", f"v_cndmask_b32 v{ASEL+3}, 0, v3, s[30:31]"] \
            if opt("sel1", 1) else L19OLD
    L[20] = ["v_and_b32 v2, 15, v1", "v_lshrrev_b32 v4, 4, v1", "v_lshlrev_b32 v4, 9, v4", f"v_lshl_add_u32 v{V_VS}, v2, 4, v4",
             "v_bfe_u32 v2, v1, 2, 1", "v_bfe_u32 v3, v1, 3, 2", "v_and_b32 v4, 35, v1", "v_lshl_add_u32 v4, v2, 4, v4", "v_lshl_add_u32 v4, v3, 2, v4",
             f"v_lshlrev_b32 v{AVK}, 4, v4", f"v_sub_u32 v2, v{AADDR}, v{AVO}", f"v_add_u32 v{AADK}, v2, v{AVK}",
             f"s_and_b32 s26, s{S_W}, 2", "s_lshl_b32 s26, s26, 14", f"s_and_b32 s27, s{S_W}, 1", "s_lshl_b32 s27, s27, 13", "s_add_u32 s26, s26, s27",
             f"s_lshr_b32 s27, s{S_W}, 2", "s_lshl_b32 s27, s27, 14", "s_add_u32 s26, s26, s27", f"v_add_u32 v{V_VL}, s26, v{V_VS}"]
    L[21] = ["v_lshrrev_b32 v2, 3, v1", "v_and_b32 v3, 7, v1", "v_lshrrev_b32 v4, 4, v1", "v_lshlrev_b32 v4, 1, v4", "v_xor_b32 v4, v3, v4",
             "v_lshlrev_b32 v4, 4, v4", f"v_lshl_add_u32 v{AWD}, v2, 11, v4",
             f"s_cmp_eq_u32 s{S_B}, 0\ns_cselect_b32 s26, s36, s42\ns_cselect_b32 s27, s37, s43", f"s_lshl_b32 s30, s{S_HP}, 7", f"s_sub_u32 s31, {1024*2048}, s30"] \
            + srd(SRD_WO, 26, 27, 30, "s31") + ["s_mov_b32 s92, s46", "s_and_b32 s93, s47, 0xffff", "s_mov_b32 s94, 256", "s_mov_b32 s95, 0x00020000"]
    if WARMF:
        L[22] = [f"s_lshl_b32 s28, s{S_B}, 4", f"s_add_u32 s28, s28, s{S_HP}", "s_lshl_b32 s28, s28, 10", f"s_add_u32 s30, s28, {F1_OFF}",
                 f"s_lshl_b32 s28, s{S_B}, 3", f"s_add_u32 s28, s28, s{S_TM}", "s_lshl_b32 s28, s28, 11", f"s_add_u32 s31, s28, {F2_OFF}",
                 "s_mov_b32 s76, s48", "s_and_b32 s77, s49, 0xffff", f"s_mov_b32 s78, {34 << 20}", "s_mov_b32 s79, 0x00020000", "v_lshlrev_b32 v2, 7, v1",
                 "\n".join(if_vcc(["s_mov_b64 exec, 0xff", f"buffer_load_dword v{V_NON+1}, v2, s[76:79], s30 offen sc1",
                                   "s_mov_b64 exec, 0xffff", f"buffer_load_dword v{V_NON+1}, v2, s[76:79], s31 offen sc1", "s_mov_b64 exec, -1"], False))]
    if opt("tlb", 0):
        L[17] = [f"s_lshl_b32 s28, s{S_B}, 4", f"s_add_u32 s28, s28, s{S_HP}", "s_lshl_b32 s28, s28, 19", f"s_lshl_b32 s29, s{S_TM}, 15", "s_add_u32 s30, s28, s29",
                 f"s_lshl_b32 s28, s{S_B}, 22", f"s_lshl_b32 s29, s{S_TM}, 19", "s_add_u32 s31, s28, s29", f"s_lshl_b32 s29, s{S_HP}, 11", "s_add_u32 s31, s31, s29", f"s_add_u32 s31, s31, {O_OFF}",
                 "s_mov_b32 s76, s48", "s_and_b32 s77, s49, 0xffff", f"s_mov_b32 s78, {34 << 20}", "s_mov_b32 s79, 0x00020000",
                 "\n".join(if_vcc(["s_mov_b64 exec, 1", f"buffer_load_dword v{V_NON+1}, v{V_PD+1}, s[76:79], s30 offen sc1",
                                   f"buffer_load_dword v{V_NON+1}, v{V_PD+1}, s[76:79], s31 offen sc1", "s_mov_b64 exec, -1"], False))]
    L[27] = [f"v_mov_b32 v{AL['a']+i}, 0" for i in range(8)] + \
            [f"s_lshl_b32 s26, s{S_B}, 5", f"s_lshl_b32 s27, s{S_HP}, 1", "s_add_u32 s26, s26, s27",
             f"s_and_b32 s28, s{S_W}, 3", "s_lshl_b32 s29, s28, 12", "s_lshl_b32 s30, s26, 18", "s_add_u32 s31, s30, s29", "s_sub_u32 s50, 524288, s29"] \
            + srd(SRD_KV, 48, 49, 31, "s50") + [f"s_lshr_b32 s27, s{S_W}, 2", "s_add_u32 s26, s26, s27", "s_lshl_b32 s30, s26, 18"]
    L[28] = [f"buffer_load_dwordx2 {v(V_NON,2)}, v{V_PD+1}, s[92:95], 0 offen sc1",
             f"s_mov_b32 s{S_WOI}, -1", f"s_lshl_b32 s{S_WOB}, s{S_W}, 14", f"s_lshl_b32 s27, s{S_W}, 10", f"s_add_u32 s{S_WOM}, s27, 65536",
             f"s_lshl_b32 s{S_M0}, s{S_W}, 12", f"s_mov_b32 s{S_CIDX}, 16384", f"s_lshl_b32 s23, s{S_TM}, 15", f"s_lshr_b32 s51, s{S_W}, 1", f"s_mov_b32 s{S_EARLY}, 0"]
    L[29] = [f"s_lshl_b32 s27, s{S_TM}, 3", "s_lshl_b32 s28, s28, 1", "s_add_u32 s27, s27, s28", "s_lshl_b32 s29, s27, 12", "s_add_u32 s31, s30, s29"] \
            + srd(SRD_KVS, 48, 49, 31, 8192) + ["s_mov_b32 s50, 4096",
             f"s_lshl_b32 s28, s{S_B}, 22", "s_lshl_b32 s29, s27, 16", "s_add_u32 s31, s28, s29", "s_and_b32 s28, s26, 31", "s_lshl_b32 s28, s28, 10",
             "s_add_u32 s31, s31, s28", f"s_add_u32 s31, s31, {O_OFF}"] + srd(SRD_O, 48, 49, 31, 131072)
    L[30] = [f"s_lshl_b32 s28, s{S_B}, 4", f"s_add_u32 s28, s28, s{S_HP}", "s_lshl_b32 s28, s28, 10", f"s_add_u32 s31, s28, {F1_OFF}"] + srd(SRD_F, 48, 49, 31, 1024) \
            + [f"s_bitcmp0_b32 s{S_W}, 1\ns_cselect_b64 vcc, -1, 0", f"s_mov_b32 s26, {QSCALE}", f"s_mov_b32 s27, {QSCALE}"]
    L[23] = [f"s_lshl_b32 s28, s{S_B}, 3", f"s_add_u32 s28, s28, s{S_TM}", "s_lshl_b32 s28, s28, 11", f"s_add_u32 s30, s28, {F2_OFF}"] + srd(SRD_F2, 48, 49, 30, 2048) \
            + [f"s_lshl_b32 s28, s{S_B}, 22", f"s_lshl_b32 s29, s{S_TM}, 19", "s_add_u32 s30, s28, s29", f"s_lshl_b32 s29, s{S_W}, 16", "s_add_u32 s30, s30, s29",
               f"s_add_u32 s30, s30, {O_OFF}"] + srd(SRD_OL, 48, 49, 30, 65536)
    L[24] = [f"s_lshl_b32 s28, s{S_TM}, 20", f"s_lshl_b32 s29, s{S_W}, 17", "s_add_u32 s30, s28, s29", f"s_lshl_b32 s29, s{S_B}, 11", "s_add_u32 s30, s30, s29",
             f"s_lshl_b32 s29, s{S_HP}, 7", "s_add_u32 s30, s30, s29", f"s_sub_u32 s31, {2048*4096}, s30"] + srd(SRD_OUT, 44, 45, 30, "s31") \
            + [f"s_and_b32 s26, s{S_HP}, 8", "s_lshl_b32 s27, s26, 11", f"v_add_u32 v{P_OV[0][0]}, s27, v{AVO}", f"v_add_u32 v{P_OV[0][1]}, 32768, v{P_OV[0][0]}",
               f"v_xor_b32 v{P_OV[1][0]}, 16384, v{P_OV[0][0]}", f"v_xor_b32 v{P_OV[1][1]}, 16384, v{P_OV[0][1]}",
               "s_lshl_b32 s26, s26, 4", f"s_lshr_b32 s27, s{S_W}, 1", "s_lshl_b32 s27, s27, 9", f"s_add_u32 s{S_FL0}, s26, s27"]
    L[25] = [x for j in range(8) for x in (f"s_add_u32 s26, s{S_HP}, {j}", "s_and_b32 s26, s26, 7", f"s_lshl_b32 s{S_OSO+j}, s26, 11")]
    L[26] = [f"s_and_b32 s26, s{S_W}, 3", "s_lshl_b32 s26, s26, 6", f"s_lshr_b32 s27, s{S_W}, 2", "s_lshl_b32 s27, s27, 5", "s_add_u32 s26, s26, s27",
             f"s_and_b32 s27, s{S_HP}, 8", f"s_add_u32 s27, s27, s{S_HP}", "s_add_u32 s26, s26, s27", "s_lshl_b32 s26, s26, 3", f"v_mov_b32 v{V_FA2}, s26",
             "v_and_b32 v4, 15, v1", "v_lshlrev_b32 v4, 4, v4", "v_bfe_u32 v5, v1, 4, 1", "v_lshl_add_u32 v4, v5, 15, v4", "v_lshrrev_b32 v5, 5, v1", "v_lshl_add_u32 v6, v5, 8, v4"]
    L[30] += ["v_lshrrev_b32 v4, 4, v1", "v_bfe_u32 v2, v1, 2, 2", "v_and_b32 v3, 3, v1", "v_and_b32 v5, 1, v4", "v_lshrrev_b32 v4, 1, v4", "v_lshl_add_u32 v7, v5, 2, v2",
              "v_lshl_add_u32 v4, v4, 4, v7", "v_lshrrev_b32 v7, 1, v7", "v_lshlrev_b32 v7, 5, v7", "v_lshl_add_u32 v7, v3, 3, v7", "v_lshl_add_u32 v7, v4, 7, v7",
              f"v_add_u32 v{P_WR[0]}, 65536, v7\nv_xor_b32 v{P_WR[1]}, 32, v{P_WR[0]}", f"v_xor_b32 v{P_WR[2]}, 64, v{P_WR[0]}\nv_xor_b32 v{P_WR[3]}, 96, v{P_WR[0]}"]
    if opt("tlb", 0):
        L[26] += ["\n".join(if_vcc(["s_mov_b64 exec, 1", f"buffer_load_dword v{V_NON+1}, v{V_PD+1}, s[{SRD_WO}:{SRD_WO+3}], 0 offen",
                                    f"buffer_load_dword v{V_NON+1}, v{V_PD+1}, s[{SRD_OUT}:{SRD_OUT+3}], 0 offen sc1", "s_mov_b64 exec, -1"], False))]
    L[31] = []
    return L

UNITS = [('V',0,0,80), ('V',0,1,84), ('V',1,0,72), ('V',1,1,76), ('K',1,1,88), ('K',1,0,92), ('K',0,0,96), ('K',0,1,100)]
def unit_src(u):
    k, T, h, d = UNITS[u]
    return [(2*T, 4+h), (2*T+1, 4+h)] if k == 'V' else [(2*T+h, 2), (2*T+h, 3)]
def cvt4(regs, d): return [f"v_cvt_pk_bf16_f32 v{d+i}, v{regs[2*i]}, v{regs[2*i+1]}" for i in range(4)]
def unit_cvt(u):
    k, T, h, d = UNITS[u]
    regs = [acc(*x) + i for x in unit_src(u) for i in range(4)]
    w = f"ds_write_b128 v{V_VL}, {v(d,4)} offset:{T*4096 + (2048 if k == 'V' else 0) + h*256}"
    return cvt4(regs, d) + [w]
def kv_store(u):
    k, T, h, d = UNITS[u]
    return f"buffer_store_dwordx4 {v(d,4)}, v{V_VS}, s[{SRD_KVS}:{SRD_KVS+3}], {'0' if T == 0 else 's50'} offen offset:{(2048 if k == 'V' else 0) + h*256}{SC1}"
def q_cvt(tt):
    return [f"v_pk_mul_f32 {v(acc(tt,0)+2*i,2)}, {v(acc(tt,0)+2*i,2)}, s[26:27]" for i in range(4)] + cvt4([acc(tt,0)+i for i in range(8)], AQ[("ab"[tt >> 1], tt & 1)])

NEP = opt('nep', 4)
def last_step(a, sal):
    order = [(3, 0), (3, 1)] + [x for u in range(8) for x in unit_src(u)] + [(tt, f) for tt in range(3) for f in range(2)]
    gaps = [[] for _ in range(24)]
    gaps[10] += q_cvt(3)
    for u in range(6): gaps[12 + 2*u] += unit_cvt(u) + (if_vcc([kv_store(u - 1), kv_store(u)]) if u & 1 and u < NEP else [])
    for i, (tt, f) in enumerate(order):
        d = acc(tt, f)
        A, B = (WF[1][f], XF[1][tt]) if f < 4 else (XF[1][tt], WF[1][f])
        a(f"v_mfma_f32_16x16x32_bf16 {v(d,4)}, {v(A,4)}, {v(B,4)}, {v(d,4)}")
        for x in gaps[i]: a(x)
    for x in unit_cvt(6) + unit_cvt(7) + (if_vcc([kv_store(6), kv_store(7)]) if NEP == 8 else []): a(x)

def transition_ab(a):
    a(f"s_cmp_lt_u32 s{S_W}, 4\ns_setprio 1\ns_cbranch_scc0 Lyng0\ns_setprio 2\nLyng0:")
    a("s_waitcnt lgkmcnt(0)\ns_barrier")
    for j in range(2): a(f"ds_read_b128 {v(AK[0][j],4)}, v{AADK} offset:{1024*j}")
    for j in range(2): a(f"ds_read_b128 {v(AV[0][j],4)}, v{AADDR} offset:{2048+1024*j}")
    rest = list(range(NEP, 8))
    for tt in range(3):
        if rest and (tt < 2 or NEP < 4):
            k = 2 if tt < 2 else len(rest)
            for x in if_vcc([kv_store(u) for u in rest[:k]]): a(x)
            rest = rest[k:]
        for x in q_cvt(tt): a(x)
    assert not rest
    a("s_nop 1")
    for q in "ab":
        for i in range(4): a(f"v_permlane16_swap_b32 v{AQ[(q,0)]+i}, v{AQ[(q,1)]+i}")
    for q in "ab":
        for i in range(4): a(f"v_permlane32_swap_b32 v{AQ[(q,0)]+i}, v{AQ[(q,1)]+i}")
    a("s_waitcnt lgkmcnt(2)")
    a(qk1(AS[0],0,'a',"0")); a(qk2(AS[0],0,'a')); a(qk1(AS[1],0,'b',"0")); a(qk2(AS[1],0,'b'))
    a(f"""
    v_readfirstlane_b32 s{S_NONCE}, v{V_NON}
    v_readfirstlane_b32 s{S_NONCE+1}, v{V_NON+1}
    s_lshl_b32 s26, s{S_TM}, 4
    s_add_u32 s26, s26, s{S_W}
    s_lshl_b32 s28, s26, 3
    s_nop 3
    s_cmp_eq_u32 s{S_NONCE}, 0
    s_cbranch_scc1 Lnonce_spin
    Lnonce_ok:
    v_mov_b32 v{V_FA}, s28
    s_nop 0
    """)
    rowmax16(a, AS[0], 2, 3)
    rowmax16(a, AS[1], 4, 5)
    MOFF = struct.unpack("<I", struct.pack("<f", float(opt("moff", 19))))[0]
    if MOFF: a(f"v_add_f32 v2, {MOFF:#x}, v2\nv_add_f32 v4, {MOFF:#x}, v4")
    for i in range(8): a(f"v_pk_mul_f32 {v(AC['a']+2*i,2)}, v[2:3], -1.0 op_sel_hi:[0,0]")
    a(f"v_pk_mul_f32 {v(AC['b'],2)}, v[4:5], -1.0 op_sel_hi:[0,0]\nv_pk_mul_f32 {v(AC['b']+2,2)}, v[4:5], -1.0 op_sel_hi:[0,0]")
    a(qk1(AS[0],0,'a')); a(qk2(AS[0],0,'a'))
    for i in range(2, 8): a(f"v_pk_mul_f32 {v(AC['b']+2*i,2)}, v[4:5], -1.0 op_sel_hi:[0,0]")
    a("s_nop 4")

def rowmax16(a, S, m, t):
    a(f"v_max3_f32 v{m}, v{S}, v{S+1}, v{S+2}")
    for i in range(3, 15, 2): a(f"v_max3_f32 v{m}, v{m}, v{S+i}, v{S+i+1}")
    a(f"v_max_f32 v{m}, v{m}, v{S+15}")
    a(f"v_mov_b32 v{t}, v{m}\ns_nop 1\nv_permlane32_swap_b32 v{m}, v{t}\ns_nop 0\nv_max_f32 v{m}, v{m}, v{t}")

def attn_half(a, t, q, extra=None, skipz=False):
    hs = (2*t + (q == 'b')) % 4
    oq = 'b' if q == 'a' else 'a'
    X = AS[hs]; Y = AS[(hs+1) % 4]; Z = AS[(hs-1) % 4]
    kb = t % 2 if q == 'a' else (t+1) % 2
    vb = (t-1) % 2 if q == 'a' else t % 2
    nt = (t + 1) % 4
    M = {'Q1': qk1(Y,kb,oq), 'Q2': qk2(Y,kb,oq), 'P1': pv(Z,0,vb,oq), 'S1': sm(Z,0,oq), 'P2': pv(Z,1,vb,oq), 'S2': sm(Z,1,oq)}
    e = 0
    for tok in "Q1 W0 3 S1 L0 2 Q2 3 P1 3 S2 L1 2 P2 W1 3".split():
        if tok in M:
            if not (skipz and tok[0] != 'Q'): a(M[tok])
        elif tok in ('L0', 'L1'):
            j = int(tok[1])
            if q == 'a': a(f"ds_read_b128 {v(AK[(t+1)%2][j],4)}, v{AADK} offset:{nt*4096 + 1024*j}")
            else: a(f"ds_read_b128 {v(AV[(t+1)%2][j],4)}, v{AADDR} offset:{nt*4096 + 2048 + 1024*j}")
        elif tok == 'W0':
            if q == 'b': a("s_waitcnt lgkmcnt(0)")
        elif tok == 'W1':
            if q == 'a': a("s_waitcnt lgkmcnt(1)")
        else:
            for _ in range(int(tok)):
                a(f"v_exp_f32 v{X+e}, v{X+e}"); e += 1
        if extra and tok in extra:
            for x in extra[tok]: a(x)
    assert e == 16

def kv_dma(h): return [f"buffer_load_dwordx4 v{AVO}, s[{SRD_KV}:{SRD_KV+3}], s{S_CH if h == 0 else S_CH2} offen offset:{1024*i}{SC1} lds" for i in range(4)]
S_FSO = 24
def flag_load(srd=None):
    srd = SRD_F if srd is None else srd
    return f"buffer_load_dwordx2 {v(AFL,2)}, v{AFA}, s[{srd}:{srd+3}], s{S_FSO} offen sc1"
S_EARLY = 41
DEPTH = opt("odepth", 5)
OSL = [72, 80, 88, 96, 136, 144, 152, 160, 8, 16, 24, 32, 224, 232, 240, 248]
def oslot(p, tt): return OSL[p % 16] + 4 * tt
def oload_ins(p):
    return [f"buffer_load_dwordx4 {v(oslot(p, tt),4)}, v{P_OV[(p>>3)&1][tt]}, s[{SRD_OL}:{SRD_OL+3}], s{S_OSO + p%8} offen offset:{(p>>4)*1024}{SC1}" for tt in range(2)]
def chunk_scalars():
    return [f"s_add_u32 s{S_CIDX}, s{S_CIDX}, 16384", f"s_xor_b32 s{S_CH}, s{S_CIDX}, s23", f"s_add_u32 s{S_CH2}, s{S_CH}, 262144",
            f"s_bfe_u32 s26, s{S_CH}, 0x1000e", "s_lshl_b32 s26, s26, 1", f"s_add_u32 s{S_FIDX}, s26, s51"]
def line_cur(): return [f"s_lshr_b32 s26, s{S_CH}, 15", f"s_lshl_b32 s{S_FSO}, s26, 7"]
def line_next(): return [f"s_add_u32 s26, s{S_CIDX}, 16384", "s_xor_b32 s26, s26, s23", "s_bfe_u32 s26, s26, 0x3000f", f"s_lshl_b32 s{S_FSO}, s26, 7"]
def mask_test():
    return [f"s_lshr_b32 s26, s{S_MASK}, s{S_FIDX}", "s_andn2_b32 s26, 0x11, s26"]
def flag_cmp(): return f"v_cmp_eq_u64 s[{S_MASK}:{S_MASK+1}], s[{S_NONCE}:{S_NONCE+1}], {v(AFL,2)}"
def spin(a, name, test, lowprio=False, SLEEP=SLEEP):
    if lowprio:
        a(f"""
        {name}:
        s_mov_b32 s{S_SPIN}, {SPIN_LIMIT}
        {name}_l:
        {flag_load()}
        s_waitcnt vmcnt(0)
        {flag_cmp()}
        s_sub_u32 s{S_SPIN}, s{S_SPIN}, 1
        s_cbranch_scc1 {name}_x
        """)
        for x in test: a(x)
        a(f"s_cbranch_scc0 {name}_x\ns_setprio 0\ns_branch {name}_l\n{name}_x:\ns_cbranch_vccz {name}_r\ns_setprio 2\ns_branch {name}_r")
        return
    a(f"""
    {name}:
    s_mov_b32 s{S_SPIN}, {SPIN_LIMIT}
    {name}_l:
    {flag_load()}
    s_waitcnt vmcnt(0)
    {flag_cmp()}
    s_sub_u32 s{S_SPIN}, s{S_SPIN}, 1
    s_cbranch_scc1 {name}_r
    """)
    for x in test: a(x)
    if SLEEP: a(f"s_cbranch_scc0 {name}_r\ns_sleep {SLEEP}\ns_branch {name}_l")
    else: a(f"s_cbranch_scc1 {name}_l\ns_branch {name}_r")
def spin_flags(a, name): spin(a, name, mask_test())
def wo_dma():
    return [f"s_add_u32 s{S_WOI}, s{S_WOI}, 1", f"s_add_u32 s26, s{S_WOI}, s{S_HP}", "s_and_b32 s26, s26, 7",
            f"s_xor_b32 s27, s{S_WOI}, s{S_HP}", "s_and_b32 s27, s27, 8", "s_or_b32 s26, s26, s27", "s_lshl_b32 s26, s26, 1",
            f"s_lshr_b32 s27, s{S_WOI}, 4", "s_add_u32 s26, s26, s27", "s_lshl_b32 s26, s26, 16", f"s_mov_b32 m0, s{S_WOM}",
            f"s_add_u32 s{S_WOS}, s26, s{S_WOB}", f"s_add_u32 s{S_WOM}, s{S_WOM}, 4096",
            f"buffer_load_dwordx4 v{AWD}, s[{SRD_WO}:{SRD_WO+3}], s{S_WOS} offen{NTW} lds"]
TOUCH = "--touch" in sys.argv
WARMF = "--nowarmf" not in sys.argv
def publish(fa=V_FA): return ["s_waitcnt vmcnt(0)", "s_mov_b64 exec, 1", f"buffer_store_dwordx2 {v(V_NON,2)}, v{fa}, s[{SRD_F}:{SRD_F+3}], 0 offen sc1", "s_mov_b64 exec, -1"]
def wo_rows(n):
    o = []
    for _ in range(n): o += wo_dma()
    return o
EARLY = '--noearly' not in sys.argv
XT = opt('xt', 1)
LST = opt("lst", 1)
def tailpf():
    if not opt("codepf2", 2): return []
    return [f"s_cmp_eq_u32 s{S_CNT}, {opt('codepf2', 2)}", "s_cbranch_scc0 Lnopf2", "s_getpc_b64 s[26:27]", "Lpcref2:", f"s_lshl_b32 s28, s{S_W}, 13",
            "v_lshlrev_b32 v2, 7, v1", "v_add_u32 v2, s28, v2", "v_min_u32 v2, Lattn_fallback-Lattn_j-4, v2", "s_add_u32 s26, s26, Lattn_j-Lpcref2", "s_addc_u32 s27, s27, 0",
            "v_mov_b32 v3, s27", "v_add_co_u32 v2, s[28:29], s26, v2", "s_nop 1", "v_addc_co_u32 v3, s[28:29], 0, v3, s[28:29]", "global_load_dword v4, v[2:3], off", "Lnopf2:"]
def attn_chunk(a, kind):
    tog = f"v_xor_b32 v{AADDR}, 32768, v{AADDR}\nv_xor_b32 v{AADK}, 32768, v{AADK}"
    for t in range(4):
        ea, eb = {}, {}
        if kind in ('c0', 'c1'): stamp(a, None, "c")
        if t in (1, 3): jitter(a)
        if kind == 'c1' and t == opt("polt", 1) + 1: pass
        if kind == 'c1' and t == opt("polt", 1):
            for x in old_only(chunk_scalars() + line_cur() + ["s_branch Lspin_c1a", "Lspin_c1a_r:", f"s_mov_b32 m0, s{S_M0}", "s_nop 0"] + kv_dma(0)
                              + [f"s_add_u32 m0, s{S_M0}, 16384", "s_nop 0"] + kv_dma(1)): a(x)
            stamp(a, None, "c")
        if kind == 'c14' and t == XT:
            for x in if_vcc(["s_barrier"], False): a(x)
        if kind == 'c0':
            for k, e in enumerate((ea, eb)):
                j = 2*t + k - LST
                if 0 <= j < 4: e['P1'] = if_vcc([kv_store(2*j), kv_store(2*j + 1)], False)
        if kind == 'c1' and t == 0:
            eb['P2'] = [f"s_and_b32 s26, s{S_W}, 6", "s_cmp_eq_u32 s26, 2", "s_cbranch_scc0 Lpub2"] + publish() + ["Lpub2:"]
        if kind == 'c14' and t == 0:
            ea['Q2'] = old_only([f"s_lshl_b32 s28, s{S_W}, 1", f"s_add_u32 s28, s28, s{S_HP}", "v_lshrrev_b32 v2, 5, v1", "v_add_u32 v2, s28, v2", "v_and_b32 v2, 7, v2",
                                 f"s_and_b32 s28, s{S_HP}, 8", "s_xor_b32 s28, s28, 8", "v_or_b32 v2, s28, v2", "v_lshlrev_b32 v2, 17, v2", "v_and_b32 v3, 31, v1",
                                 "v_lshl_add_u32 v2, v3, 11, v2", "s_mov_b32 s28, 65536", f"buffer_load_dword v3, v2, s[{SRD_WO}:{SRD_WO+3}], s28 offen"])
        if kind == 'c15' and EARLY:
            if t == 2: ea['Q2'] = if_vcc([f"s_mov_b32 s{S_FSO}, s{S_FL0}", flag_load(SRD_F2)], False)
            if t == 3: ea['Q2'] = if_vcc(["s_waitcnt vmcnt(0)", flag_cmp(), "s_nop 0", f"s_cmp_lg_u32 s{S_MASK}, -1", "s_cbranch_scc1 Lnoearly", f"s_mov_b32 s{S_EARLY}, 1"]
                                         + [x for p in range(min(DEPTH, 4)) for x in oload_ins(p)] + ["Lnoearly:"], False)
        if t == 3:
            if kind == 'c0':
                stamp(a); a("s_waitcnt lgkmcnt(0)\ns_barrier"); stamp(a)
                for x in [f"s_cmp_lt_u32 s{S_W}, 4", "s_cselect_b64 vcc, -1, 0", f"s_and_b32 s26, s{S_W}, 6", "s_cmp_eq_u32 s26, 2", "s_cbranch_scc1 Lpub1"] + publish() + ["Lpub1:"]: a(x)
                stamp(a)
                ea['Q1'] = [tog]
            elif kind == 'c14':
                ea['Q1'] = [f"v_add_u32 v{AADDR}, 131072, v{AADDR}\nv_add_u32 v{AADK}, 131072, v{AADK}"]
            elif kind != 'c15':
                stamp(a); a("s_waitcnt vmcnt(0) lgkmcnt(0)"); stamp(a)
                if not ("--xnobar" in sys.argv and kind == 'loop'): a("s_barrier")
                stamp(a)
                if kind in ('c1', 'loop'):
                    nm = "Lspin_" + kind
                    ea = {'Q1': [tog],
                          'Q2': old_only([flag_cmp(), f"s_xor_b32 s{S_M0}, s{S_M0}, 32768"] + chunk_scalars() + [f"s_mov_b32 m0, s{S_M0}"] + mask_test()
                                         + [f"s_cbranch_scc1 {nm}", f"{nm}_r:"] + kv_dma(0)),
                          'P2': old_only([f"s_add_u32 m0, s{S_M0}, 16384", "s_nop 0"] + kv_dma(1) + line_next() + [flag_load()])}
                    if kind == 'loop':
                        eb = {'Q2': old_only([f"s_cmp_gt_u32 s{S_CNT}, 3", "s_cbranch_scc0 Lnowo"] + wo_rows(2) + ["Lnowo:"] + tailpf() + [f"s_cmp_eq_u32 s{S_CNT}, 1", "s_cbranch_scc0 Lno15"]
                                             + chunk_scalars() + [f"s_add_u32 m0, s{S_M0}, 131072"] + mask_test() + ["s_cbranch_scc1 Lspin_15", "Lspin_15_r:"] + kv_dma(0)
                                             + [f"s_add_u32 m0, s{S_M0}, {131072 + 16384}", "s_nop 0"] + kv_dma(1) + ["Lno15:"]),
                              'P2': [f"s_sub_u32 s{S_CNT}, s{S_CNT}, 1", f"s_cmp_lg_u32 s{S_CNT}, 0"]}
                elif kind == 'c13':
                    ea = {'Q1': [tog], 'Q2': old_only([f"s_lshl_b32 s{S_WOM}, s{S_W}, 10", f"s_add_u32 s{S_WOM}, s{S_WOM}, 32768"] + wo_rows(3)), 'P2': old_only(wo_rows(3))}
                    eb = {'Q2': old_only(wo_rows(2))}
        if "--xnoex" in sys.argv and kind == 'loop' and t == 3: ea = {'Q1': [tog]}; eb = {'P2': eb['P2']}
        attn_half(a, t, 'a', ea, skipz=(kind == 'c0' and t == 0)); attn_half(a, t, 'b', eb)

def attention(a):
    attn_chunk(a, 'c0')
    attn_chunk(a, 'c1')
    a(f"s_mov_b32 s{S_CNT}, 11")
    stamp(a, None, "l")
    SPLIT = opt("split", 1)
    def tail():
        stamp(a, None, "l")
        attn_chunk(a, 'c13')
        attn_chunk(a, 'c14')
        attn_chunk(a, 'c15')
    if SPLIT:
        a("s_cbranch_vccz Lattn_y")
        for role in (True, False):
            ROLE[0] = role
            nm = "Lattn_loop" if role else "Lattn_loop_y"
            if not role: a.label("Lattn_y")
            a(".p2align 6")
            a.label(nm)
            attn_chunk(a, 'loop')
            a(f"s_cbranch_scc1 {nm}")
            if SPLIT == 2: tail()
            if role: a("s_branch Lattn_j")
        ROLE[0] = None
        a.label("Lattn_j")
        if SPLIT == 1: tail()
    else:
        a(".p2align 6")
        a.label("Lattn_loop")
        attn_chunk(a, 'loop')
        a("s_cbranch_scc1 Lattn_loop")
        tail()
    a("s_nop 1")
    stamp(a, 4)
    a(pv(AS[3],0,1,'b')); a(sm(AS[3],0,'b')); a(pv(AS[3],1,1,'b')); a(sm(AS[3],1,'b'))
    a(f"""
    s_mov_b32 s26, 0x4e800000        ; 2^30
    s_mov_b32 s27, 65536
    s_nop 5
    """)
    for x in lbroadcast(): a(x)
    a(f"""
    v_cmp_nge_f32 vcc, s26, v{AL['a']}
    v_cmp_nge_f32 s[28:29], s26, v{AL['b']}
    s_nop 0
    s_or_b64 vcc, vcc, s[28:29]
    s_cbranch_vccnz Lattn_fallback
    Lattn_fin:
    """)
    stamp(a, None, "e")
    a(f"""
    v_rcp_f32 v2, v{AL['a']}
    v_rcp_f32 v4, v{AL['b']}
    """)
    for qi, q in enumerate('ab'):
        for u in range(2):
            for i in range(4): a(f"v_pk_mul_f32 {v(AO[q]+8*u+2*i,2)}, {v(AO[q]+8*u+2*i,2)}, {v(2+2*qi,2)} op_sel_hi:[1,0]")
            d = AS[0] + 4*(2*qi+u)
            for x in cvt4([AO[q]+8*u+i for i in range(8)], d): a(x)
            a(f"buffer_store_dwordx4 {v(d,4)}, v6, s[{SRD_O}:{SRD_O+3}], {'0' if qi==0 else 's27'} offen offset:{512*u}{SC1}")

def fallback(a):
    a.label("Lattn_fallback")
    a(f"""
    s_waitcnt vmcnt(0) lgkmcnt(0)
    s_lshl_b32 s26, s{S_B}, 5
    s_lshl_b32 s28, s{S_HP}, 1
    s_add_u32 s26, s26, s28
    s_lshr_b32 s28, s{S_W}, 2
    s_add_u32 s26, s26, s28
    s_lshl_b32 s30, s26, 18
    """)
    make_srd(a, SRD_KV, 48, 49, 30, 262144)
    a(f"""
    s_mov_b32 s{S_SPIN}, {SPIN_LIMIT}
    v_lshrrev_b32 v2, 3, v1
    v_lshl_add_u32 v2, v2, 7, v{AFA}
    Lfb_poll:
    buffer_load_dwordx2 {v(AFL,2)}, v2, s[{SRD_F}:{SRD_F+3}], 0 offen sc1
    s_waitcnt vmcnt(0)
    v_cmp_eq_u64 vcc, s[{S_NONCE}:{S_NONCE+1}], {v(AFL,2)}
    s_sub_u32 s{S_SPIN}, s{S_SPIN}, 1
    s_cbranch_scc1 Lfb_go
    s_cmp_eq_u64 vcc, -1
    s_cbranch_scc0 Lfb_poll
    Lfb_go:
    """)
    for r in list(range(AO['a'], AO['a']+32)) + list(range(AL['a'], AL['a']+8)): a(f"v_mov_b32 v{r}, 0")
    Mr = {'a': AC['a'], 'b': AC['b']}
    a(f"v_mov_b32 v{Mr['a']}, 0xff800000\nv_mov_b32 v{Mr['b']}, 0xff800000\ns_mov_b32 s26, 0")
    a.label("Lfb_loop")
    for j in range(2): a(f"buffer_load_dwordx4 {v(AK[0][j],4)}, v{AVK}, s[{SRD_KV}:{SRD_KV+3}], s26 offen offset:{1024*j} sc1")
    for j in range(2): a(f"buffer_load_dwordx4 {v(AV[0][j],4)}, v{AVO}, s[{SRD_KV}:{SRD_KV+3}], s26 offen offset:{2048+1024*j} sc1")
    a("s_waitcnt vmcnt(0)")
    for q in 'ab':
        S = AS[0]
        a(qk1(S,0,q,"0")); a(qk2(S,0,q)); a("s_nop 15")
        rowmax16(a, S, 2, 3)
        a(f"v_max_f32 v2, v2, v{Mr[q]}\nv_sub_f32 v3, v{Mr[q]}, v2\nv_exp_f32 v3, v3\nv_mov_b32 v{Mr[q]}, v2")
        for i in range(16): a(f"v_sub_f32 v{S+i}, v{S+i}, v2")
        for i in range(16): a(f"v_exp_f32 v{S+i}, v{S+i}")
        for i in range(16): a(f"v_mul_f32 v{AO[q]+i}, v3, v{AO[q]+i}")
        for i in range(4): a(f"v_mul_f32 v{AL[q]+i}, v3, v{AL[q]+i}")
        a("s_nop 1")
        a(pv(S,0,0,q)); a(sm(S,0,q)); a(pv(S,1,0,q)); a(sm(S,1,q))
        a("s_nop 15")
    a("s_add_u32 s26, s26, 4096\ns_cmp_lt_u32 s26, 262144\ns_cbranch_scc1 Lfb_loop")
    for x in lbroadcast(): a(x)
    a("s_branch Lattn_fin")

PACC = 40
PWF = [104, 120]
POF = 168
POLLS = []
def proj_body(a, old):
    vm = VmTrack(); fpos = {}
    R = "o" if old else "y"
    def wreads(p):
        off = (p if p < 16 else p - 16 + 8 if p < 24 else (p - 24) % 4) * 4096
        return [f"ds_read_b64_tr_b16 {v(PWF[p&1]+4*ct+2*h,2)}, v{P_WR[ct]} offset:{off + h*1024}" for ct in range(4) for h in range(2)]
    def check(g, hi=False):
        nm = f"Lpoll{R}{g}"; POLLS.append((nm, hi))
        return [f"s_cmp_lg_u32 s{S_MASK}, -1", f"s_cbranch_scc1 {nm}", f"{nm}_r:"]
    def setline(g): return f"s_xor_b32 s{S_FSO}, s{S_FL0}, {(g & 1) * 128 + (g >> 1) * 256}"
    def force(g, hi=False): return [f"s_mov_b32 s{S_MASK}, 0", setline(g)] + check(g, hi)
    def oload(p):
        vm.issue(("O", p)); vm.issue(("O", p))
        return oload_ins(p)
    PX, YX3 = opt("px", 10), opt("yx3", 5)
    if old:
        a("s_waitcnt vmcnt(4)\ns_barrier")
        stamp(a, None, "e")
        for x in publish(V_FA2): a(x)
        stamp(a, 5)
        for x in [f"s_lshl_b32 s{S_WOM}, s{S_W}, 10"] + wo_rows(4) + [f"s_add_u32 s{S_WOM}, s{S_WOM}, {131072 - 16384}"] + wo_rows(4) + ["s_waitcnt vmcnt(8)"]: a(x)
        OPRE = opt("opre", 6)
        if opt("olow", 1): a("s_setprio 0")
        stamp(a, None, "o")
        for p in range(OPRE):
            if p % 8 == 0:
                for x in force(p // 8, not opt("olow", 1)): a(x)
                stamp(a, None, "o")
            for x in oload(p): a(x)
        a("s_setprio 0")
        nxt = OPRE
    else:
        stamp(a, None, "e")
        YPUB = opt("ypub", 2)
        if YPUB < 0:
            for x in publish(V_FA2): a(x)
        a(f"s_setprio {opt('yprio', 1)}")
        stamp(a, 5)
        a(f"s_cmp_eq_u32 s{S_EARLY}, 1\ns_cbranch_scc1 Learly")
        for x in force(0): a(x)
        for p in range(4):
            for x in oload(p): a(x)
        a.label("Learly")
        for _ in range(1 + (opt("opre", 6) + 7) // 8): stamp(a, None, "o")
        spos = len(vm.ops)
        for p in range(4, DEPTH):
            for x in oload(p): a(x)
        nxt = DEPTH
    for x in wreads(0): a(x)
    stamp(a, 6)
    for p in range(32):
        if p + 1 == 16:
            for ct in range(4): a(f"v_add_u32 v{P_WR[ct]}, {-65536 & 0xffffffff}, v{P_WR[ct]}")
        if p + 1 == 28:
            for ct in range(4): a(f"v_add_u32 v{P_WR[ct]}, 131072, v{P_WR[ct]}")
        wc = vm.wait_count({('O', p)})
        if not old and YPUB >= 0 and p < 4:
            a(f"s_cmp_eq_u32 s{S_EARLY}, 1\ns_cbranch_scc1 Lw{p}a\ns_waitcnt vmcnt({wc})\nLw{p}a:\ns_waitcnt vmcnt({wc + 4}) lgkmcnt(0)")
        else:
            a(f"s_waitcnt vmcnt({wc}) lgkmcnt(0)")
        if not old and p == YPUB:
            for x in [f"s_waitcnt vmcnt({len(vm.ops) - spos})"] + publish(V_FA2)[1:]: a(x)
        gaps = [[] for _ in range(8)]
        for i, r in enumerate(wreads(p + 1) if p + 1 < 32 else []): gaps[i // 2].append(r)
        if not old and p == YX3: gaps[0].append("s_barrier")
        todo = []
        if old:
            todo = list(range(nxt, min(32 if p >= PX else 16, nxt + 2, 16 + p, p + 1 + opt("odold", 6))))
        elif nxt < 32: todo = [nxt]
        gi = 4
        for n in todo:
            if n % 8 == 0:
                g = n // 8
                if old and g == 2: gaps[gi] += ["s_barrier"] + force(g)
                elif g in fpos: gaps[gi] += [f"s_waitcnt vmcnt({len(vm.ops) - fpos[g]})", flag_cmp(), "s_nop 0"] + check(g)
                else: gaps[gi] += force(g)
            o = oload(n)
            gaps[gi].append(o[0]); gaps[gi + 1].append(o[1]); gi += 2
            if (n + 3) % 8 == 0 and n + 3 < 32:
                g = (n + 3) // 8
                gaps[gi - 1] += [setline(g), flag_load()]
                fpos[g] = len(vm.ops)
            nxt = n + 1
        n = 0
        for tt in range(2):
            for ct in (range(4) if tt == 0 else range(3, -1, -1)):
                d = PACC + (tt*4+ct)*4
                a(f"v_mfma_f32_16x16x32_bf16 {v(d,4)}, {v(PWF[p&1]+4*ct,4)}, {v(oslot(p, tt),4)}, {'0' if p==0 else v(d,4)}")
                for x in gaps[n]: a(x)
                n += 1
        if p % 4 == 3: stamp(a, None, "p")
        if p in (1, 9, 20): jitter(a)
    assert nxt == 32

def proj(a):
    a(f"s_mov_b64 s[{SRD_F}:{SRD_F+1}], s[{SRD_F2}:{SRD_F2+1}]\ns_mov_b32 s{SRD_F+2}, 2048")
    a(f"s_cmp_lt_u32 s{S_W}, 4\ns_cselect_b64 vcc, -1, 0\ns_cbranch_scc0 Lproj_y")
    proj_body(a, True)
    a("s_branch Lproj_e\nLproj_y:")
    proj_body(a, False)
    a.label("Lproj_e")
    a(f"""
    v_lshrrev_b32 v4, 4, v1
    v_and_b32 v2, 15, v1
    v_lshlrev_b32 v2, 12, v2
    v_and_b32 v3, 1, v4
    v_lshl_add_u32 v2, v3, 5, v2
    v_lshrrev_b32 v3, 1, v4
    v_lshl_add_u32 v2, v3, 4, v2
    s_mov_b32 s26, 65536
    s_nop 3
    """)
    for tt in range(2):
        for pr in range(2):
            d = POF + (tt*2+pr)*4
            for x in range(2):
                s0 = PACC + (tt*4+2*pr+x)*4
                a(f"v_cvt_pk_bf16_f32 v{d+2*x}, v{s0}, v{s0+1}\nv_cvt_pk_bf16_f32 v{d+2*x+1}, v{s0+2}, v{s0+3}")
            a(f"s_nop 1\nv_permlane16_swap_b32 v{d}, v{d+2}\nv_permlane16_swap_b32 v{d+1}, v{d+3}")
            a(f"buffer_store_dwordx4 {v(d,4)}, v2, s[{SRD_OUT}:{SRD_OUT+3}], {'0' if tt==0 else 's26'} offen offset:{64*pr}{' ' + opt('ofl', 'nt').replace('_', ' ') if opt('ofl', 'nt') else ''}")

def build():
    a = Asm()
    decode(a, "Lend")
    gemm1_setup_dma(a)
    jitter(a)
    stamp(a, 0); dbgstamp(a, 0)
    gemm1_main(a, late_setup())
    stamp(a, 2); dbgstamp(a, 2)
    transition_ab(a)
    stamp(a, 3); jitter(a)
    attention(a)
    jitter(a)
    dbgstamp(a, 3)
    proj(a)
    stamp(a, 7); dbgstamp(a, 4); dbgflush(a)
    stamp_flush(a, 8)
    a.label("Lend")
    a("s_endpgm")
    for nm in ("Lspin_c1a", "Lspin_c1", "Lspin_loop", "Lspin_15"): spin_flags(a, nm)
    a(f"""
    Lnonce_spin:
    s_mov_b32 s{S_SPIN}, {SPIN_LIMIT}
    Lnonce_l:
    buffer_load_dwordx2 {v(V_NON,2)}, v{V_PD+1}, s[92:95], 0 offen sc1
    s_waitcnt vmcnt(0)
    v_readfirstlane_b32 s{S_NONCE}, v{V_NON}
    v_readfirstlane_b32 s{S_NONCE+1}, v{V_NON+1}
    s_sub_u32 s{S_SPIN}, s{S_SPIN}, 1
    s_cbranch_scc1 Lnonce_ok
    s_cmp_eq_u32 s{S_NONCE}, 0
    s_cbranch_scc1 Lnonce_l
    s_branch Lnonce_ok
    """)
    for nm, hi in POLLS: spin(a, nm, [f"s_cmp_lg_u32 s{S_MASK}, -1"], lowprio=hi, SLEEP=opt("sleep2", 0) if nm[-1] in "13" else SLEEP)
    fallback(a)
    a.label("Lcode_end")
    return a.text()

def main(out):
    P = "concat_heads__mha_block__softmax_full_mha__prompt_kernel"
    txt = f"""; Kernarg layout (72 bytes, pointers only, base s[0:1]):
;   0 A_x  8 A_wqkv  16 A_wo  24 B_x  32 B_wqkv  40 B_wo  48 d_out  56 d_debug  64 d_ws
; One fused kernel, 256 workgroups (one per CU) x 8 waves; workgroup = (block b, 256 tokens tm, head pair hp).
;   phase A  QKV projection 256x192x1024 (LDS-DMA ring, 16x16x32 MFMA); Q stays in registers, K/V go to LDS and to d_ws
;   phase B  softmax(QK^T)V for 2 heads x 256 queries. exp2 results feed v_smfmac directly (high halves = bf16).
;            Shift = max of the first key tile (carried in the MFMA C operand); a run-time check of the row sums
;            falls back to an exact running-max loop when that shift could overflow.
;   phase C  output projection 256x64x1024, O fragments from d_ws
; Hand-offs between workgroups: write-through stores, then a per-wave flag holding a per-launch nonce (kept in d_debug).
; @launch grid=(256,1,1) block=(512,1,1) lds=163840
.amdgcn_target "amdgcn-amd-amdhsa--gfx950"
.text
""" + kernel_header(P) + build() + '.section .rodata,"a"\n' + kernel_desc(P, 256, sgpr=102 if DBG or JIT else 96)
    open(out, "w").write(txt)

if __name__ == "__main__":
    args = [x for x in sys.argv[1:] if not x.startswith("--")]
    main(args[0] if args else "concat_heads__mha_block__softmax_full_mha__prompt.s")
```

```python
import sys, struct, math
from dsl import *

def opt(name, default):
    for x in sys.argv:
        if x.startswith(f"--{name}="): return type(default)(x[len(name) + 3:])
    return default
STAMP = "--stamp" in sys.argv
ROT = opt("rot", 2)
PRO = opt("pro", "X0,W0,Q0,B,W1,X1,W2").replace(",", " ")
STEPX = {}
for it in opt("stepx", "0:W3.X2.Q1;1:W4;8:Q2;16:Q3").split(";"):
    if it:
        k, val = it.split(":"); STEPX[int(k)] = val.split(".")
SC1 = "" if "--nosc1" in sys.argv else " sc1"
NTD = " nt" if "d" in opt("nt", "") else (" " + opt("dfl", "").replace("_", " ") if opt("dfl", "") else "")
NTP = " nt" if "p" in opt("nt", "") else ""
NTW = " nt" if "w" in opt("nt", "") else ""
ROTB = opt("rotb", -1)

KV_OFF = 0
O_OFF = 24 << 20
F1_OFF = 32 << 20
F2_OFF = 33 << 20
SLEEP = opt('sleep', 0)
ST_OFF = 64 << 20
QSCALE = struct.unpack("<I", struct.pack("<f", math.log2(math.e) / math.sqrt(32.0)))[0]
SPIN_LIMIT = 1 << 17

S_W, S_B, S_TM, S_HP = 16, 17, 18, 19
S_SOX, S_SOW, S_XB, S_WB = 20, 21, 22, 23
S_EXW = 24
S_NONCE = 80
S_MASK = 82
S_CIDX, S_M0, S_CNT, S_CH, S_WOS, S_WOM, S_FIDX, S_SPIN = 84, 85, 86, 87, 88, 89, 90, 91
S_WOI, S_WOB = 20, 21
PRIO = opt('prio', 1)
SRD_KV, SRD_F, SRD_WO, SRD_O = 4, 8, 52, 12
SRD_KVS = 56
SRD_OUT, SRD_OL, SRD_F2 = 36, 32, 76
S_FL0 = 40

def make_srd(a, d, lo, hi, off_sgpr, nrec):
    a(f"s_add_u32 s{d}, s{lo}, s{off_sgpr}\ns_addc_u32 s{d+1}, s{hi}, 0\ns_and_b32 s{d+1}, s{d+1}, 0xffff")
    a(f"s_mov_b32 s{d+2}, {nrec}\ns_mov_b32 s{d+3}, 0x00020000")

NST = [0]
STG = opt("stg", "m")
def stamp(a, i=None, g="m"):
    if not STAMP: return
    if i is None: g = "a" if g == "m" else g
    if g not in STG: return
    a("s_memrealtime s[60:61]\ns_memtime s[62:63]\ns_waitcnt lgkmcnt(0)\ns_lshl_b64 exec, 1, s64\nv_mov_b32 v0, s60\nv_mov_b32 v203, s62\ns_mov_b64 exec, -1\ns_add_u32 s64, s64, 1")
DBG = "--dbg" in sys.argv
def dbgstamp(a, i, inv=False):
    if DBG: a(f"s_memrealtime s[60:61]\ns_waitcnt lgkmcnt(0)\ns_mov_b32 s{96+i}, s60")
def dbgflush(a):
    if not DBG: return
    a(f"""
    s_cmp_lg_u32 s{S_W}, 7
    s_cbranch_scc1 Ldbg_e
    s_mov_b64 exec, 1
    s_and_b32 s26, s{S_HP}, 7
    s_lshl_b32 s26, s26, 2
    v_mov_b32 v2, s26
    s_sub_u32 s27, s98, s96
    v_mov_b32 v3, s27
    buffer_atomic_umax v3, v2, s[92:95], 0 offen offset:8
    v_mov_b32 v4, 0
    s_sub_u32 s27, s97, s96
    v_mov_b32 v5, s27
    buffer_atomic_umax v5, v4, s[92:95], 0 offen offset:40
    s_sub_u32 s27, s99, s98
    v_mov_b32 v6, s27
    buffer_atomic_umax v6, v4, s[92:95], 0 offen offset:44
    s_sub_u32 s27, s100, s99
    v_mov_b32 v7, s27
    buffer_atomic_umax v7, v4, s[92:95], 0 offen offset:48
    s_sub_u32 s27, s100, s96
    v_mov_b32 v8, s27
    buffer_atomic_umax v8, v4, s[92:95], 0 offen offset:52
    s_not_b32 s27, s96
    v_mov_b32 v9, s27
    buffer_atomic_umax v9, v4, s[92:95], 0 offen offset:56
    v_mov_b32 v10, s100
    buffer_atomic_umax v10, v4, s[92:95], 0 offen offset:60
    Ldbg_e:
    """)
JIT = opt("jit", 0)
JC = [0]
def jitter(a):
    if not JIT: return
    JC[0] += 1
    k = JC[0]
    a(f"""
    s_mul_i32 s96, s2, {37 + 2 * k}
    s_mul_i32 s97, s{S_W}, {JIT * 11 + k}
    s_add_u32 s96, s96, s97
    s_lshr_b32 s97, s96, 3
    s_xor_b32 s96, s96, s97
    s_and_b32 s96, s96, 31
    Ljit{k}:
    s_cmp_eq_u32 s96, 0
    s_cbranch_scc1 Ljit{k}e
    s_sleep {JIT}
    s_sub_u32 s96, s96, 1
    s_branch Ljit{k}
    Ljit{k}e:
    """)
def stamp_flush(a, n):
    if not STAMP: return
    a(f"""
    s_lshl_b32 s26, s2, 3
    s_add_u32 s26, s26, s{S_W}
    s_lshl_b32 s26, s26, 9
    s_add_u32 s30, s26, {ST_OFF}
    """)
    make_srd(a, 56, 48, 49, 30, 512)
    a("v_lshlrev_b32 v2, 3, v1\nv_mov_b32 v4, v0\nv_mov_b32 v5, v203\nbuffer_store_dwordx2 v[4:5], v2, s[56:59], 0 offen")

ACC = 8
def acc(tt, f): return ACC + (tt * 6 + f) * 4
XF = [[104 + 4*i for i in range(4)], [144 + 4*i for i in range(4)]]
WF = [[120 + 4*i for i in range(6)], [160 + 4*i for i in range(6)]]
V_XR = [208, 209]; V_WR = [210, 211]; V_XD = list(range(184, 192)); V_WD = [212, 213, 214]
V_PX, V_PW, V_PD = 218, 219, 220
V_NON = 222
LDS_W = 98304

EPF = opt("epf", 4)
def entry_pf():
    if EPF == 0: return ""
    if EPF == 4:
        return f"""
        s_getpc_b64 s[26:27]
        Lpcref0:
        v_lshlrev_b32 v2, 7, v0
        v_min_u32 v2, Lcode_end-Lpcref0-4, v2
        v_mov_b32 v3, 0
        v_lshl_add_u64 v[2:3], v[2:3], 0, s[26:27]
        global_load_dword v{V_NON+1}, v[2:3], off
        """
    if EPF == 1:
        addr = """
        v_subrev_u32 v2, 448, v0
        v_cmp_gt_u32 vcc, 48, v2
        s_and_saveexec_b64 s[30:31], vcc
        s_cbranch_execz Lepf_e
        s_lshr_b32 s28, s2, 3
        s_lshl_b32 s28, s28, 4
        v_cmp_le_u32 vcc, 32, v2
        v_mov_b32 v3, s28
        s_nop 0
        v_cndmask_b32 v3, 0, v3, vcc
        v_add_u32 v2, v2, v3
        """
    else:
        addr = f"""
        v_xor_b32 v2, 256, v0
        v_cmp_gt_u32 vcc, {256 if EPF == 2 else 512}, v2
        s_and_saveexec_b64 s[30:31], vcc
        s_cbranch_execz Lepf_e
        """
    return addr + f"""
        s_getpc_b64 s[26:27]
        Lpcref0:
        v_lshlrev_b32 v2, 7, v2
        v_min_u32 v2, Lcode_end-Lpcref0-4, v2
        v_mov_b32 v3, s27
        v_add_co_u32 v2, vcc, s26, v2
        s_nop 1
        v_addc_co_u32 v3, vcc, 0, v3, vcc
        global_load_dword v{V_NON+1}, v[2:3], off
        Lepf_e:
        s_mov_b64 exec, -1
        """
def decode(a, end):
    a(f"""
    s_cmp_ge_u32 s2, 256
    s_cbranch_scc1 {end}
    s_load_dwordx16 s[32:47], s[0:1], 0
    {entry_pf()}
    s_load_dwordx2 s[48:49], s[0:1], 64
    v_lshrrev_b32 v1, 6, v0
    s_and_b32 s26, s2, 7
    s_lshr_b32 s27, s2, 3
    v_readfirstlane_b32 s{S_W}, v1
    s_lshr_b32 s{S_B}, s26, 2
    s_and_b32 s28, s26, 1
    s_lshl_b32 s28, s28, 2
    s_and_b32 s29, s27, 3
    s_add_u32 s{S_TM}, s28, s29
    s_bfe_u32 s28, s26, 0x10001
    s_lshl_b32 s28, s28, 3
    s_lshr_b32 s29, s27, 2
    s_add_u32 s{S_HP}, s28, s29
    v_and_b32 v1, 63, v0
    s_mul_i32 s51, {'s26' if ROTB < 0 else 's17'}, {ROT if ROTB < 0 else ROTB}
    s_and_b32 s51, s51, 15
    s_lshl_b32 s14, s51, 1
    s_lshl_b32 s15, s51, 7
    s_mov_b32 s64, 0
    """)

NLAB = [0]
ROLE = [None]
def if_vcc(ins, want=True):
    if ROLE[0] is not None: return list(ins) if ROLE[0] == want else []
    NLAB[0] += 1
    return [f"s_cbranch_vcc{'z' if want else 'nz'} Lskip{NLAB[0]}"] + ins + [f"Lskip{NLAB[0]}:"]
old_only = if_vcc

def gemm1_setup_dma(a):
    a(f"""
    s_cmp_lt_u32 s{S_W}, 4
    s_cselect_b64 vcc, -1, 0
    s_cbranch_scc0 Lsetup1
    s_setprio 1
    Lsetup1:
    s_and_b32 s30, s{S_W}, 3
    s_mul_i32 s{S_XB}, s30, 24576
    s_mul_i32 s26, s30, 3072
    s_add_u32 s{S_WB}, s26, {LDS_W}
    v_lshrrev_b32 v2, 3, v1
    s_lshl_b32 s26, s30, 6
    v_add_u32 v7, s26, v2
    v_and_b32 v3, 7, v1
    v_lshrrev_b32 v4, 4, v1
    v_xor_b32 v5, v3, v4
    v_lshlrev_b32 v5, 4, v5
    v_lshl_add_u32 v{V_XD[0]}, v7, 11, v5
    v_xor_b32 v5, 64, v5
    v_lshl_add_u32 v{V_XD[1]}, v7, 11, v5
    v_add_u32 v{V_XD[1]}, {8*2048}, v{V_XD[1]}
    """)
    for q in range(2, 8): a(f"v_add_u32 v{V_XD[q]}, {16*2048}, v{V_XD[q-2]}")
    a(f"s_mul_i32 s26, s30, 24")
    for q in range(3):
        a(f"""
        v_add_u32 v7, s26, v2            ; R
        s_add_u32 s26, s26, 8
        v_lshrrev_b32 v4, 5, v7          ; sec
        v_and_b32 v7, 31, v7             ; k
        v_and_b32 v5, 2, v7
        v_bfe_u32 v6, v7, 3, 1
        v_lshl_or_b32 v5, v6, 2, v5      ; swz*2
        v_xor_b32 v5, v3, v5             ; chunk
        v_lshlrev_b32 v5, 4, v5
        v_lshl_add_u32 v5, v4, 11, v5
        v_mul_u32_u24 v7, 6144, v7
        v_add_u32 v{V_WD[q]}, v7, v5
        """)
    a(f"""
    s_waitcnt lgkmcnt(0)
    s_cmp_eq_u32 s{S_B}, 0
    s_cselect_b32 s26, s32, s38
    s_cselect_b32 s27, s33, s39
    s_cselect_b32 s28, s34, s40
    s_cselect_b32 s29, s35, s41
    s_lshl_b32 s30, s{S_TM}, 19
    """)
    make_srd(a, 4, 26, 27, 30, 524288)
    a(f"s_lshl_b32 s30, s{S_HP}, 7\ns_sub_u32 s31, {1024*6144}, s30")
    make_srd(a, 8, 28, 29, 30, "s31")

def gemm1_setup_rest(a):
    a(f"""
    s_and_b32 s30, s{S_W}, 3
    s_mul_i32 s30, s30, 24576
    v_and_b32 v2, 15, v1             ; c
    v_lshrrev_b32 v4, 4, v1          ; G
    v_lshrrev_b32 v5, 1, v2
    v_xor_b32 v5, v4, v5
    v_lshlrev_b32 v5, 4, v5
    v_lshl_add_u32 v5, v2, 7, v5
    v_add_u32 v{V_XR[0]}, s30, v5
    v_xor_b32 v{V_XR[1]}, 64, v{V_XR[0]}
    v_bfe_u32 v2, v1, 2, 2           ; r
    v_and_b32 v3, 3, v1              ; c4
    v_lshl_add_u32 v5, v4, 3, v2     ; k = 8G + r
    v_lshrrev_b32 v6, 1, v2
    v_and_b32 v7, 1, v4
    v_lshl_or_b32 v6, v7, 1, v6      ; swz
    s_lshr_b32 s30, s{S_W}, 2
    s_lshl_b32 s30, s30, 1
    v_xor_b32 v6, s30, v6
    v_lshlrev_b32 v6, 5, v6
    v_lshl_add_u32 v6, v3, 3, v6
    v_lshl_add_u32 v6, v5, 7, v6
    v_add_u32 v{V_WR[0]}, {LDS_W}, v6
    v_xor_b32 v{V_WR[1]}, 32, v{V_WR[0]}
    """)
    a(f"s_lshr_b32 s30, s{S_TM}, 2\ns_lshl_b32 s30, s30, 21")
    make_srd(a, 52, 26, 27, 30, 2 << 20)
    a(f"s_lshr_b32 s30, s{S_HP}, 3\ns_lshl_b32 s30, s30, 10\ns_sub_u32 s31, {1024*6144}, s30")
    make_srd(a, 56, 28, 29, 30, "s31")
    toks = PRO + " ".join(" ".join(x) for x in STEPX.values())
    if "Q" in toks or "R" in toks:
        for l in q_setup(): a(l)
    if "P" in toks: a(f"""
    s_lshr_b32 s26, s2, 3
    s_lshl_b32 s26, s26, 3
    s_add_u32 s26, s26, s{S_W}       ; u
    s_lshl_b32 s27, s26, 13
    v_and_b32 v2, 3, v1
    v_lshlrev_b32 v2, 11, v2
    v_lshrrev_b32 v3, 2, v1
    v_lshl_add_u32 v2, v3, 7, v2
    v_add_u32 v{V_PX}, s27, v2
    v_mul_u32_u24 v2, 43, v1
    v_lshrrev_b32 v2, 8, v2
    v_mul_u32_u24 v3, 6, v2
    v_sub_u32 v3, v1, v3
    s_and_b32 s27, s26, 3
    s_mul_i32 s27, s27, 6
    v_add_u32 v3, s27, v3
    v_lshrrev_b32 v4, 3, v3
    v_and_b32 v3, 7, v3
    v_lshlrev_b32 v3, 7, v3
    v_lshl_add_u32 v3, v4, 11, v3
    s_lshr_b32 s27, s26, 2
    v_lshl_add_u32 v2, v2, 6, s27
    v_mul_u32_u24 v2, 6144, v2
    v_add_u32 v{V_PW}, v2, v3
    """)
    a(f"""
    v_mov_b32 v{V_PD+1}, 0
    s_or_b32 s26, s2, s{S_W}
    s_cmp_lg_u32 s26, 0
    s_cbranch_scc1 Lnononce
    s_memrealtime s[26:27]
    s_mov_b32 s28, s46
    s_and_b32 s29, s47, 0xffff
    s_mov_b32 s30, 256
    s_mov_b32 s31, 0x00020000
    s_waitcnt lgkmcnt(0)
    s_or_b32 s26, s26, 1
    v_mov_b32 v2, s26
    v_mov_b32 v3, s27
    s_mov_b64 exec, 1
    buffer_store_dwordx2 v[2:3], v{V_PD+1}, s[28:31], 0 offen sc1
    s_mov_b64 exec, -1
    Lnononce:
    """)

def pf_batch(s0, n):
    return [f"s_add_u32 s13, s51, {s0}", "s_and_b32 s13, s13, 15", f"s_bfm_b64 exec, {6*n}, 0", f"s_mul_i32 s50, s13, {64*6144}",
            f"buffer_load_dword v{V_PD}, v{V_PW}, s[56:59], s50 offen{NTP}", "s_lshl_b32 s13, s13, 7",
            f"s_bfm_b64 exec, {4*n}, 0",
            f"buffer_load_dword v{V_PD}, v{V_PX}, s[52:55], s13 offen{NTP}", "s_mov_b64 exec, -1"]
V_QW, V_QX = 218, 219
SLOWC = opt("slowc", 3)
def q_setup():
    return [f"s_lshr_b32 s12, s2, 3", "s_lshl_b32 s12, s12, 3", f"s_add_u32 s12, s12, s{S_W}",
            f"v_lshlrev_b32 v{V_QW}, 11, v1", f"v_add_u32 v{V_QW}, {SLOWC*128}, v{V_QW}",
            "v_and_b32 v2, 3, v1", "v_lshlrev_b32 v2, 11, v2", "v_bfe_u32 v3, v1, 2, 1", "v_lshl_add_u32 v2, v3, 10, v2",
            "s_lshl_b32 s13, s12, 13", f"s_add_u32 s13, s13, {SLOWC*128}", f"v_add_u32 v{V_QX}, s13, v2",
            "s_lshl_b32 s13, s51, 6", "s_add_u32 s12, s12, s13"]
def q_batch(i):
    return [f"s_add_u32 s13, s12, {256*i}", "s_and_b32 s13, s13, 1023", "s_mov_b64 exec, 7", "s_mul_i32 s13, s13, 6144",
            f"buffer_load_dword v{V_NON+1}, v{V_QW}, s[56:59], s13 offen", "s_mov_b64 exec, -1"]
def r_batch():
    return ["s_mov_b64 exec, 0xff", f"buffer_load_dword v{V_NON+1}, v{V_QX}, s[52:55], 0 offen", "s_mov_b64 exec, -1"]
def dma_x(stage, q):
    return [f"s_add_u32 m0, s{S_XB}, {(stage % 3)*8192 + q*1024}", f"buffer_load_dwordx4 v{V_XD[q]}, s[4:7], s{S_SOX} offen{NTD} lds"]
def dma_w(step, q):
    return [f"s_add_u32 m0, s{S_WB}, {(step % 5)*12288 + q*1024}", f"buffer_load_dwordx4 v{V_WD[q]}, s[8:11], s{S_SOW} offen{NTD} lds"]
def frag_reads(step):
    p = step & 1; xs = (step >> 1) % 3; ws = step % 5
    X = [f"ds_read_b128 {v(XF[p][tt],4)}, v{V_XR[p]} offset:{xs*8192 + tt*2048}" for tt in range(4)]
    W = [[f"ds_read_b64_tr_b16 {v(WF[p][f]+2*h,2)}, v{V_WR[f&1]} offset:{ws*12288 + (f>>1)*4096 + h*512}" for h in range(2)] for f in range(6)]
    return [X[0]] + W[0] + W[1] + W[2] + [X[1]] + W[3] + W[4] + W[5] + [X[2], X[3]]
def gemm1_mfmas(step):
    p = step & 1; out = []
    if opt("gord", 1):
        order = [(tt, f) for tt in range(4) for f in (range(4) if tt % 2 == 0 else range(3, -1, -1))] + [(tt, f) for tt in range(3, -1, -1) for f in ((4, 5) if tt % 2 else (5, 4))]
    else:
        order = [(tt, f) for tt in range(4) for f in (range(6) if tt % 2 == 0 else range(5, -1, -1))]
    for tt, f in order:
        d = acc(tt, f)
        A, B = (WF[p][f], XF[p][tt]) if f < 4 else (XF[p][tt], WF[p][f])
        out.append(f"v_mfma_f32_16x16x32_bf16 {v(d,4)}, {v(A,4)}, {v(B,4)}, {'0' if step == 0 else v(d,4)}")
    return out

HB = opt('hb', 1)
RD0, DG0, DGS = opt('rd0', 0), opt('dg0', 1), opt('dgs', 10)
def gemm1_main(a, late):
    vm = VmTrack()
    def group(tok):
        if tok == "B": return [["s_barrier"]], []
        if tok[0] == "Q": return [q_batch(int(tok[1:]))], ["pf"]
        if tok[0] == "R": return [r_batch()], ["pf"]
        if tok[0] == "P":
            s0, n = map(int, tok[1:].split("_")); return [pf_batch(s0, n)], ["pf", "pf"]
        if tok[0] == "W":
            st = int(tok[1:]); g = [f"s_add_u32 s{S_SOW}, s14, {st}", f"s_and_b32 s{S_SOW}, s{S_SOW}, 31"]
            for q in range(3):
                m, l = dma_w(st, q); g += [m, f"s_mul_i32 s{S_SOW}, s{S_SOW}, {32*6144}" if q == 0 else "s_nop 0", l]
            return [old_only(g)], [("W", st)] * 3
        if tok == "Y0":
            g = {}
            for role, qs in ((True, range(0, 4)), (False, range(4, 8))):
                g[role] = [f"s_and_b32 s{S_SOX}, s15, 0x780"]
                for q in qs:
                    m, l = dma_x(0, q); g[role] += [m, "s_nop 0", l]
            return [if_vcc(g[True], True) + if_vcc(g[False], False)], [("X", 0)] * 4
        if tok[0] == "X":
            if "h" in tok: S, h = tok[1:].split("h"); S = int(S); qs = range(0, 4) if h == "0" else range(4, 8)
            else: S = int(tok[1:]); qs = range(8)
            g = [f"s_add_u32 s{S_SOX}, s15, {S*128}"]
            for q in qs:
                m, l = dma_x(S, q); g += [m, f"s_and_b32 s{S_SOX}, s{S_SOX}, 0x780" if q == qs[0] else "s_nop 0", l]
            return [old_only(g)], [("X", S)] * len(qs)
    first = True
    for tok in PRO.split():
        g, t = group(tok)
        for x in g:
            for y in x: a(y)
        for y in t: vm.issue(y)
        if tok == "W0":
            gemm1_setup_rest(a)
    if "Y0" in PRO:
        for x in if_vcc(["s_waitcnt vmcnt(0)"], False): a(x)
    a(f"s_waitcnt vmcnt({vm.wait_count({('X',0),('W',0)})})")
    a("s_barrier")
    stamp(a, 1); dbgstamp(a, 1)
    for l in frag_reads(0): a(l)
    for st in range(32):
        bar = (not HB) or st == 0 or st % 2 == 1
        if st == 31:
            a("s_waitcnt vmcnt(0) lgkmcnt(0)")
        elif bar:
            ahead = [st + 1] + ([st + 2] if HB and st % 2 == 1 else [])
            need = {("W", x) for x in ahead} | {("X", x >> 1) for x in ahead}
            for nd in need: assert vm.ops.count(nd) == (3 if nd[0] == "W" else 8) or nd == ("X", 0), (st, nd)
            a(f"s_waitcnt vmcnt({min(63, vm.wait_count(need))}) lgkmcnt(0)")
        else:
            a("s_waitcnt lgkmcnt(0)")
        if bar: a("s_barrier")
        if st % 4 == 0: stamp(a, None, "g")
        if st in (2, 9, 30): jitter(a)
        M = gemm1_mfmas(st)
        if st == 31:
            a.label("Lgemm_end")
            last_step(a, late[31]); break
        R = frag_reads(st + 1) if st + 1 < 32 else []
        toks = list(STEPX.get(st, []))
        if not HB:
            if st + 5 < 32: toks.append(f"W{st+5}")
        elif st >= 1 and st + 4 < 32:
            toks.append(f"W{st+4}")
        if st >= 1 and ((st - 1) >> 1) + 3 < 16: toks.append(f"X{((st-1)>>1)+3}h{0 if st % 2 == 1 else 1}")
        D = []
        for tok in toks:
            g, t = group(tok); D += g
            for y in t: vm.issue(y)
        gaps = [[] for _ in range(24)]
        for i, r in enumerate(R): gaps[i + RD0].append(r)
        for i, d in enumerate(D): gaps[min(23, DG0 + (i * DGS if len(D) <= 3 else (i * (23 - DG0)) // len(D)))] += d
        lt = late.get(st, [])
        assert len(lt) <= 24
        for i, x in enumerate(lt):
            gaps[i].append(x)
            if x.startswith("buffer_"): vm.issue("late")
        for i, m in enumerate(M):
            a(m)
            for x in gaps[i]:
                if "--xnodma" in sys.argv and x.endswith("lds") and st > 3: continue
                if "--xnord" in sys.argv and x.startswith("ds_read") and st > 3: continue
                a(x)

AS = [8, 24, 40, 56]
AO = {'a': 224, 'b': 240}
AQ = {('a',0): 104, ('a',1): 108, ('b',0): 112, ('b',1): 116}
AC = {'a': 120, 'b': 136}
AK = [[152, 156], [160, 164]]
AV = [[168, 172], [176, 180]]
AL = {'a': 184, 'b': 188}
ASEL = 192; AIDX = 196; AADDR = 197; AVO = 198; AWD = 199
AFL = 200
AFA = 202
V_VS, V_VL = 205, 207
AADK, AVK = 204, 206
V_FA = 221
S_CH2 = 22
P_WR = [212, 213, 214, 215]; P_OV = [[216, 217], [218, 219]]; V_FA2 = 220
S_OSO = 64 if not STAMP else 66
def qk1(Y, kb, q, c=None): return f"v_mfma_f32_32x32x16_bf16 {v(Y,16)}, {v(AK[kb][0],4)}, {v(AQ[(q,0)],4)}, {v(AC[q],16) if c is None else c}"
def qk2(Y, kb, q): return f"v_mfma_f32_32x32x16_bf16 {v(Y,16)}, {v(AK[kb][1],4)}, {v(AQ[(q,1)],4)}, {v(Y,16)}"
def pv(Z, h, vb, q): return f"v_smfmac_f32_32x32x32_bf16 {v(AO[q],16)}, {v(AV[vb][h],4)}, {v(Z+8*h,8)}, v{AIDX}"
def sm(Z, h, q): return f"v_smfmac_f32_16x16x64_bf16 {v(AL[q],4)}, {v(ASEL,4)}, {v(Z+8*h,8)}, v{AIDX}"
def srd(d, lo, hi, off, nrec):
    return [f"s_add_u32 s{d}, s{lo}, s{off}\ns_addc_u32 s{d+1}, s{hi}, 0", f"s_and_b32 s{d+1}, s{d+1}, 0xffff", f"s_mov_b32 s{d+2}, {nrec}", f"s_mov_b32 s{d+3}, 0x00020000"]

CODEPF = opt('codepf', 12)
SEL2 = opt('sel2', 0)
def lbroadcast():
    if not SEL2: return []
    return [f"v_mov_b32 v{AL[q]+1}, v{AL[q]}" for q in 'ab'] + ['s_nop 1'] + [f"v_permlane32_swap_b32 v{AL[q]}, v{AL[q]+1}" for q in 'ab']
def late_setup():
    L = {}
    if CODEPF:
        L[CODEPF] = ["s_getpc_b64 s[26:27]\nLpcref:", f"s_and_b32 s28, s{S_W}, 3", "s_lshl_b32 s28, s28, 13", "v_lshlrev_b32 v2, 7, v1", "v_add_u32 v2, s28, v2",
                     "v_min_u32 v2, Lcode_end-Lgemm_end-4, v2", "s_add_u32 s26, s26, Lgemm_end-Lpcref\ns_addc_u32 s27, s27, 0", "v_mov_b32 v3, s27",
                     "v_add_co_u32 v2, s[28:29], s26, v2", "s_nop 1", "v_addc_co_u32 v3, s[28:29], 0, v3, s[28:29]",
                     "\n".join(if_vcc([f"global_load_dword v{V_NON+1}, v[2:3], off"], False))]
    L[18] = [f"v_mov_b32 v{AO['a']+i}, 0" for i in range(24)]
    L19OLD = [f"v_mov_b32 v{AO['a']+24+i}, 0" for i in range(8)] + \
            [f"v_lshlrev_b32 v{AVO}, 4, v1", "v_and_b32 v2, 7, v1", f"v_lshlrev_b32 v{AFA}, 3, v2", f"s_lshr_b32 s26, s{S_W}, 2", "s_lshl_b32 s26, s26, 14",
             f"v_add_u32 v{AADDR}, s26, v{AVO}", f"v_mov_b32 v{AIDX}, 0xdddddddd",
             "v_bfe_u32 v2, v1, 2, 1", "v_mov_b32 v3, 0x3f803f80", "v_cmp_eq_u32 s[28:29], 0, v2", "s_nop 1",
             f"v_cndmask_b32 v{ASEL}, 0, v3, s[28:29]", f"v_cndmask_b32 v{ASEL+1}, 0, v3, s[28:29]", f"v_xor_b32 v{ASEL+2}, v3, v{ASEL}", f"v_xor_b32 v{ASEL+3}, v3, v{ASEL}"]
    L[19] = [f"v_mov_b32 v{AO['a']+24+i}, 0" for i in range(8)] + \
            [f"v_lshlrev_b32 v{AVO}, 4, v1", "v_and_b32 v2, 7, v1", f"v_lshlrev_b32 v{AFA}, 3, v2", f"s_lshr_b32 s26, s{S_W}, 2", "s_lshl_b32 s26, s26, 14",
             f"v_add_u32 v{AADDR}, s26, v{AVO}", f"v_mov_b32 v{AIDX}, 0xdddddddd",
             f"v_and_b32 v2, {15 if SEL2 else 7}, v1", "v_mov_b32 v3, 0x3f803f80", "v_cmp_eq_u32 s[28:29], 0, v2", f"v_cmp_eq_u32 s[30:31], 4, v2",
             f"v_cndmask_b32 v{ASEL}, 0, v3, s[28:29]", f"v_cndmask_b32 v{ASEL+1}, 0, v3, s[28:29]", f"v_cndmask_b32 v{ASEL+2}, 0, v3, s[30:31]", f"v_cndmask_b32 v{ASEL+3}, 0, v3, s[30:31]"] \
            if opt("sel1", 1) else L19OLD
    L[20] = ["v_and_b32 v2, 15, v1", "v_lshrrev_b32 v4, 4, v1", "v_lshlrev_b32 v4, 9, v4", f"v_lshl_add_u32 v{V_VS}, v2, 4, v4",
             "v_bfe_u32 v2, v1, 2, 1", "v_bfe_u32 v3, v1, 3, 2", "v_and_b32 v4, 35, v1", "v_lshl_add_u32 v4, v2, 4, v4", "v_lshl_add_u32 v4, v3, 2, v4",
             f"v_lshlrev_b32 v{AVK}, 4, v4", f"v_sub_u32 v2, v{AADDR}, v{AVO}", f"v_add_u32 v{AADK}, v2, v{AVK}",
             f"s_and_b32 s26, s{S_W}, 2", "s_lshl_b32 s26, s26, 14", f"s_and_b32 s27, s{S_W}, 1", "s_lshl_b32 s27, s27, 13", "s_add_u32 s26, s26, s27",
             f"s_lshr_b32 s27, s{S_W}, 2", "s_lshl_b32 s27, s27, 14", "s_add_u32 s26, s26, s27", f"v_add_u32 v{V_VL}, s26, v{V_VS}"]
    L[21] = ["v_lshrrev_b32 v2, 3, v1", "v_and_b32 v3, 7, v1", "v_lshrrev_b32 v4, 4, v1", "v_lshlrev_b32 v4, 1, v4", "v_xor_b32 v4, v3, v4",
             "v_lshlrev_b32 v4, 4, v4", f"v_lshl_add_u32 v{AWD}, v2, 11, v4",
             f"s_cmp_eq_u32 s{S_B}, 0\ns_cselect_b32 s26, s36, s42\ns_cselect_b32 s27, s37, s43", f"s_lshl_b32 s30, s{S_HP}, 7", f"s_sub_u32 s31, {1024*2048}, s30"] \
            + srd(SRD_WO, 26, 27, 30, "s31") + ["s_mov_b32 s92, s46", "s_and_b32 s93, s47, 0xffff", "s_mov_b32 s94, 256", "s_mov_b32 s95, 0x00020000"]
    if WARMF:
        L[22] = [f"s_lshl_b32 s28, s{S_B}, 4", f"s_add_u32 s28, s28, s{S_HP}", "s_lshl_b32 s28, s28, 10", f"s_add_u32 s30, s28, {F1_OFF}",
                 f"s_lshl_b32 s28, s{S_B}, 3", f"s_add_u32 s28, s28, s{S_TM}", "s_lshl_b32 s28, s28, 11", f"s_add_u32 s31, s28, {F2_OFF}",
                 "s_mov_b32 s76, s48", "s_and_b32 s77, s49, 0xffff", f"s_mov_b32 s78, {34 << 20}", "s_mov_b32 s79, 0x00020000", "v_lshlrev_b32 v2, 7, v1",
                 "\n".join(if_vcc(["s_mov_b64 exec, 0xff", f"buffer_load_dword v{V_NON+1}, v2, s[76:79], s30 offen sc1",
                                   "s_mov_b64 exec, 0xffff", f"buffer_load_dword v{V_NON+1}, v2, s[76:79], s31 offen sc1", "s_mov_b64 exec, -1"], False))]
    if opt("tlb", 0):
        L[17] = [f"s_lshl_b32 s28, s{S_B}, 4", f"s_add_u32 s28, s28, s{S_HP}", "s_lshl_b32 s28, s28, 19", f"s_lshl_b32 s29, s{S_TM}, 15", "s_add_u32 s30, s28, s29",
                 f"s_lshl_b32 s28, s{S_B}, 22", f"s_lshl_b32 s29, s{S_TM}, 19", "s_add_u32 s31, s28, s29", f"s_lshl_b32 s29, s{S_HP}, 11", "s_add_u32 s31, s31, s29", f"s_add_u32 s31, s31, {O_OFF}",
                 "s_mov_b32 s76, s48", "s_and_b32 s77, s49, 0xffff", f"s_mov_b32 s78, {34 << 20}", "s_mov_b32 s79, 0x00020000",
                 "\n".join(if_vcc(["s_mov_b64 exec, 1", f"buffer_load_dword v{V_NON+1}, v{V_PD+1}, s[76:79], s30 offen sc1",
                                   f"buffer_load_dword v{V_NON+1}, v{V_PD+1}, s[76:79], s31 offen sc1", "s_mov_b64 exec, -1"], False))]
    L[27] = [f"v_mov_b32 v{AL['a']+i}, 0" for i in range(8)] + \
            [f"s_lshl_b32 s26, s{S_B}, 5", f"s_lshl_b32 s27, s{S_HP}, 1", "s_add_u32 s26, s26, s27",
             f"s_and_b32 s28, s{S_W}, 3", "s_lshl_b32 s29, s28, 12", "s_lshl_b32 s30, s26, 18", "s_add_u32 s31, s30, s29", "s_sub_u32 s50, 524288, s29"] \
            + srd(SRD_KV, 48, 49, 31, "s50") + [f"s_lshr_b32 s27, s{S_W}, 2", "s_add_u32 s26, s26, s27", "s_lshl_b32 s30, s26, 18"]
    L[28] = [f"buffer_load_dwordx2 {v(V_NON,2)}, v{V_PD+1}, s[92:95], 0 offen sc1",
             f"s_mov_b32 s{S_WOI}, -1", f"s_lshl_b32 s{S_WOB}, s{S_W}, 14", f"s_lshl_b32 s27, s{S_W}, 10", f"s_add_u32 s{S_WOM}, s27, 65536",
             f"s_lshl_b32 s{S_M0}, s{S_W}, 12", f"s_mov_b32 s{S_CIDX}, 16384", f"s_lshl_b32 s23, s{S_TM}, 15", f"s_lshr_b32 s51, s{S_W}, 1", f"s_mov_b32 s{S_EARLY}, 0"]
    L[29] = [f"s_lshl_b32 s27, s{S_TM}, 3", "s_lshl_b32 s28, s28, 1", "s_add_u32 s27, s27, s28", "s_lshl_b32 s29, s27, 12", "s_add_u32 s31, s30, s29"] \
            + srd(SRD_KVS, 48, 49, 31, 8192) + ["s_mov_b32 s50, 4096",
             f"s_lshl_b32 s28, s{S_B}, 22", "s_lshl_b32 s29, s27, 16", "s_add_u32 s31, s28, s29", "s_and_b32 s28, s26, 31", "s_lshl_b32 s28, s28, 10",
             "s_add_u32 s31, s31, s28", f"s_add_u32 s31, s31, {O_OFF}"] + srd(SRD_O, 48, 49, 31, 131072)
    L[30] = [f"s_lshl_b32 s28, s{S_B}, 4", f"s_add_u32 s28, s28, s{S_HP}", "s_lshl_b32 s28, s28, 10", f"s_add_u32 s31, s28, {F1_OFF}"] + srd(SRD_F, 48, 49, 31, 1024) \
            + [f"s_bitcmp0_b32 s{S_W}, 1\ns_cselect_b64 vcc, -1, 0", f"s_mov_b32 s26, {QSCALE}", f"s_mov_b32 s27, {QSCALE}"]
    L[23] = [f"s_lshl_b32 s28, s{S_B}, 3", f"s_add_u32 s28, s28, s{S_TM}", "s_lshl_b32 s28, s28, 11", f"s_add_u32 s30, s28, {F2_OFF}"] + srd(SRD_F2, 48, 49, 30, 2048) \
            + [f"s_lshl_b32 s28, s{S_B}, 22", f"s_lshl_b32 s29, s{S_TM}, 19", "s_add_u32 s30, s28, s29", f"s_lshl_b32 s29, s{S_W}, 16", "s_add_u32 s30, s30, s29",
               f"s_add_u32 s30, s30, {O_OFF}"] + srd(SRD_OL, 48, 49, 30, 65536)
    L[24] = [f"s_lshl_b32 s28, s{S_TM}, 20", f"s_lshl_b32 s29, s{S_W}, 17", "s_add_u32 s30, s28, s29", f"s_lshl_b32 s29, s{S_B}, 11", "s_add_u32 s30, s30, s29",
             f"s_lshl_b32 s29, s{S_HP}, 7", "s_add_u32 s30, s30, s29", f"s_sub_u32 s31, {2048*4096}, s30"] + srd(SRD_OUT, 44, 45, 30, "s31") \
            + [f"s_and_b32 s26, s{S_HP}, 8", "s_lshl_b32 s27, s26, 11", f"v_add_u32 v{P_OV[0][0]}, s27, v{AVO}", f"v_add_u32 v{P_OV[0][1]}, 32768, v{P_OV[0][0]}",
               f"v_xor_b32 v{P_OV[1][0]}, 16384, v{P_OV[0][0]}", f"v_xor_b32 v{P_OV[1][1]}, 16384, v{P_OV[0][1]}",
               "s_lshl_b32 s26, s26, 4", f"s_lshr_b32 s27, s{S_W}, 1", "s_lshl_b32 s27, s27, 9", f"s_add_u32 s{S_FL0}, s26, s27"]
    L[25] = [x for j in range(8) for x in (f"s_add_u32 s26, s{S_HP}, {j}", "s_and_b32 s26, s26, 7", f"s_lshl_b32 s{S_OSO+j}, s26, 11")]
    L[26] = [f"s_and_b32 s26, s{S_W}, 3", "s_lshl_b32 s26, s26, 6", f"s_lshr_b32 s27, s{S_W}, 2", "s_lshl_b32 s27, s27, 5", "s_add_u32 s26, s26, s27",
             f"s_and_b32 s27, s{S_HP}, 8", f"s_add_u32 s27, s27, s{S_HP}", "s_add_u32 s26, s26, s27", "s_lshl_b32 s26, s26, 3", f"v_mov_b32 v{V_FA2}, s26",
             "v_and_b32 v4, 15, v1", "v_lshlrev_b32 v4, 4, v4", "v_bfe_u32 v5, v1, 4, 1", "v_lshl_add_u32 v4, v5, 15, v4", "v_lshrrev_b32 v5, 5, v1", "v_lshl_add_u32 v6, v5, 8, v4"]
    L[30] += ["v_lshrrev_b32 v4, 4, v1", "v_bfe_u32 v2, v1, 2, 2", "v_and_b32 v3, 3, v1", "v_and_b32 v5, 1, v4", "v_lshrrev_b32 v4, 1, v4", "v_lshl_add_u32 v7, v5, 2, v2",
              "v_lshl_add_u32 v4, v4, 4, v7", "v_lshrrev_b32 v7, 1, v7", "v_lshlrev_b32 v7, 5, v7", "v_lshl_add_u32 v7, v3, 3, v7", "v_lshl_add_u32 v7, v4, 7, v7",
              f"v_add_u32 v{P_WR[0]}, 65536, v7\nv_xor_b32 v{P_WR[1]}, 32, v{P_WR[0]}", f"v_xor_b32 v{P_WR[2]}, 64, v{P_WR[0]}\nv_xor_b32 v{P_WR[3]}, 96, v{P_WR[0]}"]
    if opt("tlb", 0):
        L[26] += ["\n".join(if_vcc(["s_mov_b64 exec, 1", f"buffer_load_dword v{V_NON+1}, v{V_PD+1}, s[{SRD_WO}:{SRD_WO+3}], 0 offen",
                                    f"buffer_load_dword v{V_NON+1}, v{V_PD+1}, s[{SRD_OUT}:{SRD_OUT+3}], 0 offen sc1", "s_mov_b64 exec, -1"], False))]
    L[31] = []
    return L

UNITS = [('V',0,0,80), ('V',0,1,84), ('V',1,0,72), ('V',1,1,76), ('K',1,1,88), ('K',1,0,92), ('K',0,0,96), ('K',0,1,100)]
def unit_src(u):
    k, T, h, d = UNITS[u]
    return [(2*T, 4+h), (2*T+1, 4+h)] if k == 'V' else [(2*T+h, 2), (2*T+h, 3)]
def cvt4(regs, d): return [f"v_cvt_pk_bf16_f32 v{d+i}, v{regs[2*i]}, v{regs[2*i+1]}" for i in range(4)]
def unit_cvt(u):
    k, T, h, d = UNITS[u]
    regs = [acc(*x) + i for x in unit_src(u) for i in range(4)]
    w = f"ds_write_b128 v{V_VL}, {v(d,4)} offset:{T*4096 + (2048 if k == 'V' else 0) + h*256}"
    return cvt4(regs, d) + [w]
def kv_store(u):
    k, T, h, d = UNITS[u]
    return f"buffer_store_dwordx4 {v(d,4)}, v{V_VS}, s[{SRD_KVS}:{SRD_KVS+3}], {'0' if T == 0 else 's50'} offen offset:{(2048 if k == 'V' else 0) + h*256}{SC1}"
def q_cvt(tt):
    return [f"v_pk_mul_f32 {v(acc(tt,0)+2*i,2)}, {v(acc(tt,0)+2*i,2)}, s[26:27]" for i in range(4)] + cvt4([acc(tt,0)+i for i in range(8)], AQ[("ab"[tt >> 1], tt & 1)])

NEP = opt('nep', 4)
def last_step(a, sal):
    order = [(3, 0), (3, 1)] + [x for u in range(8) for x in unit_src(u)] + [(tt, f) for tt in range(3) for f in range(2)]
    gaps = [[] for _ in range(24)]
    gaps[10] += q_cvt(3)
    for u in range(6): gaps[12 + 2*u] += unit_cvt(u) + (if_vcc([kv_store(u - 1), kv_store(u)]) if u & 1 and u < NEP else [])
    for i, (tt, f) in enumerate(order):
        d = acc(tt, f)
        A, B = (WF[1][f], XF[1][tt]) if f < 4 else (XF[1][tt], WF[1][f])
        a(f"v_mfma_f32_16x16x32_bf16 {v(d,4)}, {v(A,4)}, {v(B,4)}, {v(d,4)}")
        for x in gaps[i]: a(x)
    for x in unit_cvt(6) + unit_cvt(7) + (if_vcc([kv_store(6), kv_store(7)]) if NEP == 8 else []): a(x)

def transition_ab(a):
    a(f"s_cmp_lt_u32 s{S_W}, 4\ns_setprio 1\ns_cbranch_scc0 Lyng0\ns_setprio 2\nLyng0:")
    a("s_waitcnt lgkmcnt(0)\ns_barrier")
    for j in range(2): a(f"ds_read_b128 {v(AK[0][j],4)}, v{AADK} offset:{1024*j}")
    for j in range(2): a(f"ds_read_b128 {v(AV[0][j],4)}, v{AADDR} offset:{2048+1024*j}")
    rest = list(range(NEP, 8))
    for tt in range(3):
        if rest and (tt < 2 or NEP < 4):
            k = 2 if tt < 2 else len(rest)
            for x in if_vcc([kv_store(u) for u in rest[:k]]): a(x)
            rest = rest[k:]
        for x in q_cvt(tt): a(x)
    assert not rest
    a("s_nop 1")
    for q in "ab":
        for i in range(4): a(f"v_permlane16_swap_b32 v{AQ[(q,0)]+i}, v{AQ[(q,1)]+i}")
    for q in "ab":
        for i in range(4): a(f"v_permlane32_swap_b32 v{AQ[(q,0)]+i}, v{AQ[(q,1)]+i}")
    a("s_waitcnt lgkmcnt(2)")
    a(qk1(AS[0],0,'a',"0")); a(qk2(AS[0],0,'a')); a(qk1(AS[1],0,'b',"0")); a(qk2(AS[1],0,'b'))
    a(f"""
    v_readfirstlane_b32 s{S_NONCE}, v{V_NON}
    v_readfirstlane_b32 s{S_NONCE+1}, v{V_NON+1}
    s_lshl_b32 s26, s{S_TM}, 4
    s_add_u32 s26, s26, s{S_W}
    s_lshl_b32 s28, s26, 3
    s_nop 3
    s_cmp_eq_u32 s{S_NONCE}, 0
    s_cbranch_scc1 Lnonce_spin
    Lnonce_ok:
    v_mov_b32 v{V_FA}, s28
    s_nop 0
    """)
    rowmax16(a, AS[0], 2, 3)
    rowmax16(a, AS[1], 4, 5)
    MOFF = struct.unpack("<I", struct.pack("<f", float(opt("moff", 19))))[0]
    if MOFF: a(f"v_add_f32 v2, {MOFF:#x}, v2\nv_add_f32 v4, {MOFF:#x}, v4")
    for i in range(8): a(f"v_pk_mul_f32 {v(AC['a']+2*i,2)}, v[2:3], -1.0 op_sel_hi:[0,0]")
    a(f"v_pk_mul_f32 {v(AC['b'],2)}, v[4:5], -1.0 op_sel_hi:[0,0]\nv_pk_mul_f32 {v(AC['b']+2,2)}, v[4:5], -1.0 op_sel_hi:[0,0]")
    a(qk1(AS[0],0,'a')); a(qk2(AS[0],0,'a'))
    for i in range(2, 8): a(f"v_pk_mul_f32 {v(AC['b']+2*i,2)}, v[4:5], -1.0 op_sel_hi:[0,0]")
    a("s_nop 4")

def rowmax16(a, S, m, t):
    a(f"v_max3_f32 v{m}, v{S}, v{S+1}, v{S+2}")
    for i in range(3, 15, 2): a(f"v_max3_f32 v{m}, v{m}, v{S+i}, v{S+i+1}")
    a(f"v_max_f32 v{m}, v{m}, v{S+15}")
    a(f"v_mov_b32 v{t}, v{m}\ns_nop 1\nv_permlane32_swap_b32 v{m}, v{t}\ns_nop 0\nv_max_f32 v{m}, v{m}, v{t}")

def attn_half(a, t, q, extra=None, skipz=False):
    hs = (2*t + (q == 'b')) % 4
    oq = 'b' if q == 'a' else 'a'
    X = AS[hs]; Y = AS[(hs+1) % 4]; Z = AS[(hs-1) % 4]
    kb = t % 2 if q == 'a' else (t+1) % 2
    vb = (t-1) % 2 if q == 'a' else t % 2
    nt = (t + 1) % 4
    M = {'Q1': qk1(Y,kb,oq), 'Q2': qk2(Y,kb,oq), 'P1': pv(Z,0,vb,oq), 'S1': sm(Z,0,oq), 'P2': pv(Z,1,vb,oq), 'S2': sm(Z,1,oq)}
    e = 0
    for tok in "Q1 W0 3 S1 L0 2 Q2 3 P1 3 S2 L1 2 P2 W1 3".split():
        if tok in M:
            if not (skipz and tok[0] != 'Q'): a(M[tok])
        elif tok in ('L0', 'L1'):
            j = int(tok[1])
            if q == 'a': a(f"ds_read_b128 {v(AK[(t+1)%2][j],4)}, v{AADK} offset:{nt*4096 + 1024*j}")
            else: a(f"ds_read_b128 {v(AV[(t+1)%2][j],4)}, v{AADDR} offset:{nt*4096 + 2048 + 1024*j}")
        elif tok == 'W0':
            if q == 'b': a("s_waitcnt lgkmcnt(0)")
        elif tok == 'W1':
            if q == 'a': a("s_waitcnt lgkmcnt(1)")
        else:
            for _ in range(int(tok)):
                a(f"v_exp_f32 v{X+e}, v{X+e}"); e += 1
        if extra and tok in extra:
            for x in extra[tok]: a(x)
    assert e == 16

def kv_dma(h): return [f"buffer_load_dwordx4 v{AVO}, s[{SRD_KV}:{SRD_KV+3}], s{S_CH if h == 0 else S_CH2} offen offset:{1024*i}{SC1} lds" for i in range(4)]
S_FSO = 24
def flag_load(srd=None):
    srd = SRD_F if srd is None else srd
    return f"buffer_load_dwordx2 {v(AFL,2)}, v{AFA}, s[{srd}:{srd+3}], s{S_FSO} offen sc1"
S_EARLY = 41
DEPTH = opt("odepth", 5)
OSL = [72, 80, 88, 96, 136, 144, 152, 160, 8, 16, 24, 32, 224, 232, 240, 248]
def oslot(p, tt): return OSL[p % 16] + 4 * tt
def oload_ins(p):
    return [f"buffer_load_dwordx4 {v(oslot(p, tt),4)}, v{P_OV[(p>>3)&1][tt]}, s[{SRD_OL}:{SRD_OL+3}], s{S_OSO + p%8} offen offset:{(p>>4)*1024}{SC1}" for tt in range(2)]
def chunk_scalars():
    return [f"s_add_u32 s{S_CIDX}, s{S_CIDX}, 16384", f"s_xor_b32 s{S_CH}, s{S_CIDX}, s23", f"s_add_u32 s{S_CH2}, s{S_CH}, 262144",
            f"s_bfe_u32 s26, s{S_CH}, 0x1000e", "s_lshl_b32 s26, s26, 1", f"s_add_u32 s{S_FIDX}, s26, s51"]
def line_cur(): return [f"s_lshr_b32 s26, s{S_CH}, 15", f"s_lshl_b32 s{S_FSO}, s26, 7"]
def line_next(): return [f"s_add_u32 s26, s{S_CIDX}, 16384", "s_xor_b32 s26, s26, s23", "s_bfe_u32 s26, s26, 0x3000f", f"s_lshl_b32 s{S_FSO}, s26, 7"]
def mask_test():
    return [f"s_lshr_b32 s26, s{S_MASK}, s{S_FIDX}", "s_andn2_b32 s26, 0x11, s26"]
def flag_cmp(): return f"v_cmp_eq_u64 s[{S_MASK}:{S_MASK+1}], s[{S_NONCE}:{S_NONCE+1}], {v(AFL,2)}"
def spin(a, name, test, lowprio=False, SLEEP=SLEEP):
    if lowprio:
        a(f"""
        {name}:
        s_mov_b32 s{S_SPIN}, {SPIN_LIMIT}
        {name}_l:
        {flag_load()}
        s_waitcnt vmcnt(0)
        {flag_cmp()}
        s_sub_u32 s{S_SPIN}, s{S_SPIN}, 1
        s_cbranch_scc1 {name}_x
        """)
        for x in test: a(x)
        a(f"s_cbranch_scc0 {name}_x\ns_setprio 0\ns_branch {name}_l\n{name}_x:\ns_cbranch_vccz {name}_r\ns_setprio 2\ns_branch {name}_r")
        return
    a(f"""
    {name}:
    s_mov_b32 s{S_SPIN}, {SPIN_LIMIT}
    {name}_l:
    {flag_load()}
    s_waitcnt vmcnt(0)
    {flag_cmp()}
    s_sub_u32 s{S_SPIN}, s{S_SPIN}, 1
    s_cbranch_scc1 {name}_r
    """)
    for x in test: a(x)
    if SLEEP: a(f"s_cbranch_scc0 {name}_r\ns_sleep {SLEEP}\ns_branch {name}_l")
    else: a(f"s_cbranch_scc1 {name}_l\ns_branch {name}_r")
def spin_flags(a, name): spin(a, name, mask_test())
def wo_dma():
    return [f"s_add_u32 s{S_WOI}, s{S_WOI}, 1", f"s_add_u32 s26, s{S_WOI}, s{S_HP}", "s_and_b32 s26, s26, 7",
            f"s_xor_b32 s27, s{S_WOI}, s{S_HP}", "s_and_b32 s27, s27, 8", "s_or_b32 s26, s26, s27", "s_lshl_b32 s26, s26, 1",
            f"s_lshr_b32 s27, s{S_WOI}, 4", "s_add_u32 s26, s26, s27", "s_lshl_b32 s26, s26, 16", f"s_mov_b32 m0, s{S_WOM}",
            f"s_add_u32 s{S_WOS}, s26, s{S_WOB}", f"s_add_u32 s{S_WOM}, s{S_WOM}, 4096",
            f"buffer_load_dwordx4 v{AWD}, s[{SRD_WO}:{SRD_WO+3}], s{S_WOS} offen{NTW} lds"]
TOUCH = "--touch" in sys.argv
WARMF = "--nowarmf" not in sys.argv
def publish(fa=V_FA): return ["s_waitcnt vmcnt(0)", "s_mov_b64 exec, 1", f"buffer_store_dwordx2 {v(V_NON,2)}, v{fa}, s[{SRD_F}:{SRD_F+3}], 0 offen sc1", "s_mov_b64 exec, -1"]
def wo_rows(n):
    o = []
    for _ in range(n): o += wo_dma()
    return o
EARLY = '--noearly' not in sys.argv
XT = opt('xt', 1)
LST = opt("lst", 1)
def tailpf():
    if not opt("codepf2", 2): return []
    return [f"s_cmp_eq_u32 s{S_CNT}, {opt('codepf2', 2)}", "s_cbranch_scc0 Lnopf2", "s_getpc_b64 s[26:27]", "Lpcref2:", f"s_lshl_b32 s28, s{S_W}, 13",
            "v_lshlrev_b32 v2, 7, v1", "v_add_u32 v2, s28, v2", "v_min_u32 v2, Lattn_fallback-Lattn_j-4, v2", "s_add_u32 s26, s26, Lattn_j-Lpcref2", "s_addc_u32 s27, s27, 0",
            "v_mov_b32 v3, s27", "v_add_co_u32 v2, s[28:29], s26, v2", "s_nop 1", "v_addc_co_u32 v3, s[28:29], 0, v3, s[28:29]", "global_load_dword v4, v[2:3], off", "Lnopf2:"]
def attn_chunk(a, kind):
    tog = f"v_xor_b32 v{AADDR}, 32768, v{AADDR}\nv_xor_b32 v{AADK}, 32768, v{AADK}"
    for t in range(4):
        ea, eb = {}, {}
        if kind in ('c0', 'c1'): stamp(a, None, "c")
        if t in (1, 3): jitter(a)
        if kind == 'c1' and t == opt("polt", 1) + 1: pass
        if kind == 'c1' and t == opt("polt", 1):
            for x in old_only(chunk_scalars() + line_cur() + ["s_branch Lspin_c1a", "Lspin_c1a_r:", f"s_mov_b32 m0, s{S_M0}", "s_nop 0"] + kv_dma(0)
                              + [f"s_add_u32 m0, s{S_M0}, 16384", "s_nop 0"] + kv_dma(1)): a(x)
            stamp(a, None, "c")
        if kind == 'c14' and t == XT:
            for x in if_vcc(["s_barrier"], False): a(x)
        if kind == 'c0':
            for k, e in enumerate((ea, eb)):
                j = 2*t + k - LST
                if 0 <= j < 4: e['P1'] = if_vcc([kv_store(2*j), kv_store(2*j + 1)], False)
        if kind == 'c1' and t == 0:
            eb['P2'] = [f"s_and_b32 s26, s{S_W}, 6", "s_cmp_eq_u32 s26, 2", "s_cbranch_scc0 Lpub2"] + publish() + ["Lpub2:"]
        if kind == 'c14' and t == 0:
            ea['Q2'] = old_only([f"s_lshl_b32 s28, s{S_W}, 1", f"s_add_u32 s28, s28, s{S_HP}", "v_lshrrev_b32 v2, 5, v1", "v_add_u32 v2, s28, v2", "v_and_b32 v2, 7, v2",
                                 f"s_and_b32 s28, s{S_HP}, 8", "s_xor_b32 s28, s28, 8", "v_or_b32 v2, s28, v2", "v_lshlrev_b32 v2, 17, v2", "v_and_b32 v3, 31, v1",
                                 "v_lshl_add_u32 v2, v3, 11, v2", "s_mov_b32 s28, 65536", f"buffer_load_dword v3, v2, s[{SRD_WO}:{SRD_WO+3}], s28 offen"])
        if kind == 'c15' and EARLY:
            if t == 2: ea['Q2'] = if_vcc([f"s_mov_b32 s{S_FSO}, s{S_FL0}", flag_load(SRD_F2)], False)
            if t == 3: ea['Q2'] = if_vcc(["s_waitcnt vmcnt(0)", flag_cmp(), "s_nop 0", f"s_cmp_lg_u32 s{S_MASK}, -1", "s_cbranch_scc1 Lnoearly", f"s_mov_b32 s{S_EARLY}, 1"]
                                         + [x for p in range(min(DEPTH, 4)) for x in oload_ins(p)] + ["Lnoearly:"], False)
        if t == 3:
            if kind == 'c0':
                stamp(a); a("s_waitcnt lgkmcnt(0)\ns_barrier"); stamp(a)
                for x in [f"s_cmp_lt_u32 s{S_W}, 4", "s_cselect_b64 vcc, -1, 0", f"s_and_b32 s26, s{S_W}, 6", "s_cmp_eq_u32 s26, 2", "s_cbranch_scc1 Lpub1"] + publish() + ["Lpub1:"]: a(x)
                stamp(a)
                ea['Q1'] = [tog]
            elif kind == 'c14':
                ea['Q1'] = [f"v_add_u32 v{AADDR}, 131072, v{AADDR}\nv_add_u32 v{AADK}, 131072, v{AADK}"]
            elif kind != 'c15':
                stamp(a); a("s_waitcnt vmcnt(0) lgkmcnt(0)"); stamp(a)
                if not ("--xnobar" in sys.argv and kind == 'loop'): a("s_barrier")
                stamp(a)
                if kind in ('c1', 'loop'):
                    nm = "Lspin_" + kind
                    ea = {'Q1': [tog],
                          'Q2': old_only([flag_cmp(), f"s_xor_b32 s{S_M0}, s{S_M0}, 32768"] + chunk_scalars() + [f"s_mov_b32 m0, s{S_M0}"] + mask_test()
                                         + [f"s_cbranch_scc1 {nm}", f"{nm}_r:"] + kv_dma(0)),
                          'P2': old_only([f"s_add_u32 m0, s{S_M0}, 16384", "s_nop 0"] + kv_dma(1) + line_next() + [flag_load()])}
                    if kind == 'loop':
                        eb = {'Q2': old_only([f"s_cmp_gt_u32 s{S_CNT}, 3", "s_cbranch_scc0 Lnowo"] + wo_rows(2) + ["Lnowo:"] + tailpf() + [f"s_cmp_eq_u32 s{S_CNT}, 1", "s_cbranch_scc0 Lno15"]
                                             + chunk_scalars() + [f"s_add_u32 m0, s{S_M0}, 131072"] + mask_test() + ["s_cbranch_scc1 Lspin_15", "Lspin_15_r:"] + kv_dma(0)
                                             + [f"s_add_u32 m0, s{S_M0}, {131072 + 16384}", "s_nop 0"] + kv_dma(1) + ["Lno15:"]),
                              'P2': [f"s_sub_u32 s{S_CNT}, s{S_CNT}, 1", f"s_cmp_lg_u32 s{S_CNT}, 0"]}
                elif kind == 'c13':
                    ea = {'Q1': [tog], 'Q2': old_only([f"s_lshl_b32 s{S_WOM}, s{S_W}, 10", f"s_add_u32 s{S_WOM}, s{S_WOM}, 32768"] + wo_rows(3)), 'P2': old_only(wo_rows(3))}
                    eb = {'Q2': old_only(wo_rows(2))}
        if "--xnoex" in sys.argv and kind == 'loop' and t == 3: ea = {'Q1': [tog]}; eb = {'P2': eb['P2']}
        attn_half(a, t, 'a', ea, skipz=(kind == 'c0' and t == 0)); attn_half(a, t, 'b', eb)

def attention(a):
    attn_chunk(a, 'c0')
    attn_chunk(a, 'c1')
    a(f"s_mov_b32 s{S_CNT}, 11")
    stamp(a, None, "l")
    SPLIT = opt("split", 1)
    def tail():
        stamp(a, None, "l")
        attn_chunk(a, 'c13')
        attn_chunk(a, 'c14')
        attn_chunk(a, 'c15')
    if SPLIT:
        a("s_cbranch_vccz Lattn_y")
        for role in (True, False):
            ROLE[0] = role
            nm = "Lattn_loop" if role else "Lattn_loop_y"
            if not role: a.label("Lattn_y")
            a(".p2align 6")
            a.label(nm)
            attn_chunk(a, 'loop')
            a(f"s_cbranch_scc1 {nm}")
            if SPLIT == 2: tail()
            if role: a("s_branch Lattn_j")
        ROLE[0] = None
        a.label("Lattn_j")
        if SPLIT == 1: tail()
    else:
        a(".p2align 6")
        a.label("Lattn_loop")
        attn_chunk(a, 'loop')
        a("s_cbranch_scc1 Lattn_loop")
        tail()
    a("s_nop 1")
    stamp(a, 4)
    a(pv(AS[3],0,1,'b')); a(sm(AS[3],0,'b')); a(pv(AS[3],1,1,'b')); a(sm(AS[3],1,'b'))
    a(f"""
    s_mov_b32 s26, 0x4e800000        ; 2^30
    s_mov_b32 s27, 65536
    s_nop 5
    """)
    for x in lbroadcast(): a(x)
    a(f"""
    v_cmp_nge_f32 vcc, s26, v{AL['a']}
    v_cmp_nge_f32 s[28:29], s26, v{AL['b']}
    s_nop 0
    s_or_b64 vcc, vcc, s[28:29]
    s_cbranch_vccnz Lattn_fallback
    Lattn_fin:
    """)
    stamp(a, None, "e")
    a(f"""
    v_rcp_f32 v2, v{AL['a']}
    v_rcp_f32 v4, v{AL['b']}
    """)
    for qi, q in enumerate('ab'):
        for u in range(2):
            for i in range(4): a(f"v_pk_mul_f32 {v(AO[q]+8*u+2*i,2)}, {v(AO[q]+8*u+2*i,2)}, {v(2+2*qi,2)} op_sel_hi:[1,0]")
            d = AS[0] + 4*(2*qi+u)
            for x in cvt4([AO[q]+8*u+i for i in range(8)], d): a(x)
            a(f"buffer_store_dwordx4 {v(d,4)}, v6, s[{SRD_O}:{SRD_O+3}], {'0' if qi==0 else 's27'} offen offset:{512*u}{SC1}")

def fallback(a):
    a.label("Lattn_fallback")
    a(f"""
    s_waitcnt vmcnt(0) lgkmcnt(0)
    s_lshl_b32 s26, s{S_B}, 5
    s_lshl_b32 s28, s{S_HP}, 1
    s_add_u32 s26, s26, s28
    s_lshr_b32 s28, s{S_W}, 2
    s_add_u32 s26, s26, s28
    s_lshl_b32 s30, s26, 18
    """)
    make_srd(a, SRD_KV, 48, 49, 30, 262144)
    a(f"""
    s_mov_b32 s{S_SPIN}, {SPIN_LIMIT}
    v_lshrrev_b32 v2, 3, v1
    v_lshl_add_u32 v2, v2, 7, v{AFA}
    Lfb_poll:
    buffer_load_dwordx2 {v(AFL,2)}, v2, s[{SRD_F}:{SRD_F+3}], 0 offen sc1
    s_waitcnt vmcnt(0)
    v_cmp_eq_u64 vcc, s[{S_NONCE}:{S_NONCE+1}], {v(AFL,2)}
    s_sub_u32 s{S_SPIN}, s{S_SPIN}, 1
    s_cbranch_scc1 Lfb_go
    s_cmp_eq_u64 vcc, -1
    s_cbranch_scc0 Lfb_poll
    Lfb_go:
    """)
    for r in list(range(AO['a'], AO['a']+32)) + list(range(AL['a'], AL['a']+8)): a(f"v_mov_b32 v{r}, 0")
    Mr = {'a': AC['a'], 'b': AC['b']}
    a(f"v_mov_b32 v{Mr['a']}, 0xff800000\nv_mov_b32 v{Mr['b']}, 0xff800000\ns_mov_b32 s26, 0")
    a.label("Lfb_loop")
    for j in range(2): a(f"buffer_load_dwordx4 {v(AK[0][j],4)}, v{AVK}, s[{SRD_KV}:{SRD_KV+3}], s26 offen offset:{1024*j} sc1")
    for j in range(2): a(f"buffer_load_dwordx4 {v(AV[0][j],4)}, v{AVO}, s[{SRD_KV}:{SRD_KV+3}], s26 offen offset:{2048+1024*j} sc1")
    a("s_waitcnt vmcnt(0)")
    for q in 'ab':
        S = AS[0]
        a(qk1(S,0,q,"0")); a(qk2(S,0,q)); a("s_nop 15")
        rowmax16(a, S, 2, 3)
        a(f"v_max_f32 v2, v2, v{Mr[q]}\nv_sub_f32 v3, v{Mr[q]}, v2\nv_exp_f32 v3, v3\nv_mov_b32 v{Mr[q]}, v2")
        for i in range(16): a(f"v_sub_f32 v{S+i}, v{S+i}, v2")
        for i in range(16): a(f"v_exp_f32 v{S+i}, v{S+i}")
        for i in range(16): a(f"v_mul_f32 v{AO[q]+i}, v3, v{AO[q]+i}")
        for i in range(4): a(f"v_mul_f32 v{AL[q]+i}, v3, v{AL[q]+i}")
        a("s_nop 1")
        a(pv(S,0,0,q)); a(sm(S,0,q)); a(pv(S,1,0,q)); a(sm(S,1,q))
        a("s_nop 15")
    a("s_add_u32 s26, s26, 4096\ns_cmp_lt_u32 s26, 262144\ns_cbranch_scc1 Lfb_loop")
    for x in lbroadcast(): a(x)
    a("s_branch Lattn_fin")

PACC = 40
PWF = [104, 120]
POF = 168
POLLS = []
def proj_body(a, old):
    vm = VmTrack(); fpos = {}
    R = "o" if old else "y"
    def wreads(p):
        off = (p if p < 16 else p - 16 + 8 if p < 24 else (p - 24) % 4) * 4096
        return [f"ds_read_b64_tr_b16 {v(PWF[p&1]+4*ct+2*h,2)}, v{P_WR[ct]} offset:{off + h*1024}" for ct in range(4) for h in range(2)]
    def check(g, hi=False):
        nm = f"Lpoll{R}{g}"; POLLS.append((nm, hi))
        return [f"s_cmp_lg_u32 s{S_MASK}, -1", f"s_cbranch_scc1 {nm}", f"{nm}_r:"]
    def setline(g): return f"s_xor_b32 s{S_FSO}, s{S_FL0}, {(g & 1) * 128 + (g >> 1) * 256}"
    def force(g, hi=False): return [f"s_mov_b32 s{S_MASK}, 0", setline(g)] + check(g, hi)
    def oload(p):
        vm.issue(("O", p)); vm.issue(("O", p))
        return oload_ins(p)
    PX, YX3 = opt("px", 10), opt("yx3", 5)
    if old:
        a("s_waitcnt vmcnt(4)\ns_barrier")
        stamp(a, None, "e")
        for x in publish(V_FA2): a(x)
        stamp(a, 5)
        for x in [f"s_lshl_b32 s{S_WOM}, s{S_W}, 10"] + wo_rows(4) + [f"s_add_u32 s{S_WOM}, s{S_WOM}, {131072 - 16384}"] + wo_rows(4) + ["s_waitcnt vmcnt(8)"]: a(x)
        OPRE = opt("opre", 6)
        if opt("olow", 1): a("s_setprio 0")
        stamp(a, None, "o")
        for p in range(OPRE):
            if p % 8 == 0:
                for x in force(p // 8, not opt("olow", 1)): a(x)
                stamp(a, None, "o")
            for x in oload(p): a(x)
        a("s_setprio 0")
        nxt = OPRE
    else:
        stamp(a, None, "e")
        YPUB = opt("ypub", 2)
        if YPUB < 0:
            for x in publish(V_FA2): a(x)
        a(f"s_setprio {opt('yprio', 1)}")
        stamp(a, 5)
        a(f"s_cmp_eq_u32 s{S_EARLY}, 1\ns_cbranch_scc1 Learly")
        for x in force(0): a(x)
        for p in range(4):
            for x in oload(p): a(x)
        a.label("Learly")
        for _ in range(1 + (opt("opre", 6) + 7) // 8): stamp(a, None, "o")
        spos = len(vm.ops)
        for p in range(4, DEPTH):
            for x in oload(p): a(x)
        nxt = DEPTH
    for x in wreads(0): a(x)
    stamp(a, 6)
    for p in range(32):
        if p + 1 == 16:
            for ct in range(4): a(f"v_add_u32 v{P_WR[ct]}, {-65536 & 0xffffffff}, v{P_WR[ct]}")
        if p + 1 == 28:
            for ct in range(4): a(f"v_add_u32 v{P_WR[ct]}, 131072, v{P_WR[ct]}")
        wc = vm.wait_count({('O', p)})
        if not old and YPUB >= 0 and p < 4:
            a(f"s_cmp_eq_u32 s{S_EARLY}, 1\ns_cbranch_scc1 Lw{p}a\ns_waitcnt vmcnt({wc})\nLw{p}a:\ns_waitcnt vmcnt({wc + 4}) lgkmcnt(0)")
        else:
            a(f"s_waitcnt vmcnt({wc}) lgkmcnt(0)")
        if not old and p == YPUB:
            for x in [f"s_waitcnt vmcnt({len(vm.ops) - spos})"] + publish(V_FA2)[1:]: a(x)
        gaps = [[] for _ in range(8)]
        for i, r in enumerate(wreads(p + 1) if p + 1 < 32 else []): gaps[i // 2].append(r)
        if not old and p == YX3: gaps[0].append("s_barrier")
        todo = []
        if old:
            todo = list(range(nxt, min(32 if p >= PX else 16, nxt + 2, 16 + p, p + 1 + opt("odold", 6))))
        elif nxt < 32: todo = [nxt]
        gi = 4
        for n in todo:
            if n % 8 == 0:
                g = n // 8
                if old and g == 2: gaps[gi] += ["s_barrier"] + force(g)
                elif g in fpos: gaps[gi] += [f"s_waitcnt vmcnt({len(vm.ops) - fpos[g]})", flag_cmp(), "s_nop 0"] + check(g)
                else: gaps[gi] += force(g)
            o = oload(n)
            gaps[gi].append(o[0]); gaps[gi + 1].append(o[1]); gi += 2
            if (n + 3) % 8 == 0 and n + 3 < 32:
                g = (n + 3) // 8
                gaps[gi - 1] += [setline(g), flag_load()]
                fpos[g] = len(vm.ops)
            nxt = n + 1
        n = 0
        for tt in range(2):
            for ct in (range(4) if tt == 0 else range(3, -1, -1)):
                d = PACC + (tt*4+ct)*4
                a(f"v_mfma_f32_16x16x32_bf16 {v(d,4)}, {v(PWF[p&1]+4*ct,4)}, {v(oslot(p, tt),4)}, {'0' if p==0 else v(d,4)}")
                for x in gaps[n]: a(x)
                n += 1
        if p % 4 == 3: stamp(a, None, "p")
        if p in (1, 9, 20): jitter(a)
    assert nxt == 32

def proj(a):
    a(f"s_mov_b64 s[{SRD_F}:{SRD_F+1}], s[{SRD_F2}:{SRD_F2+1}]\ns_mov_b32 s{SRD_F+2}, 2048")
    a(f"s_cmp_lt_u32 s{S_W}, 4\ns_cselect_b64 vcc, -1, 0\ns_cbranch_scc0 Lproj_y")
    proj_body(a, True)
    a("s_branch Lproj_e\nLproj_y:")
    proj_body(a, False)
    a.label("Lproj_e")
    a(f"""
    v_lshrrev_b32 v4, 4, v1
    v_and_b32 v2, 15, v1
    v_lshlrev_b32 v2, 12, v2
    v_and_b32 v3, 1, v4
    v_lshl_add_u32 v2, v3, 5, v2
    v_lshrrev_b32 v3, 1, v4
    v_lshl_add_u32 v2, v3, 4, v2
    s_mov_b32 s26, 65536
    s_nop 3
    """)
    for tt in range(2):
        for pr in range(2):
            d = POF + (tt*2+pr)*4
            for x in range(2):
                s0 = PACC + (tt*4+2*pr+x)*4
                a(f"v_cvt_pk_bf16_f32 v{d+2*x}, v{s0}, v{s0+1}\nv_cvt_pk_bf16_f32 v{d+2*x+1}, v{s0+2}, v{s0+3}")
            a(f"s_nop 1\nv_permlane16_swap_b32 v{d}, v{d+2}\nv_permlane16_swap_b32 v{d+1}, v{d+3}")
            a(f"buffer_store_dwordx4 {v(d,4)}, v2, s[{SRD_OUT}:{SRD_OUT+3}], {'0' if tt==0 else 's26'} offen offset:{64*pr}{' ' + opt('ofl', 'nt').replace('_', ' ') if opt('ofl', 'nt') else ''}")

def build():
    a = Asm()
    decode(a, "Lend")
    gemm1_setup_dma(a)
    jitter(a)
    stamp(a, 0); dbgstamp(a, 0)
    gemm1_main(a, late_setup())
    stamp(a, 2); dbgstamp(a, 2)
    transition_ab(a)
    stamp(a, 3); jitter(a)
    attention(a)
    jitter(a)
    dbgstamp(a, 3)
    proj(a)
    stamp(a, 7); dbgstamp(a, 4); dbgflush(a)
    stamp_flush(a, 8)
    a.label("Lend")
    a("s_endpgm")
    for nm in ("Lspin_c1a", "Lspin_c1", "Lspin_loop", "Lspin_15"): spin_flags(a, nm)
    a(f"""
    Lnonce_spin:
    s_mov_b32 s{S_SPIN}, {SPIN_LIMIT}
    Lnonce_l:
    buffer_load_dwordx2 {v(V_NON,2)}, v{V_PD+1}, s[92:95], 0 offen sc1
    s_waitcnt vmcnt(0)
    v_readfirstlane_b32 s{S_NONCE}, v{V_NON}
    v_readfirstlane_b32 s{S_NONCE+1}, v{V_NON+1}
    s_sub_u32 s{S_SPIN}, s{S_SPIN}, 1
    s_cbranch_scc1 Lnonce_ok
    s_cmp_eq_u32 s{S_NONCE}, 0
    s_cbranch_scc1 Lnonce_l
    s_branch Lnonce_ok
    """)
    for nm, hi in POLLS: spin(a, nm, [f"s_cmp_lg_u32 s{S_MASK}, -1"], lowprio=hi, SLEEP=opt("sleep2", 0) if nm[-1] in "13" else SLEEP)
    fallback(a)
    a.label("Lcode_end")
    return a.text()

def main(out):
    P = "concat_heads__mha_block__softmax_full_mha__prompt_kernel"
    txt = f"""; Kernarg layout (72 bytes, pointers only, base s[0:1]):
;   0 A_x  8 A_wqkv  16 A_wo  24 B_x  32 B_wqkv  40 B_wo  48 d_out  56 d_debug  64 d_ws
; One fused kernel, 256 workgroups (one per CU) x 8 waves; workgroup = (block b, 256 tokens tm, head pair hp).
;   phase A  QKV projection 256x192x1024 (LDS-DMA ring, 16x16x32 MFMA); Q stays in registers, K/V go to LDS and to d_ws
;   phase B  softmax(QK^T)V for 2 heads x 256 queries. exp2 results feed v_smfmac directly (high halves = bf16).
;            Shift = max of the first key tile (carried in the MFMA C operand); a run-time check of the row sums
;            falls back to an exact running-max loop when that shift could overflow.
;   phase C  output projection 256x64x1024, O fragments from d_ws
; Hand-offs between workgroups: write-through stores, then a per-wave flag holding a per-launch nonce (kept in d_debug).
; @launch grid=(256,1,1) block=(512,1,1) lds=163840
.amdgcn_target "amdgcn-amd-amdhsa--gfx950"
.text
""" + kernel_header(P) + build() + '.section .rodata,"a"\n' + kernel_desc(P, 256, sgpr=102 if DBG or JIT else 96)
    open(out, "w").write(txt)

if __name__ == "__main__":
    args = [x for x in sys.argv[1:] if not x.startswith("--")]
    main(args[0] if args else "concat_heads__mha_block__softmax_full_mha__prompt.s")
```

```python
import sys, struct, math
from dsl import *

def opt(name, default):
    for x in sys.argv:
        if x.startswith(f"--{name}="): return type(default)(x[len(name) + 3:])
    return default
STAMP = "--stamp" in sys.argv
ROT = opt("rot", 2)
PRO = opt("pro", "X0,W0,Q0,B,W1,X1,W2").replace(",", " ")
STEPX = {}
for it in opt("stepx", "0:W3.X2.Q1;1:W4;8:Q2;16:Q3").split(";"):
    if it:
        k, val = it.split(":"); STEPX[int(k)] = val.split(".")
SC1 = "" if "--nosc1" in sys.argv else " sc1"
NTD = " nt" if "d" in opt("nt", "") else (" " + opt("dfl", "").replace("_", " ") if opt("dfl", "") else "")
NTP = " nt" if "p" in opt("nt", "") else ""
NTW = " nt" if "w" in opt("nt", "") else ""
ROTB = opt("rotb", -1)

KV_OFF = 0
O_OFF = 24 << 20
F1_OFF = 32 << 20
F2_OFF = 33 << 20
SLEEP = opt('sleep', 0)
ST_OFF = 64 << 20
QSCALE = struct.unpack("<I", struct.pack("<f", math.log2(math.e) / math.sqrt(32.0)))[0]
SPIN_LIMIT = 1 << 17

S_W, S_B, S_TM, S_HP = 16, 17, 18, 19
S_SOX, S_SOW, S_XB, S_WB = 20, 21, 22, 23
S_EXW = 24
S_NONCE = 80
S_MASK = 82
S_CIDX, S_M0, S_CNT, S_CH, S_WOS, S_WOM, S_FIDX, S_SPIN = 84, 85, 86, 87, 88, 89, 90, 91
S_WOI, S_WOB = 20, 21
PRIO = opt('prio', 1)
SRD_KV, SRD_F, SRD_WO, SRD_O = 4, 8, 52, 12
SRD_KVS = 56
SRD_OUT, SRD_OL, SRD_F2 = 36, 32, 76
S_FL0 = 40

def make_srd(a, d, lo, hi, off_sgpr, nrec):
    a(f"s_add_u32 s{d}, s{lo}, s{off_sgpr}\ns_addc_u32 s{d+1}, s{hi}, 0\ns_and_b32 s{d+1}, s{d+1}, 0xffff")
    a(f"s_mov_b32 s{d+2}, {nrec}\ns_mov_b32 s{d+3}, 0x00020000")

NST = [0]
STG = opt("stg", "m")
def stamp(a, i=None, g="m"):
    if not STAMP: return
    if i is None: g = "a" if g == "m" else g
    if g not in STG: return
    a("s_memrealtime s[60:61]\ns_memtime s[62:63]\ns_waitcnt lgkmcnt(0)\ns_lshl_b64 exec, 1, s64\nv_mov_b32 v0, s60\nv_mov_b32 v203, s62\ns_mov_b64 exec, -1\ns_add_u32 s64, s64, 1")
DBG = "--dbg" in sys.argv
def dbgstamp(a, i, inv=False):
    if DBG: a(f"s_memrealtime s[60:61]\ns_waitcnt lgkmcnt(0)\ns_mov_b32 s{96+i}, s60")
def dbgflush(a):
    if not DBG: return
    a(f"s_cmp_lg_u32 s{S_W}, 0\ns_cbranch_scc1 Ldbg_e\ns_mov_b64 exec, 1\nv_mov_b32 v4, 0")
    for i in range(5):
        a(f"s_sub_u32 s27, s{97+i}, s{96+i}\nv_mov_b32 v{5+2*i}, s27\nbuffer_atomic_umax v{5+2*i}, v4, s[92:95], 0 offen offset:{8+4*i}\nv_mov_b32 v{6+2*i}, s27\nbuffer_atomic_add v{6+2*i}, v4, s[92:95], 0 offen offset:{32+4*i}")
    a("Ldbg_e:")
JIT = opt("jit", 0)
JC = [0]
def jitter(a):
    if not JIT: return
    JC[0] += 1
    k = JC[0]
    a(f"""
    s_mul_i32 s96, s2, {37 + 2 * k}
    s_mul_i32 s97, s{S_W}, {JIT * 11 + k}
    s_add_u32 s96, s96, s97
    s_lshr_b32 s97, s96, 3
    s_xor_b32 s96, s96, s97
    s_and_b32 s96, s96, 31
    Ljit{k}:
    s_cmp_eq_u32 s96, 0
    s_cbranch_scc1 Ljit{k}e
    s_sleep {JIT}
    s_sub_u32 s96, s96, 1
    s_branch Ljit{k}
    Ljit{k}e:
    """)
def stamp_flush(a, n):
    if not STAMP: return
    a(f"""
    s_lshl_b32 s26, s2, 3
    s_add_u32 s26, s26, s{S_W}
    s_lshl_b32 s26, s26, 9
    s_add_u32 s30, s26, {ST_OFF}
    """)
    make_srd(a, 56, 48, 49, 30, 512)
    a("v_lshlrev_b32 v2, 3, v1\nv_mov_b32 v4, v0\nv_mov_b32 v5, v203\nbuffer_store_dwordx2 v[4:5], v2, s[56:59], 0 offen")

ACC = 8
def acc(tt, f): return ACC + (tt * 6 + f) * 4
XF = [[104 + 4*i for i in range(4)], [144 + 4*i for i in range(4)]]
WF = [[120 + 4*i for i in range(6)], [160 + 4*i for i in range(6)]]
V_XR = [208, 209]; V_WR = [210, 211]; V_XD = list(range(184, 192)); V_WD = [212, 213, 214]
V_PX, V_PW, V_PD = 218, 219, 220
V_NON = 222
LDS_W = 98304

EPF = opt("epf", 3)
def entry_pf():
    if EPF == 0: return ""
    if EPF == 4:
        return f"""
        s_getpc_b64 s[26:27]
        Lpcref0:
        v_lshlrev_b32 v2, 7, v0
        v_min_u32 v2, Lcode_end-Lpcref0-4, v2
        v_mov_b32 v3, 0
        v_lshl_add_u64 v[2:3], v[2:3], 0, s[26:27]
        global_load_dword v{V_NON+1}, v[2:3], off
        """
    if EPF == 1:
        addr = """
        v_subrev_u32 v2, 448, v0
        v_cmp_gt_u32 vcc, 48, v2
        s_and_saveexec_b64 s[30:31], vcc
        s_cbranch_execz Lepf_e
        s_lshr_b32 s28, s2, 3
        s_lshl_b32 s28, s28, 4
        v_cmp_le_u32 vcc, 32, v2
        v_mov_b32 v3, s28
        s_nop 0
        v_cndmask_b32 v3, 0, v3, vcc
        v_add_u32 v2, v2, v3
        """
    else:
        addr = f"""
        v_xor_b32 v2, 256, v0
        v_cmp_gt_u32 vcc, {256 if EPF == 2 else 512}, v2
        s_and_saveexec_b64 s[30:31], vcc
        s_cbranch_execz Lepf_e
        """
    return addr + f"""
        s_getpc_b64 s[26:27]
        Lpcref0:
        v_lshlrev_b32 v2, 7, v2
        v_min_u32 v2, Lcode_end-Lpcref0-4, v2
        v_mov_b32 v3, s27
        v_add_co_u32 v2, vcc, s26, v2
        s_nop 1
        v_addc_co_u32 v3, vcc, 0, v3, vcc
        global_load_dword v{V_NON+1}, v[2:3], off
        Lepf_e:
        s_mov_b64 exec, -1
        """
def decode(a, end):
    a(f"""
    s_cmp_ge_u32 s2, 256
    s_cbranch_scc1 {end}
    {"s_memrealtime s[96:97]" if DBG else ""}
    s_load_dwordx16 s[32:47], s[0:1], 0
    {entry_pf()}
    s_load_dwordx2 s[48:49], s[0:1], 64
    v_lshrrev_b32 v1, 6, v0
    s_and_b32 s26, s2, 7
    s_lshr_b32 s27, s2, 3
    v_readfirstlane_b32 s{S_W}, v1
    s_lshr_b32 s{S_B}, s26, 2
    s_and_b32 s28, s26, 1
    s_lshl_b32 s28, s28, 2
    s_and_b32 s29, s27, 3
    s_add_u32 s{S_TM}, s28, s29
    s_bfe_u32 s28, s26, 0x10001
    s_lshl_b32 s28, s28, 3
    s_lshr_b32 s29, s27, 2
    s_add_u32 s{S_HP}, s28, s29
    v_and_b32 v1, 63, v0
    s_mul_i32 s51, {'s26' if ROTB < 0 else 's17'}, {ROT if ROTB < 0 else ROTB}
    s_and_b32 s51, s51, 15
    s_lshl_b32 s14, s51, 1
    s_lshl_b32 s15, s51, 7
    s_mov_b32 s64, 0
    """)

NLAB = [0]
ROLE = [None]
def if_vcc(ins, want=True):
    if ROLE[0] is not None: return list(ins) if ROLE[0] == want else []
    NLAB[0] += 1
    return [f"s_cbranch_vcc{'z' if want else 'nz'} Lskip{NLAB[0]}"] + ins + [f"Lskip{NLAB[0]}:"]
old_only = if_vcc

def gemm1_setup_dma(a):
    a(f"""
    s_cmp_lt_u32 s{S_W}, 4
    s_cselect_b64 vcc, -1, 0
    s_cbranch_scc0 Lsetup1
    s_setprio 1
    Lsetup1:
    s_and_b32 s30, s{S_W}, 3
    s_mul_i32 s{S_XB}, s30, 24576
    s_mul_i32 s26, s30, 3072
    s_add_u32 s{S_WB}, s26, {LDS_W}
    v_lshrrev_b32 v2, 3, v1
    s_lshl_b32 s26, s30, 6
    v_add_u32 v7, s26, v2
    v_and_b32 v3, 7, v1
    v_lshrrev_b32 v4, 4, v1
    v_xor_b32 v5, v3, v4
    v_lshlrev_b32 v5, 4, v5
    v_lshl_add_u32 v{V_XD[0]}, v7, 11, v5
    v_xor_b32 v5, 64, v5
    v_lshl_add_u32 v{V_XD[1]}, v7, 11, v5
    v_add_u32 v{V_XD[1]}, {8*2048}, v{V_XD[1]}
    """)
    for q in range(2, 8): a(f"v_add_u32 v{V_XD[q]}, {16*2048}, v{V_XD[q-2]}")
    a(f"s_mul_i32 s26, s30, 24")
    for q in range(3):
        a(f"""
        v_add_u32 v7, s26, v2            ; R
        s_add_u32 s26, s26, 8
        v_lshrrev_b32 v4, 5, v7          ; sec
        v_and_b32 v7, 31, v7             ; k
        v_and_b32 v5, 2, v7
        v_bfe_u32 v6, v7, 3, 1
        v_lshl_or_b32 v5, v6, 2, v5      ; swz*2
        v_xor_b32 v5, v3, v5             ; chunk
        v_lshlrev_b32 v5, 4, v5
        v_lshl_add_u32 v5, v4, 11, v5
        v_mul_u32_u24 v7, 6144, v7
        v_add_u32 v{V_WD[q]}, v7, v5
        """)
    a(f"""
    s_waitcnt lgkmcnt(0)
    s_cmp_eq_u32 s{S_B}, 0
    s_cselect_b32 s26, s32, s38
    s_cselect_b32 s27, s33, s39
    s_cselect_b32 s28, s34, s40
    s_cselect_b32 s29, s35, s41
    s_lshl_b32 s30, s{S_TM}, 19
    """)
    make_srd(a, 4, 26, 27, 30, 524288)
    a(f"s_lshl_b32 s30, s{S_HP}, 7\ns_sub_u32 s31, {1024*6144}, s30")
    make_srd(a, 8, 28, 29, 30, "s31")

def gemm1_setup_rest(a):
    a(f"""
    s_and_b32 s30, s{S_W}, 3
    s_mul_i32 s30, s30, 24576
    v_and_b32 v2, 15, v1             ; c
    v_lshrrev_b32 v4, 4, v1          ; G
    v_lshrrev_b32 v5, 1, v2
    v_xor_b32 v5, v4, v5
    v_lshlrev_b32 v5, 4, v5
    v_lshl_add_u32 v5, v2, 7, v5
    v_add_u32 v{V_XR[0]}, s30, v5
    v_xor_b32 v{V_XR[1]}, 64, v{V_XR[0]}
    v_bfe_u32 v2, v1, 2, 2           ; r
    v_and_b32 v3, 3, v1              ; c4
    v_lshl_add_u32 v5, v4, 3, v2     ; k = 8G + r
    v_lshrrev_b32 v6, 1, v2
    v_and_b32 v7, 1, v4
    v_lshl_or_b32 v6, v7, 1, v6      ; swz
    s_lshr_b32 s30, s{S_W}, 2
    s_lshl_b32 s30, s30, 1
    v_xor_b32 v6, s30, v6
    v_lshlrev_b32 v6, 5, v6
    v_lshl_add_u32 v6, v3, 3, v6
    v_lshl_add_u32 v6, v5, 7, v6
    v_add_u32 v{V_WR[0]}, {LDS_W}, v6
    v_xor_b32 v{V_WR[1]}, 32, v{V_WR[0]}
    """)
    a(f"s_lshr_b32 s30, s{S_TM}, 2\ns_lshl_b32 s30, s30, 21")
    make_srd(a, 52, 26, 27, 30, 2 << 20)
    a(f"s_lshr_b32 s30, s{S_HP}, 3\ns_lshl_b32 s30, s30, 10\ns_sub_u32 s31, {1024*6144}, s30")
    make_srd(a, 56, 28, 29, 30, "s31")
    toks = PRO + " ".join(" ".join(x) for x in STEPX.values())
    if "Q" in toks or "R" in toks:
        for l in q_setup(): a(l)
    if "P" in toks: a(f"""
    s_lshr_b32 s26, s2, 3
    s_lshl_b32 s26, s26, 3
    s_add_u32 s26, s26, s{S_W}       ; u
    s_lshl_b32 s27, s26, 13
    v_and_b32 v2, 3, v1
    v_lshlrev_b32 v2, 11, v2
    v_lshrrev_b32 v3, 2, v1
    v_lshl_add_u32 v2, v3, 7, v2
    v_add_u32 v{V_PX}, s27, v2
    v_mul_u32_u24 v2, 43, v1
    v_lshrrev_b32 v2, 8, v2
    v_mul_u32_u24 v3, 6, v2
    v_sub_u32 v3, v1, v3
    s_and_b32 s27, s26, 3
    s_mul_i32 s27, s27, 6
    v_add_u32 v3, s27, v3
    v_lshrrev_b32 v4, 3, v3
    v_and_b32 v3, 7, v3
    v_lshlrev_b32 v3, 7, v3
    v_lshl_add_u32 v3, v4, 11, v3
    s_lshr_b32 s27, s26, 2
    v_lshl_add_u32 v2, v2, 6, s27
    v_mul_u32_u24 v2, 6144, v2
    v_add_u32 v{V_PW}, v2, v3
    """)
    a(f"""
    v_mov_b32 v{V_PD+1}, 0
    s_or_b32 s26, s2, s{S_W}
    s_cmp_lg_u32 s26, 0
    s_cbranch_scc1 Lnononce
    s_memrealtime s[26:27]
    s_mov_b32 s28, s46
    s_and_b32 s29, s47, 0xffff
    s_mov_b32 s30, 256
    s_mov_b32 s31, 0x00020000
    s_waitcnt lgkmcnt(0)
    s_or_b32 s26, s26, 1
    v_mov_b32 v2, s26
    v_mov_b32 v3, s27
    s_mov_b64 exec, 1
    buffer_store_dwordx2 v[2:3], v{V_PD+1}, s[28:31], 0 offen sc1
    s_mov_b64 exec, -1
    Lnononce:
    """)

def pf_batch(s0, n):
    return [f"s_add_u32 s13, s51, {s0}", "s_and_b32 s13, s13, 15", f"s_bfm_b64 exec, {6*n}, 0", f"s_mul_i32 s50, s13, {64*6144}",
            f"buffer_load_dword v{V_PD}, v{V_PW}, s[56:59], s50 offen{NTP}", "s_lshl_b32 s13, s13, 7",
            f"s_bfm_b64 exec, {4*n}, 0",
            f"buffer_load_dword v{V_PD}, v{V_PX}, s[52:55], s13 offen{NTP}", "s_mov_b64 exec, -1"]
V_QW, V_QX = 218, 219
SLOWC = opt("slowc", 3)
def q_setup():
    return [f"s_lshr_b32 s12, s2, 3", "s_lshl_b32 s12, s12, 3", f"s_add_u32 s12, s12, s{S_W}",
            f"v_lshlrev_b32 v{V_QW}, 11, v1", f"v_add_u32 v{V_QW}, {SLOWC*128}, v{V_QW}",
            "v_and_b32 v2, 3, v1", "v_lshlrev_b32 v2, 11, v2", "v_bfe_u32 v3, v1, 2, 1", "v_lshl_add_u32 v2, v3, 10, v2",
            "s_lshl_b32 s13, s12, 13", f"s_add_u32 s13, s13, {SLOWC*128}", f"v_add_u32 v{V_QX}, s13, v2",
            "s_lshl_b32 s13, s51, 6", "s_add_u32 s12, s12, s13"]
def q_batch(i):
    return [f"s_add_u32 s13, s12, {256*i}", "s_and_b32 s13, s13, 1023", "s_mov_b64 exec, 7", "s_mul_i32 s13, s13, 6144",
            f"buffer_load_dword v{V_NON+1}, v{V_QW}, s[56:59], s13 offen", "s_mov_b64 exec, -1"]
def r_batch():
    return ["s_mov_b64 exec, 0xff", f"buffer_load_dword v{V_NON+1}, v{V_QX}, s[52:55], 0 offen", "s_mov_b64 exec, -1"]
def dma_x(stage, q):
    return [f"s_add_u32 m0, s{S_XB}, {(stage % 3)*8192 + q*1024}", f"buffer_load_dwordx4 v{V_XD[q]}, s[4:7], s{S_SOX} offen{NTD} lds"]
def dma_w(step, q):
    return [f"s_add_u32 m0, s{S_WB}, {(step % 5)*12288 + q*1024}", f"buffer_load_dwordx4 v{V_WD[q]}, s[8:11], s{S_SOW} offen{NTD} lds"]
def frag_reads(step):
    p = step & 1; xs = (step >> 1) % 3; ws = step % 5
    X = [f"ds_read_b128 {v(XF[p][tt],4)}, v{V_XR[p]} offset:{xs*8192 + tt*2048}" for tt in range(4)]
    W = [[f"ds_read_b64_tr_b16 {v(WF[p][f]+2*h,2)}, v{V_WR[f&1]} offset:{ws*12288 + (f>>1)*4096 + h*512}" for h in range(2)] for f in range(6)]
    return [X[0]] + W[0] + W[1] + W[2] + [X[1]] + W[3] + W[4] + W[5] + [X[2], X[3]]
def gemm1_mfmas(step):
    p = step & 1; out = []
    if opt("gord", 1):
        order = [(tt, f) for tt in range(4) for f in (range(4) if tt % 2 == 0 else range(3, -1, -1))] + [(tt, f) for tt in range(3, -1, -1) for f in ((4, 5) if tt % 2 else (5, 4))]
    else:
        order = [(tt, f) for tt in range(4) for f in (range(6) if tt % 2 == 0 else range(5, -1, -1))]
    for tt, f in order:
        d = acc(tt, f)
        A, B = (WF[p][f], XF[p][tt]) if f < 4 else (XF[p][tt], WF[p][f])
        out.append(f"v_mfma_f32_16x16x32_bf16 {v(d,4)}, {v(A,4)}, {v(B,4)}, {'0' if step == 0 else v(d,4)}")
    return out

HB = opt('hb', 1)
RD0, DG0, DGS = opt('rd0', 0), opt('dg0', 1), opt('dgs', 10)
def gemm1_main(a, late):
    vm = VmTrack()
    def group(tok):
        if tok == "B": return [["s_barrier"]], []
        if tok[0] == "Q": return [q_batch(int(tok[1:]))], ["pf"]
        if tok[0] == "R": return [r_batch()], ["pf"]
        if tok[0] == "P":
            s0, n = map(int, tok[1:].split("_")); return [pf_batch(s0, n)], ["pf", "pf"]
        if tok[0] == "W":
            st = int(tok[1:]); g = [f"s_add_u32 s{S_SOW}, s14, {st}", f"s_and_b32 s{S_SOW}, s{S_SOW}, 31"]
            for q in range(3):
                m, l = dma_w(st, q); g += [m, f"s_mul_i32 s{S_SOW}, s{S_SOW}, {32*6144}" if q == 0 else "s_nop 0", l]
            return [old_only(g)], [("W", st)] * 3
        if tok == "Y0":
            g = {}
            for role, qs in ((True, range(0, 4)), (False, range(4, 8))):
                g[role] = [f"s_and_b32 s{S_SOX}, s15, 0x780"]
                for q in qs:
                    m, l = dma_x(0, q); g[role] += [m, "s_nop 0", l]
            return [if_vcc(g[True], True) + if_vcc(g[False], False)], [("X", 0)] * 4
        if tok[0] == "X":
            if "h" in tok: S, h = tok[1:].split("h"); S = int(S); qs = range(0, 4) if h == "0" else range(4, 8)
            else: S = int(tok[1:]); qs = range(8)
            g = [f"s_add_u32 s{S_SOX}, s15, {S*128}"]
            for q in qs:
                m, l = dma_x(S, q); g += [m, f"s_and_b32 s{S_SOX}, s{S_SOX}, 0x780" if q == qs[0] else "s_nop 0", l]
            return [old_only(g)], [("X", S)] * len(qs)
    first = True
    for tok in PRO.split():
        g, t = group(tok)
        for x in g:
            for y in x: a(y)
        for y in t: vm.issue(y)
        if tok == "W0":
            gemm1_setup_rest(a)
    if "Y0" in PRO:
        for x in if_vcc(["s_waitcnt vmcnt(0)"], False): a(x)
    a(f"s_waitcnt vmcnt({vm.wait_count({('X',0),('W',0)})})")
    a("s_barrier")
    stamp(a, 1); dbgstamp(a, 2)
    for l in frag_reads(0): a(l)
    for st in range(32):
        bar = (not HB) or st == 0 or st % 2 == 1
        if st == 31:
            a("s_waitcnt vmcnt(0) lgkmcnt(0)")
        elif bar:
            ahead = [st + 1] + ([st + 2] if HB and st % 2 == 1 else [])
            need = {("W", x) for x in ahead} | {("X", x >> 1) for x in ahead}
            for nd in need: assert vm.ops.count(nd) == (3 if nd[0] == "W" else 8) or nd == ("X", 0), (st, nd)
            a(f"s_waitcnt vmcnt({min(63, vm.wait_count(need))}) lgkmcnt(0)")
        else:
            a("s_waitcnt lgkmcnt(0)")
        if bar: a("s_barrier")
        if st % 4 == 0: stamp(a, None, "g")
        if st in (2, 9, 30): jitter(a)
        M = gemm1_mfmas(st)
        if st == 31:
            a.label("Lgemm_end")
            last_step(a, late[31]); break
        R = frag_reads(st + 1) if st + 1 < 32 else []
        toks = list(STEPX.get(st, []))
        if not HB:
            if st + 5 < 32: toks.append(f"W{st+5}")
        elif st >= 1 and st + 4 < 32:
            toks.append(f"W{st+4}")
        if st >= 1 and ((st - 1) >> 1) + 3 < 16: toks.append(f"X{((st-1)>>1)+3}h{0 if st % 2 == 1 else 1}")
        D = []
        for tok in toks:
            g, t = group(tok); D += g
            for y in t: vm.issue(y)
        gaps = [[] for _ in range(24)]
        for i, r in enumerate(R): gaps[i + RD0].append(r)
        for i, d in enumerate(D): gaps[min(23, DG0 + (i * DGS if len(D) <= 3 else (i * (23 - DG0)) // len(D)))] += d
        lt = late.get(st, [])
        assert len(lt) <= 24
        for i, x in enumerate(lt):
            gaps[i].append(x)
            if x.startswith("buffer_"): vm.issue("late")
        for i, m in enumerate(M):
            a(m)
            for x in gaps[i]:
                if "--xnodma" in sys.argv and x.endswith("lds") and st > 3: continue
                if "--xnord" in sys.argv and x.startswith("ds_read") and st > 3: continue
                a(x)

AS = [8, 24, 40, 56]
AO = {'a': 224, 'b': 240}
AQ = {('a',0): 104, ('a',1): 108, ('b',0): 112, ('b',1): 116}
AC = {'a': 120, 'b': 136}
AK = [[152, 156], [160, 164]]
AV = [[168, 172], [176, 180]]
AL = {'a': 184, 'b': 188}
ASEL = 192; AIDX = 196; AADDR = 197; AVO = 198; AWD = 199
AFL = 200
AFA = 202
V_VS, V_VL = 205, 207
AADK, AVK = 204, 206
V_FA = 221
S_CH2 = 22
P_WR = [212, 213, 214, 215]; P_OV = [[216, 217], [218, 219]]; V_FA2 = 220
S_OSO = 64 if not STAMP else 66
def qk1(Y, kb, q, c=None): return f"v_mfma_f32_32x32x16_bf16 {v(Y,16)}, {v(AK[kb][0],4)}, {v(AQ[(q,0)],4)}, {v(AC[q],16) if c is None else c}"
def qk2(Y, kb, q): return f"v_mfma_f32_32x32x16_bf16 {v(Y,16)}, {v(AK[kb][1],4)}, {v(AQ[(q,1)],4)}, {v(Y,16)}"
def pv(Z, h, vb, q): return f"v_smfmac_f32_32x32x32_bf16 {v(AO[q],16)}, {v(AV[vb][h],4)}, {v(Z+8*h,8)}, v{AIDX}"
def sm(Z, h, q): return f"v_smfmac_f32_16x16x64_bf16 {v(AL[q],4)}, {v(ASEL,4)}, {v(Z+8*h,8)}, v{AIDX}"
def srd(d, lo, hi, off, nrec):
    return [f"s_add_u32 s{d}, s{lo}, s{off}\ns_addc_u32 s{d+1}, s{hi}, 0", f"s_and_b32 s{d+1}, s{d+1}, 0xffff", f"s_mov_b32 s{d+2}, {nrec}", f"s_mov_b32 s{d+3}, 0x00020000"]

CODEPF = opt('codepf', 12)
SEL2 = opt('sel2', 0)
def lbroadcast():
    if not SEL2: return []
    return [f"v_mov_b32 v{AL[q]+1}, v{AL[q]}" for q in 'ab'] + ['s_nop 1'] + [f"v_permlane32_swap_b32 v{AL[q]}, v{AL[q]+1}" for q in 'ab']
def late_setup():
    L = {}
    if CODEPF:
        L[CODEPF] = ["s_getpc_b64 s[26:27]\nLpcref:", f"s_and_b32 s28, s{S_W}, 3", "s_lshl_b32 s28, s28, 13", "v_lshlrev_b32 v2, 7, v1", "v_add_u32 v2, s28, v2",
                     "v_min_u32 v2, Lcode_end-Lgemm_end-4, v2", "s_add_u32 s26, s26, Lgemm_end-Lpcref\ns_addc_u32 s27, s27, 0", "v_mov_b32 v3, s27",
                     "v_add_co_u32 v2, s[28:29], s26, v2", "s_nop 1", "v_addc_co_u32 v3, s[28:29], 0, v3, s[28:29]",
                     "\n".join(if_vcc([f"global_load_dword v{V_NON+1}, v[2:3], off"], False))]
    L[18] = [f"v_mov_b32 v{AO['a']+i}, 0" for i in range(24)]
    L19OLD = [f"v_mov_b32 v{AO['a']+24+i}, 0" for i in range(8)] + \
            [f"v_lshlrev_b32 v{AVO}, 4, v1", "v_and_b32 v2, 7, v1", f"v_lshlrev_b32 v{AFA}, 3, v2", f"s_lshr_b32 s26, s{S_W}, 2", "s_lshl_b32 s26, s26, 14",
             f"v_add_u32 v{AADDR}, s26, v{AVO}", f"v_mov_b32 v{AIDX}, 0xdddddddd",
             "v_bfe_u32 v2, v1, 2, 1", "v_mov_b32 v3, 0x3f803f80", "v_cmp_eq_u32 s[28:29], 0, v2", "s_nop 1",
             f"v_cndmask_b32 v{ASEL}, 0, v3, s[28:29]", f"v_cndmask_b32 v{ASEL+1}, 0, v3, s[28:29]", f"v_xor_b32 v{ASEL+2}, v3, v{ASEL}", f"v_xor_b32 v{ASEL+3}, v3, v{ASEL}"]
    L[19] = [f"v_mov_b32 v{AO['a']+24+i}, 0" for i in range(8)] + \
            [f"v_lshlrev_b32 v{AVO}, 4, v1", "v_and_b32 v2, 7, v1", f"v_lshlrev_b32 v{AFA}, 3, v2", f"s_lshr_b32 s26, s{S_W}, 2", "s_lshl_b32 s26, s26, 14",
             f"v_add_u32 v{AADDR}, s26, v{AVO}", f"v_mov_b32 v{AIDX}, 0xdddddddd",
             f"v_and_b32 v2, {15 if SEL2 else 7}, v1", "v_mov_b32 v3, 0x3f803f80", "v_cmp_eq_u32 s[28:29], 0, v2", f"v_cmp_eq_u32 s[30:31], 4, v2",
             f"v_cndmask_b32 v{ASEL}, 0, v3, s[28:29]", f"v_cndmask_b32 v{ASEL+1}, 0, v3, s[28:29]", f"v_cndmask_b32 v{ASEL+2}, 0, v3, s[30:31]", f"v_cndmask_b32 v{ASEL+3}, 0, v3, s[30:31]"] \
            if opt("sel1", 1) else L19OLD
    L[20] = ["v_and_b32 v2, 15, v1", "v_lshrrev_b32 v4, 4, v1", "v_lshlrev_b32 v4, 9, v4", f"v_lshl_add_u32 v{V_VS}, v2, 4, v4",
             "v_bfe_u32 v2, v1, 2, 1", "v_bfe_u32 v3, v1, 3, 2", "v_and_b32 v4, 35, v1", "v_lshl_add_u32 v4, v2, 4, v4", "v_lshl_add_u32 v4, v3, 2, v4",
             f"v_lshlrev_b32 v{AVK}, 4, v4", f"v_sub_u32 v2, v{AADDR}, v{AVO}", f"v_add_u32 v{AADK}, v2, v{AVK}",
             f"s_and_b32 s26, s{S_W}, 2", "s_lshl_b32 s26, s26, 14", f"s_and_b32 s27, s{S_W}, 1", "s_lshl_b32 s27, s27, 13", "s_add_u32 s26, s26, s27",
             f"s_lshr_b32 s27, s{S_W}, 2", "s_lshl_b32 s27, s27, 14", "s_add_u32 s26, s26, s27", f"v_add_u32 v{V_VL}, s26, v{V_VS}"]
    L[21] = ["v_lshrrev_b32 v2, 3, v1", "v_and_b32 v3, 7, v1", "v_lshrrev_b32 v4, 4, v1", "v_lshlrev_b32 v4, 1, v4", "v_xor_b32 v4, v3, v4",
             "v_lshlrev_b32 v4, 4, v4", f"v_lshl_add_u32 v{AWD}, v2, 11, v4",
             f"s_cmp_eq_u32 s{S_B}, 0\ns_cselect_b32 s26, s36, s42\ns_cselect_b32 s27, s37, s43", f"s_lshl_b32 s30, s{S_HP}, 7", f"s_sub_u32 s31, {1024*2048}, s30"] \
            + srd(SRD_WO, 26, 27, 30, "s31") + ["s_mov_b32 s92, s46", "s_and_b32 s93, s47, 0xffff", "s_mov_b32 s94, 256", "s_mov_b32 s95, 0x00020000"]
    if WARMF:
        L[22] = [f"s_lshl_b32 s28, s{S_B}, 4", f"s_add_u32 s28, s28, s{S_HP}", "s_lshl_b32 s28, s28, 10", f"s_add_u32 s30, s28, {F1_OFF}",
                 f"s_lshl_b32 s28, s{S_B}, 3", f"s_add_u32 s28, s28, s{S_TM}", "s_lshl_b32 s28, s28, 11", f"s_add_u32 s31, s28, {F2_OFF}",
                 "s_mov_b32 s76, s48", "s_and_b32 s77, s49, 0xffff", f"s_mov_b32 s78, {34 << 20}", "s_mov_b32 s79, 0x00020000", "v_lshlrev_b32 v2, 7, v1",
                 "\n".join(if_vcc(["s_mov_b64 exec, 0xff", f"buffer_load_dword v{V_NON+1}, v2, s[76:79], s30 offen sc1",
                                   "s_mov_b64 exec, 0xffff", f"buffer_load_dword v{V_NON+1}, v2, s[76:79], s31 offen sc1", "s_mov_b64 exec, -1"], False))]
    if opt("tlb", 0):
        L[17] = [f"s_lshl_b32 s28, s{S_B}, 4", f"s_add_u32 s28, s28, s{S_HP}", "s_lshl_b32 s28, s28, 19", f"s_lshl_b32 s29, s{S_TM}, 15", "s_add_u32 s30, s28, s29",
                 f"s_lshl_b32 s28, s{S_B}, 22", f"s_lshl_b32 s29, s{S_TM}, 19", "s_add_u32 s31, s28, s29", f"s_lshl_b32 s29, s{S_HP}, 11", "s_add_u32 s31, s31, s29", f"s_add_u32 s31, s31, {O_OFF}",
                 "s_mov_b32 s76, s48", "s_and_b32 s77, s49, 0xffff", f"s_mov_b32 s78, {34 << 20}", "s_mov_b32 s79, 0x00020000",
                 "\n".join(if_vcc(["s_mov_b64 exec, 1", f"buffer_load_dword v{V_NON+1}, v{V_PD+1}, s[76:79], s30 offen sc1",
                                   f"buffer_load_dword v{V_NON+1}, v{V_PD+1}, s[76:79], s31 offen sc1", "s_mov_b64 exec, -1"], False))]
    L[27] = [f"v_mov_b32 v{AL['a']+i}, 0" for i in range(8)] + \
            [f"s_lshl_b32 s26, s{S_B}, 5", f"s_lshl_b32 s27, s{S_HP}, 1", "s_add_u32 s26, s26, s27",
             f"s_and_b32 s28, s{S_W}, 3", "s_lshl_b32 s29, s28, 12", "s_lshl_b32 s30, s26, 18", "s_add_u32 s31, s30, s29", "s_sub_u32 s50, 524288, s29"] \
            + srd(SRD_KV, 48, 49, 31, "s50") + [f"s_lshr_b32 s27, s{S_W}, 2", "s_add_u32 s26, s26, s27", "s_lshl_b32 s30, s26, 18"]
    L[28] = [f"buffer_load_dwordx2 {v(V_NON,2)}, v{V_PD+1}, s[92:95], 0 offen sc1",
             f"s_mov_b32 s{S_WOI}, -1", f"s_lshl_b32 s{S_WOB}, s{S_W}, 14", f"s_lshl_b32 s27, s{S_W}, 10", f"s_add_u32 s{S_WOM}, s27, 65536",
             f"s_lshl_b32 s{S_M0}, s{S_W}, 12", f"s_mov_b32 s{S_CIDX}, 16384", f"s_lshl_b32 s23, s{S_TM}, 15", f"s_lshr_b32 s51, s{S_W}, 1", f"s_mov_b32 s{S_EARLY}, 0"]
    L[29] = [f"s_lshl_b32 s27, s{S_TM}, 3", "s_lshl_b32 s28, s28, 1", "s_add_u32 s27, s27, s28", "s_lshl_b32 s29, s27, 12", "s_add_u32 s31, s30, s29"] \
            + srd(SRD_KVS, 48, 49, 31, 8192) + ["s_mov_b32 s50, 4096",
             f"s_lshl_b32 s28, s{S_B}, 22", "s_lshl_b32 s29, s27, 16", "s_add_u32 s31, s28, s29", "s_and_b32 s28, s26, 31", "s_lshl_b32 s28, s28, 10",
             "s_add_u32 s31, s31, s28", f"s_add_u32 s31, s31, {O_OFF}"] + srd(SRD_O, 48, 49, 31, 131072)
    L[30] = [f"s_lshl_b32 s28, s{S_B}, 4", f"s_add_u32 s28, s28, s{S_HP}", "s_lshl_b32 s28, s28, 10", f"s_add_u32 s31, s28, {F1_OFF}"] + srd(SRD_F, 48, 49, 31, 1024) \
            + [f"s_bitcmp0_b32 s{S_W}, 1\ns_cselect_b64 vcc, -1, 0", f"s_mov_b32 s26, {QSCALE}", f"s_mov_b32 s27, {QSCALE}"]
    L[23] = [f"s_lshl_b32 s28, s{S_B}, 3", f"s_add_u32 s28, s28, s{S_TM}", "s_lshl_b32 s28, s28, 11", f"s_add_u32 s30, s28, {F2_OFF}"] + srd(SRD_F2, 48, 49, 30, 2048) \
            + [f"s_lshl_b32 s28, s{S_B}, 22", f"s_lshl_b32 s29, s{S_TM}, 19", "s_add_u32 s30, s28, s29", f"s_lshl_b32 s29, s{S_W}, 16", "s_add_u32 s30, s30, s29",
               f"s_add_u32 s30, s30, {O_OFF}"] + srd(SRD_OL, 48, 49, 30, 65536)
    L[24] = [f"s_lshl_b32 s28, s{S_TM}, 20", f"s_lshl_b32 s29, s{S_W}, 17", "s_add_u32 s30, s28, s29", f"s_lshl_b32 s29, s{S_B}, 11", "s_add_u32 s30, s30, s29",
             f"s_lshl_b32 s29, s{S_HP}, 7", "s_add_u32 s30, s30, s29", f"s_sub_u32 s31, {2048*4096}, s30"] + srd(SRD_OUT, 44, 45, 30, "s31") \
            + [f"s_and_b32 s26, s{S_HP}, 8", "s_lshl_b32 s27, s26, 11", f"v_add_u32 v{P_OV[0][0]}, s27, v{AVO}", f"v_add_u32 v{P_OV[0][1]}, 32768, v{P_OV[0][0]}",
               f"v_xor_b32 v{P_OV[1][0]}, 16384, v{P_OV[0][0]}", f"v_xor_b32 v{P_OV[1][1]}, 16384, v{P_OV[0][1]}",
               "s_lshl_b32 s26, s26, 4", f"s_lshr_b32 s27, s{S_W}, 1", "s_lshl_b32 s27, s27, 9", f"s_add_u32 s{S_FL0}, s26, s27"]
    L[25] = [x for j in range(8) for x in (f"s_add_u32 s26, s{S_HP}, {j}", "s_and_b32 s26, s26, 7", f"s_lshl_b32 s{S_OSO+j}, s26, 11")]
    L[26] = [f"s_and_b32 s26, s{S_W}, 3", "s_lshl_b32 s26, s26, 6", f"s_lshr_b32 s27, s{S_W}, 2", "s_lshl_b32 s27, s27, 5", "s_add_u32 s26, s26, s27",
             f"s_and_b32 s27, s{S_HP}, 8", f"s_add_u32 s27, s27, s{S_HP}", "s_add_u32 s26, s26, s27", "s_lshl_b32 s26, s26, 3", f"v_mov_b32 v{V_FA2}, s26",
             "v_and_b32 v4, 15, v1", "v_lshlrev_b32 v4, 4, v4", "v_bfe_u32 v5, v1, 4, 1", "v_lshl_add_u32 v4, v5, 15, v4", "v_lshrrev_b32 v5, 5, v1", "v_lshl_add_u32 v6, v5, 8, v4"]
    L[30] += ["v_lshrrev_b32 v4, 4, v1", "v_bfe_u32 v2, v1, 2, 2", "v_and_b32 v3, 3, v1", "v_and_b32 v5, 1, v4", "v_lshrrev_b32 v4, 1, v4", "v_lshl_add_u32 v7, v5, 2, v2",
              "v_lshl_add_u32 v4, v4, 4, v7", "v_lshrrev_b32 v7, 1, v7", "v_lshlrev_b32 v7, 5, v7", "v_lshl_add_u32 v7, v3, 3, v7", "v_lshl_add_u32 v7, v4, 7, v7",
              f"v_add_u32 v{P_WR[0]}, 65536, v7\nv_xor_b32 v{P_WR[1]}, 32, v{P_WR[0]}", f"v_xor_b32 v{P_WR[2]}, 64, v{P_WR[0]}\nv_xor_b32 v{P_WR[3]}, 96, v{P_WR[0]}"]
    if opt("tlb", 0):
        L[26] += ["\n".join(if_vcc(["s_mov_b64 exec, 1", f"buffer_load_dword v{V_NON+1}, v{V_PD+1}, s[{SRD_WO}:{SRD_WO+3}], 0 offen",
                                    f"buffer_load_dword v{V_NON+1}, v{V_PD+1}, s[{SRD_OUT}:{SRD_OUT+3}], 0 offen sc1", "s_mov_b64 exec, -1"], False))]
    L[31] = []
    return L

UNITS = [('V',0,0,80), ('V',0,1,84), ('V',1,0,72), ('V',1,1,76), ('K',1,1,88), ('K',1,0,92), ('K',0,0,96), ('K',0,1,100)]
def unit_src(u):
    k, T, h, d = UNITS[u]
    return [(2*T, 4+h), (2*T+1, 4+h)] if k == 'V' else [(2*T+h, 2), (2*T+h, 3)]
def cvt4(regs, d): return [f"v_cvt_pk_bf16_f32 v{d+i}, v{regs[2*i]}, v{regs[2*i+1]}" for i in range(4)]
def unit_cvt(u):
    k, T, h, d = UNITS[u]
    regs = [acc(*x) + i for x in unit_src(u) for i in range(4)]
    w = f"ds_write_b128 v{V_VL}, {v(d,4)} offset:{T*4096 + (2048 if k == 'V' else 0) + h*256}"
    return cvt4(regs, d) + [w]
def kv_store(u):
    k, T, h, d = UNITS[u]
    return f"buffer_store_dwordx4 {v(d,4)}, v{V_VS}, s[{SRD_KVS}:{SRD_KVS+3}], {'0' if T == 0 else 's50'} offen offset:{(2048 if k == 'V' else 0) + h*256}{SC1}"
def q_cvt(tt):
    return [f"v_pk_mul_f32 {v(acc(tt,0)+2*i,2)}, {v(acc(tt,0)+2*i,2)}, s[26:27]" for i in range(4)] + cvt4([acc(tt,0)+i for i in range(8)], AQ[("ab"[tt >> 1], tt & 1)])

NEP = opt('nep', 4)
def last_step(a, sal):
    order = [(3, 0), (3, 1)] + [x for u in range(8) for x in unit_src(u)] + [(tt, f) for tt in range(3) for f in range(2)]
    gaps = [[] for _ in range(24)]
    gaps[10] += q_cvt(3)
    for u in range(6): gaps[12 + 2*u] += unit_cvt(u) + (if_vcc([kv_store(u - 1), kv_store(u)]) if u & 1 and u < NEP else [])
    for i, (tt, f) in enumerate(order):
        d = acc(tt, f)
        A, B = (WF[1][f], XF[1][tt]) if f < 4 else (XF[1][tt], WF[1][f])
        a(f"v_mfma_f32_16x16x32_bf16 {v(d,4)}, {v(A,4)}, {v(B,4)}, {v(d,4)}")
        for x in gaps[i]: a(x)
    for x in unit_cvt(6) + unit_cvt(7) + (if_vcc([kv_store(6), kv_store(7)]) if NEP == 8 else []): a(x)

def transition_ab(a):
    a(f"s_cmp_lt_u32 s{S_W}, 4\ns_setprio 1\ns_cbranch_scc0 Lyng0\ns_setprio 2\nLyng0:")
    a("s_waitcnt lgkmcnt(0)\ns_barrier")
    for j in range(2): a(f"ds_read_b128 {v(AK[0][j],4)}, v{AADK} offset:{1024*j}")
    for j in range(2): a(f"ds_read_b128 {v(AV[0][j],4)}, v{AADDR} offset:{2048+1024*j}")
    rest = list(range(NEP, 8))
    for tt in range(3):
        if rest and (tt < 2 or NEP < 4):
            k = 2 if tt < 2 else len(rest)
            for x in if_vcc([kv_store(u) for u in rest[:k]]): a(x)
            rest = rest[k:]
        for x in q_cvt(tt): a(x)
    assert not rest
    a("s_nop 1")
    for q in "ab":
        for i in range(4): a(f"v_permlane16_swap_b32 v{AQ[(q,0)]+i}, v{AQ[(q,1)]+i}")
    for q in "ab":
        for i in range(4): a(f"v_permlane32_swap_b32 v{AQ[(q,0)]+i}, v{AQ[(q,1)]+i}")
    a("s_waitcnt lgkmcnt(2)")
    a(qk1(AS[0],0,'a',"0")); a(qk2(AS[0],0,'a')); a(qk1(AS[1],0,'b',"0")); a(qk2(AS[1],0,'b'))
    a(f"""
    v_readfirstlane_b32 s{S_NONCE}, v{V_NON}
    v_readfirstlane_b32 s{S_NONCE+1}, v{V_NON+1}
    s_lshl_b32 s26, s{S_TM}, 4
    s_add_u32 s26, s26, s{S_W}
    s_lshl_b32 s28, s26, 3
    s_nop 3
    s_cmp_eq_u32 s{S_NONCE}, 0
    s_cbranch_scc1 Lnonce_spin
    Lnonce_ok:
    v_mov_b32 v{V_FA}, s28
    s_nop 0
    """)
    rowmax16(a, AS[0], 2, 3)
    rowmax16(a, AS[1], 4, 5)
    MOFF = struct.unpack("<I", struct.pack("<f", float(opt("moff", 19))))[0]
    if MOFF: a(f"v_add_f32 v2, {MOFF:#x}, v2\nv_add_f32 v4, {MOFF:#x}, v4")
    for i in range(8): a(f"v_pk_mul_f32 {v(AC['a']+2*i,2)}, v[2:3], -1.0 op_sel_hi:[0,0]")
    a(f"v_pk_mul_f32 {v(AC['b'],2)}, v[4:5], -1.0 op_sel_hi:[0,0]\nv_pk_mul_f32 {v(AC['b']+2,2)}, v[4:5], -1.0 op_sel_hi:[0,0]")
    a(qk1(AS[0],0,'a')); a(qk2(AS[0],0,'a'))
    for i in range(2, 8): a(f"v_pk_mul_f32 {v(AC['b']+2*i,2)}, v[4:5], -1.0 op_sel_hi:[0,0]")
    a("s_nop 4")

def rowmax16(a, S, m, t):
    a(f"v_max3_f32 v{m}, v{S}, v{S+1}, v{S+2}")
    for i in range(3, 15, 2): a(f"v_max3_f32 v{m}, v{m}, v{S+i}, v{S+i+1}")
    a(f"v_max_f32 v{m}, v{m}, v{S+15}")
    a(f"v_mov_b32 v{t}, v{m}\ns_nop 1\nv_permlane32_swap_b32 v{m}, v{t}\ns_nop 0\nv_max_f32 v{m}, v{m}, v{t}")

def attn_half(a, t, q, extra=None, skipz=False):
    hs = (2*t + (q == 'b')) % 4
    oq = 'b' if q == 'a' else 'a'
    X = AS[hs]; Y = AS[(hs+1) % 4]; Z = AS[(hs-1) % 4]
    kb = t % 2 if q == 'a' else (t+1) % 2
    vb = (t-1) % 2 if q == 'a' else t % 2
    nt = (t + 1) % 4
    M = {'Q1': qk1(Y,kb,oq), 'Q2': qk2(Y,kb,oq), 'P1': pv(Z,0,vb,oq), 'S1': sm(Z,0,oq), 'P2': pv(Z,1,vb,oq), 'S2': sm(Z,1,oq)}
    e = 0
    for tok in "Q1 W0 3 S1 L0 2 Q2 3 P1 3 S2 L1 2 P2 W1 3".split():
        if tok in M:
            if not (skipz and tok[0] != 'Q'): a(M[tok])
        elif tok in ('L0', 'L1'):
            j = int(tok[1])
            if q == 'a': a(f"ds_read_b128 {v(AK[(t+1)%2][j],4)}, v{AADK} offset:{nt*4096 + 1024*j}")
            else: a(f"ds_read_b128 {v(AV[(t+1)%2][j],4)}, v{AADDR} offset:{nt*4096 + 2048 + 1024*j}")
        elif tok == 'W0':
            if q == 'b': a("s_waitcnt lgkmcnt(0)")
        elif tok == 'W1':
            if q == 'a': a("s_waitcnt lgkmcnt(1)")
        else:
            for _ in range(int(tok)):
                a(f"v_exp_f32 v{X+e}, v{X+e}"); e += 1
        if extra and tok in extra:
            for x in extra[tok]: a(x)
    assert e == 16

def kv_dma(h): return [f"buffer_load_dwordx4 v{AVO}, s[{SRD_KV}:{SRD_KV+3}], s{S_CH if h == 0 else S_CH2} offen offset:{1024*i}{SC1} lds" for i in range(4)]
S_FSO = 24
def flag_load(srd=None):
    srd = SRD_F if srd is None else srd
    return f"buffer_load_dwordx2 {v(AFL,2)}, v{AFA}, s[{srd}:{srd+3}], s{S_FSO} offen sc1"
S_EARLY = 41
DEPTH = opt("odepth", 5)
OSL = [72, 80, 88, 96, 136, 144, 152, 160, 8, 16, 24, 32, 224, 232, 240, 248]
def oslot(p, tt): return OSL[p % 16] + 4 * tt
def oload_ins(p):
    return [f"buffer_load_dwordx4 {v(oslot(p, tt),4)}, v{P_OV[(p>>3)&1][tt]}, s[{SRD_OL}:{SRD_OL+3}], s{S_OSO + p%8} offen offset:{(p>>4)*1024}{SC1}" for tt in range(2)]
def chunk_scalars():
    return [f"s_add_u32 s{S_CIDX}, s{S_CIDX}, 16384", f"s_xor_b32 s{S_CH}, s{S_CIDX}, s23", f"s_add_u32 s{S_CH2}, s{S_CH}, 262144",
            f"s_bfe_u32 s26, s{S_CH}, 0x1000e", "s_lshl_b32 s26, s26, 1", f"s_add_u32 s{S_FIDX}, s26, s51"]
def line_cur(): return [f"s_lshr_b32 s26, s{S_CH}, 15", f"s_lshl_b32 s{S_FSO}, s26, 7"]
def line_next(): return [f"s_add_u32 s26, s{S_CIDX}, 16384", "s_xor_b32 s26, s26, s23", "s_bfe_u32 s26, s26, 0x3000f", f"s_lshl_b32 s{S_FSO}, s26, 7"]
def mask_test():
    return [f"s_lshr_b32 s26, s{S_MASK}, s{S_FIDX}", "s_andn2_b32 s26, 0x11, s26"]
def flag_cmp(): return f"v_cmp_eq_u64 s[{S_MASK}:{S_MASK+1}], s[{S_NONCE}:{S_NONCE+1}], {v(AFL,2)}"
def spin(a, name, test, lowprio=False, SLEEP=SLEEP):
    if lowprio:
        a(f"""
        {name}:
        s_mov_b32 s{S_SPIN}, {SPIN_LIMIT}
        {name}_l:
        {flag_load()}
        s_waitcnt vmcnt(0)
        {flag_cmp()}
        s_sub_u32 s{S_SPIN}, s{S_SPIN}, 1
        s_cbranch_scc1 {name}_x
        """)
        for x in test: a(x)
        a(f"s_cbranch_scc0 {name}_x\ns_setprio 0\ns_branch {name}_l\n{name}_x:\ns_cbranch_vccz {name}_r\ns_setprio 2\ns_branch {name}_r")
        return
    a(f"""
    {name}:
    s_mov_b32 s{S_SPIN}, {SPIN_LIMIT}
    {name}_l:
    {flag_load()}
    s_waitcnt vmcnt(0)
    {flag_cmp()}
    s_sub_u32 s{S_SPIN}, s{S_SPIN}, 1
    s_cbranch_scc1 {name}_r
    """)
    for x in test: a(x)
    if SLEEP: a(f"s_cbranch_scc0 {name}_r\ns_sleep {SLEEP}\ns_branch {name}_l")
    else: a(f"s_cbranch_scc1 {name}_l\ns_branch {name}_r")
def spin_flags(a, name): spin(a, name, mask_test())
def wo_dma():
    return [f"s_add_u32 s{S_WOI}, s{S_WOI}, 1", f"s_add_u32 s26, s{S_WOI}, s{S_HP}", "s_and_b32 s26, s26, 7",
            f"s_xor_b32 s27, s{S_WOI}, s{S_HP}", "s_and_b32 s27, s27, 8", "s_or_b32 s26, s26, s27", "s_lshl_b32 s26, s26, 1",
            f"s_lshr_b32 s27, s{S_WOI}, 4", "s_add_u32 s26, s26, s27", "s_lshl_b32 s26, s26, 16", f"s_mov_b32 m0, s{S_WOM}",
            f"s_add_u32 s{S_WOS}, s26, s{S_WOB}", f"s_add_u32 s{S_WOM}, s{S_WOM}, 4096",
            f"buffer_load_dwordx4 v{AWD}, s[{SRD_WO}:{SRD_WO+3}], s{S_WOS} offen{NTW} lds"]
TOUCH = "--touch" in sys.argv
WARMF = "--nowarmf" not in sys.argv
def publish(fa=V_FA): return ["s_waitcnt vmcnt(0)", "s_mov_b64 exec, 1", f"buffer_store_dwordx2 {v(V_NON,2)}, v{fa}, s[{SRD_F}:{SRD_F+3}], 0 offen sc1", "s_mov_b64 exec, -1"]
def wo_rows(n):
    o = []
    for _ in range(n): o += wo_dma()
    return o
EARLY = '--noearly' not in sys.argv
XT = opt('xt', 1)
LST = opt("lst", 1)
def tailpf():
    if not opt("codepf2", 2): return []
    return [f"s_cmp_eq_u32 s{S_CNT}, {opt('codepf2', 2)}", "s_cbranch_scc0 Lnopf2", "s_getpc_b64 s[26:27]", "Lpcref2:", f"s_lshl_b32 s28, s{S_W}, 13",
            "v_lshlrev_b32 v2, 7, v1", "v_add_u32 v2, s28, v2", "v_min_u32 v2, Lattn_fallback-Lattn_j-4, v2", "s_add_u32 s26, s26, Lattn_j-Lpcref2", "s_addc_u32 s27, s27, 0",
            "v_mov_b32 v3, s27", "v_add_co_u32 v2, s[28:29], s26, v2", "s_nop 1", "v_addc_co_u32 v3, s[28:29], 0, v3, s[28:29]", "global_load_dword v4, v[2:3], off", "Lnopf2:"]
def attn_chunk(a, kind):
    tog = f"v_xor_b32 v{AADDR}, 32768, v{AADDR}\nv_xor_b32 v{AADK}, 32768, v{AADK}"
    for t in range(4):
        ea, eb = {}, {}
        if kind in ('c0', 'c1'): stamp(a, None, "c")
        if t in (1, 3): jitter(a)
        if kind == 'c1' and t == opt("polt", 1) + 1: pass
        if kind == 'c1' and t == opt("polt", 1):
            for x in old_only(chunk_scalars() + line_cur() + ["s_branch Lspin_c1a", "Lspin_c1a_r:", f"s_mov_b32 m0, s{S_M0}", "s_nop 0"] + kv_dma(0)
                              + [f"s_add_u32 m0, s{S_M0}, 16384", "s_nop 0"] + kv_dma(1)): a(x)
            stamp(a, None, "c")
        if kind == 'c14' and t == XT:
            for x in if_vcc(["s_barrier"], False): a(x)
        if kind == 'c0':
            for k, e in enumerate((ea, eb)):
                j = 2*t + k - LST
                if 0 <= j < 4: e['P1'] = if_vcc([kv_store(2*j), kv_store(2*j + 1)], False)
        if kind == 'c1' and t == 0:
            eb['P2'] = [f"s_and_b32 s26, s{S_W}, 6", "s_cmp_eq_u32 s26, 2", "s_cbranch_scc0 Lpub2"] + publish() + ["Lpub2:"]
        if kind == 'c14' and t == 0:
            ea['Q2'] = old_only([f"s_lshl_b32 s28, s{S_W}, 1", f"s_add_u32 s28, s28, s{S_HP}", "v_lshrrev_b32 v2, 5, v1", "v_add_u32 v2, s28, v2", "v_and_b32 v2, 7, v2",
                                 f"s_and_b32 s28, s{S_HP}, 8", "s_xor_b32 s28, s28, 8", "v_or_b32 v2, s28, v2", "v_lshlrev_b32 v2, 17, v2", "v_and_b32 v3, 31, v1",
                                 "v_lshl_add_u32 v2, v3, 11, v2", "s_mov_b32 s28, 65536", f"buffer_load_dword v3, v2, s[{SRD_WO}:{SRD_WO+3}], s28 offen"])
        if kind == 'c15' and EARLY:
            if t == 2: ea['Q2'] = if_vcc([f"s_mov_b32 s{S_FSO}, s{S_FL0}", flag_load(SRD_F2)], False)
            if t == 3: ea['Q2'] = if_vcc(["s_waitcnt vmcnt(0)", flag_cmp(), "s_nop 0", f"s_cmp_lg_u32 s{S_MASK}, -1", "s_cbranch_scc1 Lnoearly", f"s_mov_b32 s{S_EARLY}, 1"]
                                         + [x for p in range(min(DEPTH, 4)) for x in oload_ins(p)] + ["Lnoearly:"], False)
        if t == 3:
            if kind == 'c0':
                stamp(a); a("s_waitcnt lgkmcnt(0)\ns_barrier"); stamp(a)
                for x in [f"s_cmp_lt_u32 s{S_W}, 4", "s_cselect_b64 vcc, -1, 0", f"s_and_b32 s26, s{S_W}, 6", "s_cmp_eq_u32 s26, 2", "s_cbranch_scc1 Lpub1"] + publish() + ["Lpub1:"]: a(x)
                stamp(a)
                ea['Q1'] = [tog]
            elif kind == 'c14':
                ea['Q1'] = [f"v_add_u32 v{AADDR}, 131072, v{AADDR}\nv_add_u32 v{AADK}, 131072, v{AADK}"]
            elif kind != 'c15':
                stamp(a); a("s_waitcnt vmcnt(0) lgkmcnt(0)"); stamp(a)
                if not ("--xnobar" in sys.argv and kind == 'loop'): a("s_barrier")
                stamp(a)
                if kind in ('c1', 'loop'):
                    nm = "Lspin_" + kind
                    ea = {'Q1': [tog],
                          'Q2': old_only([flag_cmp(), f"s_xor_b32 s{S_M0}, s{S_M0}, 32768"] + chunk_scalars() + [f"s_mov_b32 m0, s{S_M0}"] + mask_test()
                                         + [f"s_cbranch_scc1 {nm}", f"{nm}_r:"] + kv_dma(0)),
                          'P2': old_only([f"s_add_u32 m0, s{S_M0}, 16384", "s_nop 0"] + kv_dma(1) + line_next() + [flag_load()])}
                    if kind == 'loop':
                        eb = {'Q2': old_only([f"s_cmp_gt_u32 s{S_CNT}, 3", "s_cbranch_scc0 Lnowo"] + wo_rows(2) + ["Lnowo:"] + tailpf() + [f"s_cmp_eq_u32 s{S_CNT}, 1", "s_cbranch_scc0 Lno15"]
                                             + chunk_scalars() + [f"s_add_u32 m0, s{S_M0}, 131072"] + mask_test() + ["s_cbranch_scc1 Lspin_15", "Lspin_15_r:"] + kv_dma(0)
                                             + [f"s_add_u32 m0, s{S_M0}, {131072 + 16384}", "s_nop 0"] + kv_dma(1) + ["Lno15:"]),
                              'P2': [f"s_sub_u32 s{S_CNT}, s{S_CNT}, 1", f"s_cmp_lg_u32 s{S_CNT}, 0"]}
                elif kind == 'c13':
                    ea = {'Q1': [tog], 'Q2': old_only([f"s_lshl_b32 s{S_WOM}, s{S_W}, 10", f"s_add_u32 s{S_WOM}, s{S_WOM}, 32768"] + wo_rows(3)), 'P2': old_only(wo_rows(3))}
                    eb = {'Q2': old_only(wo_rows(2))}
        if "--xnoex" in sys.argv and kind == 'loop' and t == 3: ea = {'Q1': [tog]}; eb = {'P2': eb['P2']}
        attn_half(a, t, 'a', ea, skipz=(kind == 'c0' and t == 0)); attn_half(a, t, 'b', eb)

def attention(a):
    attn_chunk(a, 'c0')
    attn_chunk(a, 'c1')
    a(f"s_mov_b32 s{S_CNT}, 11")
    stamp(a, None, "l")
    SPLIT = opt("split", 1)
    def tail():
        stamp(a, None, "l")
        attn_chunk(a, 'c13')
        attn_chunk(a, 'c14')
        attn_chunk(a, 'c15')
    if SPLIT:
        a("s_cbranch_vccz Lattn_y")
        for role in (True, False):
            ROLE[0] = role
            nm = "Lattn_loop" if role else "Lattn_loop_y"
            if not role: a.label("Lattn_y")
            a(".p2align 6")
            a.label(nm)
            attn_chunk(a, 'loop')
            a(f"s_cbranch_scc1 {nm}")
            if SPLIT == 2: tail()
            if role: a("s_branch Lattn_j")
        ROLE[0] = None
        a.label("Lattn_j")
        if SPLIT == 1: tail()
    else:
        a(".p2align 6")
        a.label("Lattn_loop")
        attn_chunk(a, 'loop')
        a("s_cbranch_scc1 Lattn_loop")
        tail()
    a("s_nop 1")
    stamp(a, 4)
    a(pv(AS[3],0,1,'b')); a(sm(AS[3],0,'b')); a(pv(AS[3],1,1,'b')); a(sm(AS[3],1,'b'))
    a(f"""
    s_mov_b32 s26, 0x4e800000        ; 2^30
    s_mov_b32 s27, 65536
    s_nop 5
    """)
    for x in lbroadcast(): a(x)
    a(f"""
    v_cmp_nge_f32 vcc, s26, v{AL['a']}
    v_cmp_nge_f32 s[28:29], s26, v{AL['b']}
    s_nop 0
    s_or_b64 vcc, vcc, s[28:29]
    s_cbranch_vccnz Lattn_fallback
    Lattn_fin:
    """)
    stamp(a, None, "e")
    a(f"""
    v_rcp_f32 v2, v{AL['a']}
    v_rcp_f32 v4, v{AL['b']}
    """)
    for qi, q in enumerate('ab'):
        for u in range(2):
            for i in range(4): a(f"v_pk_mul_f32 {v(AO[q]+8*u+2*i,2)}, {v(AO[q]+8*u+2*i,2)}, {v(2+2*qi,2)} op_sel_hi:[1,0]")
            d = AS[0] + 4*(2*qi+u)
            for x in cvt4([AO[q]+8*u+i for i in range(8)], d): a(x)
            a(f"buffer_store_dwordx4 {v(d,4)}, v6, s[{SRD_O}:{SRD_O+3}], {'0' if qi==0 else 's27'} offen offset:{512*u}{SC1}")

def fallback(a):
    a.label("Lattn_fallback")
    a(f"""
    s_waitcnt vmcnt(0) lgkmcnt(0)
    s_lshl_b32 s26, s{S_B}, 5
    s_lshl_b32 s28, s{S_HP}, 1
    s_add_u32 s26, s26, s28
    s_lshr_b32 s28, s{S_W}, 2
    s_add_u32 s26, s26, s28
    s_lshl_b32 s30, s26, 18
    """)
    make_srd(a, SRD_KV, 48, 49, 30, 262144)
    a(f"""
    s_mov_b32 s{S_SPIN}, {SPIN_LIMIT}
    v_lshrrev_b32 v2, 3, v1
    v_lshl_add_u32 v2, v2, 7, v{AFA}
    Lfb_poll:
    buffer_load_dwordx2 {v(AFL,2)}, v2, s[{SRD_F}:{SRD_F+3}], 0 offen sc1
    s_waitcnt vmcnt(0)
    v_cmp_eq_u64 vcc, s[{S_NONCE}:{S_NONCE+1}], {v(AFL,2)}
    s_sub_u32 s{S_SPIN}, s{S_SPIN}, 1
    s_cbranch_scc1 Lfb_go
    s_cmp_eq_u64 vcc, -1
    s_cbranch_scc0 Lfb_poll
    Lfb_go:
    """)
    for r in list(range(AO['a'], AO['a']+32)) + list(range(AL['a'], AL['a']+8)): a(f"v_mov_b32 v{r}, 0")
    Mr = {'a': AC['a'], 'b': AC['b']}
    a(f"v_mov_b32 v{Mr['a']}, 0xff800000\nv_mov_b32 v{Mr['b']}, 0xff800000\ns_mov_b32 s26, 0")
    a.label("Lfb_loop")
    for j in range(2): a(f"buffer_load_dwordx4 {v(AK[0][j],4)}, v{AVK}, s[{SRD_KV}:{SRD_KV+3}], s26 offen offset:{1024*j} sc1")
    for j in range(2): a(f"buffer_load_dwordx4 {v(AV[0][j],4)}, v{AVO}, s[{SRD_KV}:{SRD_KV+3}], s26 offen offset:{2048+1024*j} sc1")
    a("s_waitcnt vmcnt(0)")
    for q in 'ab':
        S = AS[0]
        a(qk1(S,0,q,"0")); a(qk2(S,0,q)); a("s_nop 15")
        rowmax16(a, S, 2, 3)
        a(f"v_max_f32 v2, v2, v{Mr[q]}\nv_sub_f32 v3, v{Mr[q]}, v2\nv_exp_f32 v3, v3\nv_mov_b32 v{Mr[q]}, v2")
        for i in range(16): a(f"v_sub_f32 v{S+i}, v{S+i}, v2")
        for i in range(16): a(f"v_exp_f32 v{S+i}, v{S+i}")
        for i in range(16): a(f"v_mul_f32 v{AO[q]+i}, v3, v{AO[q]+i}")
        for i in range(4): a(f"v_mul_f32 v{AL[q]+i}, v3, v{AL[q]+i}")
        a("s_nop 1")
        a(pv(S,0,0,q)); a(sm(S,0,q)); a(pv(S,1,0,q)); a(sm(S,1,q))
        a("s_nop 15")
    a("s_add_u32 s26, s26, 4096\ns_cmp_lt_u32 s26, 262144\ns_cbranch_scc1 Lfb_loop")
    for x in lbroadcast(): a(x)
    a("s_branch Lattn_fin")

PACC = 40
PWF = [104, 120]
POF = 168
POLLS = []
def proj_body(a, old):
    vm = VmTrack(); fpos = {}
    R = "o" if old else "y"
    def wreads(p):
        off = (p if p < 16 else p - 16 + 8 if p < 24 else (p - 24) % 4) * 4096
        return [f"ds_read_b64_tr_b16 {v(PWF[p&1]+4*ct+2*h,2)}, v{P_WR[ct]} offset:{off + h*1024}" for ct in range(4) for h in range(2)]
    def check(g, hi=False):
        nm = f"Lpoll{R}{g}"; POLLS.append((nm, hi))
        return [f"s_cmp_lg_u32 s{S_MASK}, -1", f"s_cbranch_scc1 {nm}", f"{nm}_r:"]
    def setline(g): return f"s_xor_b32 s{S_FSO}, s{S_FL0}, {(g & 1) * 128 + (g >> 1) * 256}"
    def force(g, hi=False): return [f"s_mov_b32 s{S_MASK}, 0", setline(g)] + check(g, hi)
    def oload(p):
        vm.issue(("O", p)); vm.issue(("O", p))
        return oload_ins(p)
    PX, YX3 = opt("px", 10), opt("yx3", 5)
    if old:
        a("s_waitcnt vmcnt(4)\ns_barrier")
        stamp(a, None, "e")
        for x in publish(V_FA2): a(x)
        stamp(a, 5)
        for x in [f"s_lshl_b32 s{S_WOM}, s{S_W}, 10"] + wo_rows(4) + [f"s_add_u32 s{S_WOM}, s{S_WOM}, {131072 - 16384}"] + wo_rows(4) + ["s_waitcnt vmcnt(8)"]: a(x)
        OPRE = opt("opre", 6)
        if opt("olow", 1): a("s_setprio 0")
        stamp(a, None, "o")
        for p in range(OPRE):
            if p % 8 == 0:
                for x in force(p // 8, not opt("olow", 1)): a(x)
                stamp(a, None, "o")
            for x in oload(p): a(x)
        a("s_setprio 0")
        nxt = OPRE
    else:
        stamp(a, None, "e")
        YPUB = opt("ypub", 2)
        if YPUB < 0:
            for x in publish(V_FA2): a(x)
        a(f"s_setprio {opt('yprio', 1)}")
        stamp(a, 5)
        a(f"s_cmp_eq_u32 s{S_EARLY}, 1\ns_cbranch_scc1 Learly")
        for x in force(0): a(x)
        for p in range(4):
            for x in oload(p): a(x)
        a.label("Learly")
        for _ in range(1 + (opt("opre", 6) + 7) // 8): stamp(a, None, "o")
        spos = len(vm.ops)
        for p in range(4, DEPTH):
            for x in oload(p): a(x)
        nxt = DEPTH
    for x in wreads(0): a(x)
    stamp(a, 6)
    for p in range(32):
        if p + 1 == 16:
            for ct in range(4): a(f"v_add_u32 v{P_WR[ct]}, {-65536 & 0xffffffff}, v{P_WR[ct]}")
        if p + 1 == 28:
            for ct in range(4): a(f"v_add_u32 v{P_WR[ct]}, 131072, v{P_WR[ct]}")
        wc = vm.wait_count({('O', p)})
        if not old and YPUB >= 0 and p < 4:
            a(f"s_cmp_eq_u32 s{S_EARLY}, 1\ns_cbranch_scc1 Lw{p}a\ns_waitcnt vmcnt({wc})\nLw{p}a:\ns_waitcnt vmcnt({wc + 4}) lgkmcnt(0)")
        else:
            a(f"s_waitcnt vmcnt({wc}) lgkmcnt(0)")
        if not old and p == YPUB:
            for x in [f"s_waitcnt vmcnt({len(vm.ops) - spos})"] + publish(V_FA2)[1:]: a(x)
        gaps = [[] for _ in range(8)]
        for i, r in enumerate(wreads(p + 1) if p + 1 < 32 else []): gaps[i // 2].append(r)
        if not old and p == YX3: gaps[0].append("s_barrier")
        todo = []
        if old:
            todo = list(range(nxt, min(32 if p >= PX else 16, nxt + 2, 16 + p, p + 1 + opt("odold", 6))))
        elif nxt < 32: todo = [nxt]
        gi = 4
        for n in todo:
            if n % 8 == 0:
                g = n // 8
                if old and g == 2: gaps[gi] += ["s_barrier"] + force(g)
                elif g in fpos: gaps[gi] += [f"s_waitcnt vmcnt({len(vm.ops) - fpos[g]})", flag_cmp(), "s_nop 0"] + check(g)
                else: gaps[gi] += force(g)
            o = oload(n)
            gaps[gi].append(o[0]); gaps[gi + 1].append(o[1]); gi += 2
            if (n + 3) % 8 == 0 and n + 3 < 32:
                g = (n + 3) // 8
                gaps[gi - 1] += [setline(g), flag_load()]
                fpos[g] = len(vm.ops)
            nxt = n + 1
        n = 0
        for tt in range(2):
            for ct in (range(4) if tt == 0 else range(3, -1, -1)):
                d = PACC + (tt*4+ct)*4
                a(f"v_mfma_f32_16x16x32_bf16 {v(d,4)}, {v(PWF[p&1]+4*ct,4)}, {v(oslot(p, tt),4)}, {'0' if p==0 else v(d,4)}")
                for x in gaps[n]: a(x)
                n += 1
        if p % 4 == 3: stamp(a, None, "p")
        if p in (1, 9, 20): jitter(a)
    assert nxt == 32

def proj(a):
    a(f"s_mov_b64 s[{SRD_F}:{SRD_F+1}], s[{SRD_F2}:{SRD_F2+1}]\ns_mov_b32 s{SRD_F+2}, 2048")
    a(f"s_cmp_lt_u32 s{S_W}, 4\ns_cselect_b64 vcc, -1, 0\ns_cbranch_scc0 Lproj_y")
    proj_body(a, True)
    a("s_branch Lproj_e\nLproj_y:")
    proj_body(a, False)
    a.label("Lproj_e")
    a(f"""
    v_lshrrev_b32 v4, 4, v1
    v_and_b32 v2, 15, v1
    v_lshlrev_b32 v2, 12, v2
    v_and_b32 v3, 1, v4
    v_lshl_add_u32 v2, v3, 5, v2
    v_lshrrev_b32 v3, 1, v4
    v_lshl_add_u32 v2, v3, 4, v2
    s_mov_b32 s26, 65536
    s_nop 3
    """)
    for tt in range(2):
        for pr in range(2):
            d = POF + (tt*2+pr)*4
            for x in range(2):
                s0 = PACC + (tt*4+2*pr+x)*4
                a(f"v_cvt_pk_bf16_f32 v{d+2*x}, v{s0}, v{s0+1}\nv_cvt_pk_bf16_f32 v{d+2*x+1}, v{s0+2}, v{s0+3}")
            a(f"s_nop 1\nv_permlane16_swap_b32 v{d}, v{d+2}\nv_permlane16_swap_b32 v{d+1}, v{d+3}")
            a(f"buffer_store_dwordx4 {v(d,4)}, v2, s[{SRD_OUT}:{SRD_OUT+3}], {'0' if tt==0 else 's26'} offen offset:{64*pr}{' ' + opt('ofl', 'nt').replace('_', ' ') if opt('ofl', 'nt') else ''}")

def build():
    a = Asm()
    decode(a, "Lend")
    gemm1_setup_dma(a)
    jitter(a)
    stamp(a, 0); dbgstamp(a, 1)
    gemm1_main(a, late_setup())
    stamp(a, 2); dbgstamp(a, 3)
    transition_ab(a)
    stamp(a, 3); jitter(a)
    attention(a)
    jitter(a)
    dbgstamp(a, 4)
    proj(a)
    stamp(a, 7); dbgstamp(a, 5); dbgflush(a)
    stamp_flush(a, 8)
    a.label("Lend")
    a("s_endpgm")
    for nm in ("Lspin_c1a", "Lspin_c1", "Lspin_loop", "Lspin_15"): spin_flags(a, nm)
    a(f"""
    Lnonce_spin:
    s_mov_b32 s{S_SPIN}, {SPIN_LIMIT}
    Lnonce_l:
    buffer_load_dwordx2 {v(V_NON,2)}, v{V_PD+1}, s[92:95], 0 offen sc1
    s_waitcnt vmcnt(0)
    v_readfirstlane_b32 s{S_NONCE}, v{V_NON}
    v_readfirstlane_b32 s{S_NONCE+1}, v{V_NON+1}
    s_sub_u32 s{S_SPIN}, s{S_SPIN}, 1
    s_cbranch_scc1 Lnonce_ok
    s_cmp_eq_u32 s{S_NONCE}, 0
    s_cbranch_scc1 Lnonce_l
    s_branch Lnonce_ok
    """)
    for nm, hi in POLLS: spin(a, nm, [f"s_cmp_lg_u32 s{S_MASK}, -1"], lowprio=hi, SLEEP=opt("sleep2", 0) if nm[-1] in "13" else SLEEP)
    fallback(a)
    a.label("Lcode_end")
    return a.text()

def main(out):
    P = "concat_heads__mha_block__softmax_full_mha__prompt_kernel"
    txt = f"""; Kernarg layout (72 bytes, pointers only, base s[0:1]):
;   0 A_x  8 A_wqkv  16 A_wo  24 B_x  32 B_wqkv  40 B_wo  48 d_out  56 d_debug  64 d_ws
; One fused kernel, 256 workgroups (one per CU) x 8 waves; workgroup = (block b, 256 tokens tm, head pair hp).
;   phase A  QKV projection 256x192x1024 (LDS-DMA ring, 16x16x32 MFMA); Q stays in registers, K/V go to LDS and to d_ws
;   phase B  softmax(QK^T)V for 2 heads x 256 queries. exp2 results feed v_smfmac directly (high halves = bf16).
;            Shift = max of the first key tile (carried in the MFMA C operand); a run-time check of the row sums
;            falls back to an exact running-max loop when that shift could overflow.
;   phase C  output projection 256x64x1024, O fragments from d_ws
; Hand-offs between workgroups: write-through stores, then a per-wave flag holding a per-launch nonce (kept in d_debug).
; @launch grid=(256,1,1) block=(512,1,1) lds=163840
.amdgcn_target "amdgcn-amd-amdhsa--gfx950"
.text
""" + kernel_header(P) + build() + '.section .rodata,"a"\n' + kernel_desc(P, 256, sgpr=102 if DBG or JIT else 96)
    open(out, "w").write(txt)

if __name__ == "__main__":
    args = [x for x in sys.argv[1:] if not x.startswith("--")]
    main(args[0] if args else "concat_heads__mha_block__softmax_full_mha__prompt.s")
```

```python
import sys, struct, math
from dsl import *

def opt(name, default):
    for x in sys.argv:
        if x.startswith(f"--{name}="): return type(default)(x[len(name) + 3:])
    return default
STAMP = "--stamp" in sys.argv
ROT = opt("rot", 2)
PRO = opt("pro", "X0,W0,Q0,B,W1,X1,W2").replace(",", " ")
STEPX = {}
for it in opt("stepx", "0:W3.X2.Q1;1:W4;8:Q2;16:Q3").split(";"):
    if it:
        k, val = it.split(":"); STEPX[int(k)] = val.split(".")
SC1 = "" if "--nosc1" in sys.argv else " sc1"
NTD = " nt" if "d" in opt("nt", "") else (" " + opt("dfl", "").replace("_", " ") if opt("dfl", "") else "")
NTP = " nt" if "p" in opt("nt", "") else ""
NTW = " nt" if "w" in opt("nt", "") else ""
ROTB = opt("rotb", -1)

KV_OFF = 0
O_OFF = 24 << 20
F1_OFF = 32 << 20
F2_OFF = 33 << 20
SLEEP = opt('sleep', 0)
ST_OFF = 64 << 20
QSCALE = struct.unpack("<I", struct.pack("<f", math.log2(math.e) / math.sqrt(32.0)))[0]
SPIN_LIMIT = 1 << 17

S_W, S_B, S_TM, S_HP = 16, 17, 18, 19
S_SOX, S_SOW, S_XB, S_WB = 20, 21, 22, 23
S_EXW = 24
S_NONCE = 80
S_MASK = 82
S_CIDX, S_M0, S_CNT, S_CH, S_WOS, S_WOM, S_FIDX, S_SPIN = 84, 85, 86, 87, 88, 89, 90, 91
S_WOI, S_WOB = 20, 21
PRIO = opt('prio', 1)
SRD_KV, SRD_F, SRD_WO, SRD_O = 4, 8, 52, 12
SRD_KVS = 56
SRD_OUT, SRD_OL, SRD_F2 = 36, 32, 76
S_FL0 = 40

def make_srd(a, d, lo, hi, off_sgpr, nrec):
    a(f"s_add_u32 s{d}, s{lo}, s{off_sgpr}\ns_addc_u32 s{d+1}, s{hi}, 0\ns_and_b32 s{d+1}, s{d+1}, 0xffff")
    a(f"s_mov_b32 s{d+2}, {nrec}\ns_mov_b32 s{d+3}, 0x00020000")

NST = [0]
STG = opt("stg", "m")
def stamp(a, i=None, g="m"):
    if not STAMP: return
    if i is None: g = "a" if g == "m" else g
    if g not in STG: return
    a("s_memrealtime s[60:61]\ns_memtime s[62:63]\ns_waitcnt lgkmcnt(0)\ns_lshl_b64 exec, 1, s64\nv_mov_b32 v0, s60\nv_mov_b32 v203, s62\ns_mov_b64 exec, -1\ns_add_u32 s64, s64, 1")
DBG = "--dbg" in sys.argv
def dbgstamp(a, i, inv=False):
    if DBG: a(f"s_memrealtime s[60:61]\ns_waitcnt lgkmcnt(0)\ns_mov_b32 s{96+i}, s60")
def dbgflush(a):
    if not DBG: return
    a(f"s_cmp_lg_u32 s{S_W}, 0\ns_cbranch_scc1 Ldbg_e\ns_mov_b64 exec, 1\nv_mov_b32 v4, 0")
    for i in range(5):
        a(f"s_sub_u32 s27, s{97+i}, s{96+i}\nv_mov_b32 v{5+2*i}, s27\nbuffer_atomic_umax v{5+2*i}, v4, s[92:95], 0 offen offset:{8+4*i}\nv_mov_b32 v{6+2*i}, s27\nbuffer_atomic_add v{6+2*i}, v4, s[92:95], 0 offen offset:{32+4*i}")
    a("Ldbg_e:")
JIT = opt("jit", 0)
JC = [0]
def jitter(a):
    if not JIT: return
    JC[0] += 1
    k = JC[0]
    a(f"""
    s_mul_i32 s96, s2, {37 + 2 * k}
    s_mul_i32 s97, s{S_W}, {JIT * 11 + k}
    s_add_u32 s96, s96, s97
    s_lshr_b32 s97, s96, 3
    s_xor_b32 s96, s96, s97
    s_and_b32 s96, s96, 31
    Ljit{k}:
    s_cmp_eq_u32 s96, 0
    s_cbranch_scc1 Ljit{k}e
    s_sleep {JIT}
    s_sub_u32 s96, s96, 1
    s_branch Ljit{k}
    Ljit{k}e:
    """)
def stamp_flush(a, n):
    if not STAMP: return
    a(f"""
    s_lshl_b32 s26, s2, 3
    s_add_u32 s26, s26, s{S_W}
    s_lshl_b32 s26, s26, 9
    s_add_u32 s30, s26, {ST_OFF}
    """)
    make_srd(a, 56, 48, 49, 30, 512)
    a("v_lshlrev_b32 v2, 3, v1\nv_mov_b32 v4, v0\nv_mov_b32 v5, v203\nbuffer_store_dwordx2 v[4:5], v2, s[56:59], 0 offen")

ACC = 8
def acc(tt, f): return ACC + (tt * 6 + f) * 4
XF = [[104 + 4*i for i in range(4)], [144 + 4*i for i in range(4)]]
WF = [[120 + 4*i for i in range(6)], [160 + 4*i for i in range(6)]]
V_XR = [208, 209]; V_WR = [210, 211]; V_XD = list(range(184, 192)); V_WD = [212, 213, 214]
V_PX, V_PW, V_PD = 218, 219, 220
V_NON = 222
LDS_W = 98304

EPF = opt("epf", 3)
def entry_pf():
    if EPF == 0: return ""
    if EPF == 4:
        return f"""
        s_getpc_b64 s[26:27]
        Lpcref0:
        v_lshlrev_b32 v2, 7, v0
        v_min_u32 v2, Lcode_end-Lpcref0-4, v2
        v_mov_b32 v3, 0
        v_lshl_add_u64 v[2:3], v[2:3], 0, s[26:27]
        global_load_dword v{V_NON+1}, v[2:3], off
        """
    if EPF == 1:
        addr = """
        v_subrev_u32 v2, 448, v0
        v_cmp_gt_u32 vcc, 48, v2
        s_and_saveexec_b64 s[30:31], vcc
        s_cbranch_execz Lepf_e
        s_lshr_b32 s28, s2, 3
        s_lshl_b32 s28, s28, 4
        v_cmp_le_u32 vcc, 32, v2
        v_mov_b32 v3, s28
        s_nop 0
        v_cndmask_b32 v3, 0, v3, vcc
        v_add_u32 v2, v2, v3
        """
    else:
        addr = f"""
        v_xor_b32 v2, 256, v0
        v_cmp_gt_u32 vcc, {256 if EPF == 2 else 512}, v2
        s_and_saveexec_b64 s[30:31], vcc
        s_cbranch_execz Lepf_e
        """
    return addr + f"""
        s_getpc_b64 s[26:27]
        Lpcref0:
        v_lshlrev_b32 v2, 7, v2
        v_min_u32 v2, Lcode_end-Lpcref0-4, v2
        v_mov_b32 v3, s27
        v_add_co_u32 v2, vcc, s26, v2
        s_nop 1
        v_addc_co_u32 v3, vcc, 0, v3, vcc
        global_load_dword v{V_NON+1}, v[2:3], off
        Lepf_e:
        s_mov_b64 exec, -1
        """
def decode(a, end):
    a(f"""
    s_cmp_ge_u32 s2, 256
    s_cbranch_scc1 {end}
    {"s_memrealtime s[96:97]" if DBG else ""}
    s_load_dwordx16 s[32:47], s[0:1], 0
    {entry_pf()}
    s_load_dwordx2 s[48:49], s[0:1], 64
    v_lshrrev_b32 v1, 6, v0
    s_and_b32 s26, s2, 7
    s_lshr_b32 s27, s2, 3
    v_readfirstlane_b32 s{S_W}, v1
    s_lshr_b32 s{S_B}, s26, 2
    s_and_b32 s28, s26, 1
    s_lshl_b32 s28, s28, 2
    s_and_b32 s29, s27, 3
    s_add_u32 s{S_TM}, s28, s29
    s_bfe_u32 s28, s26, 0x10001
    s_lshl_b32 s28, s28, 3
    s_lshr_b32 s29, s27, 2
    s_add_u32 s{S_HP}, s28, s29
    v_and_b32 v1, 63, v0
    s_mul_i32 s51, {'s26' if ROTB < 0 else 's17'}, {ROT if ROTB < 0 else ROTB}
    s_and_b32 s51, s51, 15
    s_lshl_b32 s14, s51, 1
    s_lshl_b32 s15, s51, 7
    s_mov_b32 s64, 0
    """)

NLAB = [0]
ROLE = [None]
def if_vcc(ins, want=True):
    if ROLE[0] is not None: return list(ins) if ROLE[0] == want else []
    NLAB[0] += 1
    return [f"s_cbranch_vcc{'z' if want else 'nz'} Lskip{NLAB[0]}"] + ins + [f"Lskip{NLAB[0]}:"]
old_only = if_vcc

def gemm1_setup_dma(a):
    a(f"""
    s_cmp_lt_u32 s{S_W}, 4
    s_cselect_b64 vcc, -1, 0
    s_cbranch_scc0 Lsetup1
    s_setprio 1
    Lsetup1:
    s_and_b32 s30, s{S_W}, 3
    s_mul_i32 s{S_XB}, s30, 24576
    s_mul_i32 s26, s30, 3072
    s_add_u32 s{S_WB}, s26, {LDS_W}
    v_lshrrev_b32 v2, 3, v1
    s_lshl_b32 s26, s30, 6
    v_add_u32 v7, s26, v2
    v_and_b32 v3, 7, v1
    v_lshrrev_b32 v4, 4, v1
    v_xor_b32 v5, v3, v4
    v_lshlrev_b32 v5, 4, v5
    v_lshl_add_u32 v{V_XD[0]}, v7, 11, v5
    v_xor_b32 v5, 64, v5
    v_lshl_add_u32 v{V_XD[1]}, v7, 11, v5
    v_add_u32 v{V_XD[1]}, {8*2048}, v{V_XD[1]}
    """)
    for q in range(2, 8): a(f"v_add_u32 v{V_XD[q]}, {16*2048}, v{V_XD[q-2]}")
    a(f"s_mul_i32 s26, s30, 24")
    for q in range(3):
        a(f"""
        v_add_u32 v7, s26, v2            ; R
        s_add_u32 s26, s26, 8
        v_lshrrev_b32 v4, 5, v7          ; sec
        v_and_b32 v7, 31, v7             ; k
        v_and_b32 v5, 2, v7
        v_bfe_u32 v6, v7, 3, 1
        v_lshl_or_b32 v5, v6, 2, v5      ; swz*2
        v_xor_b32 v5, v3, v5             ; chunk
        v_lshlrev_b32 v5, 4, v5
        v_lshl_add_u32 v5, v4, 11, v5
        v_mul_u32_u24 v7, 6144, v7
        v_add_u32 v{V_WD[q]}, v7, v5
        """)
    a(f"""
    s_waitcnt lgkmcnt(0)
    s_cmp_eq_u32 s{S_B}, 0
    s_cselect_b32 s26, s32, s38
    s_cselect_b32 s27, s33, s39
    s_cselect_b32 s28, s34, s40
    s_cselect_b32 s29, s35, s41
    s_lshl_b32 s30, s{S_TM}, 19
    """)
    make_srd(a, 4, 26, 27, 30, 524288)
    a(f"s_lshl_b32 s30, s{S_HP}, 7\ns_sub_u32 s31, {1024*6144}, s30")
    make_srd(a, 8, 28, 29, 30, "s31")

def gemm1_setup_rest(a):
    a(f"""
    s_and_b32 s30, s{S_W}, 3
    s_mul_i32 s30, s30, 24576
    v_and_b32 v2, 15, v1             ; c
    v_lshrrev_b32 v4, 4, v1          ; G
    v_lshrrev_b32 v5, 1, v2
    v_xor_b32 v5, v4, v5
    v_lshlrev_b32 v5, 4, v5
    v_lshl_add_u32 v5, v2, 7, v5
    v_add_u32 v{V_XR[0]}, s30, v5
    v_xor_b32 v{V_XR[1]}, 64, v{V_XR[0]}
    v_bfe_u32 v2, v1, 2, 2           ; r
    v_and_b32 v3, 3, v1              ; c4
    v_lshl_add_u32 v5, v4, 3, v2     ; k = 8G + r
    v_lshrrev_b32 v6, 1, v2
    v_and_b32 v7, 1, v4
    v_lshl_or_b32 v6, v7, 1, v6      ; swz
    s_lshr_b32 s30, s{S_W}, 2
    s_lshl_b32 s30, s30, 1
    v_xor_b32 v6, s30, v6
    v_lshlrev_b32 v6, 5, v6
    v_lshl_add_u32 v6, v3, 3, v6
    v_lshl_add_u32 v6, v5, 7, v6
    v_add_u32 v{V_WR[0]}, {LDS_W}, v6
    v_xor_b32 v{V_WR[1]}, 32, v{V_WR[0]}
    """)
    a(f"s_lshr_b32 s30, s{S_TM}, 2\ns_lshl_b32 s30, s30, 21")
    make_srd(a, 52, 26, 27, 30, 2 << 20)
    a(f"s_lshr_b32 s30, s{S_HP}, 3\ns_lshl_b32 s30, s30, 10\ns_sub_u32 s31, {1024*6144}, s30")
    make_srd(a, 56, 28, 29, 30, "s31")
    toks = PRO + " ".join(" ".join(x) for x in STEPX.values())
    if "Q" in toks or "R" in toks:
        for l in q_setup(): a(l)
    if "P" in toks: a(f"""
    s_lshr_b32 s26, s2, 3
    s_lshl_b32 s26, s26, 3
    s_add_u32 s26, s26, s{S_W}       ; u
    s_lshl_b32 s27, s26, 13
    v_and_b32 v2, 3, v1
    v_lshlrev_b32 v2, 11, v2
    v_lshrrev_b32 v3, 2, v1
    v_lshl_add_u32 v2, v3, 7, v2
    v_add_u32 v{V_PX}, s27, v2
    v_mul_u32_u24 v2, 43, v1
    v_lshrrev_b32 v2, 8, v2
    v_mul_u32_u24 v3, 6, v2
    v_sub_u32 v3, v1, v3
    s_and_b32 s27, s26, 3
    s_mul_i32 s27, s27, 6
    v_add_u32 v3, s27, v3
    v_lshrrev_b32 v4, 3, v3
    v_and_b32 v3, 7, v3
    v_lshlrev_b32 v3, 7, v3
    v_lshl_add_u32 v3, v4, 11, v3
    s_lshr_b32 s27, s26, 2
    v_lshl_add_u32 v2, v2, 6, s27
    v_mul_u32_u24 v2, 6144, v2
    v_add_u32 v{V_PW}, v2, v3
    """)
    a(f"""
    v_mov_b32 v{V_PD+1}, 0
    s_or_b32 s26, s2, s{S_W}
    s_cmp_lg_u32 s26, 0
    s_cbranch_scc1 Lnononce
    s_memrealtime s[26:27]
    s_mov_b32 s28, s46
    s_and_b32 s29, s47, 0xffff
    s_mov_b32 s30, 256
    s_mov_b32 s31, 0x00020000
    s_waitcnt lgkmcnt(0)
    s_or_b32 s26, s26, 1
    v_mov_b32 v2, s26
    v_mov_b32 v3, s27
    s_mov_b64 exec, 1
    buffer_store_dwordx2 v[2:3], v{V_PD+1}, s[28:31], 0 offen sc1
    s_mov_b64 exec, -1
    Lnononce:
    """)

def pf_batch(s0, n):
    return [f"s_add_u32 s13, s51, {s0}", "s_and_b32 s13, s13, 15", f"s_bfm_b64 exec, {6*n}, 0", f"s_mul_i32 s50, s13, {64*6144}",
            f"buffer_load_dword v{V_PD}, v{V_PW}, s[56:59], s50 offen{NTP}", "s_lshl_b32 s13, s13, 7",
            f"s_bfm_b64 exec, {4*n}, 0",
            f"buffer_load_dword v{V_PD}, v{V_PX}, s[52:55], s13 offen{NTP}", "s_mov_b64 exec, -1"]
V_QW, V_QX = 218, 219
SLOWC = opt("slowc", 3)
def q_setup():
    return [f"s_lshr_b32 s12, s2, 3", "s_lshl_b32 s12, s12, 3", f"s_add_u32 s12, s12, s{S_W}",
            f"v_lshlrev_b32 v{V_QW}, 11, v1", f"v_add_u32 v{V_QW}, {SLOWC*128}, v{V_QW}",
            "v_and_b32 v2, 3, v1", "v_lshlrev_b32 v2, 11, v2", "v_bfe_u32 v3, v1, 2, 1", "v_lshl_add_u32 v2, v3, 10, v2",
            "s_lshl_b32 s13, s12, 13", f"s_add_u32 s13, s13, {SLOWC*128}", f"v_add_u32 v{V_QX}, s13, v2",
            "s_lshl_b32 s13, s51, 6", "s_add_u32 s12, s12, s13"]
def q_batch(i):
    return [f"s_add_u32 s13, s12, {256*i}", "s_and_b32 s13, s13, 1023", "s_mov_b64 exec, 7", "s_mul_i32 s13, s13, 6144",
            f"buffer_load_dword v{V_NON+1}, v{V_QW}, s[56:59], s13 offen", "s_mov_b64 exec, -1"]
def r_batch():
    return ["s_mov_b64 exec, 0xff", f"buffer_load_dword v{V_NON+1}, v{V_QX}, s[52:55], 0 offen", "s_mov_b64 exec, -1"]
def dma_x(stage, q):
    return [f"s_add_u32 m0, s{S_XB}, {(stage % 3)*8192 + q*1024}", f"buffer_load_dwordx4 v{V_XD[q]}, s[4:7], s{S_SOX} offen{NTD} lds"]
def dma_w(step, q):
    return [f"s_add_u32 m0, s{S_WB}, {(step % 5)*12288 + q*1024}", f"buffer_load_dwordx4 v{V_WD[q]}, s[8:11], s{S_SOW} offen{NTD} lds"]
def frag_reads(step):
    p = step & 1; xs = (step >> 1) % 3; ws = step % 5
    X = [f"ds_read_b128 {v(XF[p][tt],4)}, v{V_XR[p]} offset:{xs*8192 + tt*2048}" for tt in range(4)]
    W = [[f"ds_read_b64_tr_b16 {v(WF[p][f]+2*h,2)}, v{V_WR[f&1]} offset:{ws*12288 + (f>>1)*4096 + h*512}" for h in range(2)] for f in range(6)]
    return [X[0]] + W[0] + W[1] + W[2] + [X[1]] + W[3] + W[4] + W[5] + [X[2], X[3]]
def gemm1_mfmas(step):
    p = step & 1; out = []
    if opt("gord", 1):
        order = [(tt, f) for tt in range(4) for f in (range(4) if tt % 2 == 0 else range(3, -1, -1))] + [(tt, f) for tt in range(3, -1, -1) for f in ((4, 5) if tt % 2 else (5, 4))]
    else:
        order = [(tt, f) for tt in range(4) for f in (range(6) if tt % 2 == 0 else range(5, -1, -1))]
    for tt, f in order:
        d = acc(tt, f)
        A, B = (WF[p][f], XF[p][tt]) if f < 4 else (XF[p][tt], WF[p][f])
        out.append(f"v_mfma_f32_16x16x32_bf16 {v(d,4)}, {v(A,4)}, {v(B,4)}, {'0' if step == 0 else v(d,4)}")
    return out

HB = opt('hb', 1)
RD0, DG0, DGS = opt('rd0', 0), opt('dg0', 1), opt('dgs', 10)
def gemm1_main(a, late):
    vm = VmTrack()
    def group(tok):
        if tok == "B": return [["s_barrier"]], []
        if tok[0] == "Q": return [q_batch(int(tok[1:]))], ["pf"]
        if tok[0] == "R": return [r_batch()], ["pf"]
        if tok[0] == "P":
            s0, n = map(int, tok[1:].split("_")); return [pf_batch(s0, n)], ["pf", "pf"]
        if tok[0] == "W":
            st = int(tok[1:]); g = [f"s_add_u32 s{S_SOW}, s14, {st}", f"s_and_b32 s{S_SOW}, s{S_SOW}, 31"]
            for q in range(3):
                m, l = dma_w(st, q); g += [m, f"s_mul_i32 s{S_SOW}, s{S_SOW}, {32*6144}" if q == 0 else "s_nop 0", l]
            return [old_only(g)], [("W", st)] * 3
        if tok == "Y0":
            g = {}
            for role, qs in ((True, range(0, 4)), (False, range(4, 8))):
                g[role] = [f"s_and_b32 s{S_SOX}, s15, 0x780"]
                for q in qs:
                    m, l = dma_x(0, q); g[role] += [m, "s_nop 0", l]
            return [if_vcc(g[True], True) + if_vcc(g[False], False)], [("X", 0)] * 4
        if tok[0] == "X":
            if "h" in tok: S, h = tok[1:].split("h"); S = int(S); qs = range(0, 4) if h == "0" else range(4, 8)
            else: S = int(tok[1:]); qs = range(8)
            g = [f"s_add_u32 s{S_SOX}, s15, {S*128}"]
            for q in qs:
                m, l = dma_x(S, q); g += [m, f"s_and_b32 s{S_SOX}, s{S_SOX}, 0x780" if q == qs[0] else "s_nop 0", l]
            return [old_only(g)], [("X", S)] * len(qs)
    first = True
    for tok in PRO.split():
        g, t = group(tok)
        for x in g:
            for y in x: a(y)
        for y in t: vm.issue(y)
        if tok == "W0":
            gemm1_setup_rest(a)
    if "Y0" in PRO:
        for x in if_vcc(["s_waitcnt vmcnt(0)"], False): a(x)
    a(f"s_waitcnt vmcnt({vm.wait_count({('X',0),('W',0)})})")
    a("s_barrier")
    stamp(a, 1); dbgstamp(a, 2)
    for l in frag_reads(0): a(l)
    for st in range(32):
        bar = (not HB) or st == 0 or st % 2 == 1
        if st == 31:
            a("s_waitcnt vmcnt(0) lgkmcnt(0)")
        elif bar:
            ahead = [st + 1] + ([st + 2] if HB and st % 2 == 1 else [])
            need = {("W", x) for x in ahead} | {("X", x >> 1) for x in ahead}
            for nd in need: assert vm.ops.count(nd) == (3 if nd[0] == "W" else 8) or nd == ("X", 0), (st, nd)
            a(f"s_waitcnt vmcnt({min(63, vm.wait_count(need))}) lgkmcnt(0)")
        else:
            a("s_waitcnt lgkmcnt(0)")
        if bar: a("s_barrier")
        if st % 4 == 0: stamp(a, None, "g")
        if st in (2, 9, 30): jitter(a)
        M = gemm1_mfmas(st)
        if st == 31:
            a.label("Lgemm_end")
            last_step(a, late[31]); break
        R = frag_reads(st + 1) if st + 1 < 32 else []
        toks = list(STEPX.get(st, []))
        if not HB:
            if st + 5 < 32: toks.append(f"W{st+5}")
        elif st >= 1 and st + 4 < 32:
            toks.append(f"W{st+4}")
        if st >= 1 and ((st - 1) >> 1) + 3 < 16: toks.append(f"X{((st-1)>>1)+3}h{0 if st % 2 == 1 else 1}")
        D = []
        for tok in toks:
            g, t = group(tok); D += g
            for y in t: vm.issue(y)
        gaps = [[] for _ in range(24)]
        for i, r in enumerate(R): gaps[i + RD0].append(r)
        for i, d in enumerate(D): gaps[min(23, DG0 + (i * DGS if len(D) <= 3 else (i * (23 - DG0)) // len(D)))] += d
        lt = late.get(st, [])
        assert len(lt) <= 24
        for i, x in enumerate(lt):
            gaps[i].append(x)
            if x.startswith("buffer_"): vm.issue("late")
        for i, m in enumerate(M):
            a(m)
            for x in gaps[i]:
                if "--xnodma" in sys.argv and x.endswith("lds") and st > 3: continue
                if "--xnord" in sys.argv and x.startswith("ds_read") and st > 3: continue
                a(x)

AS = [8, 24, 40, 56]
AO = {'a': 224, 'b': 240}
AQ = {('a',0): 104, ('a',1): 108, ('b',0): 112, ('b',1): 116}
AC = {'a': 120, 'b': 136}
AK = [[152, 156], [160, 164]]
AV = [[168, 172], [176, 180]]
AL = {'a': 184, 'b': 188}
ASEL = 192; AIDX = 196; AADDR = 197; AVO = 198; AWD = 199
AFL = 200
AFA = 202
V_VS, V_VL = 205, 207
AADK, AVK = 204, 206
V_FA = 221
S_CH2 = 22
P_WR = [212, 213, 214, 215]; P_OV = [[216, 217], [218, 219]]; V_FA2 = 220
S_OSO = 64 if not STAMP else 66
def qk1(Y, kb, q, c=None): return f"v_mfma_f32_32x32x16_bf16 {v(Y,16)}, {v(AK[kb][0],4)}, {v(AQ[(q,0)],4)}, {v(AC[q],16) if c is None else c}"
def qk2(Y, kb, q): return f"v_mfma_f32_32x32x16_bf16 {v(Y,16)}, {v(AK[kb][1],4)}, {v(AQ[(q,1)],4)}, {v(Y,16)}"
def pv(Z, h, vb, q): return f"v_smfmac_f32_32x32x32_bf16 {v(AO[q],16)}, {v(AV[vb][h],4)}, {v(Z+8*h,8)}, v{AIDX}"
def sm(Z, h, q): return f"v_smfmac_f32_16x16x64_bf16 {v(AL[q],4)}, {v(ASEL,4)}, {v(Z+8*h,8)}, v{AIDX}"
def srd(d, lo, hi, off, nrec):
    return [f"s_add_u32 s{d}, s{lo}, s{off}\ns_addc_u32 s{d+1}, s{hi}, 0", f"s_and_b32 s{d+1}, s{d+1}, 0xffff", f"s_mov_b32 s{d+2}, {nrec}", f"s_mov_b32 s{d+3}, 0x00020000"]

CODEPF = [int(x) for x in opt('codepf', '12').split(',') if int(x)]
SEL2 = opt('sel2', 0)
def lbroadcast():
    if not SEL2: return []
    return [f"v_mov_b32 v{AL[q]+1}, v{AL[q]}" for q in 'ab'] + ['s_nop 1'] + [f"v_permlane32_swap_b32 v{AL[q]}, v{AL[q]+1}" for q in 'ab']
def late_setup():
    L = {}
    L[18] = [f"v_mov_b32 v{AO['a']+i}, 0" for i in range(24)]
    L19OLD = [f"v_mov_b32 v{AO['a']+24+i}, 0" for i in range(8)] + \
            [f"v_lshlrev_b32 v{AVO}, 4, v1", "v_and_b32 v2, 7, v1", f"v_lshlrev_b32 v{AFA}, 3, v2", f"s_lshr_b32 s26, s{S_W}, 2", "s_lshl_b32 s26, s26, 14",
             f"v_add_u32 v{AADDR}, s26, v{AVO}", f"v_mov_b32 v{AIDX}, 0xdddddddd",
             "v_bfe_u32 v2, v1, 2, 1", "v_mov_b32 v3, 0x3f803f80", "v_cmp_eq_u32 s[28:29], 0, v2", "s_nop 1",
             f"v_cndmask_b32 v{ASEL}, 0, v3, s[28:29]", f"v_cndmask_b32 v{ASEL+1}, 0, v3, s[28:29]", f"v_xor_b32 v{ASEL+2}, v3, v{ASEL}", f"v_xor_b32 v{ASEL+3}, v3, v{ASEL}"]
    L[19] = [f"v_mov_b32 v{AO['a']+24+i}, 0" for i in range(8)] + \
            [f"v_lshlrev_b32 v{AVO}, 4, v1", "v_and_b32 v2, 7, v1", f"v_lshlrev_b32 v{AFA}, 3, v2", f"s_lshr_b32 s26, s{S_W}, 2", "s_lshl_b32 s26, s26, 14",
             f"v_add_u32 v{AADDR}, s26, v{AVO}", f"v_mov_b32 v{AIDX}, 0xdddddddd",
             f"v_and_b32 v2, {15 if SEL2 else 7}, v1", "v_mov_b32 v3, 0x3f803f80", "v_cmp_eq_u32 s[28:29], 0, v2", f"v_cmp_eq_u32 s[30:31], 4, v2",
             f"v_cndmask_b32 v{ASEL}, 0, v3, s[28:29]", f"v_cndmask_b32 v{ASEL+1}, 0, v3, s[28:29]", f"v_cndmask_b32 v{ASEL+2}, 0, v3, s[30:31]", f"v_cndmask_b32 v{ASEL+3}, 0, v3, s[30:31]"] \
            if opt("sel1", 1) else L19OLD
    L[20] = ["v_and_b32 v2, 15, v1", "v_lshrrev_b32 v4, 4, v1", "v_lshlrev_b32 v4, 9, v4", f"v_lshl_add_u32 v{V_VS}, v2, 4, v4",
             "v_bfe_u32 v2, v1, 2, 1", "v_bfe_u32 v3, v1, 3, 2", "v_and_b32 v4, 35, v1", "v_lshl_add_u32 v4, v2, 4, v4", "v_lshl_add_u32 v4, v3, 2, v4",
             f"v_lshlrev_b32 v{AVK}, 4, v4", f"v_sub_u32 v2, v{AADDR}, v{AVO}", f"v_add_u32 v{AADK}, v2, v{AVK}",
             f"s_and_b32 s26, s{S_W}, 2", "s_lshl_b32 s26, s26, 14", f"s_and_b32 s27, s{S_W}, 1", "s_lshl_b32 s27, s27, 13", "s_add_u32 s26, s26, s27",
             f"s_lshr_b32 s27, s{S_W}, 2", "s_lshl_b32 s27, s27, 14", "s_add_u32 s26, s26, s27", f"v_add_u32 v{V_VL}, s26, v{V_VS}"]
    L[21] = ["v_lshrrev_b32 v2, 3, v1", "v_and_b32 v3, 7, v1", "v_lshrrev_b32 v4, 4, v1", "v_lshlrev_b32 v4, 1, v4", "v_xor_b32 v4, v3, v4",
             "v_lshlrev_b32 v4, 4, v4", f"v_lshl_add_u32 v{AWD}, v2, 11, v4",
             f"s_cmp_eq_u32 s{S_B}, 0\ns_cselect_b32 s26, s36, s42\ns_cselect_b32 s27, s37, s43", f"s_lshl_b32 s30, s{S_HP}, 7", f"s_sub_u32 s31, {1024*2048}, s30"] \
            + srd(SRD_WO, 26, 27, 30, "s31") + ["s_mov_b32 s92, s46", "s_and_b32 s93, s47, 0xffff", "s_mov_b32 s94, 256", "s_mov_b32 s95, 0x00020000"]
    if WARMF:
        L[22] = [f"s_lshl_b32 s28, s{S_B}, 4", f"s_add_u32 s28, s28, s{S_HP}", "s_lshl_b32 s28, s28, 10", f"s_add_u32 s30, s28, {F1_OFF}",
                 f"s_lshl_b32 s28, s{S_B}, 3", f"s_add_u32 s28, s28, s{S_TM}", "s_lshl_b32 s28, s28, 11", f"s_add_u32 s31, s28, {F2_OFF}",
                 "s_mov_b32 s76, s48", "s_and_b32 s77, s49, 0xffff", f"s_mov_b32 s78, {34 << 20}", "s_mov_b32 s79, 0x00020000", "v_lshlrev_b32 v2, 7, v1",
                 "\n".join(if_vcc(["s_mov_b64 exec, 0xff", f"buffer_load_dword v{V_NON+1}, v2, s[76:79], s30 offen sc1",
                                   "s_mov_b64 exec, 0xffff", f"buffer_load_dword v{V_NON+1}, v2, s[76:79], s31 offen sc1", "s_mov_b64 exec, -1"], False))]
    if opt("tlb", 0):
        L[17] = [f"s_lshl_b32 s28, s{S_B}, 4", f"s_add_u32 s28, s28, s{S_HP}", "s_lshl_b32 s28, s28, 19", f"s_lshl_b32 s29, s{S_TM}, 15", "s_add_u32 s30, s28, s29",
                 f"s_lshl_b32 s28, s{S_B}, 22", f"s_lshl_b32 s29, s{S_TM}, 19", "s_add_u32 s31, s28, s29", f"s_lshl_b32 s29, s{S_HP}, 11", "s_add_u32 s31, s31, s29", f"s_add_u32 s31, s31, {O_OFF}",
                 "s_mov_b32 s76, s48", "s_and_b32 s77, s49, 0xffff", f"s_mov_b32 s78, {34 << 20}", "s_mov_b32 s79, 0x00020000",
                 "\n".join(if_vcc(["s_mov_b64 exec, 1", f"buffer_load_dword v{V_NON+1}, v{V_PD+1}, s[76:79], s30 offen sc1",
                                   f"buffer_load_dword v{V_NON+1}, v{V_PD+1}, s[76:79], s31 offen sc1", "s_mov_b64 exec, -1"], False))]
    L[27] = [f"v_mov_b32 v{AL['a']+i}, 0" for i in range(8)] + \
            [f"s_lshl_b32 s26, s{S_B}, 5", f"s_lshl_b32 s27, s{S_HP}, 1", "s_add_u32 s26, s26, s27",
             f"s_and_b32 s28, s{S_W}, 3", "s_lshl_b32 s29, s28, 12", "s_lshl_b32 s30, s26, 18", "s_add_u32 s31, s30, s29", "s_sub_u32 s50, 524288, s29"] \
            + srd(SRD_KV, 48, 49, 31, "s50") + [f"s_lshr_b32 s27, s{S_W}, 2", "s_add_u32 s26, s26, s27", "s_lshl_b32 s30, s26, 18"]
    L[28] = [f"buffer_load_dwordx2 {v(V_NON,2)}, v{V_PD+1}, s[92:95], 0 offen sc1",
             f"s_mov_b32 s{S_WOI}, -1", f"s_lshl_b32 s{S_WOB}, s{S_W}, 14", f"s_lshl_b32 s27, s{S_W}, 10", f"s_add_u32 s{S_WOM}, s27, 65536",
             f"s_lshl_b32 s{S_M0}, s{S_W}, 12", f"s_mov_b32 s{S_CIDX}, 16384", f"s_lshl_b32 s23, s{S_TM}, 15", f"s_lshr_b32 s51, s{S_W}, 1", f"s_mov_b32 s{S_EARLY}, 0"]
    L[29] = [f"s_lshl_b32 s27, s{S_TM}, 3", "s_lshl_b32 s28, s28, 1", "s_add_u32 s27, s27, s28", "s_lshl_b32 s29, s27, 12", "s_add_u32 s31, s30, s29"] \
            + srd(SRD_KVS, 48, 49, 31, 8192) + ["s_mov_b32 s50, 4096",
             f"s_lshl_b32 s28, s{S_B}, 22", "s_lshl_b32 s29, s27, 16", "s_add_u32 s31, s28, s29", "s_and_b32 s28, s26, 31", "s_lshl_b32 s28, s28, 10",
             "s_add_u32 s31, s31, s28", f"s_add_u32 s31, s31, {O_OFF}"] + srd(SRD_O, 48, 49, 31, 131072)
    L[30] = [f"s_lshl_b32 s28, s{S_B}, 4", f"s_add_u32 s28, s28, s{S_HP}", "s_lshl_b32 s28, s28, 10", f"s_add_u32 s31, s28, {F1_OFF}"] + srd(SRD_F, 48, 49, 31, 1024) \
            + [f"s_bitcmp0_b32 s{S_W}, 1\ns_cselect_b64 vcc, -1, 0", f"s_mov_b32 s26, {QSCALE}", f"s_mov_b32 s27, {QSCALE}"]
    L[23] = [f"s_lshl_b32 s28, s{S_B}, 3", f"s_add_u32 s28, s28, s{S_TM}", "s_lshl_b32 s28, s28, 11", f"s_add_u32 s30, s28, {F2_OFF}"] + srd(SRD_F2, 48, 49, 30, 2048) \
            + [f"s_lshl_b32 s28, s{S_B}, 22", f"s_lshl_b32 s29, s{S_TM}, 19", "s_add_u32 s30, s28, s29", f"s_lshl_b32 s29, s{S_W}, 16", "s_add_u32 s30, s30, s29",
               f"s_add_u32 s30, s30, {O_OFF}"] + srd(SRD_OL, 48, 49, 30, 65536)
    L[24] = [f"s_lshl_b32 s28, s{S_TM}, 20", f"s_lshl_b32 s29, s{S_W}, 17", "s_add_u32 s30, s28, s29", f"s_lshl_b32 s29, s{S_B}, 11", "s_add_u32 s30, s30, s29",
             f"s_lshl_b32 s29, s{S_HP}, 7", "s_add_u32 s30, s30, s29", f"s_sub_u32 s31, {2048*4096}, s30"] + srd(SRD_OUT, 44, 45, 30, "s31") \
            + [f"s_and_b32 s26, s{S_HP}, 8", "s_lshl_b32 s27, s26, 11", f"v_add_u32 v{P_OV[0][0]}, s27, v{AVO}", f"v_add_u32 v{P_OV[0][1]}, 32768, v{P_OV[0][0]}",
               f"v_xor_b32 v{P_OV[1][0]}, 16384, v{P_OV[0][0]}", f"v_xor_b32 v{P_OV[1][1]}, 16384, v{P_OV[0][1]}",
               "s_lshl_b32 s26, s26, 4", f"s_lshr_b32 s27, s{S_W}, 1", "s_lshl_b32 s27, s27, 9", f"s_add_u32 s{S_FL0}, s26, s27"]
    L[25] = [x for j in range(8) for x in (f"s_add_u32 s26, s{S_HP}, {j}", "s_and_b32 s26, s26, 7", f"s_lshl_b32 s{S_OSO+j}, s26, 11")]
    L[26] = [f"s_and_b32 s26, s{S_W}, 3", "s_lshl_b32 s26, s26, 6", f"s_lshr_b32 s27, s{S_W}, 2", "s_lshl_b32 s27, s27, 5", "s_add_u32 s26, s26, s27",
             f"s_and_b32 s27, s{S_HP}, 8", f"s_add_u32 s27, s27, s{S_HP}", "s_add_u32 s26, s26, s27", "s_lshl_b32 s26, s26, 3", f"v_mov_b32 v{V_FA2}, s26",
             "v_and_b32 v4, 15, v1", "v_lshlrev_b32 v4, 4, v4", "v_bfe_u32 v5, v1, 4, 1", "v_lshl_add_u32 v4, v5, 15, v4", "v_lshrrev_b32 v5, 5, v1", "v_lshl_add_u32 v6, v5, 8, v4"]
    L[30] += ["v_lshrrev_b32 v4, 4, v1", "v_bfe_u32 v2, v1, 2, 2", "v_and_b32 v3, 3, v1", "v_and_b32 v5, 1, v4", "v_lshrrev_b32 v4, 1, v4", "v_lshl_add_u32 v7, v5, 2, v2",
              "v_lshl_add_u32 v4, v4, 4, v7", "v_lshrrev_b32 v7, 1, v7", "v_lshlrev_b32 v7, 5, v7", "v_lshl_add_u32 v7, v3, 3, v7", "v_lshl_add_u32 v7, v4, 7, v7",
              f"v_add_u32 v{P_WR[0]}, 65536, v7\nv_xor_b32 v{P_WR[1]}, 32, v{P_WR[0]}", f"v_xor_b32 v{P_WR[2]}, 64, v{P_WR[0]}\nv_xor_b32 v{P_WR[3]}, 96, v{P_WR[0]}"]
    if opt("tlb", 0):
        L[26] += ["\n".join(if_vcc(["s_mov_b64 exec, 1", f"buffer_load_dword v{V_NON+1}, v{V_PD+1}, s[{SRD_WO}:{SRD_WO+3}], 0 offen",
                                    f"buffer_load_dword v{V_NON+1}, v{V_PD+1}, s[{SRD_OUT}:{SRD_OUT+3}], 0 offen sc1", "s_mov_b64 exec, -1"], False))]
    L[31] = []
    for k, st in enumerate(CODEPF):
        L[st] = L.get(st, []) + [f"s_getpc_b64 s[74:75]\nLpcref_{k}:", f"s_and_b32 s62, s{S_W}, 3", "s_lshl_b32 s62, s62, 13", "v_lshlrev_b32 v2, 7, v1", "v_add_u32 v2, s62, v2",
                     "v_min_u32 v2, Lcode_end-Lgemm_end-4, v2", f"s_add_u32 s74, s74, Lgemm_end-Lpcref_{k}\ns_addc_u32 s75, s75, 0", "v_mov_b32 v3, 0",
                     "v_lshl_add_u64 v[2:3], v[2:3], 0, s[74:75]", "\n".join(if_vcc([f"global_load_dword v{V_NON+1 if st < 28 else 0}, v[2:3], off"], False))]
    return L

UNITS = [('V',0,0,80), ('V',0,1,84), ('V',1,0,72), ('V',1,1,76), ('K',1,1,88), ('K',1,0,92), ('K',0,0,96), ('K',0,1,100)]
def unit_src(u):
    k, T, h, d = UNITS[u]
    return [(2*T, 4+h), (2*T+1, 4+h)] if k == 'V' else [(2*T+h, 2), (2*T+h, 3)]
def cvt4(regs, d): return [f"v_cvt_pk_bf16_f32 v{d+i}, v{regs[2*i]}, v{regs[2*i+1]}" for i in range(4)]
def unit_cvt(u):
    k, T, h, d = UNITS[u]
    regs = [acc(*x) + i for x in unit_src(u) for i in range(4)]
    w = f"ds_write_b128 v{V_VL}, {v(d,4)} offset:{T*4096 + (2048 if k == 'V' else 0) + h*256}"
    return cvt4(regs, d) + [w]
def kv_store(u):
    k, T, h, d = UNITS[u]
    return f"buffer_store_dwordx4 {v(d,4)}, v{V_VS}, s[{SRD_KVS}:{SRD_KVS+3}], {'0' if T == 0 else 's50'} offen offset:{(2048 if k == 'V' else 0) + h*256}{SC1}"
def q_cvt(tt):
    return [f"v_pk_mul_f32 {v(acc(tt,0)+2*i,2)}, {v(acc(tt,0)+2*i,2)}, s[26:27]" for i in range(4)] + cvt4([acc(tt,0)+i for i in range(8)], AQ[("ab"[tt >> 1], tt & 1)])

NEP = opt('nep', 4)
def last_step(a, sal):
    order = [(3, 0), (3, 1)] + [x for u in range(8) for x in unit_src(u)] + [(tt, f) for tt in range(3) for f in range(2)]
    gaps = [[] for _ in range(24)]
    gaps[10] += q_cvt(3)
    for u in range(6): gaps[12 + 2*u] += unit_cvt(u) + (if_vcc([kv_store(u - 1), kv_store(u)]) if u & 1 and u < NEP else [])
    for i, (tt, f) in enumerate(order):
        d = acc(tt, f)
        A, B = (WF[1][f], XF[1][tt]) if f < 4 else (XF[1][tt], WF[1][f])
        a(f"v_mfma_f32_16x16x32_bf16 {v(d,4)}, {v(A,4)}, {v(B,4)}, {v(d,4)}")
        for x in gaps[i]: a(x)
    for x in unit_cvt(6) + unit_cvt(7) + (if_vcc([kv_store(6), kv_store(7)]) if NEP == 8 else []): a(x)

def transition_ab(a):
    a(f"s_cmp_lt_u32 s{S_W}, 4\ns_setprio 1\ns_cbranch_scc0 Lyng0\ns_setprio 2\nLyng0:")
    a("s_waitcnt lgkmcnt(0)\ns_barrier")
    for j in range(2): a(f"ds_read_b128 {v(AK[0][j],4)}, v{AADK} offset:{1024*j}")
    for j in range(2): a(f"ds_read_b128 {v(AV[0][j],4)}, v{AADDR} offset:{2048+1024*j}")
    rest = list(range(NEP, 8))
    for tt in range(3):
        if rest and (tt < 2 or NEP < 4):
            k = 2 if tt < 2 else len(rest)
            for x in if_vcc([kv_store(u) for u in rest[:k]]): a(x)
            rest = rest[k:]
        for x in q_cvt(tt): a(x)
    assert not rest
    a("s_nop 1")
    for q in "ab":
        for i in range(4): a(f"v_permlane16_swap_b32 v{AQ[(q,0)]+i}, v{AQ[(q,1)]+i}")
    for q in "ab":
        for i in range(4): a(f"v_permlane32_swap_b32 v{AQ[(q,0)]+i}, v{AQ[(q,1)]+i}")
    a("s_waitcnt lgkmcnt(2)")
    a(qk1(AS[0],0,'a',"0")); a(qk2(AS[0],0,'a')); a(qk1(AS[1],0,'b',"0")); a(qk2(AS[1],0,'b'))
    a(f"""
    v_readfirstlane_b32 s{S_NONCE}, v{V_NON}
    v_readfirstlane_b32 s{S_NONCE+1}, v{V_NON+1}
    s_lshl_b32 s26, s{S_TM}, 4
    s_add_u32 s26, s26, s{S_W}
    s_lshl_b32 s28, s26, 3
    s_nop 3
    s_cmp_eq_u32 s{S_NONCE}, 0
    s_cbranch_scc1 Lnonce_spin
    Lnonce_ok:
    v_mov_b32 v{V_FA}, s28
    s_nop 0
    """)
    rowmax16(a, AS[0], 2, 3)
    rowmax16(a, AS[1], 4, 5)
    MOFF = struct.unpack("<I", struct.pack("<f", float(opt("moff", 19))))[0]
    if MOFF: a(f"v_add_f32 v2, {MOFF:#x}, v2\nv_add_f32 v4, {MOFF:#x}, v4")
    for i in range(8): a(f"v_pk_mul_f32 {v(AC['a']+2*i,2)}, v[2:3], -1.0 op_sel_hi:[0,0]")
    a(f"v_pk_mul_f32 {v(AC['b'],2)}, v[4:5], -1.0 op_sel_hi:[0,0]\nv_pk_mul_f32 {v(AC['b']+2,2)}, v[4:5], -1.0 op_sel_hi:[0,0]")
    a(qk1(AS[0],0,'a')); a(qk2(AS[0],0,'a'))
    for i in range(2, 8): a(f"v_pk_mul_f32 {v(AC['b']+2*i,2)}, v[4:5], -1.0 op_sel_hi:[0,0]")
    a("s_nop 4")

def rowmax16(a, S, m, t):
    a(f"v_max3_f32 v{m}, v{S}, v{S+1}, v{S+2}")
    for i in range(3, 15, 2): a(f"v_max3_f32 v{m}, v{m}, v{S+i}, v{S+i+1}")
    a(f"v_max_f32 v{m}, v{m}, v{S+15}")
    a(f"v_mov_b32 v{t}, v{m}\ns_nop 1\nv_permlane32_swap_b32 v{m}, v{t}\ns_nop 0\nv_max_f32 v{m}, v{m}, v{t}")

def attn_half(a, t, q, extra=None, skipz=False):
    hs = (2*t + (q == 'b')) % 4
    oq = 'b' if q == 'a' else 'a'
    X = AS[hs]; Y = AS[(hs+1) % 4]; Z = AS[(hs-1) % 4]
    kb = t % 2 if q == 'a' else (t+1) % 2
    vb = (t-1) % 2 if q == 'a' else t % 2
    nt = (t + 1) % 4
    M = {'Q1': qk1(Y,kb,oq), 'Q2': qk2(Y,kb,oq), 'P1': pv(Z,0,vb,oq), 'S1': sm(Z,0,oq), 'P2': pv(Z,1,vb,oq), 'S2': sm(Z,1,oq)}
    e = 0
    for tok in "Q1 W0 3 S1 L0 2 Q2 3 P1 3 S2 L1 2 P2 W1 3".split():
        if tok in M:
            if not (skipz and tok[0] != 'Q'): a(M[tok])
        elif tok in ('L0', 'L1'):
            j = int(tok[1])
            if q == 'a': a(f"ds_read_b128 {v(AK[(t+1)%2][j],4)}, v{AADK} offset:{nt*4096 + 1024*j}")
            else: a(f"ds_read_b128 {v(AV[(t+1)%2][j],4)}, v{AADDR} offset:{nt*4096 + 2048 + 1024*j}")
        elif tok == 'W0':
            if q == 'b': a("s_waitcnt lgkmcnt(0)")
        elif tok == 'W1':
            if q == 'a': a("s_waitcnt lgkmcnt(1)")
        else:
            for _ in range(int(tok)):
                a(f"v_exp_f32 v{X+e}, v{X+e}"); e += 1
        if extra and tok in extra:
            for x in extra[tok]: a(x)
    assert e == 16

def kv_dma(h): return [f"buffer_load_dwordx4 v{AVO}, s[{SRD_KV}:{SRD_KV+3}], s{S_CH if h == 0 else S_CH2} offen offset:{1024*i}{SC1} lds" for i in range(4)]
S_FSO = 24
def flag_load(srd=None):
    srd = SRD_F if srd is None else srd
    return f"buffer_load_dwordx2 {v(AFL,2)}, v{AFA}, s[{srd}:{srd+3}], s{S_FSO} offen sc1"
S_EARLY = 41
DEPTH = opt("odepth", 5)
OSL = [72, 80, 88, 96, 136, 144, 152, 160, 8, 16, 24, 32, 224, 232, 240, 248]
def oslot(p, tt): return OSL[p % 16] + 4 * tt
def oload_ins(p):
    return [f"buffer_load_dwordx4 {v(oslot(p, tt),4)}, v{P_OV[(p>>3)&1][tt]}, s[{SRD_OL}:{SRD_OL+3}], s{S_OSO + p%8} offen offset:{(p>>4)*1024}{SC1}" for tt in range(2)]
def chunk_scalars():
    return [f"s_add_u32 s{S_CIDX}, s{S_CIDX}, 16384", f"s_xor_b32 s{S_CH}, s{S_CIDX}, s23", f"s_add_u32 s{S_CH2}, s{S_CH}, 262144",
            f"s_bfe_u32 s26, s{S_CH}, 0x1000e", "s_lshl_b32 s26, s26, 1", f"s_add_u32 s{S_FIDX}, s26, s51"]
def line_cur(): return [f"s_lshr_b32 s26, s{S_CH}, 15", f"s_lshl_b32 s{S_FSO}, s26, 7"]
def line_next(): return [f"s_add_u32 s26, s{S_CIDX}, 16384", "s_xor_b32 s26, s26, s23", "s_bfe_u32 s26, s26, 0x3000f", f"s_lshl_b32 s{S_FSO}, s26, 7"]
def mask_test():
    return [f"s_lshr_b32 s26, s{S_MASK}, s{S_FIDX}", "s_andn2_b32 s26, 0x11, s26"]
def flag_cmp(): return f"v_cmp_eq_u64 s[{S_MASK}:{S_MASK+1}], s[{S_NONCE}:{S_NONCE+1}], {v(AFL,2)}"
def spin(a, name, test, lowprio=False, SLEEP=SLEEP):
    if lowprio:
        a(f"""
        {name}:
        s_mov_b32 s{S_SPIN}, {SPIN_LIMIT}
        {name}_l:
        {flag_load()}
        s_waitcnt vmcnt(0)
        {flag_cmp()}
        s_sub_u32 s{S_SPIN}, s{S_SPIN}, 1
        s_cbranch_scc1 {name}_x
        """)
        for x in test: a(x)
        a(f"s_cbranch_scc0 {name}_x\ns_setprio 0\ns_branch {name}_l\n{name}_x:\ns_cbranch_vccz {name}_r\ns_setprio 2\ns_branch {name}_r")
        return
    a(f"""
    {name}:
    s_mov_b32 s{S_SPIN}, {SPIN_LIMIT}
    {name}_l:
    {flag_load()}
    s_waitcnt vmcnt(0)
    {flag_cmp()}
    s_sub_u32 s{S_SPIN}, s{S_SPIN}, 1
    s_cbranch_scc1 {name}_r
    """)
    for x in test: a(x)
    if SLEEP: a(f"s_cbranch_scc0 {name}_r\ns_sleep {SLEEP}\ns_branch {name}_l")
    else: a(f"s_cbranch_scc1 {name}_l\ns_branch {name}_r")
def spin_flags(a, name): spin(a, name, mask_test())
def wo_dma():
    return [f"s_add_u32 s{S_WOI}, s{S_WOI}, 1", f"s_add_u32 s26, s{S_WOI}, s{S_HP}", "s_and_b32 s26, s26, 7",
            f"s_xor_b32 s27, s{S_WOI}, s{S_HP}", "s_and_b32 s27, s27, 8", "s_or_b32 s26, s26, s27", "s_lshl_b32 s26, s26, 1",
            f"s_lshr_b32 s27, s{S_WOI}, 4", "s_add_u32 s26, s26, s27", "s_lshl_b32 s26, s26, 16", f"s_mov_b32 m0, s{S_WOM}",
            f"s_add_u32 s{S_WOS}, s26, s{S_WOB}", f"s_add_u32 s{S_WOM}, s{S_WOM}, 4096",
            f"buffer_load_dwordx4 v{AWD}, s[{SRD_WO}:{SRD_WO+3}], s{S_WOS} offen{NTW} lds"]
TOUCH = "--touch" in sys.argv
WARMF = "--nowarmf" not in sys.argv
def publish(fa=V_FA): return ["s_waitcnt vmcnt(0)", "s_mov_b64 exec, 1", f"buffer_store_dwordx2 {v(V_NON,2)}, v{fa}, s[{SRD_F}:{SRD_F+3}], 0 offen sc1", "s_mov_b64 exec, -1"]
def wo_rows(n):
    o = []
    for _ in range(n): o += wo_dma()
    return o
EARLY = '--noearly' not in sys.argv
XT = opt('xt', 1)
LST = opt("lst", 1)
def tailpf():
    if not opt("codepf2", 2): return []
    return [f"s_cmp_eq_u32 s{S_CNT}, {opt('codepf2', 2)}", "s_cbranch_scc0 Lnopf2", "s_getpc_b64 s[26:27]", "Lpcref2:", f"s_lshl_b32 s28, s{S_W}, 13",
            "v_lshlrev_b32 v2, 7, v1", "v_add_u32 v2, s28, v2", "v_min_u32 v2, Lattn_fallback-Lattn_j-4, v2", "s_add_u32 s26, s26, Lattn_j-Lpcref2", "s_addc_u32 s27, s27, 0",
            "v_mov_b32 v3, s27", "v_add_co_u32 v2, s[28:29], s26, v2", "s_nop 1", "v_addc_co_u32 v3, s[28:29], 0, v3, s[28:29]", "global_load_dword v4, v[2:3], off", "Lnopf2:"]
def attn_chunk(a, kind):
    tog = f"v_xor_b32 v{AADDR}, 32768, v{AADDR}\nv_xor_b32 v{AADK}, 32768, v{AADK}"
    for t in range(4):
        ea, eb = {}, {}
        if kind in ('c0', 'c1'): stamp(a, None, "c")
        if t in (1, 3): jitter(a)
        if kind == 'c1' and t == opt("polt", 1) + 1: pass
        if kind == 'c1' and t == opt("polt", 1):
            for x in old_only(chunk_scalars() + line_cur() + ["s_branch Lspin_c1a", "Lspin_c1a_r:", f"s_mov_b32 m0, s{S_M0}", "s_nop 0"] + kv_dma(0)
                              + [f"s_add_u32 m0, s{S_M0}, 16384", "s_nop 0"] + kv_dma(1)): a(x)
            stamp(a, None, "c")
        if kind == 'c14' and t == XT:
            for x in if_vcc(["s_barrier"], False): a(x)
        if kind == 'c0':
            for k, e in enumerate((ea, eb)):
                j = 2*t + k - LST
                if 0 <= j < 4: e['P1'] = if_vcc([kv_store(2*j), kv_store(2*j + 1)], False)
        if kind == 'c1' and t == 0:
            eb['P2'] = [f"s_and_b32 s26, s{S_W}, 6", "s_cmp_eq_u32 s26, 2", "s_cbranch_scc0 Lpub2"] + publish() + ["Lpub2:"]
        if kind == 'c14' and t == 0:
            ea['Q2'] = old_only([f"s_lshl_b32 s28, s{S_W}, 1", f"s_add_u32 s28, s28, s{S_HP}", "v_lshrrev_b32 v2, 5, v1", "v_add_u32 v2, s28, v2", "v_and_b32 v2, 7, v2",
                                 f"s_and_b32 s28, s{S_HP}, 8", "s_xor_b32 s28, s28, 8", "v_or_b32 v2, s28, v2", "v_lshlrev_b32 v2, 17, v2", "v_and_b32 v3, 31, v1",
                                 "v_lshl_add_u32 v2, v3, 11, v2", "s_mov_b32 s28, 65536", f"buffer_load_dword v3, v2, s[{SRD_WO}:{SRD_WO+3}], s28 offen"])
        if kind == 'c15' and EARLY:
            if t == 2: ea['Q2'] = if_vcc([f"s_mov_b32 s{S_FSO}, s{S_FL0}", flag_load(SRD_F2)], False)
            if t == 3: ea['Q2'] = if_vcc(["s_waitcnt vmcnt(0)", flag_cmp(), "s_nop 0", f"s_cmp_lg_u32 s{S_MASK}, -1", "s_cbranch_scc1 Lnoearly", f"s_mov_b32 s{S_EARLY}, 1"]
                                         + [x for p in range(min(DEPTH, 4)) for x in oload_ins(p)] + ["Lnoearly:"], False)
        if t == 3:
            if kind == 'c0':
                stamp(a); a("s_waitcnt lgkmcnt(0)\ns_barrier"); stamp(a)
                for x in [f"s_cmp_lt_u32 s{S_W}, 4", "s_cselect_b64 vcc, -1, 0", f"s_and_b32 s26, s{S_W}, 6", "s_cmp_eq_u32 s26, 2", "s_cbranch_scc1 Lpub1"] + publish() + ["Lpub1:"]: a(x)
                stamp(a)
                ea['Q1'] = [tog]
            elif kind == 'c14':
                ea['Q1'] = [f"v_add_u32 v{AADDR}, 131072, v{AADDR}\nv_add_u32 v{AADK}, 131072, v{AADK}"]
            elif kind != 'c15':
                stamp(a); a("s_waitcnt vmcnt(0) lgkmcnt(0)"); stamp(a)
                if not ("--xnobar" in sys.argv and kind == 'loop'): a("s_barrier")
                stamp(a)
                if kind in ('c1', 'loop'):
                    nm = "Lspin_" + kind
                    ea = {'Q1': [tog],
                          'Q2': old_only([flag_cmp(), f"s_xor_b32 s{S_M0}, s{S_M0}, 32768"] + chunk_scalars() + [f"s_mov_b32 m0, s{S_M0}"] + mask_test()
                                         + [f"s_cbranch_scc1 {nm}", f"{nm}_r:"] + kv_dma(0)),
                          'P2': old_only([f"s_add_u32 m0, s{S_M0}, 16384", "s_nop 0"] + kv_dma(1) + line_next() + [flag_load()])}
                    if kind == 'loop':
                        eb = {'Q2': old_only([f"s_cmp_gt_u32 s{S_CNT}, 3", "s_cbranch_scc0 Lnowo"] + wo_rows(2) + ["Lnowo:"] + tailpf() + [f"s_cmp_eq_u32 s{S_CNT}, 1", "s_cbranch_scc0 Lno15"]
                                             + chunk_scalars() + [f"s_add_u32 m0, s{S_M0}, 131072"] + mask_test() + ["s_cbranch_scc1 Lspin_15", "Lspin_15_r:"] + kv_dma(0)
                                             + [f"s_add_u32 m0, s{S_M0}, {131072 + 16384}", "s_nop 0"] + kv_dma(1) + ["Lno15:"]),
                              'P2': [f"s_sub_u32 s{S_CNT}, s{S_CNT}, 1", f"s_cmp_lg_u32 s{S_CNT}, 0"]}
                elif kind == 'c13':
                    ea = {'Q1': [tog], 'Q2': old_only([f"s_lshl_b32 s{S_WOM}, s{S_W}, 10", f"s_add_u32 s{S_WOM}, s{S_WOM}, 32768"] + wo_rows(3)), 'P2': old_only(wo_rows(3))}
                    eb = {'Q2': old_only(wo_rows(2))}
        if "--xnoex" in sys.argv and kind == 'loop' and t == 3: ea = {'Q1': [tog]}; eb = {'P2': eb['P2']}
        attn_half(a, t, 'a', ea, skipz=(kind == 'c0' and t == 0)); attn_half(a, t, 'b', eb)

def attention(a):
    attn_chunk(a, 'c0')
    attn_chunk(a, 'c1')
    a(f"s_mov_b32 s{S_CNT}, 11")
    stamp(a, None, "l")
    SPLIT = opt("split", 1)
    def tail():
        stamp(a, None, "l")
        attn_chunk(a, 'c13')
        attn_chunk(a, 'c14')
        attn_chunk(a, 'c15')
    if SPLIT:
        a("s_cbranch_vccz Lattn_y")
        for role in (True, False):
            ROLE[0] = role
            nm = "Lattn_loop" if role else "Lattn_loop_y"
            if not role: a.label("Lattn_y")
            a(".p2align 6")
            a.label(nm)
            attn_chunk(a, 'loop')
            a(f"s_cbranch_scc1 {nm}")
            if SPLIT == 2: tail()
            if role: a("s_branch Lattn_j")
        ROLE[0] = None
        a.label("Lattn_j")
        if SPLIT == 1: tail()
    else:
        a(".p2align 6")
        a.label("Lattn_loop")
        attn_chunk(a, 'loop')
        a("s_cbranch_scc1 Lattn_loop")
        tail()
    a("s_nop 1")
    stamp(a, 4)
    a(pv(AS[3],0,1,'b')); a(sm(AS[3],0,'b')); a(pv(AS[3],1,1,'b')); a(sm(AS[3],1,'b'))
    a(f"""
    s_mov_b32 s26, 0x5d800000
    s_mov_b32 s27, 65536
    s_nop 5
    """)
    for x in lbroadcast(): a(x)
    a(f"""
    v_cmp_nge_f32 vcc, s26, v{AL['a']}
    v_cmp_nge_f32 s[28:29], s26, v{AL['b']}
    s_nop 0
    s_or_b64 vcc, vcc, s[28:29]
    s_cbranch_vccnz Lattn_fallback
    Lattn_fin:
    """)
    stamp(a, None, "e")
    a(f"""
    v_rcp_f32 v2, v{AL['a']}
    v_rcp_f32 v4, v{AL['b']}
    """)
    for qi, q in enumerate('ab'):
        for u in range(2):
            for i in range(4): a(f"v_pk_mul_f32 {v(AO[q]+8*u+2*i,2)}, {v(AO[q]+8*u+2*i,2)}, {v(2+2*qi,2)} op_sel_hi:[1,0]")
            d = AS[0] + 4*(2*qi+u)
            for x in cvt4([AO[q]+8*u+i for i in range(8)], d): a(x)
            a(f"buffer_store_dwordx4 {v(d,4)}, v6, s[{SRD_O}:{SRD_O+3}], {'0' if qi==0 else 's27'} offen offset:{512*u}{SC1}")

def fallback(a):
    a.label("Lattn_fallback")
    a(f"""
    s_waitcnt vmcnt(0) lgkmcnt(0)
    s_lshl_b32 s26, s{S_B}, 5
    s_lshl_b32 s28, s{S_HP}, 1
    s_add_u32 s26, s26, s28
    s_lshr_b32 s28, s{S_W}, 2
    s_add_u32 s26, s26, s28
    s_lshl_b32 s30, s26, 18
    """)
    make_srd(a, SRD_KV, 48, 49, 30, 262144)
    a(f"""
    s_mov_b32 s{S_SPIN}, {SPIN_LIMIT}
    v_lshrrev_b32 v2, 3, v1
    v_lshl_add_u32 v2, v2, 7, v{AFA}
    Lfb_poll:
    buffer_load_dwordx2 {v(AFL,2)}, v2, s[{SRD_F}:{SRD_F+3}], 0 offen sc1
    s_waitcnt vmcnt(0)
    v_cmp_eq_u64 vcc, s[{S_NONCE}:{S_NONCE+1}], {v(AFL,2)}
    s_sub_u32 s{S_SPIN}, s{S_SPIN}, 1
    s_cbranch_scc1 Lfb_go
    s_cmp_eq_u64 vcc, -1
    s_cbranch_scc0 Lfb_poll
    Lfb_go:
    """)
    for r in list(range(AO['a'], AO['a']+32)) + list(range(AL['a'], AL['a']+8)): a(f"v_mov_b32 v{r}, 0")
    Mr = {'a': AC['a'], 'b': AC['b']}
    a(f"v_mov_b32 v{Mr['a']}, 0xff800000\nv_mov_b32 v{Mr['b']}, 0xff800000\ns_mov_b32 s26, 0")
    a.label("Lfb_loop")
    for j in range(2): a(f"buffer_load_dwordx4 {v(AK[0][j],4)}, v{AVK}, s[{SRD_KV}:{SRD_KV+3}], s26 offen offset:{1024*j} sc1")
    for j in range(2): a(f"buffer_load_dwordx4 {v(AV[0][j],4)}, v{AVO}, s[{SRD_KV}:{SRD_KV+3}], s26 offen offset:{2048+1024*j} sc1")
    a("s_waitcnt vmcnt(0)")
    for q in 'ab':
        S = AS[0]
        a(qk1(S,0,q,"0")); a(qk2(S,0,q)); a("s_nop 15")
        rowmax16(a, S, 2, 3)
        a(f"v_max_f32 v2, v2, v{Mr[q]}\nv_sub_f32 v3, v{Mr[q]}, v2\nv_exp_f32 v3, v3\nv_mov_b32 v{Mr[q]}, v2")
        for i in range(16): a(f"v_sub_f32 v{S+i}, v{S+i}, v2")
        for i in range(16): a(f"v_exp_f32 v{S+i}, v{S+i}")
        for i in range(16): a(f"v_mul_f32 v{AO[q]+i}, v3, v{AO[q]+i}")
        for i in range(4): a(f"v_mul_f32 v{AL[q]+i}, v3, v{AL[q]+i}")
        a("s_nop 1")
        a(pv(S,0,0,q)); a(sm(S,0,q)); a(pv(S,1,0,q)); a(sm(S,1,q))
        a("s_nop 15")
    a("s_add_u32 s26, s26, 4096\ns_cmp_lt_u32 s26, 262144\ns_cbranch_scc1 Lfb_loop")
    for x in lbroadcast(): a(x)
    a("s_branch Lattn_fin")

PACC = 40
PWF = [104, 120]
POF = 168
POLLS = []
def proj_body(a, old):
    vm = VmTrack(); fpos = {}
    R = "o" if old else "y"
    def wreads(p):
        off = (p if p < 16 else p - 16 + 8 if p < 24 else (p - 24) % 4) * 4096
        return [f"ds_read_b64_tr_b16 {v(PWF[p&1]+4*ct+2*h,2)}, v{P_WR[ct]} offset:{off + h*1024}" for ct in range(4) for h in range(2)]
    def check(g, hi=False):
        nm = f"Lpoll{R}{g}"; POLLS.append((nm, hi))
        return [f"s_cmp_lg_u32 s{S_MASK}, -1", f"s_cbranch_scc1 {nm}", f"{nm}_r:"]
    def setline(g): return f"s_xor_b32 s{S_FSO}, s{S_FL0}, {(g & 1) * 128 + (g >> 1) * 256}"
    def force(g, hi=False): return [f"s_mov_b32 s{S_MASK}, 0", setline(g)] + check(g, hi)
    def oload(p):
        vm.issue(("O", p)); vm.issue(("O", p))
        return oload_ins(p)
    PX, YX3 = opt("px", 10), opt("yx3", 5)
    if old:
        a("s_waitcnt vmcnt(4)\ns_barrier")
        stamp(a, None, "e")
        for x in publish(V_FA2): a(x)
        stamp(a, 5)
        for x in [f"s_lshl_b32 s{S_WOM}, s{S_W}, 10"] + wo_rows(4) + [f"s_add_u32 s{S_WOM}, s{S_WOM}, {131072 - 16384}"] + wo_rows(4) + ["s_waitcnt vmcnt(8)"]: a(x)
        OPRE = opt("opre", 6)
        if opt("olow", 1): a("s_setprio 0")
        stamp(a, None, "o")
        for p in range(OPRE):
            if p % 8 == 0:
                for x in force(p // 8, not opt("olow", 1)): a(x)
                stamp(a, None, "o")
            for x in oload(p): a(x)
        a("s_setprio 0")
        nxt = OPRE
    else:
        stamp(a, None, "e")
        YPUB = opt("ypub", 2)
        if YPUB < 0:
            for x in publish(V_FA2): a(x)
        a(f"s_setprio {opt('yprio', 1)}")
        stamp(a, 5)
        a(f"s_cmp_eq_u32 s{S_EARLY}, 1\ns_cbranch_scc1 Learly")
        for x in force(0): a(x)
        for p in range(4):
            for x in oload(p): a(x)
        a.label("Learly")
        for _ in range(1 + (opt("opre", 6) + 7) // 8): stamp(a, None, "o")
        spos = len(vm.ops)
        for p in range(4, DEPTH):
            for x in oload(p): a(x)
        nxt = DEPTH
    for x in wreads(0): a(x)
    stamp(a, 6)
    for p in range(32):
        if p + 1 == 16:
            for ct in range(4): a(f"v_add_u32 v{P_WR[ct]}, {-65536 & 0xffffffff}, v{P_WR[ct]}")
        if p + 1 == 28:
            for ct in range(4): a(f"v_add_u32 v{P_WR[ct]}, 131072, v{P_WR[ct]}")
        wc = vm.wait_count({('O', p)})
        if not old and YPUB >= 0 and p < 4:
            a(f"s_cmp_eq_u32 s{S_EARLY}, 1\ns_cbranch_scc1 Lw{p}a\ns_waitcnt vmcnt({wc})\nLw{p}a:\ns_waitcnt vmcnt({wc + 4}) lgkmcnt(0)")
        else:
            a(f"s_waitcnt vmcnt({wc}) lgkmcnt(0)")
        if not old and p == YPUB:
            for x in [f"s_waitcnt vmcnt({len(vm.ops) - spos})"] + publish(V_FA2)[1:]: a(x)
        gaps = [[] for _ in range(8)]
        for i, r in enumerate(wreads(p + 1) if p + 1 < 32 else []): gaps[i // 2].append(r)
        if not old and p == YX3: gaps[0].append("s_barrier")
        todo = []
        if old:
            todo = list(range(nxt, min(32 if p >= PX else 16, nxt + 2, 16 + p, p + 1 + opt("odold", 6))))
        elif nxt < 32: todo = [nxt]
        gi = 4
        for n in todo:
            if n % 8 == 0:
                g = n // 8
                if old and g == 2: gaps[gi] += ["s_barrier"] + force(g)
                elif g in fpos: gaps[gi] += [f"s_waitcnt vmcnt({len(vm.ops) - fpos[g]})", flag_cmp(), "s_nop 0"] + check(g)
                else: gaps[gi] += force(g)
            o = oload(n)
            gaps[gi].append(o[0]); gaps[gi + 1].append(o[1]); gi += 2
            if (n + 3) % 8 == 0 and n + 3 < 32:
                g = (n + 3) // 8
                gaps[gi - 1] += [setline(g), flag_load()]
                fpos[g] = len(vm.ops)
            nxt = n + 1
        n = 0
        for tt in range(2):
            for ct in (range(4) if tt == 0 else range(3, -1, -1)):
                d = PACC + (tt*4+ct)*4
                a(f"v_mfma_f32_16x16x32_bf16 {v(d,4)}, {v(PWF[p&1]+4*ct,4)}, {v(oslot(p, tt),4)}, {'0' if p==0 else v(d,4)}")
                for x in gaps[n]: a(x)
                n += 1
        if p % 4 == 3: stamp(a, None, "p")
        if p in (1, 9, 20): jitter(a)
    assert nxt == 32

def proj(a):
    a(f"s_mov_b64 s[{SRD_F}:{SRD_F+1}], s[{SRD_F2}:{SRD_F2+1}]\ns_mov_b32 s{SRD_F+2}, 2048")
    a(f"s_cmp_lt_u32 s{S_W}, 4\ns_cselect_b64 vcc, -1, 0\ns_cbranch_scc0 Lproj_y")
    proj_body(a, True)
    a("s_branch Lproj_e\nLproj_y:")
    proj_body(a, False)
    a.label("Lproj_e")
    a(f"""
    v_lshrrev_b32 v4, 4, v1
    v_and_b32 v2, 15, v1
    v_lshlrev_b32 v2, 12, v2
    v_and_b32 v3, 1, v4
    v_lshl_add_u32 v2, v3, 5, v2
    v_lshrrev_b32 v3, 1, v4
    v_lshl_add_u32 v2, v3, 4, v2
    s_mov_b32 s26, 65536
    s_nop 3
    """)
    for tt in range(2):
        for pr in range(2):
            d = POF + (tt*2+pr)*4
            for x in range(2):
                s0 = PACC + (tt*4+2*pr+x)*4
                a(f"v_cvt_pk_bf16_f32 v{d+2*x}, v{s0}, v{s0+1}\nv_cvt_pk_bf16_f32 v{d+2*x+1}, v{s0+2}, v{s0+3}")
            a(f"s_nop 1\nv_permlane16_swap_b32 v{d}, v{d+2}\nv_permlane16_swap_b32 v{d+1}, v{d+3}")
            a(f"buffer_store_dwordx4 {v(d,4)}, v2, s[{SRD_OUT}:{SRD_OUT+3}], {'0' if tt==0 else 's26'} offen offset:{64*pr}{' ' + opt('ofl', 'nt').replace('_', ' ') if opt('ofl', 'nt') else ''}")

def build():
    a = Asm()
    decode(a, "Lend")
    gemm1_setup_dma(a)
    jitter(a)
    stamp(a, 0); dbgstamp(a, 1)
    gemm1_main(a, late_setup())
    stamp(a, 2); dbgstamp(a, 3)
    transition_ab(a)
    stamp(a, 3); jitter(a)
    attention(a)
    jitter(a)
    dbgstamp(a, 4)
    proj(a)
    stamp(a, 7); dbgstamp(a, 5); dbgflush(a)
    stamp_flush(a, 8)
    a.label("Lend")
    a("s_endpgm")
    for nm in ("Lspin_c1a", "Lspin_c1", "Lspin_loop", "Lspin_15"): spin_flags(a, nm)
    a(f"""
    Lnonce_spin:
    s_mov_b32 s{S_SPIN}, {SPIN_LIMIT}
    Lnonce_l:
    buffer_load_dwordx2 {v(V_NON,2)}, v{V_PD+1}, s[92:95], 0 offen sc1
    s_waitcnt vmcnt(0)
    v_readfirstlane_b32 s{S_NONCE}, v{V_NON}
    v_readfirstlane_b32 s{S_NONCE+1}, v{V_NON+1}
    s_sub_u32 s{S_SPIN}, s{S_SPIN}, 1
    s_cbranch_scc1 Lnonce_ok
    s_cmp_eq_u32 s{S_NONCE}, 0
    s_cbranch_scc1 Lnonce_l
    s_branch Lnonce_ok
    """)
    for nm, hi in POLLS: spin(a, nm, [f"s_cmp_lg_u32 s{S_MASK}, -1"], lowprio=hi, SLEEP=opt("sleep2", 0) if nm[-1] in "13" else SLEEP)
    fallback(a)
    a.label("Lcode_end")
    return a.text()

def main(out):
    P = "concat_heads__mha_block__softmax_full_mha__prompt_kernel"
    txt = f"""; Kernarg layout (72 bytes, pointers only, base s[0:1]):
;   0 A_x  8 A_wqkv  16 A_wo  24 B_x  32 B_wqkv  40 B_wo  48 d_out  56 d_debug  64 d_ws
; One fused kernel, 256 workgroups (one per CU) x 8 waves; workgroup = (block b, 256 tokens tm, head pair hp).
;   phase A  QKV projection 256x192x1024 (LDS-DMA ring, 16x16x32 MFMA); Q stays in registers, K/V go to LDS and to d_ws
;   phase B  softmax(QK^T)V for 2 heads x 256 queries. exp2 results feed v_smfmac directly (high halves = bf16).
;            Shift = max of the first key tile (carried in the MFMA C operand); a run-time check of the row sums
;            falls back to an exact running-max loop when that shift could overflow.
;   phase C  output projection 256x64x1024, O fragments from d_ws
; Hand-offs between workgroups: write-through stores, then a per-wave flag holding a per-launch nonce (kept in d_debug).
; @launch grid=(256,1,1) block=(512,1,1) lds=163840
.amdgcn_target "amdgcn-amd-amdhsa--gfx950"
.text
""" + kernel_header(P) + build() + '.section .rodata,"a"\n' + kernel_desc(P, 256, sgpr=102 if DBG or JIT else 96)
    open(out, "w").write(txt)

if __name__ == "__main__":
    args = [x for x in sys.argv[1:] if not x.startswith("--")]
    main(args[0] if args else "concat_heads__mha_block__softmax_full_mha__prompt.s")
```

```python
import sys, struct, math
from dsl import *

def opt(name, default):
    for x in sys.argv:
        if x.startswith(f"--{name}="): return type(default)(x[len(name) + 3:])
    return default
STAMP = "--stamp" in sys.argv
ROT = opt("rot", 2)
PRO = opt("pro", "X0,W0,Q0,B,W1,X1,W2").replace(",", " ")
STEPX = {}
for it in opt("stepx", "0:W3.X2.Q1;1:W4;8:Q2;16:Q3").split(";"):
    if it:
        k, val = it.split(":"); STEPX[int(k)] = val.split(".")
SC1 = "" if "--nosc1" in sys.argv else " sc1"
NTD = " nt" if "d" in opt("nt", "") else (" " + opt("dfl", "").replace("_", " ") if opt("dfl", "") else "")
NTP = " nt" if "p" in opt("nt", "") else ""
NTW = " nt" if "w" in opt("nt", "") else ""
ROTB = opt("rotb", -1)

KV_OFF = 0
O_OFF = 24 << 20
F1_OFF = 32 << 20
F2_OFF = 33 << 20
SLEEP = opt('sleep', 0)
ST_OFF = 64 << 20
QSCALE = struct.unpack("<I", struct.pack("<f", math.log2(math.e) / math.sqrt(32.0)))[0]
SPIN_LIMIT = 1 << 17

S_W, S_B, S_TM, S_HP = 16, 17, 18, 19
S_SOX, S_SOW, S_XB, S_WB = 20, 21, 22, 23
S_EXW = 24
S_NONCE = 80
S_MASK = 82
S_CIDX, S_M0, S_CNT, S_CH, S_WOS, S_WOM, S_FIDX, S_SPIN = 84, 85, 86, 87, 88, 89, 90, 91
S_WOI, S_WOB = 20, 21
PRIO = opt('prio', 1)
SRD_KV, SRD_F, SRD_WO, SRD_O = 4, 8, 52, 12
SRD_KVS = 56
SRD_OUT, SRD_OL, SRD_F2 = 36, 32, 76
S_FL0 = 40

def make_srd(a, d, lo, hi, off_sgpr, nrec):
    a(f"s_add_u32 s{d}, s{lo}, s{off_sgpr}\ns_addc_u32 s{d+1}, s{hi}, 0\ns_and_b32 s{d+1}, s{d+1}, 0xffff")
    a(f"s_mov_b32 s{d+2}, {nrec}\ns_mov_b32 s{d+3}, 0x00020000")

NST = [0]
STG = opt("stg", "m")
def stamp(a, i=None, g="m"):
    if not STAMP: return
    if i is None: g = "a" if g == "m" else g
    if g not in STG: return
    a("s_memrealtime s[60:61]\ns_memtime s[62:63]\ns_waitcnt lgkmcnt(0)\ns_lshl_b64 exec, 1, s64\nv_mov_b32 v0, s60\nv_mov_b32 v203, s62\ns_mov_b64 exec, -1\ns_add_u32 s64, s64, 1")
DBG = "--dbg" in sys.argv
def dbgstamp(a, i, inv=False):
    if DBG: a(f"s_memrealtime s[60:61]\ns_waitcnt lgkmcnt(0)\ns_mov_b32 s{96+i}, s60")
def dbgflush(a):
    if not DBG: return
    a(f"s_cmp_lg_u32 s{S_W}, 0\ns_cbranch_scc1 Ldbg_e\ns_mov_b64 exec, 1\nv_mov_b32 v4, 0")
    for i in range(5):
        a(f"s_sub_u32 s27, s{97+i}, s{96+i}\nv_mov_b32 v{5+2*i}, s27\nbuffer_atomic_umax v{5+2*i}, v4, s[92:95], 0 offen offset:{8+4*i}\nv_mov_b32 v{6+2*i}, s27\nbuffer_atomic_add v{6+2*i}, v4, s[92:95], 0 offen offset:{32+4*i}")
    a("Ldbg_e:")
JIT = opt("jit", 0)
JC = [0]
def jitter(a):
    if not JIT: return
    JC[0] += 1
    k = JC[0]
    a(f"""
    s_mul_i32 s96, s2, {37 + 2 * k}
    s_mul_i32 s97, s{S_W}, {JIT * 11 + k}
    s_add_u32 s96, s96, s97
    s_lshr_b32 s97, s96, 3
    s_xor_b32 s96, s96, s97
    s_and_b32 s96, s96, 31
    Ljit{k}:
    s_cmp_eq_u32 s96, 0
    s_cbranch_scc1 Ljit{k}e
    s_sleep {JIT}
    s_sub_u32 s96, s96, 1
    s_branch Ljit{k}
    Ljit{k}e:
    """)
def stamp_flush(a, n):
    if not STAMP: return
    a(f"""
    s_lshl_b32 s26, s2, 3
    s_add_u32 s26, s26, s{S_W}
    s_lshl_b32 s26, s26, 9
    s_add_u32 s30, s26, {ST_OFF}
    """)
    make_srd(a, 56, 48, 49, 30, 512)
    a("v_lshlrev_b32 v2, 3, v1\nv_mov_b32 v4, v0\nv_mov_b32 v5, v203\nbuffer_store_dwordx2 v[4:5], v2, s[56:59], 0 offen")

ACC = 8
def acc(tt, f): return ACC + (tt * 6 + f) * 4
XF = [[104 + 4*i for i in range(4)], [144 + 4*i for i in range(4)]]
WF = [[120 + 4*i for i in range(6)], [160 + 4*i for i in range(6)]]
V_XR = [208, 209]; V_WR = [210, 211]; V_XD = list(range(184, 192)); V_WD = [212, 213, 214]
V_PX, V_PW, V_PD = 218, 219, 220
V_NON = 222
LDS_W = 98304

EPF = opt("epf", 3)
def entry_pf():
    if EPF == 0: return ""
    if EPF == 4:
        return f"""
        s_getpc_b64 s[26:27]
        Lpcref0:
        v_lshlrev_b32 v2, 7, v0
        v_min_u32 v2, Lcode_end-Lpcref0-4, v2
        v_mov_b32 v3, 0
        v_lshl_add_u64 v[2:3], v[2:3], 0, s[26:27]
        global_load_dword v{V_NON+1}, v[2:3], off
        """
    if EPF == 1:
        addr = """
        v_subrev_u32 v2, 448, v0
        v_cmp_gt_u32 vcc, 48, v2
        s_and_saveexec_b64 s[30:31], vcc
        s_cbranch_execz Lepf_e
        s_lshr_b32 s28, s2, 3
        s_lshl_b32 s28, s28, 4
        v_cmp_le_u32 vcc, 32, v2
        v_mov_b32 v3, s28
        s_nop 0
        v_cndmask_b32 v3, 0, v3, vcc
        v_add_u32 v2, v2, v3
        """
    else:
        addr = f"""
        v_xor_b32 v2, 256, v0
        v_cmp_gt_u32 vcc, {256 if EPF == 2 else 512}, v2
        s_and_saveexec_b64 s[30:31], vcc
        s_cbranch_execz Lepf_e
        """
    return addr + f"""
        s_getpc_b64 s[26:27]
        Lpcref0:
        v_lshlrev_b32 v2, 7, v2
        v_min_u32 v2, Lcode_end-Lpcref0-4, v2
        v_mov_b32 v3, s27
        v_add_co_u32 v2, vcc, s26, v2
        s_nop 1
        v_addc_co_u32 v3, vcc, 0, v3, vcc
        global_load_dword v{V_NON+1}, v[2:3], off
        Lepf_e:
        s_mov_b64 exec, -1
        """
def decode(a, end):
    a(f"""
    s_cmp_ge_u32 s2, 256
    s_cbranch_scc1 {end}
    {"s_memrealtime s[96:97]" if DBG else ""}
    s_load_dwordx16 s[32:47], s[0:1], 0
    {entry_pf()}
    s_load_dwordx2 s[48:49], s[0:1], 64
    v_lshrrev_b32 v1, 6, v0
    s_and_b32 s26, s2, 7
    s_lshr_b32 s27, s2, 3
    v_readfirstlane_b32 s{S_W}, v1
    s_lshr_b32 s{S_B}, s26, 2
    s_and_b32 s28, s26, 1
    s_lshl_b32 s28, s28, 2
    s_and_b32 s29, s27, 3
    s_add_u32 s{S_TM}, s28, s29
    s_bfe_u32 s28, s26, 0x10001
    s_lshl_b32 s28, s28, 3
    s_lshr_b32 s29, s27, 2
    s_add_u32 s{S_HP}, s28, s29
    v_and_b32 v1, 63, v0
    s_mul_i32 s51, {'s26' if ROTB < 0 else 's17'}, {ROT if ROTB < 0 else ROTB}
    s_and_b32 s51, s51, 15
    s_lshl_b32 s14, s51, 1
    s_lshl_b32 s15, s51, 7
    s_mov_b32 s64, 0
    """)

NLAB = [0]
ROLE = [None]
def if_vcc(ins, want=True):
    if ROLE[0] is not None: return list(ins) if ROLE[0] == want else []
    NLAB[0] += 1
    return [f"s_cbranch_vcc{'z' if want else 'nz'} Lskip{NLAB[0]}"] + ins + [f"Lskip{NLAB[0]}:"]
old_only = if_vcc

def gemm1_setup_dma(a):
    a(f"""
    s_cmp_lt_u32 s{S_W}, 4
    s_cselect_b64 vcc, -1, 0
    s_cbranch_scc0 Lsetup1
    s_setprio 1
    Lsetup1:
    s_and_b32 s30, s{S_W}, 3
    s_mul_i32 s{S_XB}, s30, 24576
    s_mul_i32 s26, s30, 3072
    s_add_u32 s{S_WB}, s26, {LDS_W}
    v_lshrrev_b32 v2, 3, v1
    s_lshl_b32 s26, s30, 6
    v_add_u32 v7, s26, v2
    v_and_b32 v3, 7, v1
    v_lshrrev_b32 v4, 4, v1
    v_xor_b32 v5, v3, v4
    v_lshlrev_b32 v5, 4, v5
    v_lshl_add_u32 v{V_XD[0]}, v7, 11, v5
    v_xor_b32 v5, 64, v5
    v_lshl_add_u32 v{V_XD[1]}, v7, 11, v5
    v_add_u32 v{V_XD[1]}, {8*2048}, v{V_XD[1]}
    """)
    for q in range(2, 8): a(f"v_add_u32 v{V_XD[q]}, {16*2048}, v{V_XD[q-2]}")
    a(f"s_mul_i32 s26, s30, 24")
    for q in range(3):
        a(f"""
        v_add_u32 v7, s26, v2            ; R
        s_add_u32 s26, s26, 8
        v_lshrrev_b32 v4, 5, v7          ; sec
        v_and_b32 v7, 31, v7             ; k
        v_and_b32 v5, 2, v7
        v_bfe_u32 v6, v7, 3, 1
        v_lshl_or_b32 v5, v6, 2, v5      ; swz*2
        v_xor_b32 v5, v3, v5             ; chunk
        v_lshlrev_b32 v5, 4, v5
        v_lshl_add_u32 v5, v4, 11, v5
        v_mul_u32_u24 v7, 6144, v7
        v_add_u32 v{V_WD[q]}, v7, v5
        """)
    a(f"""
    s_waitcnt lgkmcnt(0)
    s_cmp_eq_u32 s{S_B}, 0
    s_cselect_b32 s26, s32, s38
    s_cselect_b32 s27, s33, s39
    s_cselect_b32 s28, s34, s40
    s_cselect_b32 s29, s35, s41
    s_lshl_b32 s30, s{S_TM}, 19
    """)
    make_srd(a, 4, 26, 27, 30, 524288)
    a(f"s_lshl_b32 s30, s{S_HP}, 7\ns_sub_u32 s31, {1024*6144}, s30")
    make_srd(a, 8, 28, 29, 30, "s31")
    NV = opt("vpf", 0)
    if NV:
        a(f"s_lshr_b32 s30, s{S_HP}, 3\ns_lshl_b32 s30, s30, 10\ns_sub_u32 s31, {1024*6144}, s30")
        make_srd(a, 56, 28, 29, 30, "s31")
        g = ["s_bfe_u32 s12, s2, 0x40003", "s_lshl_b32 s12, s12, 2", f"s_and_b32 s13, s{S_W}, 3", "s_add_u32 s12, s12, s13", "s_lshl_b32 s13, s51, 6", "s_add_u32 s12, s12, s13",
             "v_lshrrev_b32 v2, 3, v1", "v_and_b32 v3, 7, v1", "v_lshlrev_b32 v3, 7, v3", "v_lshl_add_u32 v2, v2, 11, v3", "s_bfm_b64 exec, 24, 0"]
        for i in range(NV):
            g += [f"s_add_u32 s13, s12, {64*i}", "s_and_b32 s13, s13, 1023", "s_mul_i32 s13, s13, 6144", f"buffer_load_dword v{V_NON+1}, v2, s[56:59], s13 offen"]
        for x in if_vcc(g + ["s_mov_b64 exec, -1"], False): a(x)

def gemm1_setup_rest(a):
    a(f"""
    s_and_b32 s30, s{S_W}, 3
    s_mul_i32 s30, s30, 24576
    v_and_b32 v2, 15, v1             ; c
    v_lshrrev_b32 v4, 4, v1          ; G
    v_lshrrev_b32 v5, 1, v2
    v_xor_b32 v5, v4, v5
    v_lshlrev_b32 v5, 4, v5
    v_lshl_add_u32 v5, v2, 7, v5
    v_add_u32 v{V_XR[0]}, s30, v5
    v_xor_b32 v{V_XR[1]}, 64, v{V_XR[0]}
    v_bfe_u32 v2, v1, 2, 2           ; r
    v_and_b32 v3, 3, v1              ; c4
    v_lshl_add_u32 v5, v4, 3, v2     ; k = 8G + r
    v_lshrrev_b32 v6, 1, v2
    v_and_b32 v7, 1, v4
    v_lshl_or_b32 v6, v7, 1, v6      ; swz
    s_lshr_b32 s30, s{S_W}, 2
    s_lshl_b32 s30, s30, 1
    v_xor_b32 v6, s30, v6
    v_lshlrev_b32 v6, 5, v6
    v_lshl_add_u32 v6, v3, 3, v6
    v_lshl_add_u32 v6, v5, 7, v6
    v_add_u32 v{V_WR[0]}, {LDS_W}, v6
    v_xor_b32 v{V_WR[1]}, 32, v{V_WR[0]}
    """)
    a(f"s_lshr_b32 s30, s{S_TM}, 2\ns_lshl_b32 s30, s30, 21")
    make_srd(a, 52, 26, 27, 30, 2 << 20)
    a(f"s_lshr_b32 s30, s{S_HP}, 3\ns_lshl_b32 s30, s30, 10\ns_sub_u32 s31, {1024*6144}, s30")
    make_srd(a, 56, 28, 29, 30, "s31")
    toks = PRO + " ".join(" ".join(x) for x in STEPX.values())
    if "Q" in toks or "R" in toks:
        for l in q_setup(): a(l)
    if "P" in toks: a(f"""
    s_lshr_b32 s26, s2, 3
    s_lshl_b32 s26, s26, 3
    s_add_u32 s26, s26, s{S_W}       ; u
    s_lshl_b32 s27, s26, 13
    v_and_b32 v2, 3, v1
    v_lshlrev_b32 v2, 11, v2
    v_lshrrev_b32 v3, 2, v1
    v_lshl_add_u32 v2, v3, 7, v2
    v_add_u32 v{V_PX}, s27, v2
    v_mul_u32_u24 v2, 43, v1
    v_lshrrev_b32 v2, 8, v2
    v_mul_u32_u24 v3, 6, v2
    v_sub_u32 v3, v1, v3
    s_and_b32 s27, s26, 3
    s_mul_i32 s27, s27, 6
    v_add_u32 v3, s27, v3
    v_lshrrev_b32 v4, 3, v3
    v_and_b32 v3, 7, v3
    v_lshlrev_b32 v3, 7, v3
    v_lshl_add_u32 v3, v4, 11, v3
    s_lshr_b32 s27, s26, 2
    v_lshl_add_u32 v2, v2, 6, s27
    v_mul_u32_u24 v2, 6144, v2
    v_add_u32 v{V_PW}, v2, v3
    """)
    a(f"""
    v_mov_b32 v{V_PD+1}, 0
    s_or_b32 s26, s2, s{S_W}
    s_cmp_lg_u32 s26, 0
    s_cbranch_scc1 Lnononce
    s_memrealtime s[26:27]
    s_mov_b32 s28, s46
    s_and_b32 s29, s47, 0xffff
    s_mov_b32 s30, 256
    s_mov_b32 s31, 0x00020000
    s_waitcnt lgkmcnt(0)
    s_or_b32 s26, s26, 1
    v_mov_b32 v2, s26
    v_mov_b32 v3, s27
    s_mov_b64 exec, 1
    buffer_store_dwordx2 v[2:3], v{V_PD+1}, s[28:31], 0 offen sc1
    s_mov_b64 exec, -1
    Lnononce:
    """)

def pf_batch(s0, n):
    return [f"s_add_u32 s13, s51, {s0}", "s_and_b32 s13, s13, 15", f"s_bfm_b64 exec, {6*n}, 0", f"s_mul_i32 s50, s13, {64*6144}",
            f"buffer_load_dword v{V_PD}, v{V_PW}, s[56:59], s50 offen{NTP}", "s_lshl_b32 s13, s13, 7",
            f"s_bfm_b64 exec, {4*n}, 0",
            f"buffer_load_dword v{V_PD}, v{V_PX}, s[52:55], s13 offen{NTP}", "s_mov_b64 exec, -1"]
V_QW, V_QX = 218, 219
SLOWC = opt("slowc", 3)
def q_setup():
    return [f"s_lshr_b32 s12, s2, 3", "s_lshl_b32 s12, s12, 3", f"s_add_u32 s12, s12, s{S_W}",
            f"v_lshlrev_b32 v{V_QW}, 11, v1", f"v_add_u32 v{V_QW}, {SLOWC*128}, v{V_QW}",
            "v_and_b32 v2, 3, v1", "v_lshlrev_b32 v2, 11, v2", "v_bfe_u32 v3, v1, 2, 1", "v_lshl_add_u32 v2, v3, 10, v2",
            "s_lshl_b32 s13, s12, 13", f"s_add_u32 s13, s13, {SLOWC*128}", f"v_add_u32 v{V_QX}, s13, v2",
            "s_lshl_b32 s13, s51, 6", "s_add_u32 s12, s12, s13"]
def q_batch(i):
    return [f"s_add_u32 s13, s12, {256*i}", "s_and_b32 s13, s13, 1023", "s_mov_b64 exec, 7", "s_mul_i32 s13, s13, 6144",
            f"buffer_load_dword v{V_NON+1}, v{V_QW}, s[56:59], s13 offen", "s_mov_b64 exec, -1"]
def r_batch():
    return ["s_mov_b64 exec, 0xff", f"buffer_load_dword v{V_NON+1}, v{V_QX}, s[52:55], 0 offen", "s_mov_b64 exec, -1"]
def dma_x(stage, q):
    return [f"s_add_u32 m0, s{S_XB}, {(stage % 3)*8192 + q*1024}", f"buffer_load_dwordx4 v{V_XD[q]}, s[4:7], s{S_SOX} offen{NTD} lds"]
def dma_w(step, q):
    return [f"s_add_u32 m0, s{S_WB}, {(step % 5)*12288 + q*1024}", f"buffer_load_dwordx4 v{V_WD[q]}, s[8:11], s{S_SOW} offen{NTD} lds"]
def frag_reads(step):
    p = step & 1; xs = (step >> 1) % 3; ws = step % 5
    X = [f"ds_read_b128 {v(XF[p][tt],4)}, v{V_XR[p]} offset:{xs*8192 + tt*2048}" for tt in range(4)]
    W = [[f"ds_read_b64_tr_b16 {v(WF[p][f]+2*h,2)}, v{V_WR[f&1]} offset:{ws*12288 + (f>>1)*4096 + h*512}" for h in range(2)] for f in range(6)]
    return [X[0]] + W[0] + W[1] + W[2] + [X[1]] + W[3] + W[4] + W[5] + [X[2], X[3]]
def gemm1_mfmas(step):
    p = step & 1; out = []
    if opt("gord", 1):
        order = [(tt, f) for tt in range(4) for f in (range(4) if tt % 2 == 0 else range(3, -1, -1))] + [(tt, f) for tt in range(3, -1, -1) for f in ((4, 5) if tt % 2 else (5, 4))]
    else:
        order = [(tt, f) for tt in range(4) for f in (range(6) if tt % 2 == 0 else range(5, -1, -1))]
    for tt, f in order:
        d = acc(tt, f)
        A, B = (WF[p][f], XF[p][tt]) if f < 4 else (XF[p][tt], WF[p][f])
        out.append(f"v_mfma_f32_16x16x32_bf16 {v(d,4)}, {v(A,4)}, {v(B,4)}, {'0' if step == 0 else v(d,4)}")
    return out

HB = opt('hb', 1)
RD0, DG0, DGS = opt('rd0', 0), opt('dg0', 1), opt('dgs', 10)
def gemm1_main(a, late):
    vm = VmTrack()
    def group(tok):
        if tok == "B": return [["s_barrier"]], []
        if tok[0] == "Q": return [q_batch(int(tok[1:]))], ["pf"]
        if tok[0] == "R": return [r_batch()], ["pf"]
        if tok[0] == "P":
            s0, n = map(int, tok[1:].split("_")); return [pf_batch(s0, n)], ["pf", "pf"]
        if tok[0] == "W":
            st = int(tok[1:]); g = [f"s_add_u32 s{S_SOW}, s14, {st}", f"s_and_b32 s{S_SOW}, s{S_SOW}, 31"]
            for q in range(3):
                m, l = dma_w(st, q); g += [m, f"s_mul_i32 s{S_SOW}, s{S_SOW}, {32*6144}" if q == 0 else "s_nop 0", l]
            return [old_only(g)], [("W", st)] * 3
        if tok in ("Ha", "Hb"):
            g = [f"s_and_b32 s{S_SOX}, s15, 0x780", "s_mov_b32 s62, 0x0f0f0f0f", "s_mov_b32 s63, s62"]
            for q in range(8):
                m, l = dma_x(0, q)
                g += [m, "s_mov_b64 exec, s[62:63]" if (q & 1) == (tok == "Hb") else "s_not_b64 exec, s[62:63]", l]
            return [old_only(g + ["s_mov_b64 exec, -1"])], [("X", 0) if tok == "Hb" else ("Xa", 0)] * 8
        if tok == "Y0":
            g = {}
            for role, qs in ((True, range(0, 4)), (False, range(4, 8))):
                g[role] = [f"s_and_b32 s{S_SOX}, s15, 0x780"]
                for q in qs:
                    m, l = dma_x(0, q); g[role] += [m, "s_nop 0", l]
            return [if_vcc(g[True], True) + if_vcc(g[False], False)], [("X", 0)] * 4
        if tok[0] == "X":
            if "h" in tok: S, h = tok[1:].split("h"); S = int(S); qs = range(0, 4) if h == "0" else range(4, 8)
            else: S = int(tok[1:]); qs = range(8)
            g = [f"s_add_u32 s{S_SOX}, s15, {S*128}"]
            for q in qs:
                m, l = dma_x(S, q); g += [m, f"s_and_b32 s{S_SOX}, s{S_SOX}, 0x780" if q == qs[0] else "s_nop 0", l]
            return [old_only(g)], [("X", S)] * len(qs)
    first = True
    for tok in PRO.split():
        g, t = group(tok)
        for x in g:
            for y in x: a(y)
        for y in t: vm.issue(y)
        if tok == ("Hb" if "Hb" in PRO else "W0"):
            gemm1_setup_rest(a)
    if "Y0" in PRO:
        for x in if_vcc(["s_waitcnt vmcnt(0)"], False): a(x)
    a(f"s_waitcnt vmcnt({vm.wait_count({('Xa' if 'Ha' in PRO else 'X',0),('W',0)})})")
    a("s_barrier")
    stamp(a, 1); dbgstamp(a, 2)
    for l in frag_reads(0): a(l)
    for st in range(32):
        bar = (not HB) or st == 0 or st % 2 == 1
        if st == 31:
            a("s_waitcnt vmcnt(0) lgkmcnt(0)")
        elif bar:
            ahead = [st + 1] + ([st + 2] if HB and st % 2 == 1 else [])
            need = {("W", x) for x in ahead} | {("X", x >> 1) for x in ahead}
            for nd in need: assert vm.ops.count(nd) == (3 if nd[0] == "W" else 8) or nd == ("X", 0), (st, nd)
            a(f"s_waitcnt vmcnt({min(63, vm.wait_count(need))}) lgkmcnt(0)")
        else:
            a("s_waitcnt lgkmcnt(0)")
        if bar: a("s_barrier")
        if st % 4 == 0: stamp(a, None, "g")
        if st in (2, 9, 30): jitter(a)
        M = gemm1_mfmas(st)
        if st == 31:
            a.label("Lgemm_end")
            last_step(a, late[31]); break
        R = frag_reads(st + 1) if st + 1 < 32 else []
        toks = list(STEPX.get(st, []))
        if not HB:
            if st + 5 < 32: toks.append(f"W{st+5}")
        elif st >= 1 and st + 4 < 32:
            toks.append(f"W{st+4}")
        if st >= 1 and ((st - 1) >> 1) + 3 < 16: toks.append(f"X{((st-1)>>1)+3}h{0 if st % 2 == 1 else 1}")
        D = []
        for tok in toks:
            g, t = group(tok); D += g
            for y in t: vm.issue(y)
        gaps = [[] for _ in range(24)]
        for i, r in enumerate(R): gaps[i + RD0].append(r)
        for i, d in enumerate(D): gaps[min(23, DG0 + (i * DGS if len(D) <= 3 else (i * (23 - DG0)) // len(D)))] += d
        lt = late.get(st, [])
        assert len(lt) <= 24
        for i, x in enumerate(lt):
            gaps[i].append(x)
            if x.startswith("buffer_"): vm.issue("late")
        for i, m in enumerate(M):
            a(m)
            for x in gaps[i]:
                if "--xnodma" in sys.argv and x.endswith("lds") and st > 3: continue
                if "--xnord" in sys.argv and x.startswith("ds_read") and st > 3: continue
                a(x)

AS = [8, 24, 40, 56]
AO = {'a': 224, 'b': 240}
AQ = {('a',0): 104, ('a',1): 108, ('b',0): 112, ('b',1): 116}
AC = {'a': 120, 'b': 136}
AK = [[152, 156], [160, 164]]
AV = [[168, 172], [176, 180]]
AL = {'a': 184, 'b': 188}
ASEL = 192; AIDX = 196; AADDR = 197; AVO = 198; AWD = 199
AFL = 200
AFA = 202
V_VS, V_VL = 205, 207
AADK, AVK = 204, 206
V_FA = 221
S_CH2 = 22
P_WR = [212, 213, 214, 215]; P_OV = [[216, 217], [218, 219]]; V_FA2 = 220
S_OSO = 64 if not STAMP else 66
def qk1(Y, kb, q, c=None): return f"v_mfma_f32_32x32x16_bf16 {v(Y,16)}, {v(AK[kb][0],4)}, {v(AQ[(q,0)],4)}, {v(AC[q],16) if c is None else c}"
def qk2(Y, kb, q): return f"v_mfma_f32_32x32x16_bf16 {v(Y,16)}, {v(AK[kb][1],4)}, {v(AQ[(q,1)],4)}, {v(Y,16)}"
def pv(Z, h, vb, q): return f"v_smfmac_f32_32x32x32_bf16 {v(AO[q],16)}, {v(AV[vb][h],4)}, {v(Z+8*h,8)}, v{AIDX}"
def sm(Z, h, q): return f"v_smfmac_f32_16x16x64_bf16 {v(AL[q],4)}, {v(ASEL,4)}, {v(Z+8*h,8)}, v{AIDX}"
def srd(d, lo, hi, off, nrec):
    return [f"s_add_u32 s{d}, s{lo}, s{off}\ns_addc_u32 s{d+1}, s{hi}, 0", f"s_and_b32 s{d+1}, s{d+1}, 0xffff", f"s_mov_b32 s{d+2}, {nrec}", f"s_mov_b32 s{d+3}, 0x00020000"]

CODEPF = [int(x) for x in opt('codepf', '12').split(',') if int(x)]
SEL2 = opt('sel2', 0)
def lbroadcast():
    if not SEL2: return []
    return [f"v_mov_b32 v{AL[q]+1}, v{AL[q]}" for q in 'ab'] + ['s_nop 1'] + [f"v_permlane32_swap_b32 v{AL[q]}, v{AL[q]+1}" for q in 'ab']
def late_setup():
    L = {}
    L[18] = [f"v_mov_b32 v{AO['a']+i}, 0" for i in range(24)]
    L19OLD = [f"v_mov_b32 v{AO['a']+24+i}, 0" for i in range(8)] + \
            [f"v_lshlrev_b32 v{AVO}, 4, v1", "v_and_b32 v2, 7, v1", f"v_lshlrev_b32 v{AFA}, 3, v2", f"s_lshr_b32 s26, s{S_W}, 2", "s_lshl_b32 s26, s26, 14",
             f"v_add_u32 v{AADDR}, s26, v{AVO}", f"v_mov_b32 v{AIDX}, 0xdddddddd",
             "v_bfe_u32 v2, v1, 2, 1", "v_mov_b32 v3, 0x3f803f80", "v_cmp_eq_u32 s[28:29], 0, v2", "s_nop 1",
             f"v_cndmask_b32 v{ASEL}, 0, v3, s[28:29]", f"v_cndmask_b32 v{ASEL+1}, 0, v3, s[28:29]", f"v_xor_b32 v{ASEL+2}, v3, v{ASEL}", f"v_xor_b32 v{ASEL+3}, v3, v{ASEL}"]
    L[19] = [f"v_mov_b32 v{AO['a']+24+i}, 0" for i in range(8)] + \
            [f"v_lshlrev_b32 v{AVO}, 4, v1", "v_and_b32 v2, 7, v1", f"v_lshlrev_b32 v{AFA}, 3, v2", f"s_lshr_b32 s26, s{S_W}, 2", "s_lshl_b32 s26, s26, 14",
             f"v_add_u32 v{AADDR}, s26, v{AVO}", f"v_mov_b32 v{AIDX}, 0xdddddddd",
             f"v_and_b32 v2, {15 if SEL2 else 7}, v1", "v_mov_b32 v3, 0x3f803f80", "v_cmp_eq_u32 s[28:29], 0, v2", f"v_cmp_eq_u32 s[30:31], 4, v2",
             f"v_cndmask_b32 v{ASEL}, 0, v3, s[28:29]", f"v_cndmask_b32 v{ASEL+1}, 0, v3, s[28:29]", f"v_cndmask_b32 v{ASEL+2}, 0, v3, s[30:31]", f"v_cndmask_b32 v{ASEL+3}, 0, v3, s[30:31]"] \
            if opt("sel1", 1) else L19OLD
    L[20] = ["v_and_b32 v2, 15, v1", "v_lshrrev_b32 v4, 4, v1", "v_lshlrev_b32 v4, 9, v4", f"v_lshl_add_u32 v{V_VS}, v2, 4, v4",
             "v_bfe_u32 v2, v1, 2, 1", "v_bfe_u32 v3, v1, 3, 2", "v_and_b32 v4, 35, v1", "v_lshl_add_u32 v4, v2, 4, v4", "v_lshl_add_u32 v4, v3, 2, v4",
             f"v_lshlrev_b32 v{AVK}, 4, v4", f"v_sub_u32 v2, v{AADDR}, v{AVO}", f"v_add_u32 v{AADK}, v2, v{AVK}",
             f"s_and_b32 s26, s{S_W}, 2", "s_lshl_b32 s26, s26, 14", f"s_and_b32 s27, s{S_W}, 1", "s_lshl_b32 s27, s27, 13", "s_add_u32 s26, s26, s27",
             f"s_lshr_b32 s27, s{S_W}, 2", "s_lshl_b32 s27, s27, 14", "s_add_u32 s26, s26, s27", f"v_add_u32 v{V_VL}, s26, v{V_VS}"]
    L[21] = ["v_lshrrev_b32 v2, 3, v1", "v_and_b32 v3, 7, v1", "v_lshrrev_b32 v4, 4, v1", "v_lshlrev_b32 v4, 1, v4", "v_xor_b32 v4, v3, v4",
             "v_lshlrev_b32 v4, 4, v4", f"v_lshl_add_u32 v{AWD}, v2, 11, v4",
             f"s_cmp_eq_u32 s{S_B}, 0\ns_cselect_b32 s26, s36, s42\ns_cselect_b32 s27, s37, s43", f"s_lshl_b32 s30, s{S_HP}, 7", f"s_sub_u32 s31, {1024*2048}, s30"] \
            + srd(SRD_WO, 26, 27, 30, "s31") + ["s_mov_b32 s92, s46", "s_and_b32 s93, s47, 0xffff", "s_mov_b32 s94, 256", "s_mov_b32 s95, 0x00020000"]
    if WARMF:
        L[22] = [f"s_lshl_b32 s28, s{S_B}, 4", f"s_add_u32 s28, s28, s{S_HP}", "s_lshl_b32 s28, s28, 10", f"s_add_u32 s30, s28, {F1_OFF}",
                 f"s_lshl_b32 s28, s{S_B}, 3", f"s_add_u32 s28, s28, s{S_TM}", "s_lshl_b32 s28, s28, 11", f"s_add_u32 s31, s28, {F2_OFF}",
                 "s_mov_b32 s76, s48", "s_and_b32 s77, s49, 0xffff", f"s_mov_b32 s78, {34 << 20}", "s_mov_b32 s79, 0x00020000", "v_lshlrev_b32 v2, 7, v1",
                 "\n".join(if_vcc(["s_mov_b64 exec, 0xff", f"buffer_load_dword v{V_NON+1}, v2, s[76:79], s30 offen sc1",
                                   "s_mov_b64 exec, 0xffff", f"buffer_load_dword v{V_NON+1}, v2, s[76:79], s31 offen sc1", "s_mov_b64 exec, -1"], False))]
    if opt("tlb", 0):
        L[17] = [f"s_lshl_b32 s28, s{S_B}, 4", f"s_add_u32 s28, s28, s{S_HP}", "s_lshl_b32 s28, s28, 19", f"s_lshl_b32 s29, s{S_TM}, 15", "s_add_u32 s30, s28, s29",
                 f"s_lshl_b32 s28, s{S_B}, 22", f"s_lshl_b32 s29, s{S_TM}, 19", "s_add_u32 s31, s28, s29", f"s_lshl_b32 s29, s{S_HP}, 11", "s_add_u32 s31, s31, s29", f"s_add_u32 s31, s31, {O_OFF}",
                 "s_mov_b32 s76, s48", "s_and_b32 s77, s49, 0xffff", f"s_mov_b32 s78, {34 << 20}", "s_mov_b32 s79, 0x00020000",
                 "\n".join(if_vcc(["s_mov_b64 exec, 1", f"buffer_load_dword v{V_NON+1}, v{V_PD+1}, s[76:79], s30 offen sc1",
                                   f"buffer_load_dword v{V_NON+1}, v{V_PD+1}, s[76:79], s31 offen sc1", "s_mov_b64 exec, -1"], False))]
    L[27] = [f"v_mov_b32 v{AL['a']+i}, 0" for i in range(8)] + \
            [f"s_lshl_b32 s26, s{S_B}, 5", f"s_lshl_b32 s27, s{S_HP}, 1", "s_add_u32 s26, s26, s27",
             f"s_and_b32 s28, s{S_W}, 3", "s_lshl_b32 s29, s28, 12", "s_lshl_b32 s30, s26, 18", "s_add_u32 s31, s30, s29", "s_sub_u32 s50, 524288, s29"] \
            + srd(SRD_KV, 48, 49, 31, "s50") + [f"s_lshr_b32 s27, s{S_W}, 2", "s_add_u32 s26, s26, s27", "s_lshl_b32 s30, s26, 18"]
    L[28] = [f"buffer_load_dwordx2 {v(V_NON,2)}, v{V_PD+1}, s[92:95], 0 offen sc1",
             f"s_mov_b32 s{S_WOI}, -1", f"s_lshl_b32 s{S_WOB}, s{S_W}, 14", f"s_lshl_b32 s27, s{S_W}, 10", f"s_add_u32 s{S_WOM}, s27, 65536",
             f"s_lshl_b32 s{S_M0}, s{S_W}, 12", f"s_mov_b32 s{S_CIDX}, 16384", f"s_lshl_b32 s23, s{S_TM}, 15", f"s_lshr_b32 s51, s{S_W}, 1", f"s_mov_b32 s{S_EARLY}, 0"]
    L[29] = [f"s_lshl_b32 s27, s{S_TM}, 3", "s_lshl_b32 s28, s28, 1", "s_add_u32 s27, s27, s28", "s_lshl_b32 s29, s27, 12", "s_add_u32 s31, s30, s29"] \
            + srd(SRD_KVS, 48, 49, 31, 8192) + ["s_mov_b32 s50, 4096",
             f"s_lshl_b32 s28, s{S_B}, 22", "s_lshl_b32 s29, s27, 16", "s_add_u32 s31, s28, s29", "s_and_b32 s28, s26, 31", "s_lshl_b32 s28, s28, 10",
             "s_add_u32 s31, s31, s28", f"s_add_u32 s31, s31, {O_OFF}"] + srd(SRD_O, 48, 49, 31, 131072)
    L[30] = [f"s_lshl_b32 s28, s{S_B}, 4", f"s_add_u32 s28, s28, s{S_HP}", "s_lshl_b32 s28, s28, 10", f"s_add_u32 s31, s28, {F1_OFF}"] + srd(SRD_F, 48, 49, 31, 1024) \
            + [f"s_bitcmp0_b32 s{S_W}, 1\ns_cselect_b64 vcc, -1, 0", f"s_mov_b32 s26, {QSCALE}", f"s_mov_b32 s27, {QSCALE}"]
    L[23] = [f"s_lshl_b32 s28, s{S_B}, 3", f"s_add_u32 s28, s28, s{S_TM}", "s_lshl_b32 s28, s28, 11", f"s_add_u32 s30, s28, {F2_OFF}"] + srd(SRD_F2, 48, 49, 30, 2048) \
            + [f"s_lshl_b32 s28, s{S_B}, 22", f"s_lshl_b32 s29, s{S_TM}, 19", "s_add_u32 s30, s28, s29", f"s_lshl_b32 s29, s{S_W}, 16", "s_add_u32 s30, s30, s29",
               f"s_add_u32 s30, s30, {O_OFF}"] + srd(SRD_OL, 48, 49, 30, 65536)
    L[24] = [f"s_lshl_b32 s28, s{S_TM}, 20", f"s_lshl_b32 s29, s{S_W}, 17", "s_add_u32 s30, s28, s29", f"s_lshl_b32 s29, s{S_B}, 11", "s_add_u32 s30, s30, s29",
             f"s_lshl_b32 s29, s{S_HP}, 7", "s_add_u32 s30, s30, s29", f"s_sub_u32 s31, {2048*4096}, s30"] + srd(SRD_OUT, 44, 45, 30, "s31") \
            + [f"s_and_b32 s26, s{S_HP}, 8", "s_lshl_b32 s27, s26, 11", f"v_add_u32 v{P_OV[0][0]}, s27, v{AVO}", f"v_add_u32 v{P_OV[0][1]}, 32768, v{P_OV[0][0]}",
               f"v_xor_b32 v{P_OV[1][0]}, 16384, v{P_OV[0][0]}", f"v_xor_b32 v{P_OV[1][1]}, 16384, v{P_OV[0][1]}",
               "s_lshl_b32 s26, s26, 4", f"s_lshr_b32 s27, s{S_W}, 1", "s_lshl_b32 s27, s27, 9", f"s_add_u32 s{S_FL0}, s26, s27"]
    L[25] = [x for j in range(8) for x in (f"s_add_u32 s26, s{S_HP}, {j}", "s_and_b32 s26, s26, 7", f"s_lshl_b32 s{S_OSO+j}, s26, 11")]
    L[26] = [f"s_and_b32 s26, s{S_W}, 3", "s_lshl_b32 s26, s26, 6", f"s_lshr_b32 s27, s{S_W}, 2", "s_lshl_b32 s27, s27, 5", "s_add_u32 s26, s26, s27",
             f"s_and_b32 s27, s{S_HP}, 8", f"s_add_u32 s27, s27, s{S_HP}", "s_add_u32 s26, s26, s27", "s_lshl_b32 s26, s26, 3", f"v_mov_b32 v{V_FA2}, s26",
             "v_and_b32 v4, 15, v1", "v_lshlrev_b32 v4, 4, v4", "v_bfe_u32 v5, v1, 4, 1", "v_lshl_add_u32 v4, v5, 15, v4", "v_lshrrev_b32 v5, 5, v1", "v_lshl_add_u32 v6, v5, 8, v4"]
    L[30] += ["v_lshrrev_b32 v4, 4, v1", "v_bfe_u32 v2, v1, 2, 2", "v_and_b32 v3, 3, v1", "v_and_b32 v5, 1, v4", "v_lshrrev_b32 v4, 1, v4", "v_lshl_add_u32 v7, v5, 2, v2",
              "v_lshl_add_u32 v4, v4, 4, v7", "v_lshrrev_b32 v7, 1, v7", "v_lshlrev_b32 v7, 5, v7", "v_lshl_add_u32 v7, v3, 3, v7", "v_lshl_add_u32 v7, v4, 7, v7",
              f"v_add_u32 v{P_WR[0]}, 65536, v7\nv_xor_b32 v{P_WR[1]}, 32, v{P_WR[0]}", f"v_xor_b32 v{P_WR[2]}, 64, v{P_WR[0]}\nv_xor_b32 v{P_WR[3]}, 96, v{P_WR[0]}"]
    if opt("tlb", 0):
        L[26] += ["\n".join(if_vcc(["s_mov_b64 exec, 1", f"buffer_load_dword v{V_NON+1}, v{V_PD+1}, s[{SRD_WO}:{SRD_WO+3}], 0 offen",
                                    f"buffer_load_dword v{V_NON+1}, v{V_PD+1}, s[{SRD_OUT}:{SRD_OUT+3}], 0 offen sc1", "s_mov_b64 exec, -1"], False))]
    L[31] = []
    for k, st in enumerate(CODEPF):
        L[st] = L.get(st, []) + [f"s_getpc_b64 s[74:75]\nLpcref_{k}:", f"s_and_b32 s62, s{S_W}, 3", "s_lshl_b32 s62, s62, 13", "v_lshlrev_b32 v2, 7, v1", "v_add_u32 v2, s62, v2",
                     "v_min_u32 v2, Lcode_end-Lgemm_end-4, v2", f"s_add_u32 s74, s74, Lgemm_end-Lpcref_{k}\ns_addc_u32 s75, s75, 0", "v_mov_b32 v3, 0",
                     "v_lshl_add_u64 v[2:3], v[2:3], 0, s[74:75]", "\n".join(if_vcc([f"global_load_dword v{V_NON+1 if st < 28 else 0}, v[2:3], off"], False))]
    return L

UNITS = [('V',0,0,80), ('V',0,1,84), ('V',1,0,72), ('V',1,1,76), ('K',1,1,88), ('K',1,0,92), ('K',0,0,96), ('K',0,1,100)]
def unit_src(u):
    k, T, h, d = UNITS[u]
    return [(2*T, 4+h), (2*T+1, 4+h)] if k == 'V' else [(2*T+h, 2), (2*T+h, 3)]
def cvt4(regs, d): return [f"v_cvt_pk_bf16_f32 v{d+i}, v{regs[2*i]}, v{regs[2*i+1]}" for i in range(4)]
def unit_cvt(u):
    k, T, h, d = UNITS[u]
    regs = [acc(*x) + i for x in unit_src(u) for i in range(4)]
    w = f"ds_write_b128 v{V_VL}, {v(d,4)} offset:{T*4096 + (2048 if k == 'V' else 0) + h*256}"
    return cvt4(regs, d) + [w]
def kv_store(u):
    k, T, h, d = UNITS[u]
    return f"buffer_store_dwordx4 {v(d,4)}, v{V_VS}, s[{SRD_KVS}:{SRD_KVS+3}], {'0' if T == 0 else 's50'} offen offset:{(2048 if k == 'V' else 0) + h*256}{SC1}"
def q_cvt(tt):
    return [f"v_pk_mul_f32 {v(acc(tt,0)+2*i,2)}, {v(acc(tt,0)+2*i,2)}, s[26:27]" for i in range(4)] + cvt4([acc(tt,0)+i for i in range(8)], AQ[("ab"[tt >> 1], tt & 1)])

NEP = opt('nep', 4)
def last_step(a, sal):
    order = [(3, 0), (3, 1)] + [x for u in range(8) for x in unit_src(u)] + [(tt, f) for tt in range(3) for f in range(2)]
    gaps = [[] for _ in range(24)]
    gaps[10] += q_cvt(3)
    for u in range(6): gaps[12 + 2*u] += unit_cvt(u) + (if_vcc([kv_store(u - 1), kv_store(u)]) if u & 1 and u < NEP else [])
    for i, (tt, f) in enumerate(order):
        d = acc(tt, f)
        A, B = (WF[1][f], XF[1][tt]) if f < 4 else (XF[1][tt], WF[1][f])
        a(f"v_mfma_f32_16x16x32_bf16 {v(d,4)}, {v(A,4)}, {v(B,4)}, {v(d,4)}")
        for x in gaps[i]: a(x)
    for x in unit_cvt(6) + unit_cvt(7) + (if_vcc([kv_store(6), kv_store(7)]) if NEP == 8 else []): a(x)

def transition_ab(a):
    a(f"s_cmp_lt_u32 s{S_W}, 4\ns_setprio 1\ns_cbranch_scc0 Lyng0\ns_setprio 2\nLyng0:")
    a("s_waitcnt lgkmcnt(0)\ns_barrier")
    for j in range(2): a(f"ds_read_b128 {v(AK[0][j],4)}, v{AADK} offset:{1024*j}")
    for j in range(2): a(f"ds_read_b128 {v(AV[0][j],4)}, v{AADDR} offset:{2048+1024*j}")
    rest = list(range(NEP, 8))
    for tt in range(3):
        if rest and (tt < 2 or NEP < 4):
            k = 2 if tt < 2 else len(rest)
            for x in if_vcc([kv_store(u) for u in rest[:k]]): a(x)
            rest = rest[k:]
        for x in q_cvt(tt): a(x)
    assert not rest
    a("s_nop 1")
    for q in "ab":
        for i in range(4): a(f"v_permlane16_swap_b32 v{AQ[(q,0)]+i}, v{AQ[(q,1)]+i}")
    for q in "ab":
        for i in range(4): a(f"v_permlane32_swap_b32 v{AQ[(q,0)]+i}, v{AQ[(q,1)]+i}")
    a("s_waitcnt lgkmcnt(2)")
    a(qk1(AS[0],0,'a',"0")); a(qk2(AS[0],0,'a')); a(qk1(AS[1],0,'b',"0")); a(qk2(AS[1],0,'b'))
    a(f"""
    v_readfirstlane_b32 s{S_NONCE}, v{V_NON}
    v_readfirstlane_b32 s{S_NONCE+1}, v{V_NON+1}
    s_lshl_b32 s26, s{S_TM}, 4
    s_add_u32 s26, s26, s{S_W}
    s_lshl_b32 s28, s26, 3
    s_nop 3
    s_cmp_eq_u32 s{S_NONCE}, 0
    s_cbranch_scc1 Lnonce_spin
    Lnonce_ok:
    v_mov_b32 v{V_FA}, s28
    s_nop 0
    """)
    rowmax16(a, AS[0], 2, 3)
    rowmax16(a, AS[1], 4, 5)
    MOFF = struct.unpack("<I", struct.pack("<f", float(opt("moff", 19))))[0]
    if MOFF: a(f"v_add_f32 v2, {MOFF:#x}, v2\nv_add_f32 v4, {MOFF:#x}, v4")
    for i in range(8): a(f"v_pk_mul_f32 {v(AC['a']+2*i,2)}, v[2:3], -1.0 op_sel_hi:[0,0]")
    a(f"v_pk_mul_f32 {v(AC['b'],2)}, v[4:5], -1.0 op_sel_hi:[0,0]\nv_pk_mul_f32 {v(AC['b']+2,2)}, v[4:5], -1.0 op_sel_hi:[0,0]")
    a(qk1(AS[0],0,'a')); a(qk2(AS[0],0,'a'))
    for i in range(2, 8): a(f"v_pk_mul_f32 {v(AC['b']+2*i,2)}, v[4:5], -1.0 op_sel_hi:[0,0]")
    a("s_nop 4")

def rowmax16(a, S, m, t):
    a(f"v_max3_f32 v{m}, v{S}, v{S+1}, v{S+2}")
    for i in range(3, 15, 2): a(f"v_max3_f32 v{m}, v{m}, v{S+i}, v{S+i+1}")
    a(f"v_max_f32 v{m}, v{m}, v{S+15}")
    a(f"v_mov_b32 v{t}, v{m}\ns_nop 1\nv_permlane32_swap_b32 v{m}, v{t}\ns_nop 0\nv_max_f32 v{m}, v{m}, v{t}")

def attn_half(a, t, q, extra=None, skipz=False):
    hs = (2*t + (q == 'b')) % 4
    oq = 'b' if q == 'a' else 'a'
    X = AS[hs]; Y = AS[(hs+1) % 4]; Z = AS[(hs-1) % 4]
    kb = t % 2 if q == 'a' else (t+1) % 2
    vb = (t-1) % 2 if q == 'a' else t % 2
    nt = (t + 1) % 4
    M = {'Q1': qk1(Y,kb,oq), 'Q2': qk2(Y,kb,oq), 'P1': pv(Z,0,vb,oq), 'S1': sm(Z,0,oq), 'P2': pv(Z,1,vb,oq), 'S2': sm(Z,1,oq)}
    e = 0
    for tok in "Q1 W0 3 S1 L0 2 Q2 3 P1 3 S2 L1 2 P2 W1 3".split():
        if tok in M:
            if not (skipz and tok[0] != 'Q'): a(M[tok])
        elif tok in ('L0', 'L1'):
            j = int(tok[1])
            if q == 'a': a(f"ds_read_b128 {v(AK[(t+1)%2][j],4)}, v{AADK} offset:{nt*4096 + 1024*j}")
            else: a(f"ds_read_b128 {v(AV[(t+1)%2][j],4)}, v{AADDR} offset:{nt*4096 + 2048 + 1024*j}")
        elif tok == 'W0':
            if q == 'b': a("s_waitcnt lgkmcnt(0)")
        elif tok == 'W1':
            if q == 'a': a("s_waitcnt lgkmcnt(1)")
        else:
            for _ in range(int(tok)):
                a(f"v_exp_f32 v{X+e}, v{X+e}"); e += 1
        if extra and tok in extra:
            for x in extra[tok]: a(x)
    assert e == 16

def kv_dma(h): return [f"buffer_load_dwordx4 v{AVO}, s[{SRD_KV}:{SRD_KV+3}], s{S_CH if h == 0 else S_CH2} offen offset:{1024*i}{SC1} lds" for i in range(4)]
S_FSO = 24
def flag_load(srd=None):
    srd = SRD_F if srd is None else srd
    return f"buffer_load_dwordx2 {v(AFL,2)}, v{AFA}, s[{srd}:{srd+3}], s{S_FSO} offen sc1"
S_EARLY = 41
DEPTH = opt("odepth", 5)
OSL = [72, 80, 88, 96, 136, 144, 152, 160, 8, 16, 24, 32, 224, 232, 240, 248]
def oslot(p, tt): return OSL[p % 16] + 4 * tt
def oload_ins(p):
    return [f"buffer_load_dwordx4 {v(oslot(p, tt),4)}, v{P_OV[(p>>3)&1][tt]}, s[{SRD_OL}:{SRD_OL+3}], s{S_OSO + p%8} offen offset:{(p>>4)*1024}{SC1}" for tt in range(2)]
def chunk_scalars():
    return [f"s_add_u32 s{S_CIDX}, s{S_CIDX}, 16384", f"s_xor_b32 s{S_CH}, s{S_CIDX}, s23", f"s_add_u32 s{S_CH2}, s{S_CH}, 262144",
            f"s_bfe_u32 s26, s{S_CH}, 0x1000e", "s_lshl_b32 s26, s26, 1", f"s_add_u32 s{S_FIDX}, s26, s51"]
def line_cur(): return [f"s_lshr_b32 s26, s{S_CH}, 15", f"s_lshl_b32 s{S_FSO}, s26, 7"]
def line_next(): return [f"s_add_u32 s26, s{S_CIDX}, 16384", "s_xor_b32 s26, s26, s23", "s_bfe_u32 s26, s26, 0x3000f", f"s_lshl_b32 s{S_FSO}, s26, 7"]
def mask_test():
    return [f"s_lshr_b32 s26, s{S_MASK}, s{S_FIDX}", "s_andn2_b32 s26, 0x11, s26"]
def flag_cmp(): return f"v_cmp_eq_u64 s[{S_MASK}:{S_MASK+1}], s[{S_NONCE}:{S_NONCE+1}], {v(AFL,2)}"
def spin(a, name, test, lowprio=False, SLEEP=SLEEP):
    if lowprio:
        a(f"""
        {name}:
        s_mov_b32 s{S_SPIN}, {SPIN_LIMIT}
        {name}_l:
        {flag_load()}
        s_waitcnt vmcnt(0)
        {flag_cmp()}
        s_sub_u32 s{S_SPIN}, s{S_SPIN}, 1
        s_cbranch_scc1 {name}_x
        """)
        for x in test: a(x)
        a(f"s_cbranch_scc0 {name}_x\ns_setprio 0\ns_branch {name}_l\n{name}_x:\ns_cbranch_vccz {name}_r\ns_setprio 2\ns_branch {name}_r")
        return
    a(f"""
    {name}:
    s_mov_b32 s{S_SPIN}, {SPIN_LIMIT}
    {name}_l:
    {flag_load()}
    s_waitcnt vmcnt(0)
    {flag_cmp()}
    s_sub_u32 s{S_SPIN}, s{S_SPIN}, 1
    s_cbranch_scc1 {name}_r
    """)
    for x in test: a(x)
    if SLEEP: a(f"s_cbranch_scc0 {name}_r\ns_sleep {SLEEP}\ns_branch {name}_l")
    else: a(f"s_cbranch_scc1 {name}_l\ns_branch {name}_r")
def spin_flags(a, name): spin(a, name, mask_test())
def wo_dma():
    return [f"s_add_u32 s{S_WOI}, s{S_WOI}, 1", f"s_add_u32 s26, s{S_WOI}, s{S_HP}", "s_and_b32 s26, s26, 7",
            f"s_xor_b32 s27, s{S_WOI}, s{S_HP}", "s_and_b32 s27, s27, 8", "s_or_b32 s26, s26, s27", "s_lshl_b32 s26, s26, 1",
            f"s_lshr_b32 s27, s{S_WOI}, 4", "s_add_u32 s26, s26, s27", "s_lshl_b32 s26, s26, 16", f"s_mov_b32 m0, s{S_WOM}",
            f"s_add_u32 s{S_WOS}, s26, s{S_WOB}", f"s_add_u32 s{S_WOM}, s{S_WOM}, 4096",
            f"buffer_load_dwordx4 v{AWD}, s[{SRD_WO}:{SRD_WO+3}], s{S_WOS} offen{NTW} lds"]
TOUCH = "--touch" in sys.argv
WARMF = "--nowarmf" not in sys.argv
def publish(fa=V_FA): return ["s_waitcnt vmcnt(0)", "s_mov_b64 exec, 1", f"buffer_store_dwordx2 {v(V_NON,2)}, v{fa}, s[{SRD_F}:{SRD_F+3}], 0 offen sc1", "s_mov_b64 exec, -1"]
def wo_rows(n):
    o = []
    for _ in range(n): o += wo_dma()
    return o
EARLY = '--noearly' not in sys.argv
XT = opt('xt', 1)
LST = opt("lst", 1)
def tailpf():
    if not opt("codepf2", 2): return []
    return [f"s_cmp_eq_u32 s{S_CNT}, {opt('codepf2', 2)}", "s_cbranch_scc0 Lnopf2", "s_getpc_b64 s[26:27]", "Lpcref2:", f"s_lshl_b32 s28, s{S_W}, 13",
            "v_lshlrev_b32 v2, 7, v1", "v_add_u32 v2, s28, v2", "v_min_u32 v2, Lattn_fallback-Lattn_j-4, v2", "s_add_u32 s26, s26, Lattn_j-Lpcref2", "s_addc_u32 s27, s27, 0",
            "v_mov_b32 v3, s27", "v_add_co_u32 v2, s[28:29], s26, v2", "s_nop 1", "v_addc_co_u32 v3, s[28:29], 0, v3, s[28:29]", "global_load_dword v4, v[2:3], off", "Lnopf2:"]
def attn_chunk(a, kind):
    tog = f"v_xor_b32 v{AADDR}, 32768, v{AADDR}\nv_xor_b32 v{AADK}, 32768, v{AADK}"
    for t in range(4):
        ea, eb = {}, {}
        if kind in ('c0', 'c1'): stamp(a, None, "c")
        if t in (1, 3): jitter(a)
        if kind == 'c1' and t == opt("polt", 1) + 1: pass
        if kind == 'c1' and t == opt("polt", 1):
            for x in old_only(chunk_scalars() + line_cur() + ["s_branch Lspin_c1a", "Lspin_c1a_r:", f"s_mov_b32 m0, s{S_M0}", "s_nop 0"] + kv_dma(0)
                              + [f"s_add_u32 m0, s{S_M0}, 16384", "s_nop 0"] + kv_dma(1)): a(x)
            stamp(a, None, "c")
        if kind == 'c14' and t == XT:
            for x in if_vcc(["s_barrier"], False): a(x)
        if kind == 'c0':
            for k, e in enumerate((ea, eb)):
                j = 2*t + k - LST
                if 0 <= j < 4: e['P1'] = if_vcc([kv_store(2*j), kv_store(2*j + 1)], False)
        if kind == 'c1' and t == 0:
            eb['P2'] = [f"s_and_b32 s26, s{S_W}, 6", "s_cmp_eq_u32 s26, 2", "s_cbranch_scc0 Lpub2"] + publish() + ["Lpub2:"]
        if kind == 'c14' and t == 0:
            ea['Q2'] = old_only([f"s_lshl_b32 s28, s{S_W}, 1", f"s_add_u32 s28, s28, s{S_HP}", "v_lshrrev_b32 v2, 5, v1", "v_add_u32 v2, s28, v2", "v_and_b32 v2, 7, v2",
                                 f"s_and_b32 s28, s{S_HP}, 8", "s_xor_b32 s28, s28, 8", "v_or_b32 v2, s28, v2", "v_lshlrev_b32 v2, 17, v2", "v_and_b32 v3, 31, v1",
                                 "v_lshl_add_u32 v2, v3, 11, v2", "s_mov_b32 s28, 65536", f"buffer_load_dword v3, v2, s[{SRD_WO}:{SRD_WO+3}], s28 offen"])
        if kind == 'c15' and EARLY:
            if t == 2: ea['Q2'] = if_vcc([f"s_mov_b32 s{S_FSO}, s{S_FL0}", flag_load(SRD_F2)], False)
            if t == 3: ea['Q2'] = if_vcc(["s_waitcnt vmcnt(0)", flag_cmp(), "s_nop 0", f"s_cmp_lg_u32 s{S_MASK}, -1", "s_cbranch_scc1 Lnoearly", f"s_mov_b32 s{S_EARLY}, 1"]
                                         + [x for p in range(min(DEPTH, 4)) for x in oload_ins(p)] + ["Lnoearly:"], False)
        if t == 3:
            if kind == 'c0':
                stamp(a); a("s_waitcnt lgkmcnt(0)\ns_barrier"); stamp(a)
                for x in [f"s_cmp_lt_u32 s{S_W}, 4", "s_cselect_b64 vcc, -1, 0", f"s_and_b32 s26, s{S_W}, 6", "s_cmp_eq_u32 s26, 2", "s_cbranch_scc1 Lpub1"] + publish() + ["Lpub1:"]: a(x)
                stamp(a)
                ea['Q1'] = [tog]
            elif kind == 'c14':
                ea['Q1'] = [f"v_add_u32 v{AADDR}, 131072, v{AADDR}\nv_add_u32 v{AADK}, 131072, v{AADK}"]
            elif kind != 'c15':
                stamp(a); a("s_waitcnt vmcnt(0) lgkmcnt(0)"); stamp(a)
                if not ("--xnobar" in sys.argv and kind == 'loop'): a("s_barrier")
                stamp(a)
                if kind in ('c1', 'loop'):
                    nm = "Lspin_" + kind
                    ea = {'Q1': [tog],
                          'Q2': old_only([flag_cmp(), f"s_xor_b32 s{S_M0}, s{S_M0}, 32768"] + chunk_scalars() + [f"s_mov_b32 m0, s{S_M0}"] + mask_test()
                                         + [f"s_cbranch_scc1 {nm}", f"{nm}_r:"] + kv_dma(0)),
                          'P2': old_only([f"s_add_u32 m0, s{S_M0}, 16384", "s_nop 0"] + kv_dma(1) + line_next() + [flag_load()])}
                    if kind == 'loop':
                        eb = {'Q2': old_only([f"s_cmp_gt_u32 s{S_CNT}, 3", "s_cbranch_scc0 Lnowo"] + wo_rows(2) + ["Lnowo:"] + tailpf() + [f"s_cmp_eq_u32 s{S_CNT}, 1", "s_cbranch_scc0 Lno15"]
                                             + chunk_scalars() + [f"s_add_u32 m0, s{S_M0}, 131072"] + mask_test() + ["s_cbranch_scc1 Lspin_15", "Lspin_15_r:"] + kv_dma(0)
                                             + [f"s_add_u32 m0, s{S_M0}, {131072 + 16384}", "s_nop 0"] + kv_dma(1) + ["Lno15:"]),
                              'P2': [f"s_sub_u32 s{S_CNT}, s{S_CNT}, 1", f"s_cmp_lg_u32 s{S_CNT}, 0"]}
                elif kind == 'c13':
                    ea = {'Q1': [tog], 'Q2': old_only([f"s_lshl_b32 s{S_WOM}, s{S_W}, 10", f"s_add_u32 s{S_WOM}, s{S_WOM}, 32768"] + wo_rows(3)), 'P2': old_only(wo_rows(3))}
                    eb = {'Q2': old_only(wo_rows(2))}
        if "--xnoex" in sys.argv and kind == 'loop' and t == 3: ea = {'Q1': [tog]}; eb = {'P2': eb['P2']}
        attn_half(a, t, 'a', ea, skipz=(kind == 'c0' and t == 0)); attn_half(a, t, 'b', eb)

def attention(a):
    attn_chunk(a, 'c0')
    attn_chunk(a, 'c1')
    a(f"s_mov_b32 s{S_CNT}, 11")
    stamp(a, None, "l")
    SPLIT = opt("split", 1)
    def tail():
        stamp(a, None, "l")
        attn_chunk(a, 'c13')
        attn_chunk(a, 'c14')
        attn_chunk(a, 'c15')
    if SPLIT:
        a("s_cbranch_vccz Lattn_y")
        for role in (True, False):
            ROLE[0] = role
            nm = "Lattn_loop" if role else "Lattn_loop_y"
            if not role: a.label("Lattn_y")
            a(".p2align 6")
            a.label(nm)
            attn_chunk(a, 'loop')
            a(f"s_cbranch_scc1 {nm}")
            if SPLIT == 2: tail()
            if role: a("s_branch Lattn_j")
        ROLE[0] = None
        a.label("Lattn_j")
        if SPLIT == 1: tail()
    else:
        a(".p2align 6")
        a.label("Lattn_loop")
        attn_chunk(a, 'loop')
        a("s_cbranch_scc1 Lattn_loop")
        tail()
    a("s_nop 1")
    stamp(a, 4)
    a(pv(AS[3],0,1,'b')); a(sm(AS[3],0,'b')); a(pv(AS[3],1,1,'b')); a(sm(AS[3],1,'b'))
    a(f"""
    s_mov_b32 s26, 0x5d800000
    s_mov_b32 s27, 65536
    s_nop 5
    """)
    for x in lbroadcast(): a(x)
    a(f"""
    v_cmp_nge_f32 vcc, s26, v{AL['a']}
    v_cmp_nge_f32 s[28:29], s26, v{AL['b']}
    s_nop 0
    s_or_b64 vcc, vcc, s[28:29]
    s_cbranch_vccnz Lattn_fallback
    Lattn_fin:
    """)
    stamp(a, None, "e")
    a(f"""
    v_rcp_f32 v2, v{AL['a']}
    v_rcp_f32 v4, v{AL['b']}
    """)
    for qi, q in enumerate('ab'):
        for u in range(2):
            for i in range(4): a(f"v_pk_mul_f32 {v(AO[q]+8*u+2*i,2)}, {v(AO[q]+8*u+2*i,2)}, {v(2+2*qi,2)} op_sel_hi:[1,0]")
            d = AS[0] + 4*(2*qi+u)
            for x in cvt4([AO[q]+8*u+i for i in range(8)], d): a(x)
            a(f"buffer_store_dwordx4 {v(d,4)}, v6, s[{SRD_O}:{SRD_O+3}], {'0' if qi==0 else 's27'} offen offset:{512*u}{SC1}")

def fallback(a):
    a.label("Lattn_fallback")
    a(f"""
    s_waitcnt vmcnt(0) lgkmcnt(0)
    s_lshl_b32 s26, s{S_B}, 5
    s_lshl_b32 s28, s{S_HP}, 1
    s_add_u32 s26, s26, s28
    s_lshr_b32 s28, s{S_W}, 2
    s_add_u32 s26, s26, s28
    s_lshl_b32 s30, s26, 18
    """)
    make_srd(a, SRD_KV, 48, 49, 30, 262144)
    a(f"""
    s_mov_b32 s{S_SPIN}, {SPIN_LIMIT}
    v_lshrrev_b32 v2, 3, v1
    v_lshl_add_u32 v2, v2, 7, v{AFA}
    Lfb_poll:
    buffer_load_dwordx2 {v(AFL,2)}, v2, s[{SRD_F}:{SRD_F+3}], 0 offen sc1
    s_waitcnt vmcnt(0)
    v_cmp_eq_u64 vcc, s[{S_NONCE}:{S_NONCE+1}], {v(AFL,2)}
    s_sub_u32 s{S_SPIN}, s{S_SPIN}, 1
    s_cbranch_scc1 Lfb_go
    s_cmp_eq_u64 vcc, -1
    s_cbranch_scc0 Lfb_poll
    Lfb_go:
    """)
    for r in list(range(AO['a'], AO['a']+32)) + list(range(AL['a'], AL['a']+8)): a(f"v_mov_b32 v{r}, 0")
    Mr = {'a': AC['a'], 'b': AC['b']}
    a(f"v_mov_b32 v{Mr['a']}, 0xff800000\nv_mov_b32 v{Mr['b']}, 0xff800000\ns_mov_b32 s26, 0")
    a.label("Lfb_loop")
    for j in range(2): a(f"buffer_load_dwordx4 {v(AK[0][j],4)}, v{AVK}, s[{SRD_KV}:{SRD_KV+3}], s26 offen offset:{1024*j} sc1")
    for j in range(2): a(f"buffer_load_dwordx4 {v(AV[0][j],4)}, v{AVO}, s[{SRD_KV}:{SRD_KV+3}], s26 offen offset:{2048+1024*j} sc1")
    a("s_waitcnt vmcnt(0)")
    for q in 'ab':
        S = AS[0]
        a(qk1(S,0,q,"0")); a(qk2(S,0,q)); a("s_nop 15")
        rowmax16(a, S, 2, 3)
        a(f"v_max_f32 v2, v2, v{Mr[q]}\nv_sub_f32 v3, v{Mr[q]}, v2\nv_exp_f32 v3, v3\nv_mov_b32 v{Mr[q]}, v2")
        for i in range(16): a(f"v_sub_f32 v{S+i}, v{S+i}, v2")
        for i in range(16): a(f"v_exp_f32 v{S+i}, v{S+i}")
        for i in range(16): a(f"v_mul_f32 v{AO[q]+i}, v3, v{AO[q]+i}")
        for i in range(4): a(f"v_mul_f32 v{AL[q]+i}, v3, v{AL[q]+i}")
        a("s_nop 1")
        a(pv(S,0,0,q)); a(sm(S,0,q)); a(pv(S,1,0,q)); a(sm(S,1,q))
        a("s_nop 15")
    a("s_add_u32 s26, s26, 4096\ns_cmp_lt_u32 s26, 262144\ns_cbranch_scc1 Lfb_loop")
    for x in lbroadcast(): a(x)
    a("s_branch Lattn_fin")

PACC = 40
PWF = [104, 120]
POF = 168
POLLS = []
def proj_body(a, old):
    vm = VmTrack(); fpos = {}
    R = "o" if old else "y"
    def wreads(p):
        off = (p if p < 16 else p - 16 + 8 if p < 24 else (p - 24) % 4) * 4096
        return [f"ds_read_b64_tr_b16 {v(PWF[p&1]+4*ct+2*h,2)}, v{P_WR[ct]} offset:{off + h*1024}" for ct in range(4) for h in range(2)]
    def check(g, hi=False):
        nm = f"Lpoll{R}{g}"; POLLS.append((nm, hi))
        return [f"s_cmp_lg_u32 s{S_MASK}, -1", f"s_cbranch_scc1 {nm}", f"{nm}_r:"]
    def setline(g): return f"s_xor_b32 s{S_FSO}, s{S_FL0}, {(g & 1) * 128 + (g >> 1) * 256}"
    def force(g, hi=False): return [f"s_mov_b32 s{S_MASK}, 0", setline(g)] + check(g, hi)
    def oload(p):
        vm.issue(("O", p)); vm.issue(("O", p))
        return oload_ins(p)
    PX, YX3 = opt("px", 10), opt("yx3", 5)
    if old:
        a("s_waitcnt vmcnt(4)\ns_barrier")
        stamp(a, None, "e")
        for x in publish(V_FA2): a(x)
        stamp(a, 5)
        for x in [f"s_lshl_b32 s{S_WOM}, s{S_W}, 10"] + wo_rows(4) + [f"s_add_u32 s{S_WOM}, s{S_WOM}, {131072 - 16384}"] + wo_rows(4) + ["s_waitcnt vmcnt(8)"]: a(x)
        OPRE = opt("opre", 6)
        if opt("olow", 1): a("s_setprio 0")
        stamp(a, None, "o")
        for p in range(OPRE):
            if p % 8 == 0:
                for x in force(p // 8, not opt("olow", 1)): a(x)
                stamp(a, None, "o")
            for x in oload(p): a(x)
        a("s_setprio 0")
        nxt = OPRE
    else:
        stamp(a, None, "e")
        YPUB = opt("ypub", 2)
        if YPUB < 0:
            for x in publish(V_FA2): a(x)
        a(f"s_setprio {opt('yprio', 1)}")
        stamp(a, 5)
        a(f"s_cmp_eq_u32 s{S_EARLY}, 1\ns_cbranch_scc1 Learly")
        for x in force(0): a(x)
        for p in range(4):
            for x in oload(p): a(x)
        a.label("Learly")
        for _ in range(1 + (opt("opre", 6) + 7) // 8): stamp(a, None, "o")
        spos = len(vm.ops)
        for p in range(4, DEPTH):
            for x in oload(p): a(x)
        nxt = DEPTH
    for x in wreads(0): a(x)
    stamp(a, 6)
    for p in range(32):
        if p + 1 == 16:
            for ct in range(4): a(f"v_add_u32 v{P_WR[ct]}, {-65536 & 0xffffffff}, v{P_WR[ct]}")
        if p + 1 == 28:
            for ct in range(4): a(f"v_add_u32 v{P_WR[ct]}, 131072, v{P_WR[ct]}")
        wc = vm.wait_count({('O', p)})
        if not old and YPUB >= 0 and p < 4:
            a(f"s_cmp_eq_u32 s{S_EARLY}, 1\ns_cbranch_scc1 Lw{p}a\ns_waitcnt vmcnt({wc})\nLw{p}a:\ns_waitcnt vmcnt({wc + 4}) lgkmcnt(0)")
        else:
            a(f"s_waitcnt vmcnt({wc}) lgkmcnt(0)")
        if not old and p == YPUB:
            for x in [f"s_waitcnt vmcnt({len(vm.ops) - spos})"] + publish(V_FA2)[1:]: a(x)
        gaps = [[] for _ in range(8)]
        for i, r in enumerate(wreads(p + 1) if p + 1 < 32 else []): gaps[i // 2].append(r)
        if not old and p == YX3: gaps[0].append("s_barrier")
        todo = []
        if old:
            todo = list(range(nxt, min(32 if p >= PX else 16, nxt + 2, 16 + p, p + 1 + opt("odold", 6))))
        elif nxt < 32: todo = [nxt]
        gi = 4
        for n in todo:
            if n % 8 == 0:
                g = n // 8
                if old and g == 2: gaps[gi] += ["s_barrier"] + force(g)
                elif g in fpos: gaps[gi] += [f"s_waitcnt vmcnt({len(vm.ops) - fpos[g]})", flag_cmp(), "s_nop 0"] + check(g)
                else: gaps[gi] += force(g)
            o = oload(n)
            gaps[gi].append(o[0]); gaps[gi + 1].append(o[1]); gi += 2
            if (n + 3) % 8 == 0 and n + 3 < 32:
                g = (n + 3) // 8
                gaps[gi - 1] += [setline(g), flag_load()]
                fpos[g] = len(vm.ops)
            nxt = n + 1
        n = 0
        for tt in range(2):
            for ct in (range(4) if tt == 0 else range(3, -1, -1)):
                d = PACC + (tt*4+ct)*4
                a(f"v_mfma_f32_16x16x32_bf16 {v(d,4)}, {v(PWF[p&1]+4*ct,4)}, {v(oslot(p, tt),4)}, {'0' if p==0 else v(d,4)}")
                for x in gaps[n]: a(x)
                n += 1
        if p % 4 == 3: stamp(a, None, "p")
        if p in (1, 9, 20): jitter(a)
    assert nxt == 32

def proj(a):
    a(f"s_mov_b64 s[{SRD_F}:{SRD_F+1}], s[{SRD_F2}:{SRD_F2+1}]\ns_mov_b32 s{SRD_F+2}, 2048")
    a(f"s_cmp_lt_u32 s{S_W}, 4\ns_cselect_b64 vcc, -1, 0\ns_cbranch_scc0 Lproj_y")
    proj_body(a, True)
    a("s_branch Lproj_e\nLproj_y:")
    proj_body(a, False)
    a.label("Lproj_e")
    a(f"""
    v_lshrrev_b32 v4, 4, v1
    v_and_b32 v2, 15, v1
    v_lshlrev_b32 v2, 12, v2
    v_and_b32 v3, 1, v4
    v_lshl_add_u32 v2, v3, 5, v2
    v_lshrrev_b32 v3, 1, v4
    v_lshl_add_u32 v2, v3, 4, v2
    s_mov_b32 s26, 65536
    s_nop 3
    """)
    for tt in range(2):
        for pr in range(2):
            d = POF + (tt*2+pr)*4
            for x in range(2):
                s0 = PACC + (tt*4+2*pr+x)*4
                a(f"v_cvt_pk_bf16_f32 v{d+2*x}, v{s0}, v{s0+1}\nv_cvt_pk_bf16_f32 v{d+2*x+1}, v{s0+2}, v{s0+3}")
            a(f"s_nop 1\nv_permlane16_swap_b32 v{d}, v{d+2}\nv_permlane16_swap_b32 v{d+1}, v{d+3}")
            a(f"buffer_store_dwordx4 {v(d,4)}, v2, s[{SRD_OUT}:{SRD_OUT+3}], {'0' if tt==0 else 's26'} offen offset:{64*pr}{' ' + opt('ofl', 'nt').replace('_', ' ') if opt('ofl', 'nt') else ''}")

def build():
    a = Asm()
    decode(a, "Lend")
    gemm1_setup_dma(a)
    jitter(a)
    stamp(a, 0); dbgstamp(a, 1)
    gemm1_main(a, late_setup())
    stamp(a, 2); dbgstamp(a, 3)
    transition_ab(a)
    stamp(a, 3); jitter(a)
    attention(a)
    jitter(a)
    dbgstamp(a, 4)
    proj(a)
    stamp(a, 7); dbgstamp(a, 5); dbgflush(a)
    stamp_flush(a, 8)
    a.label("Lend")
    a("s_endpgm")
    for nm in ("Lspin_c1a", "Lspin_c1", "Lspin_loop", "Lspin_15"): spin_flags(a, nm)
    a(f"""
    Lnonce_spin:
    s_mov_b32 s{S_SPIN}, {SPIN_LIMIT}
    Lnonce_l:
    buffer_load_dwordx2 {v(V_NON,2)}, v{V_PD+1}, s[92:95], 0 offen sc1
    s_waitcnt vmcnt(0)
    v_readfirstlane_b32 s{S_NONCE}, v{V_NON}
    v_readfirstlane_b32 s{S_NONCE+1}, v{V_NON+1}
    s_sub_u32 s{S_SPIN}, s{S_SPIN}, 1
    s_cbranch_scc1 Lnonce_ok
    s_cmp_eq_u32 s{S_NONCE}, 0
    s_cbranch_scc1 Lnonce_l
    s_branch Lnonce_ok
    """)
    for nm, hi in POLLS: spin(a, nm, [f"s_cmp_lg_u32 s{S_MASK}, -1"], lowprio=hi, SLEEP=opt("sleep2", 0) if nm[-1] in "13" else SLEEP)
    fallback(a)
    a.label("Lcode_end")
    return a.text()

def main(out):
    P = "concat_heads__mha_block__softmax_full_mha__prompt_kernel"
    txt = f"""; Kernarg layout (72 bytes, pointers only, base s[0:1]):
;   0 A_x  8 A_wqkv  16 A_wo  24 B_x  32 B_wqkv  40 B_wo  48 d_out  56 d_debug  64 d_ws
; One fused kernel, 256 workgroups (one per CU) x 8 waves; workgroup = (block b, 256 tokens tm, head pair hp).
;   phase A  QKV projection 256x192x1024 (LDS-DMA ring, 16x16x32 MFMA); Q stays in registers, K/V go to LDS and to d_ws
;   phase B  softmax(QK^T)V for 2 heads x 256 queries. exp2 results feed v_smfmac directly (high halves = bf16).
;            Shift = max of the first key tile (carried in the MFMA C operand); a run-time check of the row sums
;            falls back to an exact running-max loop when that shift could overflow.
;   phase C  output projection 256x64x1024, O fragments from d_ws
; Hand-offs between workgroups: write-through stores, then a per-wave flag holding a per-launch nonce (kept in d_debug).
; @launch grid=(256,1,1) block=(512,1,1) lds=163840
.amdgcn_target "amdgcn-amd-amdhsa--gfx950"
.text
""" + kernel_header(P) + build() + '.section .rodata,"a"\n' + kernel_desc(P, 256, sgpr=102 if DBG or JIT else 96)
    open(out, "w").write(txt)

if __name__ == "__main__":
    args = [x for x in sys.argv[1:] if not x.startswith("--")]
    main(args[0] if args else "concat_heads__mha_block__softmax_full_mha__prompt.s")
```

```python
import sys, struct, math
from dsl import *

def opt(name, default):
    for x in sys.argv:
        if x.startswith(f"--{name}="): return type(default)(x[len(name) + 3:])
    return default
STAMP = "--stamp" in sys.argv
ROT = opt("rot", 2)
PRO = opt("pro", "X0,W0,Q0,B,W1,X1,W2").replace(",", " ")
STEPX = {}
for it in opt("stepx", "0:W3.X2.Q1;1:W4;8:Q2;16:Q3").split(";"):
    if it:
        k, val = it.split(":"); STEPX[int(k)] = val.split(".")
SC1 = "" if "--nosc1" in sys.argv else " sc1"
NTD = " nt" if "d" in opt("nt", "") else (" " + opt("dfl", "").replace("_", " ") if opt("dfl", "") else "")
NTP = " nt" if "p" in opt("nt", "") else ""
NTW = " nt" if "w" in opt("nt", "") else ""
ROTB = opt("rotb", -1)

KV_OFF = 0
O_OFF = 24 << 20
F1_OFF = 32 << 20
F2_OFF = 33 << 20
SLEEP = opt('sleep', 0)
ST_OFF = 64 << 20
QSCALE = struct.unpack("<I", struct.pack("<f", math.log2(math.e) / math.sqrt(32.0)))[0]
SPIN_LIMIT = 1 << 17

S_W, S_B, S_TM, S_HP = 16, 17, 18, 19
S_SOX, S_SOW, S_XB, S_WB = 20, 21, 22, 23
S_EXW = 24
S_NONCE = 80
S_MASK = 82
S_CIDX, S_M0, S_CNT, S_CH, S_WOS, S_WOM, S_FIDX, S_SPIN = 84, 85, 86, 87, 88, 89, 90, 91
S_WOI, S_WOB = 20, 21
PRIO = opt('prio', 1)
SRD_KV, SRD_F, SRD_WO, SRD_O = 4, 8, 52, 12
SRD_KVS = 56
SRD_OUT, SRD_OL, SRD_F2 = 36, 32, 76
S_FL0 = 40

def make_srd(a, d, lo, hi, off_sgpr, nrec):
    a(f"s_add_u32 s{d}, s{lo}, s{off_sgpr}\ns_addc_u32 s{d+1}, s{hi}, 0\ns_and_b32 s{d+1}, s{d+1}, 0xffff")
    a(f"s_mov_b32 s{d+2}, {nrec}\ns_mov_b32 s{d+3}, 0x00020000")

NST = [0]
STG = opt("stg", "m")
def stamp(a, i=None, g="m"):
    if not STAMP: return
    if i is None: g = "a" if g == "m" else g
    if g not in STG: return
    a("s_memrealtime s[60:61]\ns_memtime s[62:63]\ns_waitcnt lgkmcnt(0)\ns_lshl_b64 exec, 1, s64\nv_mov_b32 v0, s60\nv_mov_b32 v203, s62\ns_mov_b64 exec, -1\ns_add_u32 s64, s64, 1")
DBG = "--dbg" in sys.argv
def dbgstamp(a, i, inv=False):
    if DBG: a(f"s_memrealtime s[60:61]\ns_waitcnt lgkmcnt(0)\ns_mov_b32 s{96+i}, s60")
def dbgflush(a):
    if not DBG: return
    a(f"s_cmp_lg_u32 s{S_W}, 0\ns_cbranch_scc1 Ldbg_e\ns_mov_b64 exec, 1\nv_mov_b32 v4, 0")
    for i in range(5):
        a(f"s_sub_u32 s27, s{97+i}, s{96+i}\nv_mov_b32 v{5+2*i}, s27\nbuffer_atomic_umax v{5+2*i}, v4, s[92:95], 0 offen offset:{8+4*i}\nv_mov_b32 v{6+2*i}, s27\nbuffer_atomic_add v{6+2*i}, v4, s[92:95], 0 offen offset:{32+4*i}")
    a("Ldbg_e:")
JIT = opt("jit", 0)
JC = [0]
def jitter(a):
    if not JIT: return
    JC[0] += 1
    k = JC[0]
    a(f"""
    s_mul_i32 s96, s2, {37 + 2 * k}
    s_mul_i32 s97, s{S_W}, {JIT * 11 + k}
    s_add_u32 s96, s96, s97
    s_lshr_b32 s97, s96, 3
    s_xor_b32 s96, s96, s97
    s_and_b32 s96, s96, 31
    Ljit{k}:
    s_cmp_eq_u32 s96, 0
    s_cbranch_scc1 Ljit{k}e
    s_sleep {JIT}
    s_sub_u32 s96, s96, 1
    s_branch Ljit{k}
    Ljit{k}e:
    """)
def stamp_flush(a, n):
    if not STAMP: return
    a(f"""
    s_lshl_b32 s26, s2, 3
    s_add_u32 s26, s26, s{S_W}
    s_lshl_b32 s26, s26, 9
    s_add_u32 s30, s26, {ST_OFF}
    """)
    make_srd(a, 56, 48, 49, 30, 512)
    a("v_lshlrev_b32 v2, 3, v1\nv_mov_b32 v4, v0\nv_mov_b32 v5, v203\nbuffer_store_dwordx2 v[4:5], v2, s[56:59], 0 offen")

ACC = 8
def acc(tt, f): return ACC + (tt * 6 + f) * 4
XF = [[104 + 4*i for i in range(4)], [144 + 4*i for i in range(4)]]
WF = [[120 + 4*i for i in range(6)], [160 + 4*i for i in range(6)]]
V_XR = [208, 209]; V_WR = [210, 211]; V_XD = list(range(184, 192)); V_WD = [212, 213, 214]
V_PX, V_PW, V_PD = 218, 219, 220
V_NON = 222
LDS_W = 98304

EPF = opt("epf", 3)
def entry_pf():
    if EPF == 0: return ""
    if EPF == 4:
        return f"""
        s_getpc_b64 s[26:27]
        Lpcref0:
        v_lshlrev_b32 v2, 7, v0
        v_min_u32 v2, Lcode_end-Lpcref0-4, v2
        v_mov_b32 v3, 0
        v_lshl_add_u64 v[2:3], v[2:3], 0, s[26:27]
        global_load_dword v{V_NON+1}, v[2:3], off
        """
    if EPF == 1:
        addr = """
        v_subrev_u32 v2, 448, v0
        v_cmp_gt_u32 vcc, 48, v2
        s_and_saveexec_b64 s[30:31], vcc
        s_cbranch_execz Lepf_e
        s_lshr_b32 s28, s2, 3
        s_lshl_b32 s28, s28, 4
        v_cmp_le_u32 vcc, 32, v2
        v_mov_b32 v3, s28
        s_nop 0
        v_cndmask_b32 v3, 0, v3, vcc
        v_add_u32 v2, v2, v3
        """
    else:
        addr = f"""
        v_xor_b32 v2, 256, v0
        v_cmp_gt_u32 vcc, {256 if EPF == 2 else 512}, v2
        s_and_saveexec_b64 s[30:31], vcc
        s_cbranch_execz Lepf_e
        """
    return addr + f"""
        s_getpc_b64 s[26:27]
        Lpcref0:
        v_lshlrev_b32 v2, 7, v2
        v_min_u32 v2, Lcode_end-Lpcref0-4, v2
        v_mov_b32 v3, s27
        v_add_co_u32 v2, vcc, s26, v2
        s_nop 1
        v_addc_co_u32 v3, vcc, 0, v3, vcc
        global_load_dword v{V_NON+1}, v[2:3], off
        Lepf_e:
        s_mov_b64 exec, -1
        """
def decode(a, end):
    a(f"""
    s_cmp_ge_u32 s2, 256
    s_cbranch_scc1 {end}
    {"s_memrealtime s[96:97]" if DBG else ""}
    s_load_dwordx16 s[32:47], s[0:1], 0
    {entry_pf()}
    s_load_dwordx2 s[48:49], s[0:1], 64
    v_lshrrev_b32 v1, 6, v0
    s_and_b32 s26, s2, 7
    s_lshr_b32 s27, s2, 3
    v_readfirstlane_b32 s{S_W}, v1
    s_lshr_b32 s{S_B}, s26, 2
    s_and_b32 s28, s26, 1
    s_lshl_b32 s28, s28, 2
    s_and_b32 s29, s27, 3
    s_add_u32 s{S_TM}, s28, s29
    s_bfe_u32 s28, s26, 0x10001
    s_lshl_b32 s28, s28, 3
    s_lshr_b32 s29, s27, 2
    s_add_u32 s{S_HP}, s28, s29
    v_and_b32 v1, 63, v0
    s_mul_i32 s51, {'s26' if ROTB < 0 else 's17'}, {ROT if ROTB < 0 else ROTB}
    s_and_b32 s51, s51, 15
    s_lshl_b32 s14, s51, 1
    s_lshl_b32 s15, s51, 7
    s_mov_b32 s64, 0
    """)

NLAB = [0]
ROLE = [None]
def if_vcc(ins, want=True):
    if ROLE[0] is not None: return list(ins) if ROLE[0] == want else []
    NLAB[0] += 1
    return [f"s_cbranch_vcc{'z' if want else 'nz'} Lskip{NLAB[0]}"] + ins + [f"Lskip{NLAB[0]}:"]
old_only = if_vcc

def gemm1_setup_dma(a):
    a(f"""
    s_cmp_lt_u32 s{S_W}, 4
    s_cselect_b64 vcc, -1, 0
    s_cbranch_scc0 Lsetup1
    s_setprio 1
    Lsetup1:
    s_and_b32 s30, s{S_W}, 3
    s_mul_i32 s{S_XB}, s30, 24576
    s_mul_i32 s26, s30, 3072
    s_add_u32 s{S_WB}, s26, {LDS_W}
    v_lshrrev_b32 v2, 3, v1
    s_lshl_b32 s26, s30, 6
    v_add_u32 v7, s26, v2
    v_and_b32 v3, 7, v1
    v_lshrrev_b32 v4, 4, v1
    v_xor_b32 v5, v3, v4
    v_lshlrev_b32 v5, 4, v5
    v_lshl_add_u32 v{V_XD[0]}, v7, 11, v5
    v_xor_b32 v5, 64, v5
    v_lshl_add_u32 v{V_XD[1]}, v7, 11, v5
    v_add_u32 v{V_XD[1]}, {8*2048}, v{V_XD[1]}
    """)
    for q in range(2, 8): a(f"v_add_u32 v{V_XD[q]}, {16*2048}, v{V_XD[q-2]}")
    a(f"s_mul_i32 s26, s30, 24")
    for q in range(3):
        a(f"""
        v_add_u32 v7, s26, v2            ; R
        s_add_u32 s26, s26, 8
        v_lshrrev_b32 v4, 5, v7          ; sec
        v_and_b32 v7, 31, v7             ; k
        v_and_b32 v5, 2, v7
        v_bfe_u32 v6, v7, 3, 1
        v_lshl_or_b32 v5, v6, 2, v5      ; swz*2
        v_xor_b32 v5, v3, v5             ; chunk
        v_lshlrev_b32 v5, 4, v5
        v_lshl_add_u32 v5, v4, 11, v5
        v_mul_u32_u24 v7, 6144, v7
        v_add_u32 v{V_WD[q]}, v7, v5
        """)
    a(f"""
    s_waitcnt lgkmcnt(0)
    s_cmp_eq_u32 s{S_B}, 0
    s_cselect_b32 s26, s32, s38
    s_cselect_b32 s27, s33, s39
    s_cselect_b32 s28, s34, s40
    s_cselect_b32 s29, s35, s41
    s_lshl_b32 s30, s{S_TM}, 19
    """)
    make_srd(a, 4, 26, 27, 30, 524288)
    a(f"s_lshl_b32 s30, s{S_HP}, 7\ns_sub_u32 s31, {1024*6144}, s30")
    make_srd(a, 8, 28, 29, 30, "s31")
    NV = opt("vpf", 0)
    if NV:
        a(f"s_lshr_b32 s30, s{S_HP}, 3\ns_lshl_b32 s30, s30, 10\ns_sub_u32 s31, {1024*6144}, s30")
        make_srd(a, 56, 28, 29, 30, "s31")
        g = ["s_bfe_u32 s12, s2, 0x40003", "s_lshl_b32 s12, s12, 2", f"s_and_b32 s13, s{S_W}, 3", "s_add_u32 s12, s12, s13", "s_lshl_b32 s13, s51, 6", "s_add_u32 s12, s12, s13",
             "v_lshrrev_b32 v2, 3, v1", "v_and_b32 v3, 7, v1", "v_lshlrev_b32 v3, 7, v3", "v_lshl_add_u32 v2, v2, 11, v3", "s_bfm_b64 exec, 24, 0"]
        for i in range(NV):
            g += [f"s_add_u32 s13, s12, {64*i}", "s_and_b32 s13, s13, 1023", "s_mul_i32 s13, s13, 6144", f"buffer_load_dword v{V_NON+1}, v2, s[56:59], s13 offen"]
        for x in if_vcc(g + ["s_mov_b64 exec, -1"], False): a(x)

def gemm1_setup_rest(a):
    a(f"""
    s_and_b32 s30, s{S_W}, 3
    s_mul_i32 s30, s30, 24576
    v_and_b32 v2, 15, v1             ; c
    v_lshrrev_b32 v4, 4, v1          ; G
    v_lshrrev_b32 v5, 1, v2
    v_xor_b32 v5, v4, v5
    v_lshlrev_b32 v5, 4, v5
    v_lshl_add_u32 v5, v2, 7, v5
    v_add_u32 v{V_XR[0]}, s30, v5
    v_xor_b32 v{V_XR[1]}, 64, v{V_XR[0]}
    v_bfe_u32 v2, v1, 2, 2           ; r
    v_and_b32 v3, 3, v1              ; c4
    v_lshl_add_u32 v5, v4, 3, v2     ; k = 8G + r
    v_lshrrev_b32 v6, 1, v2
    v_and_b32 v7, 1, v4
    v_lshl_or_b32 v6, v7, 1, v6      ; swz
    s_lshr_b32 s30, s{S_W}, 2
    s_lshl_b32 s30, s30, 1
    v_xor_b32 v6, s30, v6
    v_lshlrev_b32 v6, 5, v6
    v_lshl_add_u32 v6, v3, 3, v6
    v_lshl_add_u32 v6, v5, 7, v6
    v_add_u32 v{V_WR[0]}, {LDS_W}, v6
    v_xor_b32 v{V_WR[1]}, 32, v{V_WR[0]}
    """)
    a(f"s_lshr_b32 s30, s{S_TM}, 2\ns_lshl_b32 s30, s30, 21")
    make_srd(a, 52, 26, 27, 30, 2 << 20)
    a(f"s_lshr_b32 s30, s{S_HP}, 3\ns_lshl_b32 s30, s30, 10\ns_sub_u32 s31, {1024*6144}, s30")
    make_srd(a, 56, 28, 29, 30, "s31")
    toks = PRO + " ".join(" ".join(x) for x in STEPX.values())
    if "Q" in toks or "R" in toks:
        for l in q_setup(): a(l)
    if "P" in toks: a(f"""
    s_lshr_b32 s26, s2, 3
    s_lshl_b32 s26, s26, 3
    s_add_u32 s26, s26, s{S_W}       ; u
    s_lshl_b32 s27, s26, 13
    v_and_b32 v2, 3, v1
    v_lshlrev_b32 v2, 11, v2
    v_lshrrev_b32 v3, 2, v1
    v_lshl_add_u32 v2, v3, 7, v2
    v_add_u32 v{V_PX}, s27, v2
    v_mul_u32_u24 v2, 43, v1
    v_lshrrev_b32 v2, 8, v2
    v_mul_u32_u24 v3, 6, v2
    v_sub_u32 v3, v1, v3
    s_and_b32 s27, s26, 3
    s_mul_i32 s27, s27, 6
    v_add_u32 v3, s27, v3
    v_lshrrev_b32 v4, 3, v3
    v_and_b32 v3, 7, v3
    v_lshlrev_b32 v3, 7, v3
    v_lshl_add_u32 v3, v4, 11, v3
    s_lshr_b32 s27, s26, 2
    v_lshl_add_u32 v2, v2, 6, s27
    v_mul_u32_u24 v2, 6144, v2
    v_add_u32 v{V_PW}, v2, v3
    """)
    a(f"""
    v_mov_b32 v{V_PD+1}, 0
    s_or_b32 s26, s2, s{S_W}
    s_cmp_lg_u32 s26, 0
    s_cbranch_scc1 Lnononce
    s_memrealtime s[26:27]
    s_mov_b32 s28, s46
    s_and_b32 s29, s47, 0xffff
    s_mov_b32 s30, 256
    s_mov_b32 s31, 0x00020000
    s_waitcnt lgkmcnt(0)
    s_or_b32 s26, s26, 1
    v_mov_b32 v2, s26
    v_mov_b32 v3, s27
    s_mov_b64 exec, 1
    buffer_store_dwordx2 v[2:3], v{V_PD+1}, s[28:31], 0 offen sc1
    s_mov_b64 exec, -1
    Lnononce:
    """)

def pf_batch(s0, n):
    return [f"s_add_u32 s13, s51, {s0}", "s_and_b32 s13, s13, 15", f"s_bfm_b64 exec, {6*n}, 0", f"s_mul_i32 s50, s13, {64*6144}",
            f"buffer_load_dword v{V_PD}, v{V_PW}, s[56:59], s50 offen{NTP}", "s_lshl_b32 s13, s13, 7",
            f"s_bfm_b64 exec, {4*n}, 0",
            f"buffer_load_dword v{V_PD}, v{V_PX}, s[52:55], s13 offen{NTP}", "s_mov_b64 exec, -1"]
V_QW, V_QX = 218, 219
SLOWC = opt("slowc", 3)
def q_setup():
    return [f"s_lshr_b32 s12, s2, 3", "s_lshl_b32 s12, s12, 3", f"s_add_u32 s12, s12, s{S_W}",
            f"v_lshlrev_b32 v{V_QW}, 11, v1", f"v_add_u32 v{V_QW}, {SLOWC*128}, v{V_QW}",
            "v_and_b32 v2, 3, v1", "v_lshlrev_b32 v2, 11, v2", "v_bfe_u32 v3, v1, 2, 1", "v_lshl_add_u32 v2, v3, 10, v2",
            "s_lshl_b32 s13, s12, 13", f"s_add_u32 s13, s13, {SLOWC*128}", f"v_add_u32 v{V_QX}, s13, v2",
            "s_lshl_b32 s13, s51, 6", "s_add_u32 s12, s12, s13"]
def q_batch(i):
    return [f"s_add_u32 s13, s12, {256*i}", "s_and_b32 s13, s13, 1023", "s_mov_b64 exec, 7", "s_mul_i32 s13, s13, 6144",
            f"buffer_load_dword v{V_NON+1}, v{V_QW}, s[56:59], s13 offen", "s_mov_b64 exec, -1"]
def r_batch():
    return ["s_mov_b64 exec, 0xff", f"buffer_load_dword v{V_NON+1}, v{V_QX}, s[52:55], 0 offen", "s_mov_b64 exec, -1"]
def dma_x(stage, q):
    return [f"s_add_u32 m0, s{S_XB}, {(stage % 3)*8192 + q*1024}", f"buffer_load_dwordx4 v{V_XD[q]}, s[4:7], s{S_SOX} offen{NTD} lds"]
def dma_w(step, q):
    return [f"s_add_u32 m0, s{S_WB}, {(step % 5)*12288 + q*1024}", f"buffer_load_dwordx4 v{V_WD[q]}, s[8:11], s{S_SOW} offen{NTD} lds"]
def frag_reads(step):
    p = step & 1; xs = (step >> 1) % 3; ws = step % 5
    X = [f"ds_read_b128 {v(XF[p][tt],4)}, v{V_XR[p]} offset:{xs*8192 + tt*2048}" for tt in range(4)]
    W = [[f"ds_read_b64_tr_b16 {v(WF[p][f]+2*h,2)}, v{V_WR[f&1]} offset:{ws*12288 + (f>>1)*4096 + h*512}" for h in range(2)] for f in range(6)]
    return [X[0]] + W[0] + W[1] + W[2] + [X[1]] + W[3] + W[4] + W[5] + [X[2], X[3]]
def gemm1_mfmas(step):
    p = step & 1; out = []
    if opt("gord", 1):
        order = [(tt, f) for tt in range(4) for f in (range(4) if tt % 2 == 0 else range(3, -1, -1))] + [(tt, f) for tt in range(3, -1, -1) for f in ((4, 5) if tt % 2 else (5, 4))]
    else:
        order = [(tt, f) for tt in range(4) for f in (range(6) if tt % 2 == 0 else range(5, -1, -1))]
    for tt, f in order:
        d = acc(tt, f)
        A, B = (WF[p][f], XF[p][tt]) if f < 4 else (XF[p][tt], WF[p][f])
        out.append(f"v_mfma_f32_16x16x32_bf16 {v(d,4)}, {v(A,4)}, {v(B,4)}, {'0' if step == 0 else v(d,4)}")
    return out

HB = opt('hb', 1)
RD0, DG0, DGS = opt('rd0', 0), opt('dg0', 1), opt('dgs', 10)
def gemm1_main(a, late):
    vm = VmTrack()
    def group(tok):
        if tok == "B": return [["s_barrier"]], []
        if tok[0] == "Q": return [q_batch(int(tok[1:]))], ["pf"]
        if tok[0] == "R": return [r_batch()], ["pf"]
        if tok[0] == "P":
            s0, n = map(int, tok[1:].split("_")); return [pf_batch(s0, n)], ["pf", "pf"]
        if tok[0] == "W":
            st = int(tok[1:]); g = [f"s_add_u32 s{S_SOW}, s14, {st}", f"s_and_b32 s{S_SOW}, s{S_SOW}, 31"]
            for q in range(3):
                m, l = dma_w(st, q); g += [m, f"s_mul_i32 s{S_SOW}, s{S_SOW}, {32*6144}" if q == 0 else "s_nop 0", l]
            return [old_only(g)], [("W", st)] * 3
        if tok in ("Ha", "Hb"):
            g = [f"s_and_b32 s{S_SOX}, s15, 0x780", "s_mov_b32 s62, 0x0f0f0f0f", "s_mov_b32 s63, s62"]
            for q in range(8):
                m, l = dma_x(0, q)
                g += [m, "s_mov_b64 exec, s[62:63]" if (q & 1) == (tok == "Hb") else "s_not_b64 exec, s[62:63]", l]
            return [old_only(g + ["s_mov_b64 exec, -1"])], [("X", 0) if tok == "Hb" else ("Xa", 0)] * 8
        if tok == "Y0":
            g = {}
            for role, qs in ((True, range(0, 4)), (False, range(4, 8))):
                g[role] = [f"s_and_b32 s{S_SOX}, s15, 0x780"]
                for q in qs:
                    m, l = dma_x(0, q); g[role] += [m, "s_nop 0", l]
            return [if_vcc(g[True], True) + if_vcc(g[False], False)], [("X", 0)] * 4
        if tok[0] == "X":
            if "h" in tok: S, h = tok[1:].split("h"); S = int(S); qs = range(0, 4) if h == "0" else range(4, 8)
            else: S = int(tok[1:]); qs = range(8)
            g = [f"s_add_u32 s{S_SOX}, s15, {S*128}"]
            for q in qs:
                m, l = dma_x(S, q); g += [m, f"s_and_b32 s{S_SOX}, s{S_SOX}, 0x780" if q == qs[0] else "s_nop 0", l]
            return [old_only(g)], [("X", S)] * len(qs)
    first = True
    for tok in PRO.split():
        g, t = group(tok)
        for x in g:
            for y in x: a(y)
        for y in t: vm.issue(y)
        if tok == ("Hb" if "Hb" in PRO else "W0"):
            gemm1_setup_rest(a)
    if "Y0" in PRO:
        for x in if_vcc(["s_waitcnt vmcnt(0)"], False): a(x)
    a(f"s_waitcnt vmcnt({vm.wait_count({('Xa' if 'Ha' in PRO else 'X',0),('W',0)})})")
    a("s_barrier")
    stamp(a, 1); dbgstamp(a, 2)
    for l in frag_reads(0): a(l)
    for st in range(32):
        bar = (not HB) or st == 0 or st % 2 == 1
        if st == 31:
            a("s_waitcnt vmcnt(0) lgkmcnt(0)")
        elif bar:
            ahead = [st + 1] + ([st + 2] if HB and st % 2 == 1 else [])
            need = {("W", x) for x in ahead} | {("X", x >> 1) for x in ahead}
            for nd in need: assert vm.ops.count(nd) == (3 if nd[0] == "W" else 8) or nd == ("X", 0), (st, nd)
            a(f"s_waitcnt vmcnt({min(63, vm.wait_count(need))}) lgkmcnt(0)")
        else:
            a("s_waitcnt lgkmcnt(0)")
        if bar: a("s_barrier")
        if st % 4 == 0: stamp(a, None, "g")
        if st in (2, 9, 30): jitter(a)
        M = gemm1_mfmas(st)
        if st == 31:
            a.label("Lgemm_end")
            last_step(a, late[31]); break
        R = frag_reads(st + 1) if st + 1 < 32 else []
        toks = list(STEPX.get(st, []))
        if not HB:
            if st + 5 < 32: toks.append(f"W{st+5}")
        elif st >= 1 and st + 4 < 32:
            toks.append(f"W{st+4}")
        if st >= 1 and ((st - 1) >> 1) + 3 < 16: toks.append(f"X{((st-1)>>1)+3}h{0 if st % 2 == 1 else 1}")
        D = []
        for tok in toks:
            g, t = group(tok); D += g
            for y in t: vm.issue(y)
        gaps = [[] for _ in range(24)]
        for i, r in enumerate(R): gaps[i + RD0].append(r)
        for i, d in enumerate(D): gaps[min(23, DG0 + (i * DGS if len(D) <= 3 else (i * (23 - DG0)) // len(D)))] += d
        lt = late.get(st, [])
        assert len(lt) <= 24
        for i, x in enumerate(lt):
            gaps[i].append(x)
            if x.startswith("buffer_"): vm.issue("late")
        for i, m in enumerate(M):
            a(m)
            for x in gaps[i]:
                if "--xnodma" in sys.argv and x.endswith("lds") and st > 3: continue
                if "--xnord" in sys.argv and x.startswith("ds_read") and st > 3: continue
                a(x)

AS = [8, 24, 40, 56]
AO = {'a': 224, 'b': 240}
AQ = {('a',0): 104, ('a',1): 108, ('b',0): 112, ('b',1): 116}
AC = {'a': 120, 'b': 136}
AK = [[152, 156], [160, 164]]
AV = [[168, 172], [176, 180]]
AL = {'a': 184, 'b': 188}
ASEL = 192; AIDX = 196; AADDR = 197; AVO = 198; AWD = 199
AFL = 200
AFA = 202
V_VS, V_VL = 205, 207
AADK, AVK = 204, 206
V_FA = 221
S_CH2 = 22
P_WR = [212, 213, 214, 215]; P_OV = [[216, 217], [218, 219]]; V_FA2 = 220
S_OSO = 64 if not STAMP else 66
def qk1(Y, kb, q, c=None): return f"v_mfma_f32_32x32x16_bf16 {v(Y,16)}, {v(AK[kb][0],4)}, {v(AQ[(q,0)],4)}, {v(AC[q],16) if c is None else c}"
def qk2(Y, kb, q): return f"v_mfma_f32_32x32x16_bf16 {v(Y,16)}, {v(AK[kb][1],4)}, {v(AQ[(q,1)],4)}, {v(Y,16)}"
def pv(Z, h, vb, q): return f"v_smfmac_f32_32x32x32_bf16 {v(AO[q],16)}, {v(AV[vb][h],4)}, {v(Z+8*h,8)}, v{AIDX}"
def sm(Z, h, q): return f"v_smfmac_f32_16x16x64_bf16 {v(AL[q],4)}, {v(ASEL,4)}, {v(Z+8*h,8)}, v{AIDX}"
def srd(d, lo, hi, off, nrec):
    return [f"s_add_u32 s{d}, s{lo}, s{off}\ns_addc_u32 s{d+1}, s{hi}, 0", f"s_and_b32 s{d+1}, s{d+1}, 0xffff", f"s_mov_b32 s{d+2}, {nrec}", f"s_mov_b32 s{d+3}, 0x00020000"]

CODEPF = [int(x) for x in opt('codepf', '12').split(',') if int(x)]
SEL2 = opt('sel2', 0)
def lbroadcast():
    if not SEL2: return []
    return [f"v_mov_b32 v{AL[q]+1}, v{AL[q]}" for q in 'ab'] + ['s_nop 1'] + [f"v_permlane32_swap_b32 v{AL[q]}, v{AL[q]+1}" for q in 'ab']
def late_setup():
    L = {}
    L[18] = [f"v_mov_b32 v{AO['a']+i}, 0" for i in range(24)]
    L19OLD = [f"v_mov_b32 v{AO['a']+24+i}, 0" for i in range(8)] + \
            [f"v_lshlrev_b32 v{AVO}, 4, v1", "v_and_b32 v2, 7, v1", f"v_lshlrev_b32 v{AFA}, 3, v2", f"s_lshr_b32 s26, s{S_W}, 2", "s_lshl_b32 s26, s26, 14",
             f"v_add_u32 v{AADDR}, s26, v{AVO}", f"v_mov_b32 v{AIDX}, 0xdddddddd",
             "v_bfe_u32 v2, v1, 2, 1", "v_mov_b32 v3, 0x3f803f80", "v_cmp_eq_u32 s[28:29], 0, v2", "s_nop 1",
             f"v_cndmask_b32 v{ASEL}, 0, v3, s[28:29]", f"v_cndmask_b32 v{ASEL+1}, 0, v3, s[28:29]", f"v_xor_b32 v{ASEL+2}, v3, v{ASEL}", f"v_xor_b32 v{ASEL+3}, v3, v{ASEL}"]
    L[19] = [f"v_mov_b32 v{AO['a']+24+i}, 0" for i in range(8)] + \
            [f"v_lshlrev_b32 v{AVO}, 4, v1", "v_and_b32 v2, 7, v1", f"v_lshlrev_b32 v{AFA}, 3, v2", f"s_lshr_b32 s26, s{S_W}, 2", "s_lshl_b32 s26, s26, 14",
             f"v_add_u32 v{AADDR}, s26, v{AVO}", f"v_mov_b32 v{AIDX}, 0xdddddddd",
             f"v_and_b32 v2, {15 if SEL2 else 7}, v1", "v_mov_b32 v3, 0x3f803f80", "v_cmp_eq_u32 s[28:29], 0, v2", f"v_cmp_eq_u32 s[30:31], 4, v2",
             f"v_cndmask_b32 v{ASEL}, 0, v3, s[28:29]", f"v_cndmask_b32 v{ASEL+1}, 0, v3, s[28:29]", f"v_cndmask_b32 v{ASEL+2}, 0, v3, s[30:31]", f"v_cndmask_b32 v{ASEL+3}, 0, v3, s[30:31]"] \
            if opt("sel1", 1) else L19OLD
    L[20] = ["v_and_b32 v2, 15, v1", "v_lshrrev_b32 v4, 4, v1", "v_lshlrev_b32 v4, 9, v4", f"v_lshl_add_u32 v{V_VS}, v2, 4, v4",
             "v_bfe_u32 v2, v1, 2, 1", "v_bfe_u32 v3, v1, 3, 2", "v_and_b32 v4, 35, v1", "v_lshl_add_u32 v4, v2, 4, v4", "v_lshl_add_u32 v4, v3, 2, v4",
             f"v_lshlrev_b32 v{AVK}, 4, v4", f"v_sub_u32 v2, v{AADDR}, v{AVO}", f"v_add_u32 v{AADK}, v2, v{AVK}",
             f"s_and_b32 s26, s{S_W}, 2", "s_lshl_b32 s26, s26, 14", f"s_and_b32 s27, s{S_W}, 1", "s_lshl_b32 s27, s27, 13", "s_add_u32 s26, s26, s27",
             f"s_lshr_b32 s27, s{S_W}, 2", "s_lshl_b32 s27, s27, 14", "s_add_u32 s26, s26, s27", f"v_add_u32 v{V_VL}, s26, v{V_VS}"]
    L[21] = ["v_lshrrev_b32 v2, 3, v1", "v_and_b32 v3, 7, v1", "v_lshrrev_b32 v4, 4, v1", "v_lshlrev_b32 v4, 1, v4", "v_xor_b32 v4, v3, v4",
             "v_lshlrev_b32 v4, 4, v4", f"v_lshl_add_u32 v{AWD}, v2, 11, v4",
             f"s_cmp_eq_u32 s{S_B}, 0\ns_cselect_b32 s26, s36, s42\ns_cselect_b32 s27, s37, s43", f"s_lshl_b32 s30, s{S_HP}, 7", f"s_sub_u32 s31, {1024*2048}, s30"] \
            + srd(SRD_WO, 26, 27, 30, "s31") + ["s_mov_b32 s92, s46", "s_and_b32 s93, s47, 0xffff", "s_mov_b32 s94, 256", "s_mov_b32 s95, 0x00020000"]
    if WARMF:
        L[22] = [f"s_lshl_b32 s28, s{S_B}, 4", f"s_add_u32 s28, s28, s{S_HP}", "s_lshl_b32 s28, s28, 10", f"s_add_u32 s30, s28, {F1_OFF}",
                 f"s_lshl_b32 s28, s{S_B}, 3", f"s_add_u32 s28, s28, s{S_TM}", "s_lshl_b32 s28, s28, 11", f"s_add_u32 s31, s28, {F2_OFF}",
                 "s_mov_b32 s76, s48", "s_and_b32 s77, s49, 0xffff", f"s_mov_b32 s78, {34 << 20}", "s_mov_b32 s79, 0x00020000", "v_lshlrev_b32 v2, 7, v1",
                 "\n".join(if_vcc(["s_mov_b64 exec, 0xff", f"buffer_load_dword v{V_NON+1}, v2, s[76:79], s30 offen sc1",
                                   "s_mov_b64 exec, 0xffff", f"buffer_load_dword v{V_NON+1}, v2, s[76:79], s31 offen sc1", "s_mov_b64 exec, -1"], False))]
    if opt("tlb", 0):
        L[17] = [f"s_lshl_b32 s28, s{S_B}, 4", f"s_add_u32 s28, s28, s{S_HP}", "s_lshl_b32 s28, s28, 19", f"s_lshl_b32 s29, s{S_TM}, 15", "s_add_u32 s30, s28, s29",
                 f"s_lshl_b32 s28, s{S_B}, 22", f"s_lshl_b32 s29, s{S_TM}, 19", "s_add_u32 s31, s28, s29", f"s_lshl_b32 s29, s{S_HP}, 11", "s_add_u32 s31, s31, s29", f"s_add_u32 s31, s31, {O_OFF}",
                 "s_mov_b32 s76, s48", "s_and_b32 s77, s49, 0xffff", f"s_mov_b32 s78, {34 << 20}", "s_mov_b32 s79, 0x00020000",
                 "\n".join(if_vcc(["s_mov_b64 exec, 1", f"buffer_load_dword v{V_NON+1}, v{V_PD+1}, s[76:79], s30 offen sc1",
                                   f"buffer_load_dword v{V_NON+1}, v{V_PD+1}, s[76:79], s31 offen sc1", "s_mov_b64 exec, -1"], False))]
    L[27] = [f"v_mov_b32 v{AL['a']+i}, 0" for i in range(8)] + \
            [f"s_lshl_b32 s26, s{S_B}, 5", f"s_lshl_b32 s27, s{S_HP}, 1", "s_add_u32 s26, s26, s27",
             f"s_and_b32 s28, s{S_W}, 3", "s_lshl_b32 s29, s28, 12", "s_lshl_b32 s30, s26, 18", "s_add_u32 s31, s30, s29", "s_sub_u32 s50, 524288, s29"] \
            + srd(SRD_KV, 48, 49, 31, "s50") + [f"s_lshr_b32 s27, s{S_W}, 2", "s_add_u32 s26, s26, s27", "s_lshl_b32 s30, s26, 18"]
    L[28] = [f"buffer_load_dwordx2 {v(V_NON,2)}, v{V_PD+1}, s[92:95], 0 offen sc1",
             f"s_mov_b32 s{S_WOI}, -1", f"s_lshl_b32 s{S_WOB}, s{S_W}, 14", f"s_lshl_b32 s27, s{S_W}, 10", f"s_add_u32 s{S_WOM}, s27, 65536",
             f"s_lshl_b32 s{S_M0}, s{S_W}, 12", f"s_mov_b32 s{S_CIDX}, 16384", f"s_lshl_b32 s23, s{S_TM}, 15", f"s_lshr_b32 s51, s{S_W}, 1", f"s_mov_b32 s{S_EARLY}, 0"]
    L[29] = [f"s_lshl_b32 s27, s{S_TM}, 3", "s_lshl_b32 s28, s28, 1", "s_add_u32 s27, s27, s28", "s_lshl_b32 s29, s27, 12", "s_add_u32 s31, s30, s29"] \
            + srd(SRD_KVS, 48, 49, 31, 8192) + ["s_mov_b32 s50, 4096",
             f"s_lshl_b32 s28, s{S_B}, 22", "s_lshl_b32 s29, s27, 16", "s_add_u32 s31, s28, s29", "s_and_b32 s28, s26, 31", "s_lshl_b32 s28, s28, 10",
             "s_add_u32 s31, s31, s28", f"s_add_u32 s31, s31, {O_OFF}"] + srd(SRD_O, 48, 49, 31, 131072)
    L[30] = [f"s_lshl_b32 s28, s{S_B}, 4", f"s_add_u32 s28, s28, s{S_HP}", "s_lshl_b32 s28, s28, 10", f"s_add_u32 s31, s28, {F1_OFF}"] + srd(SRD_F, 48, 49, 31, 1024) \
            + [f"s_bitcmp0_b32 s{S_W}, 1\ns_cselect_b64 vcc, -1, 0", f"s_mov_b32 s26, {QSCALE}", f"s_mov_b32 s27, {QSCALE}"]
    L[23] = [f"s_lshl_b32 s28, s{S_B}, 3", f"s_add_u32 s28, s28, s{S_TM}", "s_lshl_b32 s28, s28, 11", f"s_add_u32 s30, s28, {F2_OFF}"] + srd(SRD_F2, 48, 49, 30, 2048) \
            + [f"s_lshl_b32 s28, s{S_B}, 22", f"s_lshl_b32 s29, s{S_TM}, 19", "s_add_u32 s30, s28, s29", f"s_lshl_b32 s29, s{S_W}, 16", "s_add_u32 s30, s30, s29",
               f"s_add_u32 s30, s30, {O_OFF}"] + srd(SRD_OL, 48, 49, 30, 65536)
    L[24] = [f"s_lshl_b32 s28, s{S_TM}, 20", f"s_lshl_b32 s29, s{S_W}, 17", "s_add_u32 s30, s28, s29", f"s_lshl_b32 s29, s{S_B}, 11", "s_add_u32 s30, s30, s29",
             f"s_lshl_b32 s29, s{S_HP}, 7", "s_add_u32 s30, s30, s29", f"s_sub_u32 s31, {2048*4096}, s30"] + srd(SRD_OUT, 44, 45, 30, "s31") \
            + [f"s_and_b32 s26, s{S_HP}, 8", "s_lshl_b32 s27, s26, 11", f"v_add_u32 v{P_OV[0][0]}, s27, v{AVO}", f"v_add_u32 v{P_OV[0][1]}, 32768, v{P_OV[0][0]}",
               f"v_xor_b32 v{P_OV[1][0]}, 16384, v{P_OV[0][0]}", f"v_xor_b32 v{P_OV[1][1]}, 16384, v{P_OV[0][1]}",
               "s_lshl_b32 s26, s26, 4", f"s_lshr_b32 s27, s{S_W}, 1", "s_lshl_b32 s27, s27, 9", f"s_add_u32 s{S_FL0}, s26, s27"]
    L[25] = [x for j in range(8) for x in (f"s_add_u32 s26, s{S_HP}, {j}", "s_and_b32 s26, s26, 7", f"s_lshl_b32 s{S_OSO+j}, s26, 11")]
    L[26] = [f"s_and_b32 s26, s{S_W}, 3", "s_lshl_b32 s26, s26, 6", f"s_lshr_b32 s27, s{S_W}, 2", "s_lshl_b32 s27, s27, 5", "s_add_u32 s26, s26, s27",
             f"s_and_b32 s27, s{S_HP}, 8", f"s_add_u32 s27, s27, s{S_HP}", "s_add_u32 s26, s26, s27", "s_lshl_b32 s26, s26, 3", f"v_mov_b32 v{V_FA2}, s26",
             "v_and_b32 v4, 15, v1", "v_lshlrev_b32 v4, 4, v4", "v_bfe_u32 v5, v1, 4, 1", "v_lshl_add_u32 v4, v5, 15, v4", "v_lshrrev_b32 v5, 5, v1", "v_lshl_add_u32 v6, v5, 8, v4"]
    L[30] += ["v_lshrrev_b32 v4, 4, v1", "v_bfe_u32 v2, v1, 2, 2", "v_and_b32 v3, 3, v1", "v_and_b32 v5, 1, v4", "v_lshrrev_b32 v4, 1, v4", "v_lshl_add_u32 v7, v5, 2, v2",
              "v_lshl_add_u32 v4, v4, 4, v7", "v_lshrrev_b32 v7, 1, v7", "v_lshlrev_b32 v7, 5, v7", "v_lshl_add_u32 v7, v3, 3, v7", "v_lshl_add_u32 v7, v4, 7, v7",
              f"v_add_u32 v{P_WR[0]}, 65536, v7\nv_xor_b32 v{P_WR[1]}, 32, v{P_WR[0]}", f"v_xor_b32 v{P_WR[2]}, 64, v{P_WR[0]}\nv_xor_b32 v{P_WR[3]}, 96, v{P_WR[0]}"]
    if opt("tlb", 0):
        L[26] += ["\n".join(if_vcc(["s_mov_b64 exec, 1", f"buffer_load_dword v{V_NON+1}, v{V_PD+1}, s[{SRD_WO}:{SRD_WO+3}], 0 offen",
                                    f"buffer_load_dword v{V_NON+1}, v{V_PD+1}, s[{SRD_OUT}:{SRD_OUT+3}], 0 offen sc1", "s_mov_b64 exec, -1"], False))]
    L[31] = []
    for k, st in enumerate(CODEPF):
        L[st] = L.get(st, []) + [f"s_getpc_b64 s[74:75]\nLpcref_{k}:", f"s_and_b32 s62, s{S_W}, 3", "s_lshl_b32 s62, s62, 13", "v_lshlrev_b32 v2, 7, v1", "v_add_u32 v2, s62, v2",
                     "v_min_u32 v2, Lcode_end-Lgemm_end-4, v2", f"s_add_u32 s74, s74, Lgemm_end-Lpcref_{k}\ns_addc_u32 s75, s75, 0", "v_mov_b32 v3, 0",
                     "v_lshl_add_u64 v[2:3], v[2:3], 0, s[74:75]", "\n".join(if_vcc([f"global_load_dword v{V_NON+1 if st < 28 else 0}, v[2:3], off"], False))]
    return L

UNITS = [('V',0,0,80), ('V',0,1,84), ('V',1,0,72), ('V',1,1,76), ('K',1,1,88), ('K',1,0,92), ('K',0,0,96), ('K',0,1,100)]
def unit_src(u):
    k, T, h, d = UNITS[u]
    return [(2*T, 4+h), (2*T+1, 4+h)] if k == 'V' else [(2*T+h, 2), (2*T+h, 3)]
def cvt4(regs, d): return [f"v_cvt_pk_bf16_f32 v{d+i}, v{regs[2*i]}, v{regs[2*i+1]}" for i in range(4)]
def unit_cvt(u):
    k, T, h, d = UNITS[u]
    regs = [acc(*x) + i for x in unit_src(u) for i in range(4)]
    w = f"ds_write_b128 v{V_VL}, {v(d,4)} offset:{T*4096 + (2048 if k == 'V' else 0) + h*256}"
    return cvt4(regs, d) + [w]
def kv_store(u):
    k, T, h, d = UNITS[u]
    return f"buffer_store_dwordx4 {v(d,4)}, v{V_VS}, s[{SRD_KVS}:{SRD_KVS+3}], {'0' if T == 0 else 's50'} offen offset:{(2048 if k == 'V' else 0) + h*256}{SC1}"
PK = opt('pk', 0)
def q_cvt(tt):
    return ([f"v_pk_mul_f32 {v(acc(tt,0)+2*i,2)}, {v(acc(tt,0)+2*i,2)}, s[26:27]" for i in range(4)] if PK else [f"v_mul_f32 v{acc(tt,0)+i}, s26, v{acc(tt,0)+i}" for i in range(8)]) + cvt4([acc(tt,0)+i for i in range(8)], AQ[("ab"[tt >> 1], tt & 1)])

NEP = opt('nep', 4)
def last_step(a, sal):
    order = [(3, 0), (3, 1)] + [x for u in range(8) for x in unit_src(u)] + [(tt, f) for tt in range(3) for f in range(2)]
    gaps = [[] for _ in range(24)]
    gaps[10] += q_cvt(3)
    for u in range(6): gaps[12 + 2*u] += unit_cvt(u) + (if_vcc([kv_store(u - 1), kv_store(u)]) if u & 1 and u < NEP else [])
    for i, (tt, f) in enumerate(order):
        d = acc(tt, f)
        A, B = (WF[1][f], XF[1][tt]) if f < 4 else (XF[1][tt], WF[1][f])
        a(f"v_mfma_f32_16x16x32_bf16 {v(d,4)}, {v(A,4)}, {v(B,4)}, {v(d,4)}")
        for x in gaps[i]: a(x)
    for x in unit_cvt(6) + unit_cvt(7) + (if_vcc([kv_store(6), kv_store(7)]) if NEP == 8 else []): a(x)

def transition_ab(a):
    a(f"s_cmp_lt_u32 s{S_W}, 4\ns_setprio 1\ns_cbranch_scc0 Lyng0\ns_setprio 2\nLyng0:")
    a("s_waitcnt lgkmcnt(0)\ns_barrier")
    for j in range(2): a(f"ds_read_b128 {v(AK[0][j],4)}, v{AADK} offset:{1024*j}")
    for j in range(2): a(f"ds_read_b128 {v(AV[0][j],4)}, v{AADDR} offset:{2048+1024*j}")
    rest = list(range(NEP, 8))
    for tt in range(3):
        if rest and (tt < 2 or NEP < 4):
            k = 2 if tt < 2 else len(rest)
            for x in if_vcc([kv_store(u) for u in rest[:k]]): a(x)
            rest = rest[k:]
        for x in q_cvt(tt): a(x)
    assert not rest
    a("s_nop 1")
    for q in "ab":
        for i in range(4): a(f"v_permlane16_swap_b32 v{AQ[(q,0)]+i}, v{AQ[(q,1)]+i}")
    for q in "ab":
        for i in range(4): a(f"v_permlane32_swap_b32 v{AQ[(q,0)]+i}, v{AQ[(q,1)]+i}")
    a("s_waitcnt lgkmcnt(2)")
    a(qk1(AS[0],0,'a',"0")); a(qk2(AS[0],0,'a')); a(qk1(AS[1],0,'b',"0")); a(qk2(AS[1],0,'b'))
    a(f"""
    v_readfirstlane_b32 s{S_NONCE}, v{V_NON}
    v_readfirstlane_b32 s{S_NONCE+1}, v{V_NON+1}
    s_lshl_b32 s26, s{S_TM}, 4
    s_add_u32 s26, s26, s{S_W}
    s_lshl_b32 s28, s26, 3
    s_nop 3
    s_cmp_eq_u32 s{S_NONCE}, 0
    s_cbranch_scc1 Lnonce_spin
    Lnonce_ok:
    v_mov_b32 v{V_FA}, s28
    s_nop 0
    """)
    rowmax16(a, AS[0], 2, 3)
    rowmax16(a, AS[1], 4, 5)
    MOFF = struct.unpack("<I", struct.pack("<f", float(opt("moff", 19))))[0]
    if MOFF: a(f"v_add_f32 v2, {MOFF:#x}, v2\nv_add_f32 v4, {MOFF:#x}, v4")
    if PK:
        for i in range(8): a(f"v_pk_mul_f32 {v(AC['a']+2*i,2)}, v[2:3], -1.0 op_sel_hi:[0,0]")
        a(f"v_pk_mul_f32 {v(AC['b'],2)}, v[4:5], -1.0 op_sel_hi:[0,0]\nv_pk_mul_f32 {v(AC['b']+2,2)}, v[4:5], -1.0 op_sel_hi:[0,0]")
        a(qk1(AS[0],0,'a')); a(qk2(AS[0],0,'a'))
        for i in range(2, 8): a(f"v_pk_mul_f32 {v(AC['b']+2*i,2)}, v[4:5], -1.0 op_sel_hi:[0,0]")
        a("s_nop 4")
    else:
        for i in range(16): a(f"v_sub_f32 v{AC['a']+i}, 0, v2")
        for i in range(2): a(f"v_sub_f32 v{AC['b']+i}, 0, v4")
        a(qk1(AS[0],0,'a')); a(qk2(AS[0],0,'a'))
        for i in range(2, 16): a(f"v_sub_f32 v{AC['b']+i}, 0, v4")
        a("s_nop 1")

def rowmax16(a, S, m, t):
    a(f"v_max3_f32 v{m}, v{S}, v{S+1}, v{S+2}")
    for i in range(3, 15, 2): a(f"v_max3_f32 v{m}, v{m}, v{S+i}, v{S+i+1}")
    a(f"v_max_f32 v{m}, v{m}, v{S+15}")
    a(f"v_mov_b32 v{t}, v{m}\ns_nop 1\nv_permlane32_swap_b32 v{m}, v{t}\ns_nop 0\nv_max_f32 v{m}, v{m}, v{t}")

def attn_half(a, t, q, extra=None, skipz=False):
    hs = (2*t + (q == 'b')) % 4
    oq = 'b' if q == 'a' else 'a'
    X = AS[hs]; Y = AS[(hs+1) % 4]; Z = AS[(hs-1) % 4]
    kb = t % 2 if q == 'a' else (t+1) % 2
    vb = (t-1) % 2 if q == 'a' else t % 2
    nt = (t + 1) % 4
    M = {'Q1': qk1(Y,kb,oq), 'Q2': qk2(Y,kb,oq), 'P1': pv(Z,0,vb,oq), 'S1': sm(Z,0,oq), 'P2': pv(Z,1,vb,oq), 'S2': sm(Z,1,oq)}
    e = 0
    for tok in "Q1 W0 3 S1 L0 2 Q2 3 P1 3 S2 L1 2 P2 W1 3".split():
        if tok in M:
            if not (skipz and tok[0] != 'Q'): a(M[tok])
        elif tok in ('L0', 'L1'):
            j = int(tok[1])
            if q == 'a': a(f"ds_read_b128 {v(AK[(t+1)%2][j],4)}, v{AADK} offset:{nt*4096 + 1024*j}")
            else: a(f"ds_read_b128 {v(AV[(t+1)%2][j],4)}, v{AADDR} offset:{nt*4096 + 2048 + 1024*j}")
        elif tok == 'W0':
            if q == 'b': a("s_waitcnt lgkmcnt(0)")
        elif tok == 'W1':
            if q == 'a': a("s_waitcnt lgkmcnt(1)")
        else:
            for _ in range(int(tok)):
                a(f"v_exp_f32 v{X+e}, v{X+e}"); e += 1
        if extra and tok in extra:
            for x in extra[tok]: a(x)
    assert e == 16

def kv_dma(h): return [f"buffer_load_dwordx4 v{AVO}, s[{SRD_KV}:{SRD_KV+3}], s{S_CH if h == 0 else S_CH2} offen offset:{1024*i}{SC1} lds" for i in range(4)]
S_FSO = 24
def flag_load(srd=None):
    srd = SRD_F if srd is None else srd
    return f"buffer_load_dwordx2 {v(AFL,2)}, v{AFA}, s[{srd}:{srd+3}], s{S_FSO} offen sc1"
S_EARLY = 41
DEPTH = opt("odepth", 5)
OSL = [72, 80, 88, 96, 136, 144, 152, 160, 8, 16, 24, 32, 224, 232, 240, 248]
def oslot(p, tt): return OSL[p % 16] + 4 * tt
def oload_ins(p):
    return [f"buffer_load_dwordx4 {v(oslot(p, tt),4)}, v{P_OV[(p>>3)&1][tt]}, s[{SRD_OL}:{SRD_OL+3}], s{S_OSO + p%8} offen offset:{(p>>4)*1024}{SC1}" for tt in range(2)]
def chunk_scalars():
    return [f"s_add_u32 s{S_CIDX}, s{S_CIDX}, 16384", f"s_xor_b32 s{S_CH}, s{S_CIDX}, s23", f"s_add_u32 s{S_CH2}, s{S_CH}, 262144",
            f"s_bfe_u32 s26, s{S_CH}, 0x1000e", "s_lshl_b32 s26, s26, 1", f"s_add_u32 s{S_FIDX}, s26, s51"]
def line_cur(): return [f"s_lshr_b32 s26, s{S_CH}, 15", f"s_lshl_b32 s{S_FSO}, s26, 7"]
def line_next(): return [f"s_add_u32 s26, s{S_CIDX}, 16384", "s_xor_b32 s26, s26, s23", "s_bfe_u32 s26, s26, 0x3000f", f"s_lshl_b32 s{S_FSO}, s26, 7"]
def mask_test():
    return [f"s_lshr_b32 s26, s{S_MASK}, s{S_FIDX}", "s_andn2_b32 s26, 0x11, s26"]
def flag_cmp(): return f"v_cmp_eq_u64 s[{S_MASK}:{S_MASK+1}], s[{S_NONCE}:{S_NONCE+1}], {v(AFL,2)}"
def spin(a, name, test, lowprio=False, SLEEP=SLEEP):
    if lowprio:
        a(f"""
        {name}:
        s_mov_b32 s{S_SPIN}, {SPIN_LIMIT}
        {name}_l:
        {flag_load()}
        s_waitcnt vmcnt(0)
        {flag_cmp()}
        s_sub_u32 s{S_SPIN}, s{S_SPIN}, 1
        s_cbranch_scc1 {name}_x
        """)
        for x in test: a(x)
        a(f"s_cbranch_scc0 {name}_x\ns_setprio 0\ns_branch {name}_l\n{name}_x:\ns_cbranch_vccz {name}_r\ns_setprio 2\ns_branch {name}_r")
        return
    a(f"""
    {name}:
    s_mov_b32 s{S_SPIN}, {SPIN_LIMIT}
    {name}_l:
    {flag_load()}
    s_waitcnt vmcnt(0)
    {flag_cmp()}
    s_sub_u32 s{S_SPIN}, s{S_SPIN}, 1
    s_cbranch_scc1 {name}_r
    """)
    for x in test: a(x)
    if SLEEP: a(f"s_cbranch_scc0 {name}_r\ns_sleep {SLEEP}\ns_branch {name}_l")
    else: a(f"s_cbranch_scc1 {name}_l\ns_branch {name}_r")
def spin_flags(a, name): spin(a, name, mask_test())
def wo_dma():
    return [f"s_add_u32 s{S_WOI}, s{S_WOI}, 1", f"s_add_u32 s26, s{S_WOI}, s{S_HP}", "s_and_b32 s26, s26, 7",
            f"s_xor_b32 s27, s{S_WOI}, s{S_HP}", "s_and_b32 s27, s27, 8", "s_or_b32 s26, s26, s27", "s_lshl_b32 s26, s26, 1",
            f"s_lshr_b32 s27, s{S_WOI}, 4", "s_add_u32 s26, s26, s27", "s_lshl_b32 s26, s26, 16", f"s_mov_b32 m0, s{S_WOM}",
            f"s_add_u32 s{S_WOS}, s26, s{S_WOB}", f"s_add_u32 s{S_WOM}, s{S_WOM}, 4096",
            f"buffer_load_dwordx4 v{AWD}, s[{SRD_WO}:{SRD_WO+3}], s{S_WOS} offen{NTW} lds"]
TOUCH = "--touch" in sys.argv
WARMF = "--nowarmf" not in sys.argv
def publish(fa=V_FA): return ["s_waitcnt vmcnt(0)", "s_mov_b64 exec, 1", f"buffer_store_dwordx2 {v(V_NON,2)}, v{fa}, s[{SRD_F}:{SRD_F+3}], 0 offen sc1", "s_mov_b64 exec, -1"]
def wo_rows(n):
    o = []
    for _ in range(n): o += wo_dma()
    return o
EARLY = '--noearly' not in sys.argv
XT = opt('xt', 5)
LST = opt("lst", 1)
def tailpf():
    if not opt("codepf2", 2): return []
    return [f"s_cmp_eq_u32 s{S_CNT}, {opt('codepf2', 2)}", "s_cbranch_scc0 Lnopf2", "s_getpc_b64 s[26:27]", "Lpcref2:", f"s_lshl_b32 s28, s{S_W}, 13",
            "v_lshlrev_b32 v2, 7, v1", "v_add_u32 v2, s28, v2", "v_min_u32 v2, Lattn_fallback-Lattn_j-4, v2", "s_add_u32 s26, s26, Lattn_j-Lpcref2", "s_addc_u32 s27, s27, 0",
            "v_mov_b32 v3, s27", "v_add_co_u32 v2, s[28:29], s26, v2", "s_nop 1", "v_addc_co_u32 v3, s[28:29], 0, v3, s[28:29]", "global_load_dword v4, v[2:3], off", "Lnopf2:"]
def attn_chunk(a, kind):
    tog = f"v_xor_b32 v{AADDR}, 32768, v{AADDR}\nv_xor_b32 v{AADK}, 32768, v{AADK}"
    for t in range(4):
        ea, eb = {}, {}
        if kind in ('c0', 'c1'): stamp(a, None, "c")
        if t in (1, 3): jitter(a)
        if kind == 'c1' and t == opt("polt", 1) + 1: pass
        if kind == 'c1' and t == opt("polt", 1):
            for x in old_only(chunk_scalars() + line_cur() + ["s_branch Lspin_c1a", "Lspin_c1a_r:", f"s_mov_b32 m0, s{S_M0}", "s_nop 0"] + kv_dma(0)
                              + [f"s_add_u32 m0, s{S_M0}, 16384", "s_nop 0"] + kv_dma(1)): a(x)
            stamp(a, None, "c")
        if (kind == 'c14' and t == XT) or (kind == 'c15' and t == XT - 4):
            for x in if_vcc(["s_barrier"], False): a(x)
        if kind == 'c0':
            for k, e in enumerate((ea, eb)):
                j = 2*t + k - LST
                if 0 <= j < 4: e['P1'] = if_vcc([kv_store(2*j), kv_store(2*j + 1)], False)
        if kind == 'c1' and t == 0:
            eb['P2'] = [f"s_and_b32 s26, s{S_W}, 6", "s_cmp_eq_u32 s26, 2", "s_cbranch_scc0 Lpub2"] + publish() + ["Lpub2:"]
        if kind == 'c14' and t == 0:
            ea['Q2'] = old_only([f"s_lshl_b32 s28, s{S_W}, 1", f"s_add_u32 s28, s28, s{S_HP}", "v_lshrrev_b32 v2, 5, v1", "v_add_u32 v2, s28, v2", "v_and_b32 v2, 7, v2",
                                 f"s_and_b32 s28, s{S_HP}, 8", "s_xor_b32 s28, s28, 8", "v_or_b32 v2, s28, v2", "v_lshlrev_b32 v2, 17, v2", "v_and_b32 v3, 31, v1",
                                 "v_lshl_add_u32 v2, v3, 11, v2", "s_mov_b32 s28, 65536", f"buffer_load_dword v3, v2, s[{SRD_WO}:{SRD_WO+3}], s28 offen"])
        if kind == 'c15' and EARLY:
            if t == 2: ea['Q2'] = if_vcc([f"s_mov_b32 s{S_FSO}, s{S_FL0}", flag_load(SRD_F2)], False)
            if t == 3: ea['Q2'] = if_vcc(["s_waitcnt vmcnt(0)", flag_cmp(), "s_nop 0", f"s_cmp_lg_u32 s{S_MASK}, -1", "s_cbranch_scc1 Lnoearly", f"s_mov_b32 s{S_EARLY}, 1"]
                                         + [x for p in range(min(DEPTH, 4)) for x in oload_ins(p)] + ["Lnoearly:"], False)
        if t == 3:
            if kind == 'c0':
                stamp(a); a("s_waitcnt lgkmcnt(0)\ns_barrier"); stamp(a)
                for x in [f"s_cmp_lt_u32 s{S_W}, 4", "s_cselect_b64 vcc, -1, 0", f"s_and_b32 s26, s{S_W}, 6", "s_cmp_eq_u32 s26, 2", "s_cbranch_scc1 Lpub1"] + publish() + ["Lpub1:"]: a(x)
                stamp(a)
                ea['Q1'] = [tog]
            elif kind == 'c14':
                ea['Q1'] = [f"v_add_u32 v{AADDR}, 131072, v{AADDR}\nv_add_u32 v{AADK}, 131072, v{AADK}"]
            elif kind != 'c15':
                stamp(a); a("s_waitcnt vmcnt(0) lgkmcnt(0)"); stamp(a)
                if not ("--xnobar" in sys.argv and kind == 'loop'): a("s_barrier")
                stamp(a)
                if kind in ('c1', 'loop'):
                    nm = "Lspin_" + kind
                    ea = {'Q1': [tog],
                          'Q2': old_only([flag_cmp(), f"s_xor_b32 s{S_M0}, s{S_M0}, 32768"] + chunk_scalars() + [f"s_mov_b32 m0, s{S_M0}"] + mask_test()
                                         + [f"s_cbranch_scc1 {nm}", f"{nm}_r:"] + kv_dma(0)),
                          'P2': old_only([f"s_add_u32 m0, s{S_M0}, 16384", "s_nop 0"] + kv_dma(1) + line_next() + [flag_load()])}
                    if kind == 'loop':
                        eb = {'Q2': old_only([f"s_cmp_gt_u32 s{S_CNT}, 3", "s_cbranch_scc0 Lnowo"] + wo_rows(2) + ["Lnowo:"] + tailpf() + [f"s_cmp_eq_u32 s{S_CNT}, 1", "s_cbranch_scc0 Lno15"]
                                             + chunk_scalars() + [f"s_add_u32 m0, s{S_M0}, 131072"] + mask_test() + ["s_cbranch_scc1 Lspin_15", "Lspin_15_r:"] + kv_dma(0)
                                             + [f"s_add_u32 m0, s{S_M0}, {131072 + 16384}", "s_nop 0"] + kv_dma(1) + ["Lno15:"]),
                              'P2': [f"s_sub_u32 s{S_CNT}, s{S_CNT}, 1", f"s_cmp_lg_u32 s{S_CNT}, 0"]}
                elif kind == 'c13':
                    ea = {'Q1': [tog], 'Q2': old_only([f"s_lshl_b32 s{S_WOM}, s{S_W}, 10", f"s_add_u32 s{S_WOM}, s{S_WOM}, 32768"] + wo_rows(3)), 'P2': old_only(wo_rows(3))}
                    eb = {'Q2': old_only(wo_rows(2))}
        if "--xnoex" in sys.argv and kind == 'loop' and t == 3: ea = {'Q1': [tog]}; eb = {'P2': eb['P2']}
        attn_half(a, t, 'a', ea, skipz=(kind == 'c0' and t == 0)); attn_half(a, t, 'b', eb)

def attention(a):
    attn_chunk(a, 'c0')
    attn_chunk(a, 'c1')
    a(f"s_mov_b32 s{S_CNT}, 11")
    stamp(a, None, "l")
    SPLIT = opt("split", 1)
    def tail():
        stamp(a, None, "l")
        attn_chunk(a, 'c13')
        attn_chunk(a, 'c14')
        attn_chunk(a, 'c15')
    if SPLIT:
        a("s_cbranch_vccz Lattn_y")
        for role in (True, False):
            ROLE[0] = role
            nm = "Lattn_loop" if role else "Lattn_loop_y"
            if not role: a.label("Lattn_y")
            a(".p2align 6")
            a.label(nm)
            attn_chunk(a, 'loop')
            a(f"s_cbranch_scc1 {nm}")
            if SPLIT == 2: tail()
            if role: a("s_branch Lattn_j")
        ROLE[0] = None
        a.label("Lattn_j")
        if SPLIT == 1: tail()
    else:
        a(".p2align 6")
        a.label("Lattn_loop")
        attn_chunk(a, 'loop')
        a("s_cbranch_scc1 Lattn_loop")
        tail()
    if XT < 0:
        for x in if_vcc(["s_barrier"], False): a(x)
    a("s_nop 1")
    stamp(a, 4)
    a(pv(AS[3],0,1,'b')); a(sm(AS[3],0,'b')); a(pv(AS[3],1,1,'b')); a(sm(AS[3],1,'b'))
    a(f"""
    s_mov_b32 s26, 0x5d800000
    s_mov_b32 s27, 65536
    s_nop 5
    """)
    for x in lbroadcast(): a(x)
    a(f"""
    v_cmp_nge_f32 vcc, s26, v{AL['a']}
    v_cmp_nge_f32 s[28:29], s26, v{AL['b']}
    s_nop 0
    s_or_b64 vcc, vcc, s[28:29]
    s_cbranch_vccnz Lattn_fallback
    Lattn_fin:
    """)
    stamp(a, None, "e")
    a(f"""
    v_rcp_f32 v2, v{AL['a']}
    v_rcp_f32 v4, v{AL['b']}
    """)
    for qi, q in enumerate('ab'):
        for u in range(2):
            if PK:
                for i in range(4): a(f"v_pk_mul_f32 {v(AO[q]+8*u+2*i,2)}, {v(AO[q]+8*u+2*i,2)}, {v(2+2*qi,2)} op_sel_hi:[1,0]")
            else:
                for i in range(8): a(f"v_mul_f32 v{AO[q]+8*u+i}, v{2+2*qi}, v{AO[q]+8*u+i}")
            d = AS[0] + 4*(2*qi+u)
            for x in cvt4([AO[q]+8*u+i for i in range(8)], d): a(x)
            a(f"buffer_store_dwordx4 {v(d,4)}, v6, s[{SRD_O}:{SRD_O+3}], {'0' if qi==0 else 's27'} offen offset:{512*u}{SC1}")

def fallback(a):
    a.label("Lattn_fallback")
    a(f"""
    s_waitcnt vmcnt(0) lgkmcnt(0)
    s_lshl_b32 s26, s{S_B}, 5
    s_lshl_b32 s28, s{S_HP}, 1
    s_add_u32 s26, s26, s28
    s_lshr_b32 s28, s{S_W}, 2
    s_add_u32 s26, s26, s28
    s_lshl_b32 s30, s26, 18
    """)
    make_srd(a, SRD_KV, 48, 49, 30, 262144)
    a(f"""
    s_mov_b32 s{S_SPIN}, {SPIN_LIMIT}
    v_lshrrev_b32 v2, 3, v1
    v_lshl_add_u32 v2, v2, 7, v{AFA}
    Lfb_poll:
    buffer_load_dwordx2 {v(AFL,2)}, v2, s[{SRD_F}:{SRD_F+3}], 0 offen sc1
    s_waitcnt vmcnt(0)
    v_cmp_eq_u64 vcc, s[{S_NONCE}:{S_NONCE+1}], {v(AFL,2)}
    s_sub_u32 s{S_SPIN}, s{S_SPIN}, 1
    s_cbranch_scc1 Lfb_go
    s_cmp_eq_u64 vcc, -1
    s_cbranch_scc0 Lfb_poll
    Lfb_go:
    """)
    for r in list(range(AO['a'], AO['a']+32)) + list(range(AL['a'], AL['a']+8)): a(f"v_mov_b32 v{r}, 0")
    Mr = {'a': AC['a'], 'b': AC['b']}
    a(f"v_mov_b32 v{Mr['a']}, 0xff800000\nv_mov_b32 v{Mr['b']}, 0xff800000\ns_mov_b32 s26, 0")
    a.label("Lfb_loop")
    for j in range(2): a(f"buffer_load_dwordx4 {v(AK[0][j],4)}, v{AVK}, s[{SRD_KV}:{SRD_KV+3}], s26 offen offset:{1024*j} sc1")
    for j in range(2): a(f"buffer_load_dwordx4 {v(AV[0][j],4)}, v{AVO}, s[{SRD_KV}:{SRD_KV+3}], s26 offen offset:{2048+1024*j} sc1")
    a("s_waitcnt vmcnt(0)")
    for q in 'ab':
        S = AS[0]
        a(qk1(S,0,q,"0")); a(qk2(S,0,q)); a("s_nop 15")
        rowmax16(a, S, 2, 3)
        a(f"v_max_f32 v2, v2, v{Mr[q]}\nv_sub_f32 v3, v{Mr[q]}, v2\nv_exp_f32 v3, v3\nv_mov_b32 v{Mr[q]}, v2")
        for i in range(16): a(f"v_sub_f32 v{S+i}, v{S+i}, v2")
        for i in range(16): a(f"v_exp_f32 v{S+i}, v{S+i}")
        for i in range(16): a(f"v_mul_f32 v{AO[q]+i}, v3, v{AO[q]+i}")
        for i in range(4): a(f"v_mul_f32 v{AL[q]+i}, v3, v{AL[q]+i}")
        a("s_nop 1")
        a(pv(S,0,0,q)); a(sm(S,0,q)); a(pv(S,1,0,q)); a(sm(S,1,q))
        a("s_nop 15")
    a("s_add_u32 s26, s26, 4096\ns_cmp_lt_u32 s26, 262144\ns_cbranch_scc1 Lfb_loop")
    for x in lbroadcast(): a(x)
    a("s_branch Lattn_fin")

PACC = 40
PWF = [104, 120]
POF = 168
POLLS = []
def proj_body(a, old):
    vm = VmTrack(); fpos = {}
    R = "o" if old else "y"
    def wreads(p):
        off = (p if p < 16 else p - 16 + 8 if p < 24 else (p - 24) % 4) * 4096
        return [f"ds_read_b64_tr_b16 {v(PWF[p&1]+4*ct+2*h,2)}, v{P_WR[ct]} offset:{off + h*1024}" for ct in range(4) for h in range(2)]
    def check(g, hi=False):
        nm = f"Lpoll{R}{g}"; POLLS.append((nm, hi))
        return [f"s_cmp_lg_u32 s{S_MASK}, -1", f"s_cbranch_scc1 {nm}", f"{nm}_r:"]
    def setline(g): return f"s_xor_b32 s{S_FSO}, s{S_FL0}, {(g & 1) * 128 + (g >> 1) * 256}"
    def force(g, hi=False): return [f"s_mov_b32 s{S_MASK}, 0", setline(g)] + check(g, hi)
    def oload(p):
        vm.issue(("O", p)); vm.issue(("O", p))
        return oload_ins(p)
    PX, YX3 = opt("px", 10), opt("yx3", 5)
    if old:
        w3 = [f"s_lshl_b32 s{S_WOM}, s{S_W}, 10"] + wo_rows(4) + [f"s_add_u32 s{S_WOM}, s{S_WOM}, {131072 - 16384}"] + wo_rows(4)
        XL = opt("xl", 1)
        if XT >= 0 and not XL: a("s_waitcnt vmcnt(4)\ns_barrier")
        stamp(a, None, "e")
        for x in publish(V_FA2): a(x)
        stamp(a, 5)
        if XT >= 0 and XL: a("s_barrier")
        for x in (w3 + ["s_waitcnt vmcnt(8)"] if XT >= 0 else ["s_waitcnt vmcnt(0)"]): a(x)
        OPRE = opt("opre", 6)
        if opt("olow", 1): a("s_setprio 0")
        stamp(a, None, "o")
        for p in range(OPRE):
            if p % 8 == 0:
                for x in force(p // 8, not opt("olow", 1)): a(x)
                stamp(a, None, "o")
            for x in oload(p): a(x)
        a("s_setprio 0")
        if XT < 0:
            for x in ["s_barrier"] + w3: a(x)
            for _ in range(8): vm.issue("wo")
        nxt = OPRE
    else:
        stamp(a, None, "e")
        YPUB = opt("ypub", 2)
        if YPUB < 0:
            for x in publish(V_FA2): a(x)
        a(f"s_setprio {opt('yprio', 1)}")
        stamp(a, 5)
        a(f"s_cmp_eq_u32 s{S_EARLY}, 1\ns_cbranch_scc1 Learly")
        for x in force(0): a(x)
        for p in range(4):
            for x in oload(p): a(x)
        a.label("Learly")
        for _ in range(1 + (opt("opre", 6) + 7) // 8): stamp(a, None, "o")
        spos = len(vm.ops)
        for p in range(4, DEPTH):
            for x in oload(p): a(x)
        nxt = DEPTH
    for x in wreads(0): a(x)
    stamp(a, 6)
    for p in range(32):
        if p + 1 == 16:
            for ct in range(4): a(f"v_add_u32 v{P_WR[ct]}, {-65536 & 0xffffffff}, v{P_WR[ct]}")
        if p + 1 == 28:
            for ct in range(4): a(f"v_add_u32 v{P_WR[ct]}, 131072, v{P_WR[ct]}")
        wc = vm.wait_count({('O', p)})
        if not old and YPUB >= 0 and p < 4:
            a(f"s_cmp_eq_u32 s{S_EARLY}, 1\ns_cbranch_scc1 Lw{p}a\ns_waitcnt vmcnt({wc})\nLw{p}a:\ns_waitcnt vmcnt({wc + 4}) lgkmcnt(0)")
        else:
            a(f"s_waitcnt vmcnt({wc}) lgkmcnt(0)")
        if not old and p == YPUB:
            for x in [f"s_waitcnt vmcnt({len(vm.ops) - spos})"] + publish(V_FA2)[1:]: a(x)
        gaps = [[] for _ in range(8)]
        for i, r in enumerate(wreads(p + 1) if p + 1 < 32 else []): gaps[i // 2].append(r)
        X3S = opt("x3s", 0)
        if (not X3S and not old and p == YX3) or (X3S and p == (X3S if old else opt("x3y", X3S))): gaps[0].append("s_barrier")
        todo = []
        if old:
            todo = list(range(nxt, min(32 if p >= PX or opt("x3s", 0) else 16, nxt + 2, 16 + p, p + 1 + opt("odold", 6))))
        elif nxt < 32: todo = [nxt]
        gi = 4
        for n in todo:
            if n % 8 == 0:
                g = n // 8
                if old and g == 2 and not X3S: gaps[gi] += ["s_barrier"] + force(g)
                elif g in fpos: gaps[gi] += [f"s_waitcnt vmcnt({len(vm.ops) - fpos[g]})", flag_cmp(), "s_nop 0"] + check(g)
                else: gaps[gi] += force(g)
            o = oload(n)
            gaps[gi].append(o[0]); gaps[gi + 1].append(o[1]); gi += 2
            if (n + 3) % 8 == 0 and n + 3 < 32:
                g = (n + 3) // 8
                gaps[gi - 1] += [setline(g), flag_load()]
                fpos[g] = len(vm.ops)
            nxt = n + 1
        n = 0
        for tt in range(2):
            for ct in (range(4) if tt == 0 else range(3, -1, -1)):
                d = PACC + (tt*4+ct)*4
                a(f"v_mfma_f32_16x16x32_bf16 {v(d,4)}, {v(PWF[p&1]+4*ct,4)}, {v(oslot(p, tt),4)}, {'0' if p==0 else v(d,4)}")
                for x in gaps[n]: a(x)
                n += 1
        if p % 4 == 3: stamp(a, None, "p")
        if p in (1, 9, 20): jitter(a)
    assert nxt == 32

def proj(a):
    a(f"s_mov_b64 s[{SRD_F}:{SRD_F+1}], s[{SRD_F2}:{SRD_F2+1}]\ns_mov_b32 s{SRD_F+2}, 2048")
    a(f"s_cmp_lt_u32 s{S_W}, 4\ns_cselect_b64 vcc, -1, 0\ns_cbranch_scc0 Lproj_y")
    proj_body(a, True)
    a("s_branch Lproj_e\nLproj_y:")
    proj_body(a, False)
    a.label("Lproj_e")
    a(f"""
    v_lshrrev_b32 v4, 4, v1
    v_and_b32 v2, 15, v1
    v_lshlrev_b32 v2, 12, v2
    v_and_b32 v3, 1, v4
    v_lshl_add_u32 v2, v3, 5, v2
    v_lshrrev_b32 v3, 1, v4
    v_lshl_add_u32 v2, v3, 4, v2
    s_mov_b32 s26, 65536
    s_nop 3
    """)
    for tt in range(2):
        for pr in range(2):
            d = POF + (tt*2+pr)*4
            for x in range(2):
                s0 = PACC + (tt*4+2*pr+x)*4
                a(f"v_cvt_pk_bf16_f32 v{d+2*x}, v{s0}, v{s0+1}\nv_cvt_pk_bf16_f32 v{d+2*x+1}, v{s0+2}, v{s0+3}")
            a(f"s_nop 1\nv_permlane16_swap_b32 v{d}, v{d+2}\nv_permlane16_swap_b32 v{d+1}, v{d+3}")
            a(f"buffer_store_dwordx4 {v(d,4)}, v2, s[{SRD_OUT}:{SRD_OUT+3}], {'0' if tt==0 else 's26'} offen offset:{64*pr}{' ' + opt('ofl', 'nt').replace('_', ' ') if opt('ofl', 'nt') else ''}")

def build():
    a = Asm()
    decode(a, "Lend")
    gemm1_setup_dma(a)
    jitter(a)
    stamp(a, 0); dbgstamp(a, 1)
    gemm1_main(a, late_setup())
    stamp(a, 2); dbgstamp(a, 3)
    transition_ab(a)
    stamp(a, 3); jitter(a)
    attention(a)
    jitter(a)
    dbgstamp(a, 4)
    proj(a)
    stamp(a, 7); dbgstamp(a, 5); dbgflush(a)
    stamp_flush(a, 8)
    a.label("Lend")
    a("s_endpgm")
    for nm in ("Lspin_c1a", "Lspin_c1", "Lspin_loop", "Lspin_15"): spin_flags(a, nm)
    a(f"""
    Lnonce_spin:
    s_mov_b32 s{S_SPIN}, {SPIN_LIMIT}
    Lnonce_l:
    buffer_load_dwordx2 {v(V_NON,2)}, v{V_PD+1}, s[92:95], 0 offen sc1
    s_waitcnt vmcnt(0)
    v_readfirstlane_b32 s{S_NONCE}, v{V_NON}
    v_readfirstlane_b32 s{S_NONCE+1}, v{V_NON+1}
    s_sub_u32 s{S_SPIN}, s{S_SPIN}, 1
    s_cbranch_scc1 Lnonce_ok
    s_cmp_eq_u32 s{S_NONCE}, 0
    s_cbranch_scc1 Lnonce_l
    s_branch Lnonce_ok
    """)
    for nm, hi in POLLS: spin(a, nm, [f"s_cmp_lg_u32 s{S_MASK}, -1"], lowprio=hi, SLEEP=opt("sleep2", 0) if nm[-1] in "13" else SLEEP)
    fallback(a)
    a.label("Lcode_end")
    return a.text()

def main(out):
    P = "concat_heads__mha_block__softmax_full_mha__prompt_kernel"
    txt = f"""; Kernarg layout (72 bytes, pointers only, base s[0:1]):
;   0 A_x  8 A_wqkv  16 A_wo  24 B_x  32 B_wqkv  40 B_wo  48 d_out  56 d_debug  64 d_ws
; One fused kernel, 256 workgroups (one per CU) x 8 waves; workgroup = (block b, 256 tokens tm, head pair hp).
;   phase A  QKV projection 256x192x1024 (LDS-DMA ring, 16x16x32 MFMA); Q stays in registers, K/V go to LDS and to d_ws
;   phase B  softmax(QK^T)V for 2 heads x 256 queries. exp2 results feed v_smfmac directly (high halves = bf16).
;            Shift = max of the first key tile (carried in the MFMA C operand); a run-time check of the row sums
;            falls back to an exact running-max loop when that shift could overflow.
;   phase C  output projection 256x64x1024, O fragments from d_ws
; Hand-offs between workgroups: write-through stores, then a per-wave flag holding a per-launch nonce (kept in d_debug).
; @launch grid=(256,1,1) block=(512,1,1) lds=163840
.amdgcn_target "amdgcn-amd-amdhsa--gfx950"
.text
""" + kernel_header(P) + build() + '.section .rodata,"a"\n' + kernel_desc(P, 256, sgpr=102 if DBG or JIT else 96)
    open(out, "w").write(txt)

if __name__ == "__main__":
    args = [x for x in sys.argv[1:] if not x.startswith("--")]
    main(args[0] if args else "concat_heads__mha_block__softmax_full_mha__prompt.s")
```
